```python
import torch

def _softmax(x, axis=-1):
    return torch.softmax(x, dim=axis)
def _gelu(x):
    return torch.nn.functional.gelu(x, approximate="tanh")
def _silu(x):
    return torch.nn.functional.silu(x)
def _sigmoid(x):
    return torch.sigmoid(x)
def _layernorm(x, axis=-1, eps=1e-5):
    m = x.mean(dim=axis, keepdim=True)
    v = x.var(dim=axis, keepdim=True, unbiased=False)
    return (x - m) / torch.sqrt(v + eps)
def _scatter_add(tgt, idx, src, axis=0):
    return tgt.clone().index_add_(axis, idx, src)
def _segment_sum(src, seg, n):
    out = torch.zeros((n,) + src.shape[1:], dtype=src.dtype)
    return out.index_add_(0, seg, src)
def _pad(x, pw):
    flat = tuple(v for pair in reversed(pw) for v in pair)
    return torch.nn.functional.pad(x, flat)

kernel_name = 'parallel_sum__sliding_block_cached__geglu_ffn__decode'

def setup_inputs():

    _w = (lambda a: (lambda t: t.to(torch.bfloat16) if t.is_floating_point() else t)(torch.as_tensor(a)))
    def _A_setup():
        B, Sq, D = 2, 1, 576
        Hq, Hkv, Sk, Dh = 32, 16, 4096, 128
        assert Hq % Hkv == 0, (Hq, Hkv)
        return {
            "x": _w((lambda *s: torch.randn(*s, dtype=torch.bfloat16) * 0.05)(B, Sq, D)),
            "k_cache": _w((lambda *s: torch.randn(*s, dtype=torch.bfloat16) * 3.2)(B, Hkv, Sk, Dh)),
            "v_cache": _w((lambda *s: torch.randn(*s, dtype=torch.bfloat16) * 1.6)(B, Hkv, Sk, Dh)),
            "wq": _w((lambda *s: torch.randn(*s, dtype=torch.bfloat16) * 3.2)(D, Hq * Dh) * (D ** -0.5)),
            "wo": _w((lambda *s: torch.randn(*s, dtype=torch.bfloat16) * 1.6)(Hq * Dh, D) * ((Hq * Dh) ** -0.5)),
        }
    _A_in = _A_setup()

    def _B_setup():
        B, S, D, F = 2, 1, 576, 4608
        return {
            "x": _w((lambda *s: torch.randn(*s, dtype=torch.bfloat16) * 0.05)(B, S, D)),
            "w_gate": _w((lambda *s: torch.randn(*s, dtype=torch.bfloat16) * 0.05)(D, F)),
            "w_up": _w((lambda *s: torch.randn(*s, dtype=torch.bfloat16) * 0.05)(D, F)),
            "w_down": _w((lambda *s: torch.randn(*s, dtype=torch.bfloat16) * 0.05)(F, D)),
        }
    _B_in = _B_setup()

    return {
        "A_x": _A_in["x"],
        "A_k_cache": _A_in["k_cache"],
        "A_v_cache": _A_in["v_cache"],
        "A_wq": _A_in["wq"],
        "A_wo": _A_in["wo"],
        "B_x": _B_in["x"],
        "B_w_gate": _B_in["w_gate"],
        "B_w_up": _B_in["w_up"],
        "B_w_down": _B_in["w_down"],
    }

def reference(A_x, A_k_cache, A_v_cache, A_wq, A_wo, B_x, B_w_gate, B_w_up, B_w_down):
    def _A_ref(x, k_cache, v_cache, wq, wo):
        B, Sq, D = x.shape
        Hq, Dh = 32, 128
        Hkv, Sk = k_cache.shape[1], k_cache.shape[2]
        W = min(4096, max(256, Sk // 4))
        rep = Hq // Hkv
        q = (lambda x, *d: x.permute(*d))((x @ wq).reshape(B, Sq, Hq, Dh), 0, 2, 1, 3)
        k = (lambda x, n, axis: torch.repeat_interleave(x, n, dim=axis))(k_cache[:, :, Sk - W:, :], rep, axis=1)
        v = (lambda x, n, axis: torch.repeat_interleave(x, n, dim=axis))(v_cache[:, :, Sk - W:, :], rep, axis=1)
        scores = torch.einsum("bhqd,bhkd->bhqk", q, k) * (Dh ** -0.5)
        p = _softmax(scores, axis=-1)
        o = torch.einsum("bhqk,bhkd->bhqd", p, v)
        return (lambda x, *d: x.permute(*d))(o, 0, 2, 1, 3).reshape(B, Sq, Hq * Dh) @ wo

    def _B_ref(x, w_gate, w_up, w_down):
        return (_gelu(x @ w_gate) * (x @ w_up)) @ w_down

    x = A_x
    xn = _layernorm(x, axis=-1)
    return x + _A_ref(xn, A_k_cache, A_v_cache, A_wq, A_wo) + _B_ref(xn, B_w_gate, B_w_up, B_w_down)
```

```python
import sys, argparse

NAME = "parallel_sum__sliding_block_cached__geglu_ffn__decode_kernel"

class Asm:
    def __init__(self):
        self.lines = []
        self.n = 0
    def __call__(self, s):
        for ln in s.strip("\n").split("\n"):
            ln = ln.strip()
            if not ln: continue
            if ln.endswith(":"): self.lines.append(ln)
            else: self.lines.append("    " + ln)
    def lab(self, p="L"):
        self.n += 1
        return "%s_%d" % (p, self.n)
    def text(self): return "\n".join(self.lines) + "\n"

F_PROG, F_TAG, F_QRDY, F_ACNT, F_VRDY, F_C1, F_C2 = 0, 8, 16, 20, 24, 28, 32
XN, XN_P = 256, 1152
QV = 2560
VEC2, VEC2_P = 3072, 1280
ML = 5632
OPART = 5888
RA = 10240
RK = RA + 72 * 1024
KP = 1088
RV = RK + 32 * KP
VP = 1152
LDS_TOTAL = RV + 32 * VP
W_EPOCH = 0
W_S1 = 4096
W_O = W_S1 + 208 * 512
W_F = W_O + 256 * 1024
W_END = W_F + 144 * 1024
W_DIAG = 1 << 20

def gen(o):
    a = Asm()
    D = o.depth
    DQ = o.depthq
    diag = o.diag
    sG, sI, sWV, sTY = "s28", "s29", "s30", "s31"
    sU = "s32"
    sTEAM, sCB, sNS2 = "s33", "s34", "s35"
    sBS, sBK, sB2 = "s36", "s37", "s38"
    sT0, sT1, sT2, sT3 = "s39", "s40", "s41", "s42"
    sSEEN, sTMO, sTAG = "s43", "s44", "s45"
    R0, R1, R2, R3 = 48, 52, 56, 60
    RW = 64
    ST = 72
    def srd(r): return "s[%d:%d]" % (r, r + 3)
    def mk_srd(r, lo, size):
        a("s_mov_b32 s%d, s%d\ns_mov_b32 s%d, s%d\ns_mov_b32 s%d, 0x%x\ns_mov_b32 s%d, 0x00020000" % (r, lo, r + 1, lo + 1, r + 2, size, r + 3))
    def stamp(k):
        if diag: a("s_memrealtime s[%d:%d]" % (ST + 2 * k, ST + 2 * k + 1))
    def stamps_out():
        if not diag: return
        a("s_waitcnt lgkmcnt(0)")
        a("s_mov_b64 exec, -1")
        a("s_lshl_b32 %s, s2, 4\ns_add_u32 %s, %s, %s\ns_lshl_b32 %s, %s, 6\ns_add_u32 %s, %s, 0x%x" % (sT0, sT0, sT0, sWV, sT0, sT0, sT0, sT0, W_DIAG))
        a("v_mov_b32 v1, %s" % sT0)
        for k in range(4):
            for j in range(4): a("v_mov_b32 v%d, s%d" % (4 + j, ST + 4 * k + j))
            a("global_store_dwordx4 v1, v[4:7], s[26:27] offset:%d" % (16 * k))
            a("s_nop 1")
    def lds_wait_ge(off, thr, cache=None, vt="v2", vz="v3"):
        L, E = a.lab("LW"), a.lab("LE")
        c = cache or sT3
        if cache:
            a("s_cmp_ge_i32 %s, %s\ns_cbranch_scc1 %s" % (c, thr, E))
        a("s_mov_b32 %s, 0" % sTMO)
        a("%s:" % L)
        a("ds_read_b32 %s, %s offset:%d" % (vt, vz, off))
        a("s_add_u32 %s, %s, 1" % (sTMO, sTMO))
        a("s_cmp_gt_u32 %s, 0x80000\ns_cbranch_scc1 %s" % (sTMO, E))
        a("s_waitcnt lgkmcnt(0)")
        a("v_readfirstlane_b32 %s, %s" % (c, vt))
        a("s_cmp_lt_i32 %s, %s\ns_cbranch_scc1 %s" % (c, thr, L))
        a("%s:" % E)
    def get_tag():
        L, E = a.lab("LT"), a.lab("LE")
        a("s_mov_b32 %s, 0" % sTMO)
        a("%s:" % L)
        a("ds_read_b64 v[4:5], v3 offset:%d" % F_TAG)
        a("s_add_u32 %s, %s, 1" % (sTMO, sTMO))
        a("s_waitcnt lgkmcnt(0)")
        a("v_readfirstlane_b32 %s, v4\nv_readfirstlane_b32 %s, v5" % (sTAG, sT3))
        a("s_cmp_gt_u32 %s, 0x80000\ns_cbranch_scc1 %s" % (sTMO, E))
        a("s_cmp_eq_u32 %s, 0\ns_cbranch_scc1 %s" % (sT3, L))
        a("%s:" % E)

    a("%s:" % NAME)
    stamp(0)
    a("""
    s_load_dwordx16 s[4:19], s[0:1], 0
    s_load_dwordx8 s[20:27], s[0:1], 64
    s_cmp_ge_u32 s2, 256
    s_cbranch_scc1 L_end
    v_lshrrev_b32 v1, 6, v0
    v_and_b32 v0, 63, v0
    v_mov_b32 v3, 0
    """)
    a("v_readfirstlane_b32 %s, v1" % sWV)
    a("s_and_b32 %s, s2, 7\ns_lshl_b32 %s, %s, 1\ns_lshr_b32 %s, s2, 7\ns_add_u32 %s, %s, %s" % (sG, sG, sG, sT0, sG, sG, sT0))
    a("s_bfe_u32 %s, s2, 0x40003" % sI)
    a("s_mov_b32 %s, 0" % sTY)
    a("s_cmp_ge_u32 %s, 4\ns_addc_u32 %s, %s, 0" % (sI, sTY, sTY))
    a("s_cmp_ge_u32 %s, 13\ns_addc_u32 %s, %s, 0" % (sI, sTY, sTY))
    a("s_lshl_b32 %s, %s, 2\ns_add_u32 %s, %s, %s" % (sT0, sG, sT0, sT0, sI))
    if o.gumap == 0:
        a("s_mul_i32 %s, %s, 9\ns_add_u32 %s, %s, %s\ns_add_u32 %s, %s, 60" % (sT1, sG, sT1, sT1, sI, sT1, sT1))
    else:
        a("s_lshl_b32 %s, %s, 4\ns_add_u32 %s, %s, %s" % (sT1, sI, sT1, sT1, sG))
    a("s_cmp_eq_u32 %s, 0\ns_cselect_b32 %s, %s, %s" % (sTY, sU, sT0, sT1))
    a("s_mul_i32 %s, %s, 7\ns_add_u32 %s, %s, %s\ns_sub_u32 %s, %s, 9" % (sT0, sG, sT0, sT0, sI, sT0, sT0))
    a("s_mul_i32 %s, %s, 7282\ns_lshr_b32 %s, %s, 16" % (sT1, sT0, sT1, sT1))
    a("s_mul_i32 %s, %s, 9\ns_sub_u32 %s, %s, %s" % (sT2, sT1, sT2, sT0, sT2))
    a("s_cmp_lt_u32 %s, 12\ns_cselect_b32 %s, 48, 0" % (sT1, sNS2))
    a("s_add_u32 %s, %s, 16" % (sT1, sT1))
    a("s_cmp_lt_u32 %s, 9" % sI)
    a("s_cselect_b32 %s, %s, %s\ns_cselect_b32 %s, %s, %s\ns_cselect_b32 %s, 32, %s" % (sTEAM, sG, sT1, sCB, sI, sT2, sNS2, sNS2))
    if o.gfirst:
        a("s_cmp_le_u32 %s, 1" % sTY)
    else:
        a("s_cmp_eq_u32 %s, 0" % sTY)
    a("s_cselect_b32 %s, 0, 64\ns_cselect_b32 %s, 72, 0" % (sBS, sBK))
    a("s_cmp_eq_u32 %s, 2\ns_cselect_b32 %s, 64, 136" % (sTY, sB2))
    a("s_mov_b32 %s, -1000" % sSEEN)
    a("s_cmp_lg_u32 %s, 0\ns_cbranch_scc1 L_cons" % sWV)

    sOFF, sSTEP, sCNT, sISS, sDM = "s90", "s91", "s92", "s93", "s94"
    a("s_setprio 3")
    a("v_mov_b32 v4, 0\nv_mov_b32 v5, 0\nv_mov_b32 v6, 0\nv_mov_b32 v7, 0")
    a("v_lshlrev_b32 v2, 4, v0")
    a("ds_write_b128 v2, v[4:7]")
    a("""
    v_lshrrev_b32 v8, 3, v0
    v_lshrrev_b32 v9, 4, v0
    v_lshlrev_b32 v9, 1, v9
    v_and_b32 v10, 7, v0
    v_xor_b32 v10, v10, v9
    v_lshlrev_b32 v10, 4, v10
    """)
    a("s_cmp_eq_u32 %s, 0\ns_mov_b32 %s, 9216\ns_cselect_b32 %s, 8192, %s" % (sTY, sSTEP, sSTEP, sSTEP))
    a("v_mul_lo_u32 v11, v8, %s\nv_add_u32 v11, v11, v10" % sSTEP)
    a("v_mul_u32_u24 v12, 1152, v8\nv_add_u32 v12, v12, v10")
    a("""
    v_lshrrev_b32 v8, 4, v0
    v_xor_b32 v13, v0, v8
    v_lshlrev_b32 v13, 4, v13
    v_xor_b32 v14, v0, v9
    v_lshlrev_b32 v14, 4, v14
    """)
    a("s_mov_b32 %s, 0" % sISS)
    a("s_cmp_eq_u32 %s, 0\ns_cselect_b64 vcc, -1, 0\ns_cselect_b32 %s, %d, %d" % (sTY, sDM, DQ - 4, D - 4))
    a("s_waitcnt lgkmcnt(0)")
    a("s_barrier")
    a("s_cmp_ge_u32 %s, 136\ns_cselect_b32 s%d, s18, s16\ns_cselect_b32 s%d, s19, s17" % (sU, R0, R0 + 1))
    a("s_cselect_b32 %s, 136, 64" % sT0)
    a("s_cmp_eq_u32 %s, 0\ns_cselect_b32 s%d, s10, s%d\ns_cselect_b32 s%d, s11, s%d" % (sTY, R0, R0, R0 + 1, R0 + 1))
    a("s_cselect_b32 %s, 0, %s" % (sT0, sT0))
    a("s_mov_b32 s%d, 0x510000\ns_cselect_b32 s%d, 0x480000, s%d\ns_mov_b32 s%d, 0x00020000" % (R0 + 2, R0 + 2, R0 + 2, R0 + 3))
    a("s_sub_u32 %s, %s, %s\ns_lshl_b32 s95, %s, 7" % (sT0, sU, sT0, sT0))
    mk_srd(R1, 6, 0x2000000)
    mk_srd(R2, 8, 0x2000000)
    a("s_lshr_b32 %s, %s, 3\ns_lshl_b32 %s, %s, 4\ns_add_u32 %s, %s, %s\ns_lshl_b32 %s, %s, 20" % (sT0, sI, sT0, sT0, sT0, sT0, sG, sT0, sT0))
    a("s_and_b32 %s, %s, 7\ns_lshl_b32 %s, %s, 15\ns_add_u32 %s, %s, %s\ns_add_u32 s96, %s, 0xc0000" % (sT1, sI, sT1, sT1, sT0, sT0, sT1, sT0))

    def dma_loop(r, voff, pitch, step, groups_expr, check=None):
        L = a.lab("LD")
        a("%s:" % L)
        if check: check()
        for k in range(4):
            a("s_add_u32 m0, m0, %d" % pitch)
            a("s_add_u32 %s, %s, %s" % (sOFF, sOFF, step))
            a("buffer_load_dwordx4 %s, %s, %s offen nt lds" % (voff, srd(r), sOFF))
        a("s_add_u32 %s, %s, 4" % (sISS, sISS))
        a("s_sub_u32 %s, %s, %s" % (sT0, sISS, sDM))
        a("v_mov_b32 v4, %s" % sT0)
        if DQ != D:
            L2, L3 = a.lab("LQ"), a.lab("LQ")
            a("s_cbranch_vccnz %s" % L2)
            a("s_waitcnt vmcnt(%d)" % (D - 4))
            a("%s:" % L2)
            a("s_waitcnt vmcnt(%d)" % (DQ - 4))
        else:
            a("s_waitcnt vmcnt(%d)" % (D - 4))
        a("ds_write_b32 v3, v4 offset:%d" % F_PROG)
        a("s_sub_u32 %s, %s, 1\ns_cmp_lg_u32 %s, 0\ns_cbranch_scc1 %s" % (sCNT, sCNT, sCNT, L))

    a("s_cmp_eq_u32 %s, 0\ns_cbranch_scc1 L_ld_slab" % sBS)
    a("L_ld_kv:")
    a("s_mov_b32 m0, %d\ns_sub_u32 %s, s96, 1024\ns_mov_b32 %s, 8" % (RK - KP, sOFF, sCNT))
    dma_loop(R1, "v13", KP, "1024", 8)
    a("s_mov_b32 m0, %d\ns_sub_u32 %s, s96, 1024\ns_mov_b32 %s, 8" % (RV - VP, sOFF, sCNT))
    dma_loop(R2, "v14", VP, "1024", 8)
    a("s_cmp_eq_u32 %s, 2\ns_cbranch_scc1 L_ld_s2" % sTY)
    a("s_cmp_eq_u32 %s, 0\ns_cbranch_scc1 L_ld_s2" % sBS)
    a("L_ld_slab:")
    a("s_lshl_b32 s97, %s, 3" % sSTEP)
    a("s_mov_b32 m0, %d\ns_sub_u32 %s, s95, s97\ns_mov_b32 %s, 18" % (RA - 1024, sOFF, sCNT))
    dma_loop(R0, "v11", 1024, "s97", 18)
    a("s_cmp_eq_u32 %s, 0\ns_cbranch_scc1 L_ld_kv" % sBS)
    a("L_ld_s2:")
    stamp(1)
    a("s_cmp_eq_u32 %s, 0\ns_cbranch_scc1 L_ld_drain" % sNS2)
    a("s_cmp_lt_u32 %s, 16" % sTEAM)
    a("s_cselect_b32 s%d, s12, s20\ns_cselect_b32 s%d, s13, s21\ns_mov_b32 s%d, 0x510000\ns_cselect_b32 s%d, 0x480000, s%d\ns_mov_b32 s%d, 0x00020000" % (R3, R3 + 1, R3 + 2, R3 + 2, R3 + 2, R3 + 3))
    a("s_mov_b32 %s, %d\ns_cselect_b32 %s, %d, %s" % (sT0, 384 * 1152, sT0, 256 * 1152, sT0))
    a("s_and_b32 %s, %s, 15\ns_mul_i32 %s, %s, %s" % (sT1, sTEAM, sOFF, sT0, sT1))
    a("s_lshl_b32 %s, %s, 7\ns_add_u32 %s, %s, %s\ns_sub_u32 %s, %s, %d" % (sT1, sCB, sOFF, sOFF, sT1, sOFF, sOFF, 8 * 1152))
    a("s_mov_b32 m0, %d" % (RA - 1024))
    a("s_cmp_eq_u32 %s, 2\ns_cselect_b32 s97, 0, 4" % sTY)
    lds_wait_ge(F_C1, "s97")
    a("s_mov_b32 %s, 6" % sCNT)
    dma_loop(R3, "v12", 1024, str(8 * 1152), 6)
    lds_wait_ge(F_C2, "s97")
    a("s_lshr_b32 %s, %s, 2\ns_sub_u32 %s, %s, 6" % (sCNT, sNS2, sCNT, sCNT))
    dma_loop(R3, "v12", 1024, str(8 * 1152), 6)
    a("L_ld_drain:")
    stamp(2)
    for k in range(max(D, DQ) - 8, -1, -4):
        a("s_sub_u32 %s, %s, %d\nv_mov_b32 v4, %s\ns_waitcnt vmcnt(%d)\nds_write_b32 v3, v4 offset:%d" % (sT0, sISS, k, sT0, k, F_PROG))
    stamp(3)
    stamps_out()
    a("s_endpgm")

    a("L_cons:")
    a("s_barrier")
    a("s_waitcnt lgkmcnt(0)")
    mk_srd(RW, 26, W_END)
    a("v_lshrrev_b32 v8, 4, v0\nv_and_b32 v9, 15, v0")
    a("s_cmp_ge_u32 %s, 5\ns_cbranch_scc1 L_att" % sWV)

    sW = "s90"
    a("s_sub_u32 %s, %s, 1" % (sW, sWV))
    a("""
    v_lshrrev_b32 v10, 2, v0
    v_lshrrev_b32 v11, 3, v0
    v_and_b32 v11, 3, v11
    """)
    a("v_xor_b32 v11, %s, v11" % sW)
    a("""
    v_lshlrev_b32 v10, 7, v10
    v_lshl_add_u32 v10, v11, 5, v10
    v_and_b32 v11, 3, v0
    v_lshl_add_u32 v10, v11, 3, v10
    """)
    a("v_add_u32 v10, %d, v10" % RA)
    a("v_and_b32 v12, 1, v0")
    a("s_cmp_eq_u32 %s, 2\ns_cbranch_scc1 L_w_s2" % sTY)
    mk_srd(R0, 4, 2304)
    a("v_mul_u32_u24 v13, 36, v0")
    a("buffer_load_dwordx4 v[16:19], v13, %s, 0 offen" % srd(R0))
    a("buffer_load_dwordx4 v[20:23], v13, %s, 0 offen offset:16" % srd(R0))
    a("buffer_load_dword v24, v13, %s, 0 offen offset:32" % srd(R0))
    a("s_mov_b32 %s, 0xffff0000" % sT0)
    a("s_waitcnt vmcnt(0)")
    stamp(1)
    X = 28
    for k in range(9):
        a("v_lshlrev_b32 v%d, 16, v%d\nv_and_b32 v%d, %s, v%d" % (X + 2 * k, 16 + k, X + 2 * k + 1, sT0, 16 + k))
    def half_allreduce_add(v, t):
        a("s_nop 1")
        a("v_add_f32_dpp %s, %s, %s quad_perm:[1,0,3,2] row_mask:0xf bank_mask:0xf" % (v, v, v))
        a("s_nop 1")
        a("v_add_f32_dpp %s, %s, %s quad_perm:[2,3,0,1] row_mask:0xf bank_mask:0xf" % (v, v, v))
        a("s_nop 1")
        a("v_add_f32_dpp %s, %s, %s row_ror:4 row_mask:0xf bank_mask:0xf" % (v, v, v))
        a("s_nop 1")
        a("v_add_f32_dpp %s, %s, %s row_ror:8 row_mask:0xf bank_mask:0xf" % (v, v, v))
        a("v_mov_b32 %s, %s" % (t, v))
        a("s_nop 1")
        a("v_permlane16_swap_b32 %s, %s" % (v, t))
        a("v_add_f32 %s, %s, %s" % (v, v, t))
    a("v_add_f32 v14, v%d, v%d" % (X, X + 1))
    a("v_add_f32 v15, v%d, v%d" % (X + 2, X + 3))
    for k in range(4, 18, 2):
        a("v_add_f32 v14, v14, v%d\nv_add_f32 v15, v15, v%d" % (X + k, X + k + 1))
    a("v_add_f32 v14, v14, v15")
    half_allreduce_add("v14", "v15")
    a("v_mul_f32 v14, 0x3ae38e39, v14")
    a("v_mov_b32 v15, 0\nv_mov_b32 v25, 0")
    for k in range(0, 18, 2):
        a("v_sub_f32 v26, v%d, v14\nv_sub_f32 v27, v%d, v14\nv_fmac_f32 v15, v26, v26\nv_fmac_f32 v25, v27, v27" % (X + k, X + k + 1))
    a("v_add_f32 v15, v15, v25")
    half_allreduce_add("v15", "v25")
    a("v_mul_f32 v15, 0x3ae38e39, v15")
    a("v_cvt_pk_bf16_f32 v14, v14, v15")
    a("v_and_b32 v15, %s, v14\nv_lshlrev_b32 v14, 16, v14" % sT0)
    a("v_add_f32 v15, 0x3727c5ac, v15")
    a("v_cvt_pk_bf16_f32 v15, v15, v15\nv_lshlrev_b32 v15, 16, v15")
    a("v_sqrt_f32 v15, v15\ns_nop 0")
    a("v_cvt_pk_bf16_f32 v15, v15, v15\nv_lshlrev_b32 v15, 16, v15")
    a("v_rcp_f32 v15, v15")
    for k in range(9):
        a("v_sub_f32 v26, v%d, v14\nv_sub_f32 v27, v%d, v14" % (X + 2 * k, X + 2 * k + 1))
        a("v_cvt_pk_bf16_f32 v26, v26, v27")
        a("v_and_b32 v27, %s, v26\nv_lshlrev_b32 v26, 16, v26" % sT0)
        a("v_mul_f32 v26, v26, v15\nv_mul_f32 v27, v27, v15")
        a("v_cvt_pk_bf16_f32 v%d, v26, v27" % (16 + k))
    for k in range(0, 8, 2):
        a("ds_write2_b32 v13, v%d, v%d offset0:%d offset1:%d" % (16 + k, 17 + k, XN // 4 + k, XN // 4 + k + 1))
    a("ds_write_b32 v13, v24 offset:%d" % (XN + 32))
    a("v_mul_u32_u24 v11, %d, v12\nv_lshl_add_u32 v11, v8, 3, v11\nv_add_u32 v11, %d, v11" % (XN_P, XN))
    a("v_mov_b32 v13, v10")
    for r in range(4): a("v_mov_b32 v%d, 0" % (48 + r))
    a("v_mov_b32 v14, 1")
    stamp(2)
    sIT, sTH = "s91", "s92"
    a("s_mov_b32 %s, 0\ns_add_u32 %s, %s, 8" % (sIT, sTH, sBS))
    a("L_slab:")
    lds_wait_ge(F_PROG, sTH, cache=sSEEN)
    a("""
    ds_read_b64_tr_b16 v[16:17], v13
    ds_read_b64_tr_b16 v[18:19], v13 offset:2048
    ds_read2_b64 v[24:27], v11 offset0:0 offset1:4
    ds_read_b64_tr_b16 v[20:21], v13 offset:4096
    ds_read_b64_tr_b16 v[22:23], v13 offset:6144
    ds_read2_b64 v[28:31], v11 offset0:8 offset1:12
    v_add_u32 v13, 8192, v13
    v_add_u32 v11, 128, v11
    """)
    a("s_add_u32 %s, %s, 8\ns_add_u32 %s, %s, 1" % (sTH, sTH, sIT, sIT))
    a("""
    s_waitcnt lgkmcnt(3)
    v_mfma_f32_16x16x32_bf16 v[48:51], v[16:19], v[24:27], v[48:51]
    s_waitcnt lgkmcnt(0)
    v_mfma_f32_16x16x32_bf16 v[48:51], v[20:23], v[28:31], v[48:51]
    """)
    Ln = a.lab("LN")
    a("s_cmp_eq_u32 %s, 3\ns_cbranch_scc1 L_slab_c1" % sIT)
    a("s_cmp_eq_u32 %s, 6\ns_cbranch_scc1 L_slab_c2" % sIT)
    a("L_slab_n:")
    a("s_cmp_lt_u32 %s, 9\ns_cbranch_scc1 L_slab" % sIT)
    stamp(3)
    get_tag()
    a("v_lshlrev_b32 v13, 8, v9\nv_lshl_add_u32 v13, v8, 4, v13")
    a("s_lshl_b32 %s, %s, 9\ns_lshl_b32 %s, %s, 6\ns_add_u32 %s, %s, %s\ns_add_u32 %s, %s, %d" % (sT0, sU, sT1, sW, sT0, sT0, sT1, sT0, sT0, W_S1))
    a("v_cvt_pk_bf16_f32 v16, v48, v49\nv_cvt_pk_bf16_f32 v17, v50, v51")
    a("v_mov_b32 v18, %s\nv_mov_b32 v19, 0" % sTAG)
    a("v_cmp_gt_u32 vcc, 2, v9\ns_and_saveexec_b64 s[46:47], vcc")
    a("buffer_store_dwordx4 v[16:19], v13, %s, %s offen sc1" % (srd(RW), sT0))
    a("s_mov_b64 exec, s[46:47]")
    stamp(4)
    a("L_w_s2:")
    a("s_cmp_eq_u32 %s, 0\ns_cbranch_scc1 L_w_end" % sNS2)
    get_tag()
    WF = 16
    VF = 64
    AC = 112
    a("v_mul_u32_u24 v11, %d, v12\nv_lshl_add_u32 v11, v8, 3, v11\nv_add_u32 v11, %d, v11" % (VEC2_P, VEC2))
    for r in range(4): a("v_mov_b32 v%d, 0" % (AC + r))
    a("v_lshlrev_b32 v13, 10, v8\nv_lshl_add_u32 v13, v9, 4, v13")
    a("s_lshl_b32 %s, %s, 2\ns_add_u32 %s, %s, %s\ns_lshl_b32 %s, %s, 12\ns_lshl_b32 %s, %s, 5\ns_add_u32 %s, %s, %s\ns_add_u32 s93, %s, %d" % (
        sT0, sCB, sT0, sT0, sW, sT0, sT0, sT1, sTEAM, sT0, sT0, sT1, sT0, W_F))
    a("v_mov_b32 v14, 0xffffff00")
    a("s_and_b32 s94, %s, 0xff\ns_bfe_u32 s95, %s, 0x80008\ns_bfe_u32 s96, %s, 0x80010\ns_lshr_b32 s97, %s, 24" % (sTAG, sTAG, sTAG, sTAG))
    for s in range(0, 12, 2):
        if s == 8:
            a("s_cmp_eq_u32 %s, 32\ns_cbranch_scc1 L_s2_v8" % sNS2)
        a("s_add_u32 %s, %s, %d" % (sTH, sB2, 4 * s + 8))
        lds_wait_ge(F_PROG, sTH, cache=sSEEN)
        for q in range(4):
            a("ds_read_b64_tr_b16 v[%d:%d], v10 offset:%d" % (WF + 4 * s + 2 * q, WF + 4 * s + 2 * q + 1, s * 4096 + q * 2048))
    def s2_tail(n, nthr):
        stamp(5)
        lds_wait_ge(F_VRDY, str(nthr))
        stamp(6)
        for s in range(n):
            a("ds_read2_b64 v[%d:%d], v11 offset0:%d offset1:%d" % (VF + 4 * s, VF + 4 * s + 3, 8 * s, 8 * s + 4))
        for s in range(n):
            a("s_waitcnt lgkmcnt(%d)" % (n - 1 - s))
            a("v_mfma_f32_16x16x32_bf16 v[%d:%d], v[%d:%d], v[%d:%d], v[%d:%d]" % (AC, AC + 3, WF + 4 * s, WF + 4 * s + 3, VF + 4 * s, VF + 4 * s + 3, AC, AC + 3))
    s2_tail(12, 3)
    a("s_branch L_s2_pub")
    a("L_s2_v8:")
    s2_tail(8, 4)
    a("L_s2_pub:")
    a("v_cmp_gt_u32 vcc, 2, v9\ns_and_saveexec_b64 s[46:47], vcc")
    a("s_nop 6")
    for r in range(4):
        a("v_and_or_b32 v%d, v%d, v14, s%d" % (AC + r, AC + r, 94 + r))
    a("buffer_store_dwordx4 v[%d:%d], v13, %s, s93 offen sc1" % (AC, AC + 3, srd(RW)))
    a("L_w_end:")
    stamp(7)
    stamps_out()
    a("s_endpgm")
    for nm, off in (("L_slab_c1", F_C1), ("L_slab_c2", F_C2)):
        a("%s:" % nm)
        a("s_mov_b64 exec, 1\nds_add_u32 v3, v14 offset:%d\ns_mov_b64 exec, -1\ns_branch L_slab_n" % off)

    sA = "s90"
    sTH = "s92"
    a("L_att:")
    a("s_sub_u32 %s, %s, 5" % (sA, sWV))
    a("s_cmp_lg_u32 %s, 0\ns_cbranch_scc1 L_a_noep" % sA)
    a("buffer_load_dword v4, v3, %s, 0 offen sc1" % srd(RW))
    a("s_waitcnt vmcnt(0)")
    a("v_readfirstlane_b32 %s, v4" % sTAG)
    a("s_mul_i32 %s, %s, 1664525\ns_add_u32 %s, %s, 1013904223" % (sTAG, sTAG, sTAG, sTAG))
    a("v_mov_b32 v4, %s\nv_mov_b32 v5, 1" % sTAG)
    a("ds_write_b64 v3, v[4:5] offset:%d" % F_TAG)
    a("L_a_noep:")
    a("v_lshrrev_b32 v10, 2, v9\nv_mul_u32_u24 v10, %d, v10" % KP)
    a("v_and_b32 v11, 3, v0\nv_lshl_add_u32 v10, v11, 8, v10\nv_xor_b32 v11, v11, v8\nv_lshl_add_u32 v10, v11, 4, v10")
    a("s_mul_i32 %s, %s, %d\ns_add_u32 %s, %s, %d\nv_add_u32 v10, %s, v10" % (sT0, sA, 8 * KP, sT0, sT0, RK, sT0))
    a("v_mul_u32_u24 v12, %d, v8" % VP)
    a("v_lshrrev_b32 v11, 2, v9\nv_lshl_add_u32 v12, v11, 8, v12\nv_lshl_add_u32 v12, v11, 5, v12")
    a("v_and_b32 v11, 3, v0\nv_lshl_add_u32 v12, v11, 3, v12")
    a("s_mul_i32 %s, %s, %d\ns_add_u32 %s, %s, %d\nv_add_u32 v12, %s, v12" % (sT0, sA, 8 * VP, sT0, sT0, RV, sT0))
    a("v_xor_b32 v13, 32, v12\nv_xor_b32 v14, 64, v12\nv_xor_b32 v15, 0x60, v12")
    KF, VF, QF, SC, OA = 16, 48, 80, 96, 16
    a("s_lshl_b32 %s, %s, 3\ns_add_u32 %s, %s, %s\ns_add_u32 %s, %s, 8" % (sTH, sA, sTH, sTH, sBK, sTH, sTH))
    lds_wait_ge(F_PROG, sTH, cache=sSEEN)
    for t in range(2):
        for c in range(4):
            a("ds_read_b128 v[%d:%d], v10 offset:%d" % (KF + 16 * t + 4 * c, KF + 16 * t + 4 * c + 3, t * 4 * KP + c * 64))
    stamp(1)
    get_tag()
    a("s_cmp_lg_u32 %s, 0\ns_cbranch_scc1 L_a_qwait" % sA)
    a("s_add_u32 %s, %s, %d" % (sT0, sBK, o.qpoll))
    a("s_cmp_eq_u32 %s, 0\ns_cselect_b32 %s, 0, %s" % (sBS, sT0, sT0))
    lds_wait_ge(F_PROG, sT0, cache=sSEEN)
    a("v_lshlrev_b32 v11, 9, v8\nv_lshl_add_u32 v11, v9, 4, v11")
    a("s_lshl_b32 %s, %s, 11\ns_lshr_b32 %s, %s, 3\ns_lshl_b32 %s, %s, 8\ns_add_u32 %s, %s, %s\ns_add_u32 %s, %s, %d" % (sT0, sG, sT1, sI, sT1, sT1, sT0, sT0, sT1, sT0, sT0, W_S1))
    a("s_mov_b32 %s, 0" % sTMO)
    a("L_a_qpoll:")
    a("buffer_load_dwordx4 v[4:7], v11, %s, %s offen sc1" % (srd(RW), sT0))
    a("s_add_u32 %s, %s, 1\ns_cmp_gt_u32 %s, 0x8000\ns_cbranch_scc1 L_a_qok" % (sTMO, sTMO, sTMO))
    a("s_waitcnt vmcnt(0)")
    a("v_cmp_ne_u32 vcc, %s, v6\ns_cbranch_vccnz L_a_qpoll" % sTAG)
    a("L_a_qok:")
    a("s_waitcnt vmcnt(0)")
    a("v_lshlrev_b32 v11, 3, v0\nv_mov_b32 v6, 1")
    a("ds_write_b64 v11, v[4:5] offset:%d" % QV)
    a("ds_write_b32 v3, v6 offset:%d" % F_QRDY)
    a("L_a_qwait:")
    lds_wait_ge(F_QRDY, "1")
    stamp(2)
    a("v_and_b32 v11, 1, v0\nv_lshlrev_b32 v11, 8, v11\nv_lshl_add_u32 v11, v8, 4, v11")
    for c in range(4):
        a("ds_read_b128 v[%d:%d], v11 offset:%d" % (QF + 4 * c, QF + 4 * c + 3, QV + c * 64))
    for r in range(8): a("v_mov_b32 v%d, 0" % (SC + r))
    a("s_waitcnt lgkmcnt(0)")
    for c in range(4):
        for t in range(2):
            a("v_mfma_f32_16x16x32_bf16 v[%d:%d], v[%d:%d], v[%d:%d], v[%d:%d]" % (
                SC + 4 * t, SC + 4 * t + 3, KF + 16 * t + 4 * c, KF + 16 * t + 4 * c + 3, QF + 4 * c, QF + 4 * c + 3, SC + 4 * t, SC + 4 * t + 3))
    a("s_mov_b32 %s, 0xffff0000\ns_mov_b32 %s, 0x3db504f3\ns_mov_b32 %s, 0x3fb8aa3b" % (sT0, sT1, sT2))
    a("s_nop 7")
    for k in range(0, 8, 2):
        a("v_cvt_pk_bf16_f32 v4, v%d, v%d" % (SC + k, SC + k + 1))
        a("v_and_b32 v5, %s, v4\nv_lshlrev_b32 v4, 16, v4" % sT0)
        a("v_mul_f32 v4, %s, v4\nv_mul_f32 v5, %s, v5" % (sT1, sT1))
        a("v_cvt_pk_bf16_f32 v4, v4, v5")
        a("v_and_b32 v%d, %s, v4\nv_lshlrev_b32 v%d, 16, v4" % (SC + k + 1, sT0, SC + k))
    a("v_max3_f32 v4, v%d, v%d, v%d\nv_max3_f32 v5, v%d, v%d, v%d\nv_max3_f32 v4, v4, v%d, v%d\nv_max_f32 v4, v4, v5" % tuple(SC + k for k in range(8)))
    def rows_allreduce(op, v, t):
        a("v_mov_b32 %s, %s\ns_nop 1\nv_permlane16_swap_b32 %s, %s\n%s %s, %s, %s" % (t, v, v, t, op, v, v, t))
        a("v_mov_b32 %s, %s\ns_nop 1\nv_permlane32_swap_b32 %s, %s\n%s %s, %s, %s" % (t, v, v, t, op, v, v, t))
    rows_allreduce("v_max_f32", "v4", "v5")
    a("v_mul_f32 v4, %s, v4" % sT2)
    for k in range(8):
        a("v_fma_f32 v%d, v%d, %s, -v4" % (SC + k, SC + k, sT2))
    for k in range(8):
        a("v_exp_f32 v%d, v%d" % (SC + k, SC + k))
    a("s_nop 0")
    a("v_add_f32 v5, v%d, v%d\nv_add_f32 v6, v%d, v%d" % (SC, SC + 1, SC + 2, SC + 3))
    a("v_add_f32 v5, v5, v%d\nv_add_f32 v6, v6, v%d\nv_add_f32 v5, v5, v%d\nv_add_f32 v6, v6, v%d\nv_add_f32 v5, v5, v6" % (SC + 4, SC + 5, SC + 6, SC + 7))
    rows_allreduce("v_add_f32", "v5", "v6")
    PF = 104
    for k in range(4):
        a("v_cvt_pk_bf16_f32 v%d, v%d, v%d" % (PF + k, SC + 2 * k, SC + 2 * k + 1))
    for r in range(32): a("v_mov_b32 v%d, 0" % (OA + r))
    stamp(3)
    a("s_add_u32 %s, %s, 32" % (sTH, sTH))
    lds_wait_ge(F_PROG, sTH, cache=sSEEN, vt="v6")
    for db in range(8):
        dh, dl = db >> 2, db & 3
        for t in range(2):
            a("ds_read_b64_tr_b16 v[%d:%d], v%d offset:%d" % (VF + 4 * db + 2 * t, VF + 4 * db + 2 * t + 1, 12 + dl, dh * 128 + t * 4 * VP))
    for db in range(8):
        a("s_waitcnt lgkmcnt(%d)" % min(15, 14 - 2 * db))
        a("v_mfma_f32_16x16x32_bf16 v[%d:%d], v[%d:%d], v[%d:%d], v[%d:%d]" % (
            OA + 4 * db, OA + 4 * db + 3, VF + 4 * db, VF + 4 * db + 3, PF, PF + 3, OA + 4 * db, OA + 4 * db + 3))
    a("v_lshlrev_b32 v11, 9, v9\nv_lshl_add_u32 v11, v8, 4, v11")
    a("s_lshl_b32 %s, %s, 10\nv_add_u32 v11, %s, v11" % (sT3, sA, sT3))
    a("v_lshlrev_b32 v10, 3, v9\ns_lshl_b32 %s, %s, 4\nv_add_u32 v10, %s, v10" % (sT3, sA, sT3))
    a("v_cmp_gt_u32 vcc, 2, v9\ns_and_saveexec_b64 s[46:47], vcc")
    a("ds_write_b64 v10, v[4:5] offset:%d" % ML)
    a("s_nop 1")
    for db in range(8):
        a("ds_write_b128 v11, v[%d:%d] offset:%d" % (OA + 4 * db, OA + 4 * db + 3, OPART + db * 64))
    a("s_mov_b64 exec, 1\nv_mov_b32 v6, 1")
    a("ds_add_rtn_u32 v6, v3, v6 offset:%d" % F_ACNT)
    a("s_mov_b64 exec, -1")
    a("s_waitcnt lgkmcnt(0)")
    a("v_readfirstlane_b32 %s, v6" % sT3)
    a("s_cmp_lg_u32 %s, 3\ns_cbranch_scc1 L_a_prep" % sT3)
    a("v_lshlrev_b32 v11, 4, v0")
    a("v_lshrrev_b32 v10, 5, v0\nv_lshlrev_b32 v10, 3, v10")
    for k in range(4):
        a("ds_read_b64 v[%d:%d], v10 offset:%d" % (48 + 2 * k, 49 + 2 * k, ML + 16 * k))
    for k in range(4):
        a("ds_read_b128 v[%d:%d], v11 offset:%d" % (16 + 4 * k, 19 + 4 * k, OPART + 1024 * k))
    a("s_waitcnt lgkmcnt(4)")
    a("v_max3_f32 v4, v48, v50, v52\nv_max_f32 v4, v4, v54")
    for k in range(4): a("v_sub_f32 v%d, v%d, v4" % (48 + 2 * k, 48 + 2 * k))
    for k in range(4): a("v_exp_f32 v%d, v%d" % (48 + 2 * k, 48 + 2 * k))
    a("s_nop 0")
    a("v_mul_f32 v5, v48, v49\nv_fmac_f32 v5, v50, v51\nv_fmac_f32 v5, v52, v53\nv_fmac_f32 v5, v54, v55")
    a("v_rcp_f32 v6, v5\nv_log_f32 v7, v5")
    a("s_waitcnt lgkmcnt(0)")
    for r in range(4):
        a("v_mul_f32 v%d, v48, v%d" % (32 + r, 16 + r))
        for k in range(1, 4): a("v_fmac_f32 v%d, v%d, v%d" % (32 + r, 48 + 2 * k, 16 + 4 * k + r))
        a("v_mul_f32 v%d, v%d, v6" % (32 + r, 32 + r))
    a("v_add_f32 v39, v4, v7")
    a("v_cvt_pk_bf16_f32 v36, v32, v33\nv_cvt_pk_bf16_f32 v37, v34, v35\nv_mov_b32 v38, %s" % sTAG)
    a("s_lshl_b32 %s, %s, 4\ns_add_u32 %s, %s, %s\ns_lshl_b32 %s, %s, 10\ns_add_u32 %s, %s, %d" % (sT0, sG, sT0, sT0, sI, sT0, sT0, sT0, sT0, W_O))
    a("buffer_store_dwordx4 v[36:39], v11, %s, %s offen sc1" % (srd(RW), sT0))
    a("L_a_prep:")
    stamp(4)
    a("s_cmp_eq_u32 %s, 0\ns_cbranch_scc1 L_a_red" % sNS2)
    a("s_cmp_ge_u32 %s, 16\ns_cbranch_scc1 L_a_hprep" % sTEAM)
    a("s_mov_b32 %s, %d" % (sT0, o.opoll))
    lds_wait_ge(F_PROG, sT0, cache=sSEEN)
    a("s_mov_b32 exec_hi, 0")
    a("v_lshlrev_b32 v11, 4, v0")
    a("s_lshl_b32 %s, %s, 14\ns_lshr_b32 %s, %s, 1\ns_lshl_b32 %s, %s, 13\ns_add_u32 %s, %s, %s" % (sT0, sG, sT1, sA, sT1, sT1, sT0, sT0, sT1))
    a("s_and_b32 %s, %s, 1\ns_lshl_b32 %s, %s, 9\ns_add_u32 %s, %s, %s\ns_add_u32 %s, %s, %d" % (sT1, sA, sT1, sT1, sT0, sT0, sT1, sT0, sT0, W_O))
    a("s_add_u32 %s, %s, 4096" % (sT1, sT0))
    a("s_mov_b32 %s, 0" % sTMO)
    def oloads(fl):
        for s in range(8):
            a("buffer_load_dwordx4 v[%d:%d], v11, %s, %s offen offset:%d %s" % (16 + 4 * s, 19 + 4 * s, srd(RW), sT0 if s < 4 else sT1, (s & 3) * 1024, fl))
    if o.oplain:
        oloads("")
        a("s_branch L_a_ochk")
    a("L_a_opoll:")
    oloads("sc1")
    a("L_a_ochk:")
    a("s_add_u32 %s, %s, 1\ns_cmp_gt_u32 %s, 0x8000\ns_cbranch_scc1 L_a_ook" % (sTMO, sTMO, sTMO))
    a("s_waitcnt vmcnt(0)")
    a("v_xor_b32 v4, %s, v18" % sTAG)
    for s in range(1, 8):
        a("v_xor_b32 v5, %s, v%d\nv_or_b32 v4, v4, v5" % (sTAG, 18 + 4 * s))
    a("v_cmp_ne_u32 vcc, 0, v4\ns_cbranch_vccnz L_a_opoll")
    a("L_a_ook:")
    a("s_waitcnt vmcnt(0)")
    stamp(5)
    a("v_max3_f32 v4, v19, v23, v27\nv_max3_f32 v5, v31, v35, v39\nv_max3_f32 v4, v4, v43, v47\nv_max_f32 v4, v4, v5")
    for s in range(8): a("v_sub_f32 v%d, v%d, v4" % (19 + 4 * s, 19 + 4 * s))
    for s in range(8): a("v_exp_f32 v%d, v%d" % (19 + 4 * s, 19 + 4 * s))
    a("s_mov_b32 %s, 0xffff0000" % sT0)
    for r in range(4): a("v_mov_b32 v%d, 0" % (48 + r))
    a("v_mov_b32 v5, 0")
    for s in range(8):
        w = 19 + 4 * s
        a("v_add_f32 v5, v5, v%d" % w)
        a("v_lshlrev_b32 v6, 16, v%d\nv_and_b32 v7, %s, v%d\nv_fmac_f32 v48, v%d, v6\nv_fmac_f32 v49, v%d, v7" % (16 + 4 * s, sT0, 16 + 4 * s, w, w))
        a("v_lshlrev_b32 v6, 16, v%d\nv_and_b32 v7, %s, v%d\nv_fmac_f32 v50, v%d, v6\nv_fmac_f32 v51, v%d, v7" % (17 + 4 * s, sT0, 17 + 4 * s, w, w))
    a("v_rcp_f32 v5, v5\ns_nop 0")
    for r in range(4): a("v_mul_f32 v%d, v%d, v5" % (48 + r, 48 + r))
    a("v_cvt_pk_bf16_f32 v4, v48, v49\nv_cvt_pk_bf16_f32 v5, v50, v51")
    a("s_lshr_b32 %s, %s, 1\ns_mul_i32 %s, %s, %d\ns_and_b32 %s, %s, 1\ns_lshl_b32 %s, %s, 8\ns_add_u32 %s, %s, %s" % (sT0, sA, sT0, sT0, VEC2_P, sT1, sA, sT1, sT1, sT0, sT0, sT1))
    a("v_lshlrev_b32 v11, 3, v0\nv_add_u32 v11, %s, v11" % sT0)
    a("ds_write_b64 v11, v[4:5] offset:%d" % VEC2)
    a("s_mov_b64 exec, 1\nv_mov_b32 v6, 1\nds_add_u32 v3, v6 offset:%d\ns_mov_b64 exec, -1" % F_VRDY)
    a("s_branch L_a_end")
    a("L_a_hprep:")
    a("s_cmp_ge_u32 %s, 3\ns_cbranch_scc1 L_a_red" % sA)
    a("s_add_u32 %s, %s, %d" % (sT0, sB2, o.hpoll))
    lds_wait_ge(F_PROG, sT0, cache=sSEEN)
    a("v_lshlrev_b32 v11, 4, v0")
    a("s_mul_i32 %s, %s, 3072\ns_lshl_b32 %s, %s, 10\ns_add_u32 %s, %s, %s\ns_add_u32 %s, %s, %d" % (sT0, sTEAM, sT1, sA, sT0, sT0, sT1, sT0, sT0, W_S1 + 64 * 512 - 16 * 3072))
    a("s_add_u32 %s, %s, %d" % (sT1, sT0, 72 * 512))
    a("v_and_b32 v10, 1, v8\nv_mul_u32_u24 v10, %d, v10\nv_lshl_add_u32 v10, v9, 3, v10" % VEC2_P)
    a("v_lshrrev_b32 v12, 5, v0\nv_lshl_add_u32 v10, v12, 7, v10\ns_lshl_b32 %s, %s, 8\nv_add_u32 v10, %s, v10" % (sT2, sA, sT2))
    a("s_mov_b32 %s, 0" % sTMO)
    a("L_a_hpoll:")
    a("buffer_load_dwordx4 v[16:19], v11, %s, %s offen sc1" % (srd(RW), sT0))
    a("buffer_load_dwordx4 v[20:23], v11, %s, %s offen sc1" % (srd(RW), sT1))
    a("s_add_u32 %s, %s, 1\ns_cmp_gt_u32 %s, 0x8000\ns_cbranch_scc1 L_a_hok" % (sTMO, sTMO, sTMO))
    a("s_waitcnt vmcnt(0)")
    a("v_xor_b32 v4, %s, v18\nv_xor_b32 v5, %s, v22\nv_or_b32 v4, v4, v5" % (sTAG, sTAG))
    a("v_cmp_ne_u32 vcc, 0, v4\ns_and_b64 exec, exec, vcc\ns_cbranch_vccnz L_a_hpoll")
    a("L_a_hok:")
    a("s_mov_b64 exec, -1")
    a("s_waitcnt vmcnt(0)")
    stamp(5)
    a("s_mov_b32 %s, 0xffff0000" % sT0)
    a("v_lshlrev_b32 v24, 16, v16\nv_and_b32 v25, %s, v16\nv_lshlrev_b32 v26, 16, v17\nv_and_b32 v27, %s, v17" % (sT0, sT0))
    a("v_lshlrev_b32 v28, 16, v20\nv_and_b32 v29, %s, v20\nv_lshlrev_b32 v30, 16, v21\nv_and_b32 v31, %s, v21" % (sT0, sT0))
    import math, struct
    c1 = -2.0 * math.sqrt(2.0 / math.pi) * math.log2(math.e)
    f2u = lambda f: struct.unpack("<I", struct.pack("<f", f))[0]
    a("s_mov_b32 %s, 0x%08x\nv_mov_b32 v4, 0x%08x" % (sT1, f2u(c1 * 0.044715), f2u(c1)))
    for r in range(4): a("v_mul_f32 v%d, v%d, v%d" % (32 + r, 24 + r, 24 + r))
    for r in range(4): a("v_fma_f32 v%d, v%d, %s, v4" % (32 + r, 32 + r, sT1))
    for r in range(4): a("v_mul_f32 v%d, v%d, v%d" % (32 + r, 32 + r, 24 + r))
    for r in range(4): a("v_exp_f32 v%d, v%d" % (32 + r, 32 + r))
    a("s_nop 0")
    for r in range(4): a("v_add_f32 v%d, 1.0, v%d" % (32 + r, 32 + r))
    for r in range(4): a("v_rcp_f32 v%d, v%d" % (32 + r, 32 + r))
    a("s_nop 0")
    for r in range(4): a("v_mul_f32 v%d, v%d, v%d" % (32 + r, 32 + r, 24 + r))
    a("v_cvt_pk_bf16_f32 v4, v32, v33\nv_cvt_pk_bf16_f32 v5, v34, v35")
    a("v_lshlrev_b32 v32, 16, v4\nv_and_b32 v33, %s, v4\nv_lshlrev_b32 v34, 16, v5\nv_and_b32 v35, %s, v5" % (sT0, sT0))
    for r in range(4): a("v_mul_f32 v%d, v%d, v%d" % (32 + r, 32 + r, 28 + r))
    a("v_cvt_pk_bf16_f32 v4, v32, v33\nv_cvt_pk_bf16_f32 v5, v34, v35")
    a("ds_write_b64 v10, v[4:5] offset:%d" % VEC2)
    a("s_mov_b64 exec, 1\nv_mov_b32 v6, 1\nds_add_u32 v3, v6 offset:%d\ns_mov_b64 exec, -1" % F_VRDY)
    a("L_a_red:")
    stamp(6)
    a("s_cmp_lg_u32 %s, 2\ns_cbranch_scc1 L_a_end" % sTY)
    a("s_mul_i32 %s, %s, 3\ns_add_u32 %s, %s, %s\ns_sub_u32 %s, %s, 13" % (sT0, sG, sT0, sT0, sI, sT0, sT0))
    a("s_cmp_ge_u32 %s, 36\ns_cbranch_scc1 L_a_end" % sT0)
    a("s_lshl_b32 %s, %s, 2\ns_add_u32 s93, %s, %s" % (sT0, sT0, sT0, sA))
    mk_srd(R0, 4, 2304)
    mk_srd(R1, 22, 2304)
    a("v_and_b32 v12, 1, v0\nv_mul_u32_u24 v12, 1152, v12\ns_lshl_b32 s98, s93, 3")
    a("buffer_load_dwordx2 v[14:15], v12, %s, s98 offen" % srd(R0))
    a("s_lshl_b32 %s, s93, 10\ns_add_u32 %s, %s, %d" % (sT0, sT0, sT0, W_F))
    a("v_lshlrev_b32 v11, 4, v0")
    a("s_and_b32 s94, %s, 0xff\ns_bfe_u32 s95, %s, 0x80008\ns_bfe_u32 s96, %s, 0x80010\ns_lshr_b32 s97, %s, 24" % (sTAG, sTAG, sTAG, sTAG))
    for r in range(4): a("v_mov_b32 v%d, 0" % (16 + r))
    a("s_mov_b32 exec_hi, 0x00ffffff")
    a("s_mov_b32 %s, 0" % sTMO)
    a("L_a_fpoll:")
    a("buffer_load_dwordx4 v[16:19], v11, %s, %s offen sc1" % (srd(RW), sT0))
    a("s_add_u32 %s, %s, 1\ns_cmp_gt_u32 %s, 0x8000\ns_cbranch_scc1 L_a_fok" % (sTMO, sTMO, sTMO))
    a("s_waitcnt vmcnt(0)")
    a("v_xor_b32 v4, s94, v16\nv_xor_b32 v5, s95, v17\nv_xor_b32 v6, s96, v18\nv_xor_b32 v7, s97, v19")
    a("v_or3_b32 v4, v4, v5, v6\nv_or_b32 v4, v4, v7\nv_and_b32 v4, 0xff, v4")
    a("v_cmp_ne_u32 vcc, 0, v4\ns_and_b64 exec, exec, vcc\ns_cbranch_vccnz L_a_fpoll")
    a("L_a_fok:")
    a("s_mov_b64 exec, -1")
    a("s_waitcnt vmcnt(0)")
    stamp(7)
    for dp in ("quad_perm:[2,3,0,1]", "row_ror:4", "row_ror:8"):
        for r in range(4):
            a("v_add_f32_dpp v%d, v%d, v%d %s row_mask:0xf bank_mask:0xf" % (16 + r, 16 + r, 16 + r, dp))
    for r in range(4): a("v_mov_b32 v%d, v%d" % (20 + r, 16 + r))
    for r in range(4): a("v_permlane16_swap_b32 v%d, v%d" % (16 + r, 20 + r))
    for r in range(4): a("v_add_f32 v%d, v%d, v%d" % (16 + r, 16 + r, 20 + r))
    a("v_cvt_pk_bf16_f32 v16, v16, v17\nv_cvt_pk_bf16_f32 v17, v18, v19")
    a("v_mov_b32 v18, v16\nv_mov_b32 v19, v17\ns_mov_b32 %s, 0xffff0000\ns_nop 0" % sT1)
    a("v_permlane32_swap_b32 v16, v18\nv_permlane32_swap_b32 v17, v19")
    for k in range(2):
        a("v_lshlrev_b32 v4, 16, v%d\nv_and_b32 v5, %s, v%d" % (14 + k, sT1, 14 + k))
        a("v_lshlrev_b32 v6, 16, v%d\nv_and_b32 v7, %s, v%d" % (16 + k, sT1, 16 + k))
        a("v_add_f32 v4, v4, v6\nv_add_f32 v5, v5, v7\nv_cvt_pk_bf16_f32 v4, v4, v5")
        a("v_and_b32 v5, %s, v4\nv_lshlrev_b32 v4, 16, v4" % sT1)
        a("v_lshlrev_b32 v6, 16, v%d\nv_and_b32 v7, %s, v%d" % (18 + k, sT1, 18 + k))
        a("v_add_f32 v4, v4, v6\nv_add_f32 v5, v5, v7\nv_cvt_pk_bf16_f32 v%d, v4, v5" % (20 + k))
    a("s_mov_b64 exec, 3")
    a("buffer_store_dwordx2 v[20:21], v12, %s, s98 offen" % srd(R1))
    a("s_cmp_lg_u32 s93, 0\ns_cbranch_scc1 L_a_end")
    a("s_mov_b64 exec, 1\nv_mov_b32 v4, %s" % sTAG)
    a("buffer_store_dword v4, v3, %s, 0 offen sc1" % srd(RW))
    a("L_a_end:")
    stamps_out()
    a("L_end:")
    a("s_endpgm")

    hdr = open(__file__.replace("gen.py", "header.txt")).read()
    hdr += "; @launch grid=(256,1,1) block=(576,1,1) lds=%d\n" % LDS_TOTAL
    hdr += '.amdgcn_target "amdgcn-amd-amdhsa--gfx950"\n.text\n.globl %s\n.p2align 8\n.type %s,@function\n' % (NAME, NAME)
    ftr = """.section .rodata,"a"
.p2align 6
.amdhsa_kernel %s
  .amdhsa_next_free_vgpr 128
  .amdhsa_next_free_sgpr 102
  .amdhsa_accum_offset 128
  .amdhsa_group_segment_fixed_size 0
  .amdhsa_kernarg_size 96
  .amdhsa_user_sgpr_count 2
  .amdhsa_user_sgpr_kernarg_segment_ptr 1
  .amdhsa_system_sgpr_workgroup_id_x 1
  .amdhsa_float_denorm_mode_32 3
.end_amdhsa_kernel
""" % NAME
    return hdr + a.text() + ftr

def parser():
    p = argparse.ArgumentParser()
    p.add_argument("-o", default="-")
    p.add_argument("--depth", type=int, default=32)
    p.add_argument("--depthq", type=int, default=32)
    p.add_argument("--diag", type=int, default=0)
    p.add_argument("--gumap", type=int, default=0)
    p.add_argument("--gfirst", type=int, default=0)
    p.add_argument("--qpoll", type=int, default=48)
    p.add_argument("--opoll", type=int, default=120)
    p.add_argument("--hpoll", type=int, default=0)
    p.add_argument("--oplain", type=int, default=0)
    return p

if __name__ == "__main__":
    o = parser().parse_args()
    t = gen(o)
    if o.o == "-": sys.stdout.write(t)
    else: open(o.o, "w").write(t)
```

```python
import sys, argparse

NAME = "parallel_sum__sliding_block_cached__geglu_ffn__decode_kernel"

class Asm:
    def __init__(self):
        self.lines = []
        self.n = 0
    def __call__(self, s):
        for ln in s.strip("\n").split("\n"):
            ln = ln.strip()
            if not ln: continue
            if ln.endswith(":"): self.lines.append(ln)
            else: self.lines.append("    " + ln)
    def lab(self, p="L"):
        self.n += 1
        return "%s_%d" % (p, self.n)
    def text(self): return "\n".join(self.lines) + "\n"

F_PROG, F_TAG, F_QRDY, F_ACNT, F_VRDY, F_C1, F_C2 = 0, 8, 16, 20, 24, 28, 32
XN, XN_P = 256, 1152
QV = 2560
VEC2, VEC2_P = 3072, 1280
ML = 5632
OPART = 5888
RA = 10240
RK = RA + 72 * 1024
KP = 1088
RV = RK + 32 * KP
VP = 1152
LDS_TOTAL = RV + 32 * VP
W_EPOCH = 0
W_S1 = 4096
W_O = W_S1 + 208 * 512
W_F = W_O + 256 * 1024
W_END = W_F + 144 * 1024
W_DIAG = 1 << 20

def gen(o):
    a = Asm()
    D = o.depth
    DQ = o.depthq
    diag = o.diag
    sG, sI, sWV, sTY = "s28", "s29", "s30", "s31"
    sU = "s32"
    sTEAM, sCB, sNS2 = "s33", "s34", "s35"
    sBS, sBK, sB2 = "s36", "s37", "s38"
    sT0, sT1, sT2, sT3 = "s39", "s40", "s41", "s42"
    sSEEN, sTMO, sTAG = "s43", "s44", "s45"
    R0, R1, R2, R3 = 48, 52, 56, 60
    RW = 64
    ST = 72
    def srd(r): return "s[%d:%d]" % (r, r + 3)
    def mk_srd(r, lo, size):
        a("s_mov_b32 s%d, s%d\ns_mov_b32 s%d, s%d\ns_mov_b32 s%d, 0x%x\ns_mov_b32 s%d, 0x00020000" % (r, lo, r + 1, lo + 1, r + 2, size, r + 3))
    def stamp(k):
        if diag: a("s_memrealtime s[%d:%d]" % (ST + 2 * k, ST + 2 * k + 1))
    def stamps_out():
        if not diag: return
        a("s_waitcnt lgkmcnt(0)")
        a("s_mov_b64 exec, -1")
        a("s_lshl_b32 %s, s2, 4\ns_add_u32 %s, %s, %s\ns_lshl_b32 %s, %s, 6\ns_add_u32 %s, %s, 0x%x" % (sT0, sT0, sT0, sWV, sT0, sT0, sT0, sT0, W_DIAG))
        a("v_mov_b32 v1, %s" % sT0)
        for k in range(4):
            for j in range(4): a("v_mov_b32 v%d, s%d" % (4 + j, ST + 4 * k + j))
            a("global_store_dwordx4 v1, v[4:7], s[26:27] offset:%d" % (16 * k))
            a("s_nop 1")
    def lds_wait_ge(off, thr, cache=None, vt="v2", vz="v3"):
        L, E = a.lab("LW"), a.lab("LE")
        c = cache or sT3
        if cache:
            a("s_cmp_ge_i32 %s, %s\ns_cbranch_scc1 %s" % (c, thr, E))
        a("s_mov_b32 %s, 0" % sTMO)
        a("%s:" % L)
        if o.sleep: a("s_sleep %d" % o.sleep)
        a("ds_read_b32 %s, %s offset:%d" % (vt, vz, off))
        a("s_add_u32 %s, %s, 1" % (sTMO, sTMO))
        a("s_cmp_gt_u32 %s, 0x80000\ns_cbranch_scc1 %s" % (sTMO, E))
        a("s_waitcnt lgkmcnt(0)")
        a("v_readfirstlane_b32 %s, %s" % (c, vt))
        a("s_cmp_lt_i32 %s, %s\ns_cbranch_scc1 %s" % (c, thr, L))
        a("%s:" % E)
    def get_tag():
        L, E = a.lab("LT"), a.lab("LE")
        a("s_mov_b32 %s, 0" % sTMO)
        a("%s:" % L)
        a("ds_read_b64 v[4:5], v3 offset:%d" % F_TAG)
        a("s_add_u32 %s, %s, 1" % (sTMO, sTMO))
        a("s_waitcnt lgkmcnt(0)")
        a("v_readfirstlane_b32 %s, v4\nv_readfirstlane_b32 %s, v5" % (sTAG, sT3))
        a("s_cmp_gt_u32 %s, 0x80000\ns_cbranch_scc1 %s" % (sTMO, E))
        a("s_cmp_eq_u32 %s, 0\ns_cbranch_scc1 %s" % (sT3, L))
        a("%s:" % E)

    a("%s:" % NAME)
    stamp(0)
    if diag:
        for k in range(1, 8): a("s_mov_b64 s[%d:%d], 0" % (ST + 2 * k, ST + 2 * k + 1))
    a("""
    s_load_dwordx16 s[4:19], s[0:1], 0
    s_load_dwordx8 s[20:27], s[0:1], 64
    s_cmp_ge_u32 s2, 256
    s_cbranch_scc1 L_end
    v_lshrrev_b32 v1, 6, v0
    v_and_b32 v0, 63, v0
    v_mov_b32 v3, 0
    """)
    a("v_readfirstlane_b32 %s, v1" % sWV)
    a("s_and_b32 %s, s2, 7\ns_lshl_b32 %s, %s, 1\ns_lshr_b32 %s, s2, 7\ns_add_u32 %s, %s, %s" % (sG, sG, sG, sT0, sG, sG, sT0))
    a("s_bfe_u32 %s, s2, 0x40003" % sI)
    a("s_mov_b32 %s, 0" % sTY)
    a("s_cmp_ge_u32 %s, 4\ns_addc_u32 %s, %s, 0" % (sI, sTY, sTY))
    a("s_cmp_ge_u32 %s, 13\ns_addc_u32 %s, %s, 0" % (sI, sTY, sTY))
    a("s_lshl_b32 %s, %s, 2\ns_add_u32 %s, %s, %s" % (sT0, sG, sT0, sT0, sI))
    if o.gumap == 0:
        a("s_mul_i32 %s, %s, 9\ns_add_u32 %s, %s, %s\ns_add_u32 %s, %s, 60" % (sT1, sG, sT1, sT1, sI, sT1, sT1))
    else:
        a("s_lshl_b32 %s, %s, 4\ns_add_u32 %s, %s, %s" % (sT1, sI, sT1, sT1, sG))
    a("s_cmp_eq_u32 %s, 0\ns_cselect_b32 %s, %s, %s" % (sTY, sU, sT0, sT1))
    a("s_mul_i32 %s, %s, 7\ns_add_u32 %s, %s, %s\ns_sub_u32 %s, %s, 9" % (sT0, sG, sT0, sT0, sI, sT0, sT0))
    a("s_mul_i32 %s, %s, 7282\ns_lshr_b32 %s, %s, 16" % (sT1, sT0, sT1, sT1))
    a("s_mul_i32 %s, %s, 9\ns_sub_u32 %s, %s, %s" % (sT2, sT1, sT2, sT0, sT2))
    a("s_cmp_lt_u32 %s, 12\ns_cselect_b32 %s, 48, 0" % (sT1, sNS2))
    a("s_add_u32 %s, %s, 16" % (sT1, sT1))
    a("s_cmp_lt_u32 %s, 9" % sI)
    a("s_cselect_b32 %s, %s, %s\ns_cselect_b32 %s, %s, %s\ns_cselect_b32 %s, 32, %s" % (sTEAM, sG, sT1, sCB, sI, sT2, sNS2, sNS2))
    if o.gfirst:
        a("s_cmp_le_u32 %s, 1" % sTY)
    else:
        a("s_cmp_eq_u32 %s, 0" % sTY)
    a("s_cselect_b32 %s, 0, 64\ns_cselect_b32 %s, 72, 0" % (sBS, sBK))
    a("s_cmp_eq_u32 %s, 2\ns_cselect_b32 %s, 64, 136" % (sTY, sB2))
    a("s_mov_b32 %s, -1000" % sSEEN)
    a("s_cmp_lg_u32 %s, 0\ns_cbranch_scc1 L_cons" % sWV)

    sOFF, sSTEP, sCNT, sISS, sDM = "s90", "s91", "s92", "s93", "s94"
    a("s_setprio 3")
    a("v_mov_b32 v4, 0\nv_mov_b32 v5, 0\nv_mov_b32 v6, 0\nv_mov_b32 v7, 0")
    a("v_lshlrev_b32 v2, 4, v0")
    a("ds_write_b128 v2, v[4:7]")
    a("""
    v_lshrrev_b32 v8, 3, v0
    v_lshrrev_b32 v9, 4, v0
    v_lshlrev_b32 v9, 1, v9
    v_and_b32 v10, 7, v0
    v_xor_b32 v10, v10, v9
    v_lshlrev_b32 v10, 4, v10
    """)
    a("s_cmp_eq_u32 %s, 0\ns_mov_b32 %s, 9216\ns_cselect_b32 %s, 8192, %s" % (sTY, sSTEP, sSTEP, sSTEP))
    a("v_mul_lo_u32 v11, v8, %s\nv_add_u32 v11, v11, v10" % sSTEP)
    a("v_mul_u32_u24 v12, 1152, v8\nv_add_u32 v12, v12, v10")
    a("""
    v_lshrrev_b32 v8, 4, v0
    v_xor_b32 v13, v0, v8
    v_lshlrev_b32 v13, 4, v13
    v_xor_b32 v14, v0, v9
    v_lshlrev_b32 v14, 4, v14
    """)
    a("s_mov_b32 %s, 0" % sISS)
    a("s_cmp_eq_u32 %s, 0\ns_cselect_b64 vcc, -1, 0\ns_cselect_b32 %s, %d, %d" % (sTY, sDM, DQ - 4, D - 4))
    a("s_waitcnt lgkmcnt(0)")
    a("s_barrier")
    a("s_cmp_ge_u32 %s, 136\ns_cselect_b32 s%d, s18, s16\ns_cselect_b32 s%d, s19, s17" % (sU, R0, R0 + 1))
    a("s_cselect_b32 %s, 136, 64" % sT0)
    a("s_cmp_eq_u32 %s, 0\ns_cselect_b32 s%d, s10, s%d\ns_cselect_b32 s%d, s11, s%d" % (sTY, R0, R0, R0 + 1, R0 + 1))
    a("s_cselect_b32 %s, 0, %s" % (sT0, sT0))
    a("s_mov_b32 s%d, 0x510000\ns_cselect_b32 s%d, 0x480000, s%d\ns_mov_b32 s%d, 0x00020000" % (R0 + 2, R0 + 2, R0 + 2, R0 + 3))
    a("s_sub_u32 %s, %s, %s\ns_lshl_b32 s95, %s, 7" % (sT0, sU, sT0, sT0))
    mk_srd(R1, 6, 0x2000000)
    mk_srd(R2, 8, 0x2000000)
    a("s_lshr_b32 %s, %s, 3\ns_lshl_b32 %s, %s, 4\ns_add_u32 %s, %s, %s\ns_lshl_b32 %s, %s, 20" % (sT0, sI, sT0, sT0, sT0, sT0, sG, sT0, sT0))
    a("s_and_b32 %s, %s, 7\ns_lshl_b32 %s, %s, 15\ns_add_u32 %s, %s, %s\ns_add_u32 s96, %s, 0xc0000" % (sT1, sI, sT1, sT1, sT0, sT0, sT1, sT0))

    def dma_loop(r, voff, pitch, step, groups_expr, check=None):
        L = a.lab("LD")
        a("%s:" % L)
        if check: check()
        for k in range(4):
            a("s_add_u32 m0, m0, %d" % pitch)
            a("s_add_u32 %s, %s, %s" % (sOFF, sOFF, step))
            a("buffer_load_dwordx4 %s, %s, %s offen %s lds" % (voff, srd(r), sOFF, o.pol))
        a("s_add_u32 %s, %s, 4" % (sISS, sISS))
        a("s_sub_u32 %s, %s, %s" % (sT0, sISS, sDM))
        a("v_mov_b32 v4, %s" % sT0)
        if DQ != D:
            L2, L3 = a.lab("LQ"), a.lab("LQ")
            a("s_cbranch_vccnz %s" % L2)
            a("s_waitcnt vmcnt(%d)" % (D - 4))
            a("%s:" % L2)
            a("s_waitcnt vmcnt(%d)" % (DQ - 4))
        else:
            a("s_waitcnt vmcnt(%d)" % (D - 4))
        a("ds_write_b32 v3, v4 offset:%d" % F_PROG)
        a("s_sub_u32 %s, %s, 1\ns_cmp_lg_u32 %s, 0\ns_cbranch_scc1 %s" % (sCNT, sCNT, sCNT, L))

    a("s_cmp_eq_u32 %s, 0\ns_cbranch_scc1 L_ld_slab" % sBS)
    a("L_ld_kv:")
    a("s_mov_b32 m0, %d\ns_sub_u32 %s, s96, 1024\ns_mov_b32 %s, 8" % (RK - KP, sOFF, sCNT))
    dma_loop(R1, "v13", KP, "1024", 8)
    a("s_mov_b32 m0, %d\ns_sub_u32 %s, s96, 1024\ns_mov_b32 %s, 8" % (RV - VP, sOFF, sCNT))
    dma_loop(R2, "v14", VP, "1024", 8)
    a("s_cmp_eq_u32 %s, 2\ns_cbranch_scc1 L_ld_s2" % sTY)
    a("s_cmp_eq_u32 %s, 0\ns_cbranch_scc1 L_ld_s2" % sBS)
    a("L_ld_slab:")
    a("s_lshl_b32 s97, %s, 3" % sSTEP)
    a("s_mov_b32 m0, %d\ns_sub_u32 %s, s95, s97\ns_mov_b32 %s, 18" % (RA - 1024, sOFF, sCNT))
    dma_loop(R0, "v11", 1024, "s97", 18)
    a("s_cmp_eq_u32 %s, 0\ns_cbranch_scc1 L_ld_kv" % sBS)
    a("L_ld_s2:")
    stamp(1)
    a("s_cmp_eq_u32 %s, 0\ns_cbranch_scc1 L_ld_drain" % sNS2)
    a("s_cmp_lt_u32 %s, 16" % sTEAM)
    a("s_cselect_b32 s%d, s12, s20\ns_cselect_b32 s%d, s13, s21\ns_mov_b32 s%d, 0x510000\ns_cselect_b32 s%d, 0x480000, s%d\ns_mov_b32 s%d, 0x00020000" % (R3, R3 + 1, R3 + 2, R3 + 2, R3 + 2, R3 + 3))
    a("s_mov_b32 %s, %d\ns_cselect_b32 %s, %d, %s" % (sT0, 384 * 1152, sT0, 256 * 1152, sT0))
    a("s_and_b32 %s, %s, 15\ns_mul_i32 %s, %s, %s" % (sT1, sTEAM, sOFF, sT0, sT1))
    a("s_lshl_b32 %s, %s, 7\ns_add_u32 %s, %s, %s\ns_sub_u32 %s, %s, %d" % (sT1, sCB, sOFF, sOFF, sT1, sOFF, sOFF, 8 * 1152))
    a("s_mov_b32 m0, %d" % (RA - 1024))
    a("s_cmp_eq_u32 %s, 2\ns_cselect_b32 s97, 0, %d" % (sTY, 0 if o.ldonly else 4))
    lds_wait_ge(F_C1, "s97")
    a("s_mov_b32 %s, 6" % sCNT)
    dma_loop(R3, "v12", 1024, str(8 * 1152), 6)
    lds_wait_ge(F_C2, "s97")
    a("s_lshr_b32 %s, %s, 2\ns_sub_u32 %s, %s, 6" % (sCNT, sNS2, sCNT, sCNT))
    dma_loop(R3, "v12", 1024, str(8 * 1152), 6)
    a("L_ld_drain:")
    stamp(2)
    for k in range(max(D, DQ) - 8, -1, -4):
        a("s_sub_u32 %s, %s, %d\nv_mov_b32 v4, %s\ns_waitcnt vmcnt(%d)\nds_write_b32 v3, v4 offset:%d" % (sT0, sISS, k, sT0, k, F_PROG))
    stamp(3)
    stamps_out()
    a("s_endpgm")

    a("L_cons:")
    a("s_barrier")
    if o.tlb:
        Lt = a.lab("LTL")
        a("s_waitcnt lgkmcnt(0)")
        a("s_cmp_lg_u32 %s, 8\ns_cbranch_scc1 %s" % (sWV, Lt))
        step = o.tlb << 10
        n = 0
        a("s_lshr_b32 %s, %s, 3\ns_lshl_b32 %s, %s, 4\ns_add_u32 %s, %s, %s\ns_lshl_b32 %s, %s, 20\ns_add_u32 %s, %s, 0xc0000" % (sT0, sI, sT0, sT0, sT0, sT0, sG, sT0, sT0, sT0, sT0))
        a("s_load_dword s90, s[8:9], %s" % sT0)
        a("s_load_dword s90, s[6:7], %s" % sT0)
        for base, size in ((10, 0x480000), (16, 0x510000), (18, 0x510000), (12, 0x480000), (20, 0x510000)):
            for off in range(0, size, step):
                a("s_mov_b32 %s, 0x%x\ns_load_dword s90, s[%d:%d], %s" % (sT1, off, base, base + 1, sT1))
        a("s_load_dword s90, s[26:27], 0x1000")
        a("s_waitcnt lgkmcnt(0)")
        a("%s:" % Lt)
    if o.ldonly: a("s_endpgm")
    a("s_waitcnt lgkmcnt(0)")
    mk_srd(RW, 26, W_END)
    a("v_lshrrev_b32 v8, 4, v0\nv_and_b32 v9, 15, v0")
    a("s_cmp_ge_u32 %s, 5\ns_cbranch_scc1 L_att" % sWV)

    sW = "s90"
    a("s_sub_u32 %s, %s, 1" % (sW, sWV))
    a("""
    v_lshrrev_b32 v10, 2, v0
    v_lshrrev_b32 v11, 3, v0
    v_and_b32 v11, 3, v11
    """)
    a("v_xor_b32 v11, %s, v11" % sW)
    a("""
    v_lshlrev_b32 v10, 7, v10
    v_lshl_add_u32 v10, v11, 5, v10
    v_and_b32 v11, 3, v0
    v_lshl_add_u32 v10, v11, 3, v10
    """)
    a("v_add_u32 v10, %d, v10" % RA)
    a("v_and_b32 v12, 1, v0")
    a("s_cmp_eq_u32 %s, 2\ns_cbranch_scc1 L_w_s2" % sTY)
    mk_srd(R0, 4, 2304)
    a("v_mul_u32_u24 v13, 36, v0")
    a("buffer_load_dwordx4 v[16:19], v13, %s, 0 offen" % srd(R0))
    a("buffer_load_dwordx4 v[20:23], v13, %s, 0 offen offset:16" % srd(R0))
    a("buffer_load_dword v24, v13, %s, 0 offen offset:32" % srd(R0))
    a("s_mov_b32 %s, 0xffff0000" % sT0)
    a("s_waitcnt vmcnt(0)")
    stamp(1)
    X = 28
    for k in range(9):
        a("v_lshlrev_b32 v%d, 16, v%d\nv_and_b32 v%d, %s, v%d" % (X + 2 * k, 16 + k, X + 2 * k + 1, sT0, 16 + k))
    def half_allreduce_add(v, t):
        a("s_nop 1")
        a("v_add_f32_dpp %s, %s, %s quad_perm:[1,0,3,2] row_mask:0xf bank_mask:0xf" % (v, v, v))
        a("s_nop 1")
        a("v_add_f32_dpp %s, %s, %s quad_perm:[2,3,0,1] row_mask:0xf bank_mask:0xf" % (v, v, v))
        a("s_nop 1")
        a("v_add_f32_dpp %s, %s, %s row_ror:4 row_mask:0xf bank_mask:0xf" % (v, v, v))
        a("s_nop 1")
        a("v_add_f32_dpp %s, %s, %s row_ror:8 row_mask:0xf bank_mask:0xf" % (v, v, v))
        a("v_mov_b32 %s, %s" % (t, v))
        a("s_nop 1")
        a("v_permlane16_swap_b32 %s, %s" % (v, t))
        a("v_add_f32 %s, %s, %s" % (v, v, t))
    a("v_add_f32 v14, v%d, v%d" % (X, X + 1))
    a("v_add_f32 v15, v%d, v%d" % (X + 2, X + 3))
    for k in range(4, 18, 2):
        a("v_add_f32 v14, v14, v%d\nv_add_f32 v15, v15, v%d" % (X + k, X + k + 1))
    a("v_add_f32 v14, v14, v15")
    half_allreduce_add("v14", "v15")
    a("v_mul_f32 v14, 0x3ae38e39, v14")
    a("v_mov_b32 v15, 0\nv_mov_b32 v25, 0")
    for k in range(0, 18, 2):
        a("v_sub_f32 v26, v%d, v14\nv_sub_f32 v27, v%d, v14\nv_fmac_f32 v15, v26, v26\nv_fmac_f32 v25, v27, v27" % (X + k, X + k + 1))
    a("v_add_f32 v15, v15, v25")
    half_allreduce_add("v15", "v25")
    a("v_mul_f32 v15, 0x3ae38e39, v15")
    a("v_cvt_pk_bf16_f32 v14, v14, v15")
    a("v_and_b32 v15, %s, v14\nv_lshlrev_b32 v14, 16, v14" % sT0)
    a("v_add_f32 v15, 0x3727c5ac, v15")
    a("v_cvt_pk_bf16_f32 v15, v15, v15\nv_lshlrev_b32 v15, 16, v15")
    a("v_sqrt_f32 v15, v15\ns_nop 0")
    a("v_cvt_pk_bf16_f32 v15, v15, v15\nv_lshlrev_b32 v15, 16, v15")
    a("v_rcp_f32 v15, v15")
    for k in range(9):
        a("v_sub_f32 v26, v%d, v14\nv_sub_f32 v27, v%d, v14" % (X + 2 * k, X + 2 * k + 1))
        a("v_cvt_pk_bf16_f32 v26, v26, v27")
        a("v_and_b32 v27, %s, v26\nv_lshlrev_b32 v26, 16, v26" % sT0)
        a("v_mul_f32 v26, v26, v15\nv_mul_f32 v27, v27, v15")
        a("v_cvt_pk_bf16_f32 v%d, v26, v27" % (16 + k))
    for k in range(0, 8, 2):
        a("ds_write2_b32 v13, v%d, v%d offset0:%d offset1:%d" % (16 + k, 17 + k, XN // 4 + k, XN // 4 + k + 1))
    a("ds_write_b32 v13, v24 offset:%d" % (XN + 32))
    a("v_mul_u32_u24 v11, %d, v12\nv_lshl_add_u32 v11, v8, 3, v11\nv_add_u32 v11, %d, v11" % (XN_P, XN))
    a("v_mov_b32 v13, v10")
    for r in range(4): a("v_mov_b32 v%d, 0" % (48 + r))
    a("v_mov_b32 v14, 1")
    stamp(2)
    sIT, sTH = "s91", "s92"
    a("s_mov_b32 %s, 0\ns_add_u32 %s, %s, 8" % (sIT, sTH, sBS))
    a("L_slab:")
    lds_wait_ge(F_PROG, sTH, cache=sSEEN)
    a("""
    ds_read_b64_tr_b16 v[16:17], v13
    ds_read_b64_tr_b16 v[18:19], v13 offset:2048
    ds_read2_b64 v[24:27], v11 offset0:0 offset1:4
    ds_read_b64_tr_b16 v[20:21], v13 offset:4096
    ds_read_b64_tr_b16 v[22:23], v13 offset:6144
    ds_read2_b64 v[28:31], v11 offset0:8 offset1:12
    v_add_u32 v13, 8192, v13
    v_add_u32 v11, 128, v11
    """)
    a("s_add_u32 %s, %s, 8\ns_add_u32 %s, %s, 1" % (sTH, sTH, sIT, sIT))
    a("""
    s_waitcnt lgkmcnt(3)
    v_mfma_f32_16x16x32_bf16 v[48:51], v[16:19], v[24:27], v[48:51]
    s_waitcnt lgkmcnt(0)
    v_mfma_f32_16x16x32_bf16 v[48:51], v[20:23], v[28:31], v[48:51]
    """)
    Ln = a.lab("LN")
    a("s_cmp_eq_u32 %s, 3\ns_cbranch_scc1 L_slab_c1" % sIT)
    a("s_cmp_eq_u32 %s, 6\ns_cbranch_scc1 L_slab_c2" % sIT)
    a("L_slab_n:")
    a("s_cmp_lt_u32 %s, 9\ns_cbranch_scc1 L_slab" % sIT)
    stamp(3)
    get_tag()
    a("v_lshlrev_b32 v13, 8, v9\nv_lshl_add_u32 v13, v8, 4, v13")
    a("s_lshl_b32 %s, %s, 9\ns_lshl_b32 %s, %s, 6\ns_add_u32 %s, %s, %s\ns_add_u32 %s, %s, %d" % (sT0, sU, sT1, sW, sT0, sT0, sT1, sT0, sT0, W_S1))
    a("v_cvt_pk_bf16_f32 v16, v48, v49\nv_cvt_pk_bf16_f32 v17, v50, v51")
    a("v_mov_b32 v18, %s\nv_mov_b32 v19, 0" % sTAG)
    a("v_cmp_gt_u32 vcc, 2, v9\ns_and_saveexec_b64 s[46:47], vcc")
    a("buffer_store_dwordx4 v[16:19], v13, %s, %s offen sc1" % (srd(RW), sT0))
    a("s_mov_b64 exec, s[46:47]")
    stamp(4)
    a("L_w_s2:")
    a("s_cmp_eq_u32 %s, 0\ns_cbranch_scc1 L_w_end" % sNS2)
    get_tag()
    WF = 16
    VF = 64
    AC = 112
    a("v_mul_u32_u24 v11, %d, v12\nv_lshl_add_u32 v11, v8, 3, v11\nv_add_u32 v11, %d, v11" % (VEC2_P, VEC2))
    for r in range(4): a("v_mov_b32 v%d, 0" % (AC + r))
    a("v_lshlrev_b32 v13, 10, v8\nv_lshl_add_u32 v13, v9, 4, v13")
    a("s_lshl_b32 %s, %s, 2\ns_add_u32 %s, %s, %s\ns_lshl_b32 %s, %s, 12\ns_lshl_b32 %s, %s, 5\ns_add_u32 %s, %s, %s\ns_add_u32 s93, %s, %d" % (
        sT0, sCB, sT0, sT0, sW, sT0, sT0, sT1, sTEAM, sT0, sT0, sT1, sT0, W_F))
    a("v_mov_b32 v14, 0xffffff00")
    a("s_and_b32 s94, %s, 0xff\ns_bfe_u32 s95, %s, 0x80008\ns_bfe_u32 s96, %s, 0x80010\ns_lshr_b32 s97, %s, 24" % (sTAG, sTAG, sTAG, sTAG))
    for s in range(0, 12, 2):
        if s == 8:
            a("s_cmp_eq_u32 %s, 32\ns_cbranch_scc1 L_s2_v8" % sNS2)
        a("s_add_u32 %s, %s, %d" % (sTH, sB2, 4 * s + 8))
        lds_wait_ge(F_PROG, sTH, cache=sSEEN)
        for q in range(4):
            a("ds_read_b64_tr_b16 v[%d:%d], v10 offset:%d" % (WF + 4 * s + 2 * q, WF + 4 * s + 2 * q + 1, s * 4096 + q * 2048))
    def s2_tail(n, nthr):
        stamp(5)
        lds_wait_ge(F_VRDY, str(nthr))
        stamp(6)
        for s in range(n):
            a("ds_read2_b64 v[%d:%d], v11 offset0:%d offset1:%d" % (VF + 4 * s, VF + 4 * s + 3, 8 * s, 8 * s + 4))
        for s in range(n):
            a("s_waitcnt lgkmcnt(%d)" % (n - 1 - s))
            a("v_mfma_f32_16x16x32_bf16 v[%d:%d], v[%d:%d], v[%d:%d], v[%d:%d]" % (AC, AC + 3, WF + 4 * s, WF + 4 * s + 3, VF + 4 * s, VF + 4 * s + 3, AC, AC + 3))
    s2_tail(12, 3)
    a("s_branch L_s2_pub")
    a("L_s2_v8:")
    s2_tail(8, 4)
    a("L_s2_pub:")
    a("v_cmp_gt_u32 vcc, 2, v9\ns_and_saveexec_b64 s[46:47], vcc")
    a("s_nop 6")
    for r in range(4):
        a("v_and_or_b32 v%d, v%d, v14, s%d" % (AC + r, AC + r, 94 + r))
    a("buffer_store_dwordx4 v[%d:%d], v13, %s, s93 offen sc1" % (AC, AC + 3, srd(RW)))
    a("L_w_end:")
    stamp(7)
    stamps_out()
    a("s_endpgm")
    for nm, off in (("L_slab_c1", F_C1), ("L_slab_c2", F_C2)):
        a("%s:" % nm)
        a("s_mov_b64 exec, 1\nds_add_u32 v3, v14 offset:%d\ns_mov_b64 exec, -1\ns_branch L_slab_n" % off)

    sA = "s90"
    sTH = "s92"
    a("L_att:")
    a("s_sub_u32 %s, %s, 5" % (sA, sWV))
    a("s_cmp_lg_u32 %s, 0\ns_cbranch_scc1 L_a_noep" % sA)
    a("buffer_load_dword v4, v3, %s, 0 offen sc1" % srd(RW))
    a("s_waitcnt vmcnt(0)")
    a("v_readfirstlane_b32 %s, v4" % sTAG)
    a("s_mul_i32 %s, %s, 1664525\ns_add_u32 %s, %s, 1013904223" % (sTAG, sTAG, sTAG, sTAG))
    a("v_mov_b32 v4, %s\nv_mov_b32 v5, 1" % sTAG)
    a("ds_write_b64 v3, v[4:5] offset:%d" % F_TAG)
    a("L_a_noep:")
    a("v_lshrrev_b32 v10, 2, v9\nv_mul_u32_u24 v10, %d, v10" % KP)
    a("v_and_b32 v11, 3, v0\nv_lshl_add_u32 v10, v11, 8, v10\nv_xor_b32 v11, v11, v8\nv_lshl_add_u32 v10, v11, 4, v10")
    a("s_mul_i32 %s, %s, %d\ns_add_u32 %s, %s, %d\nv_add_u32 v10, %s, v10" % (sT0, sA, 8 * KP, sT0, sT0, RK, sT0))
    a("v_mul_u32_u24 v12, %d, v8" % VP)
    a("v_lshrrev_b32 v11, 2, v9\nv_lshl_add_u32 v12, v11, 8, v12\nv_lshl_add_u32 v12, v11, 5, v12")
    a("v_and_b32 v11, 3, v0\nv_lshl_add_u32 v12, v11, 3, v12")
    a("s_mul_i32 %s, %s, %d\ns_add_u32 %s, %s, %d\nv_add_u32 v12, %s, v12" % (sT0, sA, 8 * VP, sT0, sT0, RV, sT0))
    a("v_xor_b32 v13, 32, v12\nv_xor_b32 v14, 64, v12\nv_xor_b32 v15, 0x60, v12")
    KF, VF, QF, SC, OA = 16, 48, 80, 96, 16
    a("s_lshl_b32 %s, %s, 3\ns_add_u32 %s, %s, %s\ns_add_u32 %s, %s, 8" % (sTH, sA, sTH, sTH, sBK, sTH, sTH))
    lds_wait_ge(F_PROG, sTH, cache=sSEEN)
    for t in range(2):
        for c in range(4):
            a("ds_read_b128 v[%d:%d], v10 offset:%d" % (KF + 16 * t + 4 * c, KF + 16 * t + 4 * c + 3, t * 4 * KP + c * 64))
    stamp(1)
    get_tag()
    a("s_cmp_lg_u32 %s, 0\ns_cbranch_scc1 L_a_qwait" % sA)
    a("s_add_u32 %s, %s, %d" % (sT0, sBK, o.qpoll))
    a("s_cmp_eq_u32 %s, 0\ns_cselect_b32 %s, 0, %s" % (sBS, sT0, sT0))
    lds_wait_ge(F_PROG, sT0, cache=sSEEN)
    a("v_lshlrev_b32 v11, 9, v8\nv_lshl_add_u32 v11, v9, 4, v11")
    a("s_lshl_b32 %s, %s, 11\ns_lshr_b32 %s, %s, 3\ns_lshl_b32 %s, %s, 8\ns_add_u32 %s, %s, %s\ns_add_u32 %s, %s, %d" % (sT0, sG, sT1, sI, sT1, sT1, sT0, sT0, sT1, sT0, sT0, W_S1))
    a("s_mov_b32 %s, 0" % sTMO)
    a("L_a_qpoll:")
    a("buffer_load_dwordx4 v[4:7], v11, %s, %s offen sc1" % (srd(RW), sT0))
    a("s_add_u32 %s, %s, 1\ns_cmp_gt_u32 %s, 0x8000\ns_cbranch_scc1 L_a_qok" % (sTMO, sTMO, sTMO))
    a("s_waitcnt vmcnt(0)")
    a("v_cmp_ne_u32 vcc, %s, v6\ns_cbranch_vccnz L_a_qpoll" % sTAG)
    a("L_a_qok:")
    a("s_waitcnt vmcnt(0)")
    a("v_lshlrev_b32 v11, 3, v0\nv_mov_b32 v6, 1")
    a("ds_write_b64 v11, v[4:5] offset:%d" % QV)
    a("ds_write_b32 v3, v6 offset:%d" % F_QRDY)
    a("L_a_qwait:")
    lds_wait_ge(F_QRDY, "1")
    stamp(2)
    a("v_and_b32 v11, 1, v0\nv_lshlrev_b32 v11, 8, v11\nv_lshl_add_u32 v11, v8, 4, v11")
    for c in range(4):
        a("ds_read_b128 v[%d:%d], v11 offset:%d" % (QF + 4 * c, QF + 4 * c + 3, QV + c * 64))
    for r in range(8): a("v_mov_b32 v%d, 0" % (SC + r))
    a("s_waitcnt lgkmcnt(0)")
    for c in range(4):
        for t in range(2):
            a("v_mfma_f32_16x16x32_bf16 v[%d:%d], v[%d:%d], v[%d:%d], v[%d:%d]" % (
                SC + 4 * t, SC + 4 * t + 3, KF + 16 * t + 4 * c, KF + 16 * t + 4 * c + 3, QF + 4 * c, QF + 4 * c + 3, SC + 4 * t, SC + 4 * t + 3))
    a("s_mov_b32 %s, 0xffff0000\ns_mov_b32 %s, 0x3db504f3\ns_mov_b32 %s, 0x3fb8aa3b" % (sT0, sT1, sT2))
    a("s_nop 7")
    for k in range(0, 8, 2):
        a("v_cvt_pk_bf16_f32 v4, v%d, v%d" % (SC + k, SC + k + 1))
        a("v_and_b32 v5, %s, v4\nv_lshlrev_b32 v4, 16, v4" % sT0)
        a("v_mul_f32 v4, %s, v4\nv_mul_f32 v5, %s, v5" % (sT1, sT1))
        a("v_cvt_pk_bf16_f32 v4, v4, v5")
        a("v_and_b32 v%d, %s, v4\nv_lshlrev_b32 v%d, 16, v4" % (SC + k + 1, sT0, SC + k))
    a("v_max3_f32 v4, v%d, v%d, v%d\nv_max3_f32 v5, v%d, v%d, v%d\nv_max3_f32 v4, v4, v%d, v%d\nv_max_f32 v4, v4, v5" % tuple(SC + k for k in range(8)))
    def rows_allreduce(op, v, t):
        a("v_mov_b32 %s, %s\ns_nop 1\nv_permlane16_swap_b32 %s, %s\n%s %s, %s, %s" % (t, v, v, t, op, v, v, t))
        a("v_mov_b32 %s, %s\ns_nop 1\nv_permlane32_swap_b32 %s, %s\n%s %s, %s, %s" % (t, v, v, t, op, v, v, t))
    rows_allreduce("v_max_f32", "v4", "v5")
    a("v_mul_f32 v4, %s, v4" % sT2)
    for k in range(8):
        a("v_fma_f32 v%d, v%d, %s, -v4" % (SC + k, SC + k, sT2))
    for k in range(8):
        a("v_exp_f32 v%d, v%d" % (SC + k, SC + k))
    a("s_nop 0")
    a("v_add_f32 v5, v%d, v%d\nv_add_f32 v6, v%d, v%d" % (SC, SC + 1, SC + 2, SC + 3))
    a("v_add_f32 v5, v5, v%d\nv_add_f32 v6, v6, v%d\nv_add_f32 v5, v5, v%d\nv_add_f32 v6, v6, v%d\nv_add_f32 v5, v5, v6" % (SC + 4, SC + 5, SC + 6, SC + 7))
    rows_allreduce("v_add_f32", "v5", "v6")
    PF = 104
    for k in range(4):
        a("v_cvt_pk_bf16_f32 v%d, v%d, v%d" % (PF + k, SC + 2 * k, SC + 2 * k + 1))
    for r in range(32): a("v_mov_b32 v%d, 0" % (OA + r))
    stamp(3)
    a("s_add_u32 %s, %s, 32" % (sTH, sTH))
    lds_wait_ge(F_PROG, sTH, cache=sSEEN, vt="v6")
    for db in range(8):
        dh, dl = db >> 2, db & 3
        for t in range(2):
            a("ds_read_b64_tr_b16 v[%d:%d], v%d offset:%d" % (VF + 4 * db + 2 * t, VF + 4 * db + 2 * t + 1, 12 + dl, dh * 128 + t * 4 * VP))
    for db in range(8):
        a("s_waitcnt lgkmcnt(%d)" % min(15, 14 - 2 * db))
        a("v_mfma_f32_16x16x32_bf16 v[%d:%d], v[%d:%d], v[%d:%d], v[%d:%d]" % (
            OA + 4 * db, OA + 4 * db + 3, VF + 4 * db, VF + 4 * db + 3, PF, PF + 3, OA + 4 * db, OA + 4 * db + 3))
    a("v_lshlrev_b32 v11, 9, v9\nv_lshl_add_u32 v11, v8, 4, v11")
    a("s_lshl_b32 %s, %s, 10\nv_add_u32 v11, %s, v11" % (sT3, sA, sT3))
    a("v_lshlrev_b32 v10, 3, v9\ns_lshl_b32 %s, %s, 4\nv_add_u32 v10, %s, v10" % (sT3, sA, sT3))
    a("v_cmp_gt_u32 vcc, 2, v9\ns_and_saveexec_b64 s[46:47], vcc")
    a("ds_write_b64 v10, v[4:5] offset:%d" % ML)
    a("s_nop 1")
    for db in range(8):
        a("ds_write_b128 v11, v[%d:%d] offset:%d" % (OA + 4 * db, OA + 4 * db + 3, OPART + db * 64))
    a("s_mov_b64 exec, 1\nv_mov_b32 v6, 1")
    a("ds_add_rtn_u32 v6, v3, v6 offset:%d" % F_ACNT)
    a("s_mov_b64 exec, -1")
    a("s_waitcnt lgkmcnt(0)")
    a("v_readfirstlane_b32 %s, v6" % sT3)
    a("s_cmp_lg_u32 %s, 3\ns_cbranch_scc1 L_a_prep" % sT3)
    a("v_lshlrev_b32 v11, 4, v0")
    a("v_lshrrev_b32 v10, 5, v0\nv_lshlrev_b32 v10, 3, v10")
    for k in range(4):
        a("ds_read_b64 v[%d:%d], v10 offset:%d" % (48 + 2 * k, 49 + 2 * k, ML + 16 * k))
    for k in range(4):
        a("ds_read_b128 v[%d:%d], v11 offset:%d" % (16 + 4 * k, 19 + 4 * k, OPART + 1024 * k))
    a("s_waitcnt lgkmcnt(4)")
    a("v_max3_f32 v4, v48, v50, v52\nv_max_f32 v4, v4, v54")
    for k in range(4): a("v_sub_f32 v%d, v%d, v4" % (48 + 2 * k, 48 + 2 * k))
    for k in range(4): a("v_exp_f32 v%d, v%d" % (48 + 2 * k, 48 + 2 * k))
    a("s_nop 0")
    a("v_mul_f32 v5, v48, v49\nv_fmac_f32 v5, v50, v51\nv_fmac_f32 v5, v52, v53\nv_fmac_f32 v5, v54, v55")
    a("v_rcp_f32 v6, v5\nv_log_f32 v7, v5")
    a("s_waitcnt lgkmcnt(0)")
    for r in range(4):
        a("v_mul_f32 v%d, v48, v%d" % (32 + r, 16 + r))
        for k in range(1, 4): a("v_fmac_f32 v%d, v%d, v%d" % (32 + r, 48 + 2 * k, 16 + 4 * k + r))
        a("v_mul_f32 v%d, v%d, v6" % (32 + r, 32 + r))
    a("v_add_f32 v39, v4, v7")
    a("v_cvt_pk_bf16_f32 v36, v32, v33\nv_cvt_pk_bf16_f32 v37, v34, v35\nv_mov_b32 v38, %s" % sTAG)
    a("s_lshl_b32 %s, %s, 4\ns_add_u32 %s, %s, %s\ns_lshl_b32 %s, %s, 10\ns_add_u32 %s, %s, %d" % (sT0, sG, sT0, sT0, sI, sT0, sT0, sT0, sT0, W_O))
    a("buffer_store_dwordx4 v[36:39], v11, %s, %s offen sc1" % (srd(RW), sT0))
    a("L_a_prep:")
    stamp(4)
    a("s_cmp_eq_u32 %s, 0\ns_cbranch_scc1 L_a_red" % sNS2)
    a("s_cmp_ge_u32 %s, 16\ns_cbranch_scc1 L_a_hprep" % sTEAM)
    a("s_mov_b32 %s, %d" % (sT0, o.opoll))
    lds_wait_ge(F_PROG, sT0, cache=sSEEN)
    a("s_mov_b32 exec_hi, 0")
    a("v_lshlrev_b32 v11, 4, v0")
    a("s_lshl_b32 %s, %s, 14\ns_lshr_b32 %s, %s, 1\ns_lshl_b32 %s, %s, 13\ns_add_u32 %s, %s, %s" % (sT0, sG, sT1, sA, sT1, sT1, sT0, sT0, sT1))
    a("s_and_b32 %s, %s, 1\ns_lshl_b32 %s, %s, 9\ns_add_u32 %s, %s, %s\ns_add_u32 %s, %s, %d" % (sT1, sA, sT1, sT1, sT0, sT0, sT1, sT0, sT0, W_O))
    a("s_add_u32 %s, %s, 4096" % (sT1, sT0))
    a("s_mov_b32 %s, 0" % sTMO)
    def oloads(fl):
        for s in range(8):
            a("buffer_load_dwordx4 v[%d:%d], v11, %s, %s offen offset:%d %s" % (16 + 4 * s, 19 + 4 * s, srd(RW), sT0 if s < 4 else sT1, (s & 3) * 1024, fl))
    if o.oplain:
        oloads("")
        a("s_branch L_a_ochk")
    a("L_a_opoll:")
    oloads("sc1")
    a("L_a_ochk:")
    a("s_add_u32 %s, %s, 1\ns_cmp_gt_u32 %s, 0x8000\ns_cbranch_scc1 L_a_ook" % (sTMO, sTMO, sTMO))
    a("s_waitcnt vmcnt(0)")
    a("v_xor_b32 v4, %s, v18" % sTAG)
    for s in range(1, 8):
        a("v_xor_b32 v5, %s, v%d\nv_or_b32 v4, v4, v5" % (sTAG, 18 + 4 * s))
    a("v_cmp_ne_u32 vcc, 0, v4\ns_cbranch_vccnz L_a_opoll")
    a("L_a_ook:")
    a("s_waitcnt vmcnt(0)")
    stamp(5)
    a("v_max3_f32 v4, v19, v23, v27\nv_max3_f32 v5, v31, v35, v39\nv_max3_f32 v4, v4, v43, v47\nv_max_f32 v4, v4, v5")
    for s in range(8): a("v_sub_f32 v%d, v%d, v4" % (19 + 4 * s, 19 + 4 * s))
    for s in range(8): a("v_exp_f32 v%d, v%d" % (19 + 4 * s, 19 + 4 * s))
    a("s_mov_b32 %s, 0xffff0000" % sT0)
    for r in range(4): a("v_mov_b32 v%d, 0" % (48 + r))
    a("v_mov_b32 v5, 0")
    for s in range(8):
        w = 19 + 4 * s
        a("v_add_f32 v5, v5, v%d" % w)
        a("v_lshlrev_b32 v6, 16, v%d\nv_and_b32 v7, %s, v%d\nv_fmac_f32 v48, v%d, v6\nv_fmac_f32 v49, v%d, v7" % (16 + 4 * s, sT0, 16 + 4 * s, w, w))
        a("v_lshlrev_b32 v6, 16, v%d\nv_and_b32 v7, %s, v%d\nv_fmac_f32 v50, v%d, v6\nv_fmac_f32 v51, v%d, v7" % (17 + 4 * s, sT0, 17 + 4 * s, w, w))
    a("v_rcp_f32 v5, v5\ns_nop 0")
    for r in range(4): a("v_mul_f32 v%d, v%d, v5" % (48 + r, 48 + r))
    a("v_cvt_pk_bf16_f32 v4, v48, v49\nv_cvt_pk_bf16_f32 v5, v50, v51")
    a("s_lshr_b32 %s, %s, 1\ns_mul_i32 %s, %s, %d\ns_and_b32 %s, %s, 1\ns_lshl_b32 %s, %s, 8\ns_add_u32 %s, %s, %s" % (sT0, sA, sT0, sT0, VEC2_P, sT1, sA, sT1, sT1, sT0, sT0, sT1))
    a("v_lshlrev_b32 v11, 3, v0\nv_add_u32 v11, %s, v11" % sT0)
    a("ds_write_b64 v11, v[4:5] offset:%d" % VEC2)
    a("s_mov_b64 exec, 1\nv_mov_b32 v6, 1\nds_add_u32 v3, v6 offset:%d\ns_mov_b64 exec, -1" % F_VRDY)
    a("s_branch L_a_end")
    a("L_a_hprep:")
    a("s_cmp_ge_u32 %s, 3\ns_cbranch_scc1 L_a_red" % sA)
    a("s_add_u32 %s, %s, %d" % (sT0, sB2, o.hpoll))
    lds_wait_ge(F_PROG, sT0, cache=sSEEN)
    a("v_lshlrev_b32 v11, 4, v0")
    a("s_mul_i32 %s, %s, 3072\ns_lshl_b32 %s, %s, 10\ns_add_u32 %s, %s, %s\ns_add_u32 %s, %s, %d" % (sT0, sTEAM, sT1, sA, sT0, sT0, sT1, sT0, sT0, W_S1 + 64 * 512 - 16 * 3072))
    a("s_add_u32 %s, %s, %d" % (sT1, sT0, 72 * 512))
    a("v_and_b32 v10, 1, v8\nv_mul_u32_u24 v10, %d, v10\nv_lshl_add_u32 v10, v9, 3, v10" % VEC2_P)
    a("v_lshrrev_b32 v12, 5, v0\nv_lshl_add_u32 v10, v12, 7, v10\ns_lshl_b32 %s, %s, 8\nv_add_u32 v10, %s, v10" % (sT2, sA, sT2))
    a("s_mov_b32 %s, 0" % sTMO)
    a("L_a_hpoll:")
    a("buffer_load_dwordx4 v[16:19], v11, %s, %s offen sc1" % (srd(RW), sT0))
    a("buffer_load_dwordx4 v[20:23], v11, %s, %s offen sc1" % (srd(RW), sT1))
    a("s_add_u32 %s, %s, 1\ns_cmp_gt_u32 %s, 0x8000\ns_cbranch_scc1 L_a_hok" % (sTMO, sTMO, sTMO))
    a("s_waitcnt vmcnt(0)")
    a("v_xor_b32 v4, %s, v18\nv_xor_b32 v5, %s, v22\nv_or_b32 v4, v4, v5" % (sTAG, sTAG))
    a("v_cmp_ne_u32 vcc, 0, v4\ns_and_b64 exec, exec, vcc\ns_cbranch_vccnz L_a_hpoll")
    a("L_a_hok:")
    a("s_mov_b64 exec, -1")
    a("s_waitcnt vmcnt(0)")
    stamp(5)
    a("s_mov_b32 %s, 0xffff0000" % sT0)
    a("v_lshlrev_b32 v24, 16, v16\nv_and_b32 v25, %s, v16\nv_lshlrev_b32 v26, 16, v17\nv_and_b32 v27, %s, v17" % (sT0, sT0))
    a("v_lshlrev_b32 v28, 16, v20\nv_and_b32 v29, %s, v20\nv_lshlrev_b32 v30, 16, v21\nv_and_b32 v31, %s, v21" % (sT0, sT0))
    import math, struct
    c1 = -2.0 * math.sqrt(2.0 / math.pi) * math.log2(math.e)
    f2u = lambda f: struct.unpack("<I", struct.pack("<f", f))[0]
    a("s_mov_b32 %s, 0x%08x\nv_mov_b32 v4, 0x%08x" % (sT1, f2u(c1 * 0.044715), f2u(c1)))
    for r in range(4): a("v_mul_f32 v%d, v%d, v%d" % (32 + r, 24 + r, 24 + r))
    for r in range(4): a("v_fma_f32 v%d, v%d, %s, v4" % (32 + r, 32 + r, sT1))
    for r in range(4): a("v_mul_f32 v%d, v%d, v%d" % (32 + r, 32 + r, 24 + r))
    for r in range(4): a("v_exp_f32 v%d, v%d" % (32 + r, 32 + r))
    a("s_nop 0")
    for r in range(4): a("v_add_f32 v%d, 1.0, v%d" % (32 + r, 32 + r))
    for r in range(4): a("v_rcp_f32 v%d, v%d" % (32 + r, 32 + r))
    a("s_nop 0")
    for r in range(4): a("v_mul_f32 v%d, v%d, v%d" % (32 + r, 32 + r, 24 + r))
    a("v_cvt_pk_bf16_f32 v4, v32, v33\nv_cvt_pk_bf16_f32 v5, v34, v35")
    a("v_lshlrev_b32 v32, 16, v4\nv_and_b32 v33, %s, v4\nv_lshlrev_b32 v34, 16, v5\nv_and_b32 v35, %s, v5" % (sT0, sT0))
    for r in range(4): a("v_mul_f32 v%d, v%d, v%d" % (32 + r, 32 + r, 28 + r))
    a("v_cvt_pk_bf16_f32 v4, v32, v33\nv_cvt_pk_bf16_f32 v5, v34, v35")
    a("ds_write_b64 v10, v[4:5] offset:%d" % VEC2)
    a("s_mov_b64 exec, 1\nv_mov_b32 v6, 1\nds_add_u32 v3, v6 offset:%d\ns_mov_b64 exec, -1" % F_VRDY)
    a("L_a_red:")
    stamp(6)
    a("s_cmp_lg_u32 %s, 2\ns_cbranch_scc1 L_a_end" % sTY)
    a("s_mul_i32 %s, %s, 3\ns_add_u32 %s, %s, %s\ns_sub_u32 %s, %s, 13" % (sT0, sG, sT0, sT0, sI, sT0, sT0))
    a("s_cmp_ge_u32 %s, 36\ns_cbranch_scc1 L_a_end" % sT0)
    a("s_lshl_b32 %s, %s, 2\ns_add_u32 s93, %s, %s" % (sT0, sT0, sT0, sA))
    mk_srd(R0, 4, 2304)
    mk_srd(R1, 22, 2304)
    a("v_and_b32 v12, 1, v0\nv_mul_u32_u24 v12, 1152, v12\ns_lshl_b32 s98, s93, 3")
    a("buffer_load_dwordx2 v[14:15], v12, %s, s98 offen" % srd(R0))
    a("s_lshl_b32 %s, s93, 10\ns_add_u32 %s, %s, %d" % (sT0, sT0, sT0, W_F))
    a("v_lshlrev_b32 v11, 4, v0")
    a("s_and_b32 s94, %s, 0xff\ns_bfe_u32 s95, %s, 0x80008\ns_bfe_u32 s96, %s, 0x80010\ns_lshr_b32 s97, %s, 24" % (sTAG, sTAG, sTAG, sTAG))
    for r in range(4): a("v_mov_b32 v%d, 0" % (16 + r))
    a("s_mov_b32 exec_hi, 0x00ffffff")
    a("s_mov_b32 %s, 0" % sTMO)
    a("L_a_fpoll:")
    a("buffer_load_dwordx4 v[16:19], v11, %s, %s offen sc1" % (srd(RW), sT0))
    a("s_add_u32 %s, %s, 1\ns_cmp_gt_u32 %s, 0x8000\ns_cbranch_scc1 L_a_fok" % (sTMO, sTMO, sTMO))
    a("s_waitcnt vmcnt(0)")
    a("v_xor_b32 v4, s94, v16\nv_xor_b32 v5, s95, v17\nv_xor_b32 v6, s96, v18\nv_xor_b32 v7, s97, v19")
    a("v_or3_b32 v4, v4, v5, v6\nv_or_b32 v4, v4, v7\nv_and_b32 v4, 0xff, v4")
    a("v_cmp_ne_u32 vcc, 0, v4\ns_and_b64 exec, exec, vcc\ns_cbranch_vccnz L_a_fpoll")
    a("L_a_fok:")
    a("s_mov_b64 exec, -1")
    a("s_waitcnt vmcnt(0)")
    stamp(7)
    for dp in ("quad_perm:[2,3,0,1]", "row_ror:4", "row_ror:8"):
        for r in range(4):
            a("v_add_f32_dpp v%d, v%d, v%d %s row_mask:0xf bank_mask:0xf" % (16 + r, 16 + r, 16 + r, dp))
    for r in range(4): a("v_mov_b32 v%d, v%d" % (20 + r, 16 + r))
    for r in range(4): a("v_permlane16_swap_b32 v%d, v%d" % (16 + r, 20 + r))
    for r in range(4): a("v_add_f32 v%d, v%d, v%d" % (16 + r, 16 + r, 20 + r))
    a("v_cvt_pk_bf16_f32 v16, v16, v17\nv_cvt_pk_bf16_f32 v17, v18, v19")
    a("v_mov_b32 v18, v16\nv_mov_b32 v19, v17\ns_mov_b32 %s, 0xffff0000\ns_nop 0" % sT1)
    a("v_permlane32_swap_b32 v16, v18\nv_permlane32_swap_b32 v17, v19")
    for k in range(2):
        a("v_lshlrev_b32 v4, 16, v%d\nv_and_b32 v5, %s, v%d" % (14 + k, sT1, 14 + k))
        a("v_lshlrev_b32 v6, 16, v%d\nv_and_b32 v7, %s, v%d" % (16 + k, sT1, 16 + k))
        a("v_add_f32 v4, v4, v6\nv_add_f32 v5, v5, v7\nv_cvt_pk_bf16_f32 v4, v4, v5")
        a("v_and_b32 v5, %s, v4\nv_lshlrev_b32 v4, 16, v4" % sT1)
        a("v_lshlrev_b32 v6, 16, v%d\nv_and_b32 v7, %s, v%d" % (18 + k, sT1, 18 + k))
        a("v_add_f32 v4, v4, v6\nv_add_f32 v5, v5, v7\nv_cvt_pk_bf16_f32 v%d, v4, v5" % (20 + k))
    a("s_mov_b64 exec, 3")
    a("buffer_store_dwordx2 v[20:21], v12, %s, s98 offen" % srd(R1))
    a("s_cmp_lg_u32 s93, 0\ns_cbranch_scc1 L_a_end")
    a("s_mov_b64 exec, 1\nv_mov_b32 v4, %s" % sTAG)
    a("buffer_store_dword v4, v3, %s, 0 offen sc1" % srd(RW))
    a("L_a_end:")
    stamps_out()
    a("L_end:")
    a("s_endpgm")

    hdr = open(__file__.replace("gen.py", "header.txt")).read()
    hdr += "; @launch grid=(256,1,1) block=(576,1,1) lds=%d\n" % LDS_TOTAL
    hdr += '.amdgcn_target "amdgcn-amd-amdhsa--gfx950"\n.text\n.globl %s\n.p2align 8\n.type %s,@function\n' % (NAME, NAME)
    ftr = """.section .rodata,"a"
.p2align 6
.amdhsa_kernel %s
  .amdhsa_next_free_vgpr 128
  .amdhsa_next_free_sgpr 102
  .amdhsa_accum_offset 128
  .amdhsa_group_segment_fixed_size 0
  .amdhsa_kernarg_size 96
  .amdhsa_user_sgpr_count 2
  .amdhsa_user_sgpr_kernarg_segment_ptr 1
  .amdhsa_system_sgpr_workgroup_id_x 1
  .amdhsa_float_denorm_mode_32 3
.end_amdhsa_kernel
""" % NAME
    return hdr + a.text() + ftr

def parser():
    p = argparse.ArgumentParser()
    p.add_argument("-o", default="-")
    p.add_argument("--depth", type=int, default=32)
    p.add_argument("--depthq", type=int, default=32)
    p.add_argument("--diag", type=int, default=0)
    p.add_argument("--gumap", type=int, default=0)
    p.add_argument("--gfirst", type=int, default=0)
    p.add_argument("--qpoll", type=int, default=48)
    p.add_argument("--opoll", type=int, default=120)
    p.add_argument("--hpoll", type=int, default=0)
    p.add_argument("--oplain", type=int, default=0)
    p.add_argument("--ldonly", type=int, default=0)
    p.add_argument("--pol", default="nt")
    p.add_argument("--tlb", type=int, default=0)
    p.add_argument("--sleep", type=int, default=0)
    return p

if __name__ == "__main__":
    o = parser().parse_args()
    t = gen(o)
    if o.o == "-": sys.stdout.write(t)
    else: open(o.o, "w").write(t)
```

```python
import sys, argparse

NAME = "parallel_sum__sliding_block_cached__geglu_ffn__decode_kernel"

class Asm:
    def __init__(self):
        self.lines = []
        self.n = 0
    def __call__(self, s):
        for ln in s.strip("\n").split("\n"):
            ln = ln.strip()
            if not ln: continue
            if ln.endswith(":"): self.lines.append(ln)
            else: self.lines.append("    " + ln)
    def lab(self, p="L"):
        self.n += 1
        return "%s_%d" % (p, self.n)
    def text(self): return "\n".join(self.lines) + "\n"

F_PROG, F_TAG, F_QRDY, F_ACNT, F_VRDY, F_C1, F_C2 = 0, 8, 16, 20, 24, 28, 32
XN, XN_P = 256, 1152
QV = 2560
VEC2, VEC2_P = 3072, 1280
ML = 5632
OPART = 5888
RA = 10240
RK = RA + 72 * 1024
KP = 1088
RV = RK + 32 * KP
VP = 1152
LDS_TOTAL = RV + 32 * VP
W_EPOCH = 0
W_S1 = 4096
W_O = W_S1 + 208 * 512
W_F = W_O + 256 * 1024
W_END = W_F + 144 * 1024
W_DIAG = 1 << 20

def gen(o):
    a = Asm()
    D = o.depth
    DQ = o.depthq
    diag = o.diag
    sG, sI, sWV, sTY = "s28", "s29", "s30", "s31"
    sU = "s32"
    sTEAM, sCB, sNS2 = "s33", "s34", "s35"
    sBS, sBK, sB2 = "s36", "s37", "s38"
    sT0, sT1, sT2, sT3 = "s39", "s40", "s41", "s42"
    sSEEN, sTMO, sTAG = "s43", "s44", "s45"
    R0, R1, R2, R3 = 48, 52, 56, 60
    RW = 64
    ST = 72
    def srd(r): return "s[%d:%d]" % (r, r + 3)
    def mk_srd(r, lo, size):
        a("s_mov_b32 s%d, s%d\ns_mov_b32 s%d, s%d\ns_mov_b32 s%d, 0x%x\ns_mov_b32 s%d, 0x00020000" % (r, lo, r + 1, lo + 1, r + 2, size, r + 3))
    def stamp(k):
        if diag: a("s_memrealtime s[%d:%d]" % (ST + 2 * k, ST + 2 * k + 1))
    def stamps_out(role=0):
        if not diag: return
        if diag == 2:
            a("s_waitcnt lgkmcnt(0)")
            a("s_mov_b64 exec, 1")
            a("s_not_b32 %s, s%d" % (sT0, ST))
            a("v_mov_b32 v4, %s\nglobal_atomic_umax v3, v4, s[24:25]" % sT0)
            sel = {0: [(0, 1), (1, 2), (3, 3)], 1: [(1, 4), (3, 5), (5, 6), (7, 7)], 2: [(1, 8), (2, 9), (4, 10), (5, 11), (7, 12)]}[role]
            for k, wd in sel:
                a("v_mov_b32 v4, s%d\nglobal_atomic_umax v3, v4, s[24:25] offset:%d" % (ST + 2 * k, 4 * wd))
            if role == 0:
                Lq = a.lab("LC")
                a("s_cmp_lg_u32 s2, 0\ns_cbranch_scc1 %s" % Lq)
                a("s_memtime s[98:99]\ns_waitcnt lgkmcnt(0)\ns_sub_u32 %s, s98, s100\nv_mov_b32 v4, %s" % (sT0, sT0))
                a("global_store_dword v3, v4, s[24:25] offset:56")
                a("s_sub_u32 %s, s%d, s%d\nv_mov_b32 v4, %s\nglobal_store_dword v3, v4, s[24:25] offset:60" % (sT0, ST + 6, ST, sT0))
                a("%s:" % Lq)
            return
        a("s_waitcnt lgkmcnt(0)")
        a("s_mov_b64 exec, -1")
        a("s_lshl_b32 %s, s2, 4\ns_add_u32 %s, %s, %s\ns_lshl_b32 %s, %s, 6\ns_add_u32 %s, %s, 0x%x" % (sT0, sT0, sT0, sWV, sT0, sT0, sT0, sT0, W_DIAG))
        a("v_mov_b32 v1, %s" % sT0)
        for k in range(4):
            for j in range(4): a("v_mov_b32 v%d, s%d" % (4 + j, ST + 4 * k + j))
            a("global_store_dwordx4 v1, v[4:7], s[26:27] offset:%d" % (16 * k))
            a("s_nop 1")
    def lds_wait_ge(off, thr, cache=None, vt="v2", vz="v3"):
        L, E = a.lab("LW"), a.lab("LE")
        c = cache or sT3
        if cache:
            a("s_cmp_ge_i32 %s, %s\ns_cbranch_scc1 %s" % (c, thr, E))
        a("s_mov_b32 %s, 0" % sTMO)
        a("%s:" % L)
        if o.sleep: a("s_sleep %d" % o.sleep)
        a("ds_read_b32 %s, %s offset:%d" % (vt, vz, off))
        a("s_add_u32 %s, %s, 1" % (sTMO, sTMO))
        a("s_cmp_gt_u32 %s, 0x80000\ns_cbranch_scc1 %s" % (sTMO, E))
        a("s_waitcnt lgkmcnt(0)")
        a("v_readfirstlane_b32 %s, %s" % (c, vt))
        a("s_cmp_lt_i32 %s, %s\ns_cbranch_scc1 %s" % (c, thr, L))
        a("%s:" % E)
    def get_tag():
        L, E = a.lab("LT"), a.lab("LE")
        a("s_mov_b32 %s, 0" % sTMO)
        a("%s:" % L)
        a("ds_read_b64 v[4:5], v3 offset:%d" % F_TAG)
        a("s_add_u32 %s, %s, 1" % (sTMO, sTMO))
        a("s_waitcnt lgkmcnt(0)")
        a("v_readfirstlane_b32 %s, v4\nv_readfirstlane_b32 %s, v5" % (sTAG, sT3))
        a("s_cmp_gt_u32 %s, 0x80000\ns_cbranch_scc1 %s" % (sTMO, E))
        a("s_cmp_eq_u32 %s, 0\ns_cbranch_scc1 %s" % (sT3, L))
        a("%s:" % E)

    a("%s:" % NAME)
    stamp(0)
    if diag == 2: a("s_memtime s[100:101]")
    if diag:
        for k in range(1, 8): a("s_mov_b64 s[%d:%d], 0" % (ST + 2 * k, ST + 2 * k + 1))
    a("""
    s_load_dwordx16 s[4:19], s[0:1], 0
    s_load_dwordx8 s[20:27], s[0:1], 64
    s_cmp_ge_u32 s2, 256
    s_cbranch_scc1 L_end
    v_lshrrev_b32 v1, 6, v0
    v_and_b32 v0, 63, v0
    v_mov_b32 v3, 0
    """)
    a("v_readfirstlane_b32 %s, v1" % sWV)
    a("s_and_b32 %s, s2, 7\ns_lshl_b32 %s, %s, 1\ns_lshr_b32 %s, s2, 7\ns_add_u32 %s, %s, %s" % (sG, sG, sG, sT0, sG, sG, sT0))
    a("s_bfe_u32 %s, s2, 0x40003" % sI)
    a("s_mov_b32 %s, 0" % sTY)
    a("s_cmp_ge_u32 %s, 4\ns_addc_u32 %s, %s, 0" % (sI, sTY, sTY))
    a("s_cmp_ge_u32 %s, 13\ns_addc_u32 %s, %s, 0" % (sI, sTY, sTY))
    a("s_lshl_b32 %s, %s, 2\ns_add_u32 %s, %s, %s" % (sT0, sG, sT0, sT0, sI))
    if o.gumap == 0:
        a("s_mul_i32 %s, %s, 9\ns_add_u32 %s, %s, %s\ns_add_u32 %s, %s, 60" % (sT1, sG, sT1, sT1, sI, sT1, sT1))
    else:
        a("s_lshl_b32 %s, %s, 4\ns_add_u32 %s, %s, %s" % (sT1, sI, sT1, sT1, sG))
    a("s_cmp_eq_u32 %s, 0\ns_cselect_b32 %s, %s, %s" % (sTY, sU, sT0, sT1))
    a("s_mul_i32 %s, %s, 7\ns_add_u32 %s, %s, %s\ns_sub_u32 %s, %s, 9" % (sT0, sG, sT0, sT0, sI, sT0, sT0))
    a("s_mul_i32 %s, %s, 7282\ns_lshr_b32 %s, %s, 16" % (sT1, sT0, sT1, sT1))
    a("s_mul_i32 %s, %s, 9\ns_sub_u32 %s, %s, %s" % (sT2, sT1, sT2, sT0, sT2))
    a("s_cmp_lt_u32 %s, 12\ns_cselect_b32 %s, 48, 0" % (sT1, sNS2))
    a("s_add_u32 %s, %s, 16" % (sT1, sT1))
    a("s_cmp_lt_u32 %s, 9" % sI)
    a("s_cselect_b32 %s, %s, %s\ns_cselect_b32 %s, %s, %s\ns_cselect_b32 %s, 32, %s" % (sTEAM, sG, sT1, sCB, sI, sT2, sNS2, sNS2))
    if o.gfirst:
        a("s_cmp_le_u32 %s, 1" % sTY)
    else:
        a("s_cmp_eq_u32 %s, 0" % sTY)
    a("s_cselect_b32 %s, 0, 64\ns_cselect_b32 %s, 72, 0" % (sBS, sBK))
    a("s_cmp_eq_u32 %s, 2\ns_cselect_b32 %s, 64, 136" % (sTY, sB2))
    a("s_mov_b32 %s, -1000" % sSEEN)
    a("s_cmp_lg_u32 %s, 0\ns_cbranch_scc1 L_cons" % sWV)

    sOFF, sSTEP, sCNT, sISS, sDM = "s90", "s91", "s92", "s93", "s94"
    a("s_setprio 3")
    a("v_mov_b32 v4, 0\nv_mov_b32 v5, 0\nv_mov_b32 v6, 0\nv_mov_b32 v7, 0")
    a("v_lshlrev_b32 v2, 4, v0")
    a("ds_write_b128 v2, v[4:7]")
    a("""
    v_lshrrev_b32 v8, 3, v0
    v_lshrrev_b32 v9, 4, v0
    v_lshlrev_b32 v9, 1, v9
    v_and_b32 v10, 7, v0
    v_xor_b32 v10, v10, v9
    v_lshlrev_b32 v10, 4, v10
    """)
    a("s_cmp_eq_u32 %s, 0\ns_mov_b32 %s, 9216\ns_cselect_b32 %s, 8192, %s" % (sTY, sSTEP, sSTEP, sSTEP))
    a("v_mul_lo_u32 v11, v8, %s\nv_add_u32 v11, v11, v10" % sSTEP)
    a("v_mul_u32_u24 v12, 1152, v8\nv_add_u32 v12, v12, v10")
    a("""
    v_lshrrev_b32 v8, 4, v0
    v_xor_b32 v13, v0, v8
    v_lshlrev_b32 v13, 4, v13
    v_xor_b32 v14, v0, v9
    v_lshlrev_b32 v14, 4, v14
    """)
    a("s_mov_b32 %s, 0" % sISS)
    a("s_cmp_eq_u32 %s, 0\ns_cselect_b64 vcc, -1, 0\ns_cselect_b32 %s, %d, %d" % (sTY, sDM, DQ - 4, D - 4))
    a("s_waitcnt lgkmcnt(0)")
    a("s_barrier")
    a("s_cmp_ge_u32 %s, 136\ns_cselect_b32 s%d, s18, s16\ns_cselect_b32 s%d, s19, s17" % (sU, R0, R0 + 1))
    a("s_cselect_b32 %s, 136, 64" % sT0)
    a("s_cmp_eq_u32 %s, 0\ns_cselect_b32 s%d, s10, s%d\ns_cselect_b32 s%d, s11, s%d" % (sTY, R0, R0, R0 + 1, R0 + 1))
    a("s_cselect_b32 %s, 0, %s" % (sT0, sT0))
    a("s_mov_b32 s%d, 0x510000\ns_cselect_b32 s%d, 0x480000, s%d\ns_mov_b32 s%d, 0x00020000" % (R0 + 2, R0 + 2, R0 + 2, R0 + 3))
    a("s_sub_u32 %s, %s, %s\ns_lshl_b32 s95, %s, 7" % (sT0, sU, sT0, sT0))
    mk_srd(R1, 6, 0x2000000)
    mk_srd(R2, 8, 0x2000000)
    a("s_lshr_b32 %s, %s, 3\ns_lshl_b32 %s, %s, 4\ns_add_u32 %s, %s, %s\ns_lshl_b32 %s, %s, 20" % (sT0, sI, sT0, sT0, sT0, sT0, sG, sT0, sT0))
    a("s_and_b32 %s, %s, 7\ns_lshl_b32 %s, %s, 15\ns_add_u32 %s, %s, %s\ns_add_u32 s96, %s, 0xc0000" % (sT1, sI, sT1, sT1, sT0, sT0, sT1, sT0))

    def dma_loop(r, voff, pitch, step, groups_expr, check=None):
        L = a.lab("LD")
        a("%s:" % L)
        if check: check()
        for k in range(4):
            a("s_add_u32 m0, m0, %d" % pitch)
            a("s_add_u32 %s, %s, %s" % (sOFF, sOFF, step))
            a("buffer_load_dwordx4 %s, %s, %s offen %s lds" % (voff, srd(r), sOFF, o.pol))
        a("s_add_u32 %s, %s, 4" % (sISS, sISS))
        a("s_sub_u32 %s, %s, %s" % (sT0, sISS, sDM))
        a("v_mov_b32 v4, %s" % sT0)
        if DQ != D:
            L2, L3 = a.lab("LQ"), a.lab("LQ")
            a("s_cbranch_vccnz %s" % L2)
            a("s_waitcnt vmcnt(%d)" % (D - 4))
            a("%s:" % L2)
            a("s_waitcnt vmcnt(%d)" % (DQ - 4))
        else:
            a("s_waitcnt vmcnt(%d)" % (D - 4))
        a("ds_write_b32 v3, v4 offset:%d" % F_PROG)
        a("s_sub_u32 %s, %s, 1\ns_cmp_lg_u32 %s, 0\ns_cbranch_scc1 %s" % (sCNT, sCNT, sCNT, L))

    a("s_cmp_eq_u32 %s, 0\ns_cbranch_scc1 L_ld_slab" % sBS)
    a("L_ld_kv:")
    a("s_mov_b32 m0, %d\ns_sub_u32 %s, s96, 1024\ns_mov_b32 %s, 8" % (RK - KP, sOFF, sCNT))
    dma_loop(R1, "v13", KP, "1024", 8)
    a("s_mov_b32 m0, %d\ns_sub_u32 %s, s96, 1024\ns_mov_b32 %s, 8" % (RV - VP, sOFF, sCNT))
    dma_loop(R2, "v14", VP, "1024", 8)
    a("s_cmp_eq_u32 %s, 2\ns_cbranch_scc1 L_ld_s2" % sTY)
    a("s_cmp_eq_u32 %s, 0\ns_cbranch_scc1 L_ld_s2" % sBS)
    a("L_ld_slab:")
    a("s_lshl_b32 s97, %s, 3" % sSTEP)
    a("s_mov_b32 m0, %d\ns_sub_u32 %s, s95, s97\ns_mov_b32 %s, 18" % (RA - 1024, sOFF, sCNT))
    dma_loop(R0, "v11", 1024, "s97", 18)
    a("s_cmp_eq_u32 %s, 0\ns_cbranch_scc1 L_ld_kv" % sBS)
    a("L_ld_s2:")
    stamp(1)
    a("s_cmp_eq_u32 %s, 0\ns_cbranch_scc1 L_ld_drain" % sNS2)
    a("s_cmp_lt_u32 %s, 16" % sTEAM)
    a("s_cselect_b32 s%d, s12, s20\ns_cselect_b32 s%d, s13, s21\ns_mov_b32 s%d, 0x510000\ns_cselect_b32 s%d, 0x480000, s%d\ns_mov_b32 s%d, 0x00020000" % (R3, R3 + 1, R3 + 2, R3 + 2, R3 + 2, R3 + 3))
    a("s_mov_b32 %s, %d\ns_cselect_b32 %s, %d, %s" % (sT0, 384 * 1152, sT0, 256 * 1152, sT0))
    a("s_and_b32 %s, %s, 15\ns_mul_i32 %s, %s, %s" % (sT1, sTEAM, sOFF, sT0, sT1))
    a("s_lshl_b32 %s, %s, 7\ns_add_u32 %s, %s, %s\ns_sub_u32 %s, %s, %d" % (sT1, sCB, sOFF, sOFF, sT1, sOFF, sOFF, 8 * 1152))
    a("s_mov_b32 m0, %d" % (RA - 1024))
    a("s_cmp_eq_u32 %s, 2\ns_cselect_b32 s97, 0, %d" % (sTY, 0 if o.ldonly else 4))
    lds_wait_ge(F_C1, "s97")
    a("s_mov_b32 %s, 6" % sCNT)
    dma_loop(R3, "v12", 1024, str(8 * 1152), 6)
    lds_wait_ge(F_C2, "s97")
    a("s_lshr_b32 %s, %s, 2\ns_sub_u32 %s, %s, 6" % (sCNT, sNS2, sCNT, sCNT))
    dma_loop(R3, "v12", 1024, str(8 * 1152), 6)
    a("L_ld_drain:")
    stamp(2)
    for k in range(max(D, DQ) - 8, -1, -4):
        a("s_sub_u32 %s, %s, %d\nv_mov_b32 v4, %s\ns_waitcnt vmcnt(%d)\nds_write_b32 v3, v4 offset:%d" % (sT0, sISS, k, sT0, k, F_PROG))
    stamp(3)
    stamps_out()
    a("s_endpgm")

    a("L_cons:")
    a("s_barrier")
    if o.tlb:
        Lt = a.lab("LTL")
        a("s_waitcnt lgkmcnt(0)")
        a("s_cmp_lg_u32 %s, 8\ns_cbranch_scc1 %s" % (sWV, Lt))
        step = o.tlb << 10
        n = 0
        a("s_lshr_b32 %s, %s, 3\ns_lshl_b32 %s, %s, 4\ns_add_u32 %s, %s, %s\ns_lshl_b32 %s, %s, 20\ns_add_u32 %s, %s, 0xc0000" % (sT0, sI, sT0, sT0, sT0, sT0, sG, sT0, sT0, sT0, sT0))
        a("s_load_dword s90, s[8:9], %s" % sT0)
        a("s_load_dword s90, s[6:7], %s" % sT0)
        for base, size in ((10, 0x480000), (16, 0x510000), (18, 0x510000), (12, 0x480000), (20, 0x510000)):
            for off in range(0, size, step):
                a("s_mov_b32 %s, 0x%x\ns_load_dword s90, s[%d:%d], %s" % (sT1, off, base, base + 1, sT1))
        a("s_load_dword s90, s[26:27], 0x1000")
        a("s_waitcnt lgkmcnt(0)")
        a("%s:" % Lt)
    if o.ldonly: a("s_endpgm")
    a("s_waitcnt lgkmcnt(0)")
    mk_srd(RW, 26, W_END)
    a("v_lshrrev_b32 v8, 4, v0\nv_and_b32 v9, 15, v0")
    a("s_cmp_ge_u32 %s, 5\ns_cbranch_scc1 L_att" % sWV)

    sW = "s90"
    a("s_sub_u32 %s, %s, 1" % (sW, sWV))
    a("""
    v_lshrrev_b32 v10, 2, v0
    v_lshrrev_b32 v11, 3, v0
    v_and_b32 v11, 3, v11
    """)
    a("v_xor_b32 v11, %s, v11" % sW)
    a("""
    v_lshlrev_b32 v10, 7, v10
    v_lshl_add_u32 v10, v11, 5, v10
    v_and_b32 v11, 3, v0
    v_lshl_add_u32 v10, v11, 3, v10
    """)
    a("v_add_u32 v10, %d, v10" % RA)
    a("v_and_b32 v12, 1, v0")
    a("s_cmp_eq_u32 %s, 2\ns_cbranch_scc1 L_w_s2" % sTY)
    mk_srd(R0, 4, 2304)
    a("v_mul_u32_u24 v13, 36, v0")
    a("buffer_load_dwordx4 v[16:19], v13, %s, 0 offen" % srd(R0))
    a("buffer_load_dwordx4 v[20:23], v13, %s, 0 offen offset:16" % srd(R0))
    a("buffer_load_dword v24, v13, %s, 0 offen offset:32" % srd(R0))
    a("s_mov_b32 %s, 0xffff0000" % sT0)
    a("s_waitcnt vmcnt(0)")
    stamp(1)
    X = 28
    for k in range(9):
        a("v_lshlrev_b32 v%d, 16, v%d\nv_and_b32 v%d, %s, v%d" % (X + 2 * k, 16 + k, X + 2 * k + 1, sT0, 16 + k))
    def half_allreduce_add(v, t):
        a("s_nop 1")
        a("v_add_f32_dpp %s, %s, %s quad_perm:[1,0,3,2] row_mask:0xf bank_mask:0xf" % (v, v, v))
        a("s_nop 1")
        a("v_add_f32_dpp %s, %s, %s quad_perm:[2,3,0,1] row_mask:0xf bank_mask:0xf" % (v, v, v))
        a("s_nop 1")
        a("v_add_f32_dpp %s, %s, %s row_ror:4 row_mask:0xf bank_mask:0xf" % (v, v, v))
        a("s_nop 1")
        a("v_add_f32_dpp %s, %s, %s row_ror:8 row_mask:0xf bank_mask:0xf" % (v, v, v))
        a("v_mov_b32 %s, %s" % (t, v))
        a("s_nop 1")
        a("v_permlane16_swap_b32 %s, %s" % (v, t))
        a("v_add_f32 %s, %s, %s" % (v, v, t))
    a("v_add_f32 v14, v%d, v%d" % (X, X + 1))
    a("v_add_f32 v15, v%d, v%d" % (X + 2, X + 3))
    for k in range(4, 18, 2):
        a("v_add_f32 v14, v14, v%d\nv_add_f32 v15, v15, v%d" % (X + k, X + k + 1))
    a("v_add_f32 v14, v14, v15")
    half_allreduce_add("v14", "v15")
    a("v_mul_f32 v14, 0x3ae38e39, v14")
    a("v_mov_b32 v15, 0\nv_mov_b32 v25, 0")
    for k in range(0, 18, 2):
        a("v_sub_f32 v26, v%d, v14\nv_sub_f32 v27, v%d, v14\nv_fmac_f32 v15, v26, v26\nv_fmac_f32 v25, v27, v27" % (X + k, X + k + 1))
    a("v_add_f32 v15, v15, v25")
    half_allreduce_add("v15", "v25")
    a("v_mul_f32 v15, 0x3ae38e39, v15")
    a("v_cvt_pk_bf16_f32 v14, v14, v15")
    a("v_and_b32 v15, %s, v14\nv_lshlrev_b32 v14, 16, v14" % sT0)
    a("v_add_f32 v15, 0x3727c5ac, v15")
    a("v_cvt_pk_bf16_f32 v15, v15, v15\nv_lshlrev_b32 v15, 16, v15")
    a("v_sqrt_f32 v15, v15\ns_nop 0")
    a("v_cvt_pk_bf16_f32 v15, v15, v15\nv_lshlrev_b32 v15, 16, v15")
    a("v_rcp_f32 v15, v15")
    for k in range(9):
        a("v_sub_f32 v26, v%d, v14\nv_sub_f32 v27, v%d, v14" % (X + 2 * k, X + 2 * k + 1))
        a("v_cvt_pk_bf16_f32 v26, v26, v27")
        a("v_and_b32 v27, %s, v26\nv_lshlrev_b32 v26, 16, v26" % sT0)
        a("v_mul_f32 v26, v26, v15\nv_mul_f32 v27, v27, v15")
        a("v_cvt_pk_bf16_f32 v%d, v26, v27" % (16 + k))
    for k in range(0, 8, 2):
        a("ds_write2_b32 v13, v%d, v%d offset0:%d offset1:%d" % (16 + k, 17 + k, XN // 4 + k, XN // 4 + k + 1))
    a("ds_write_b32 v13, v24 offset:%d" % (XN + 32))
    a("v_mul_u32_u24 v11, %d, v12\nv_lshl_add_u32 v11, v8, 3, v11\nv_add_u32 v11, %d, v11" % (XN_P, XN))
    a("v_mov_b32 v13, v10")
    for r in range(4): a("v_mov_b32 v%d, 0" % (48 + r))
    a("v_mov_b32 v14, 1")
    stamp(2)
    sIT, sTH = "s91", "s92"
    a("s_mov_b32 %s, 0\ns_add_u32 %s, %s, 8" % (sIT, sTH, sBS))
    a("L_slab:")
    lds_wait_ge(F_PROG, sTH, cache=sSEEN)
    a("""
    ds_read_b64_tr_b16 v[16:17], v13
    ds_read_b64_tr_b16 v[18:19], v13 offset:2048
    ds_read2_b64 v[24:27], v11 offset0:0 offset1:4
    ds_read_b64_tr_b16 v[20:21], v13 offset:4096
    ds_read_b64_tr_b16 v[22:23], v13 offset:6144
    ds_read2_b64 v[28:31], v11 offset0:8 offset1:12
    v_add_u32 v13, 8192, v13
    v_add_u32 v11, 128, v11
    """)
    a("s_add_u32 %s, %s, 8\ns_add_u32 %s, %s, 1" % (sTH, sTH, sIT, sIT))
    a("""
    s_waitcnt lgkmcnt(3)
    v_mfma_f32_16x16x32_bf16 v[48:51], v[16:19], v[24:27], v[48:51]
    s_waitcnt lgkmcnt(0)
    v_mfma_f32_16x16x32_bf16 v[48:51], v[20:23], v[28:31], v[48:51]
    """)
    Ln = a.lab("LN")
    a("s_cmp_eq_u32 %s, 3\ns_cbranch_scc1 L_slab_c1" % sIT)
    a("s_cmp_eq_u32 %s, 6\ns_cbranch_scc1 L_slab_c2" % sIT)
    a("L_slab_n:")
    a("s_cmp_lt_u32 %s, 9\ns_cbranch_scc1 L_slab" % sIT)
    stamp(3)
    get_tag()
    a("v_lshlrev_b32 v13, 8, v9\nv_lshl_add_u32 v13, v8, 4, v13")
    a("s_lshl_b32 %s, %s, 9\ns_lshl_b32 %s, %s, 6\ns_add_u32 %s, %s, %s\ns_add_u32 %s, %s, %d" % (sT0, sU, sT1, sW, sT0, sT0, sT1, sT0, sT0, W_S1))
    a("v_cvt_pk_bf16_f32 v16, v48, v49\nv_cvt_pk_bf16_f32 v17, v50, v51")
    a("v_mov_b32 v18, %s\nv_mov_b32 v19, 0" % sTAG)
    a("v_cmp_gt_u32 vcc, 2, v9\ns_and_saveexec_b64 s[46:47], vcc")
    a("buffer_store_dwordx4 v[16:19], v13, %s, %s offen sc1" % (srd(RW), sT0))
    a("s_mov_b64 exec, s[46:47]")
    stamp(4)
    a("L_w_s2:")
    a("s_cmp_eq_u32 %s, 0\ns_cbranch_scc1 L_w_end" % sNS2)
    get_tag()
    WF = 16
    VF = 64
    AC = 112
    a("v_mul_u32_u24 v11, %d, v12\nv_lshl_add_u32 v11, v8, 3, v11\nv_add_u32 v11, %d, v11" % (VEC2_P, VEC2))
    for r in range(4): a("v_mov_b32 v%d, 0" % (AC + r))
    a("v_lshlrev_b32 v13, 10, v8\nv_lshl_add_u32 v13, v9, 4, v13")
    a("s_lshl_b32 %s, %s, 2\ns_add_u32 %s, %s, %s\ns_lshl_b32 %s, %s, 12\ns_lshl_b32 %s, %s, 5\ns_add_u32 %s, %s, %s\ns_add_u32 s93, %s, %d" % (
        sT0, sCB, sT0, sT0, sW, sT0, sT0, sT1, sTEAM, sT0, sT0, sT1, sT0, W_F))
    a("v_mov_b32 v14, 0xffffff00")
    a("s_and_b32 s94, %s, 0xff\ns_bfe_u32 s95, %s, 0x80008\ns_bfe_u32 s96, %s, 0x80010\ns_lshr_b32 s97, %s, 24" % (sTAG, sTAG, sTAG, sTAG))
    for s in range(0, 12, 2):
        if s == 8:
            a("s_cmp_eq_u32 %s, 32\ns_cbranch_scc1 L_s2_v8" % sNS2)
        a("s_add_u32 %s, %s, %d" % (sTH, sB2, 4 * s + 8))
        lds_wait_ge(F_PROG, sTH, cache=sSEEN)
        for q in range(4):
            a("ds_read_b64_tr_b16 v[%d:%d], v10 offset:%d" % (WF + 4 * s + 2 * q, WF + 4 * s + 2 * q + 1, s * 4096 + q * 2048))
    def s2_tail(n, nthr):
        stamp(5)
        lds_wait_ge(F_VRDY, str(nthr))
        stamp(6)
        for s in range(n):
            a("ds_read2_b64 v[%d:%d], v11 offset0:%d offset1:%d" % (VF + 4 * s, VF + 4 * s + 3, 8 * s, 8 * s + 4))
        for s in range(n):
            a("s_waitcnt lgkmcnt(%d)" % (n - 1 - s))
            a("v_mfma_f32_16x16x32_bf16 v[%d:%d], v[%d:%d], v[%d:%d], v[%d:%d]" % (AC, AC + 3, WF + 4 * s, WF + 4 * s + 3, VF + 4 * s, VF + 4 * s + 3, AC, AC + 3))
    s2_tail(12, 3)
    a("s_branch L_s2_pub")
    a("L_s2_v8:")
    s2_tail(8, 4)
    a("L_s2_pub:")
    a("v_cmp_gt_u32 vcc, 2, v9\ns_and_saveexec_b64 s[46:47], vcc")
    a("s_nop 6")
    for r in range(4):
        a("v_and_or_b32 v%d, v%d, v14, s%d" % (AC + r, AC + r, 94 + r))
    a("buffer_store_dwordx4 v[%d:%d], v13, %s, s93 offen sc1" % (AC, AC + 3, srd(RW)))
    a("L_w_end:")
    stamp(7)
    stamps_out(1)
    a("s_endpgm")
    for nm, off in (("L_slab_c1", F_C1), ("L_slab_c2", F_C2)):
        a("%s:" % nm)
        a("s_mov_b64 exec, 1\nds_add_u32 v3, v14 offset:%d\ns_mov_b64 exec, -1\ns_branch L_slab_n" % off)

    sA = "s90"
    sTH = "s92"
    a("L_att:")
    a("s_sub_u32 %s, %s, 5" % (sA, sWV))
    a("s_cmp_lg_u32 %s, 0\ns_cbranch_scc1 L_a_noep" % sA)
    a("buffer_load_dword v4, v3, %s, 0 offen sc1" % srd(RW))
    a("s_waitcnt vmcnt(0)")
    a("v_readfirstlane_b32 %s, v4" % sTAG)
    a("s_mul_i32 %s, %s, 1664525\ns_add_u32 %s, %s, 1013904223" % (sTAG, sTAG, sTAG, sTAG))
    a("v_mov_b32 v4, %s\nv_mov_b32 v5, 1" % sTAG)
    a("ds_write_b64 v3, v[4:5] offset:%d" % F_TAG)
    a("L_a_noep:")
    a("v_lshrrev_b32 v10, 2, v9\nv_mul_u32_u24 v10, %d, v10" % KP)
    a("v_and_b32 v11, 3, v0\nv_lshl_add_u32 v10, v11, 8, v10\nv_xor_b32 v11, v11, v8\nv_lshl_add_u32 v10, v11, 4, v10")
    a("s_mul_i32 %s, %s, %d\ns_add_u32 %s, %s, %d\nv_add_u32 v10, %s, v10" % (sT0, sA, 8 * KP, sT0, sT0, RK, sT0))
    a("v_mul_u32_u24 v12, %d, v8" % VP)
    a("v_lshrrev_b32 v11, 2, v9\nv_lshl_add_u32 v12, v11, 8, v12\nv_lshl_add_u32 v12, v11, 5, v12")
    a("v_and_b32 v11, 3, v0\nv_lshl_add_u32 v12, v11, 3, v12")
    a("s_mul_i32 %s, %s, %d\ns_add_u32 %s, %s, %d\nv_add_u32 v12, %s, v12" % (sT0, sA, 8 * VP, sT0, sT0, RV, sT0))
    a("v_xor_b32 v13, 32, v12\nv_xor_b32 v14, 64, v12\nv_xor_b32 v15, 0x60, v12")
    KF, VF, QF, SC, OA = 16, 48, 80, 96, 16
    a("s_lshl_b32 %s, %s, 3\ns_add_u32 %s, %s, %s\ns_add_u32 %s, %s, 8" % (sTH, sA, sTH, sTH, sBK, sTH, sTH))
    lds_wait_ge(F_PROG, sTH, cache=sSEEN)
    for t in range(2):
        for c in range(4):
            a("ds_read_b128 v[%d:%d], v10 offset:%d" % (KF + 16 * t + 4 * c, KF + 16 * t + 4 * c + 3, t * 4 * KP + c * 64))
    stamp(1)
    get_tag()
    a("s_cmp_lg_u32 %s, 0\ns_cbranch_scc1 L_a_qwait" % sA)
    a("s_add_u32 %s, %s, %d" % (sT0, sBK, o.qpoll))
    a("s_cmp_eq_u32 %s, 0\ns_cselect_b32 %s, 0, %s" % (sBS, sT0, sT0))
    lds_wait_ge(F_PROG, sT0, cache=sSEEN)
    a("v_lshlrev_b32 v11, 9, v8\nv_lshl_add_u32 v11, v9, 4, v11")
    a("s_lshl_b32 %s, %s, 11\ns_lshr_b32 %s, %s, 3\ns_lshl_b32 %s, %s, 8\ns_add_u32 %s, %s, %s\ns_add_u32 %s, %s, %d" % (sT0, sG, sT1, sI, sT1, sT1, sT0, sT0, sT1, sT0, sT0, W_S1))
    a("s_mov_b32 %s, 0" % sTMO)
    a("L_a_qpoll:")
    a("buffer_load_dwordx4 v[4:7], v11, %s, %s offen sc1" % (srd(RW), sT0))
    a("s_add_u32 %s, %s, 1\ns_cmp_gt_u32 %s, 0x8000\ns_cbranch_scc1 L_a_qok" % (sTMO, sTMO, sTMO))
    a("s_waitcnt vmcnt(0)")
    a("v_cmp_ne_u32 vcc, %s, v6\ns_cbranch_vccnz L_a_qpoll" % sTAG)
    a("L_a_qok:")
    a("s_waitcnt vmcnt(0)")
    a("v_lshlrev_b32 v11, 3, v0\nv_mov_b32 v6, 1")
    a("ds_write_b64 v11, v[4:5] offset:%d" % QV)
    a("ds_write_b32 v3, v6 offset:%d" % F_QRDY)
    a("L_a_qwait:")
    lds_wait_ge(F_QRDY, "1")
    stamp(2)
    a("v_and_b32 v11, 1, v0\nv_lshlrev_b32 v11, 8, v11\nv_lshl_add_u32 v11, v8, 4, v11")
    for c in range(4):
        a("ds_read_b128 v[%d:%d], v11 offset:%d" % (QF + 4 * c, QF + 4 * c + 3, QV + c * 64))
    for r in range(8): a("v_mov_b32 v%d, 0" % (SC + r))
    a("s_waitcnt lgkmcnt(0)")
    for c in range(4):
        for t in range(2):
            a("v_mfma_f32_16x16x32_bf16 v[%d:%d], v[%d:%d], v[%d:%d], v[%d:%d]" % (
                SC + 4 * t, SC + 4 * t + 3, KF + 16 * t + 4 * c, KF + 16 * t + 4 * c + 3, QF + 4 * c, QF + 4 * c + 3, SC + 4 * t, SC + 4 * t + 3))
    a("s_mov_b32 %s, 0xffff0000\ns_mov_b32 %s, 0x3db504f3\ns_mov_b32 %s, 0x3fb8aa3b" % (sT0, sT1, sT2))
    a("s_nop 7")
    for k in range(0, 8, 2):
        a("v_cvt_pk_bf16_f32 v4, v%d, v%d" % (SC + k, SC + k + 1))
        a("v_and_b32 v5, %s, v4\nv_lshlrev_b32 v4, 16, v4" % sT0)
        a("v_mul_f32 v4, %s, v4\nv_mul_f32 v5, %s, v5" % (sT1, sT1))
        a("v_cvt_pk_bf16_f32 v4, v4, v5")
        a("v_and_b32 v%d, %s, v4\nv_lshlrev_b32 v%d, 16, v4" % (SC + k + 1, sT0, SC + k))
    a("v_max3_f32 v4, v%d, v%d, v%d\nv_max3_f32 v5, v%d, v%d, v%d\nv_max3_f32 v4, v4, v%d, v%d\nv_max_f32 v4, v4, v5" % tuple(SC + k for k in range(8)))
    def rows_allreduce(op, v, t):
        a("v_mov_b32 %s, %s\ns_nop 1\nv_permlane16_swap_b32 %s, %s\n%s %s, %s, %s" % (t, v, v, t, op, v, v, t))
        a("v_mov_b32 %s, %s\ns_nop 1\nv_permlane32_swap_b32 %s, %s\n%s %s, %s, %s" % (t, v, v, t, op, v, v, t))
    rows_allreduce("v_max_f32", "v4", "v5")
    a("v_mul_f32 v4, %s, v4" % sT2)
    for k in range(8):
        a("v_fma_f32 v%d, v%d, %s, -v4" % (SC + k, SC + k, sT2))
    for k in range(8):
        a("v_exp_f32 v%d, v%d" % (SC + k, SC + k))
    a("s_nop 0")
    a("v_add_f32 v5, v%d, v%d\nv_add_f32 v6, v%d, v%d" % (SC, SC + 1, SC + 2, SC + 3))
    a("v_add_f32 v5, v5, v%d\nv_add_f32 v6, v6, v%d\nv_add_f32 v5, v5, v%d\nv_add_f32 v6, v6, v%d\nv_add_f32 v5, v5, v6" % (SC + 4, SC + 5, SC + 6, SC + 7))
    rows_allreduce("v_add_f32", "v5", "v6")
    PF = 104
    for k in range(4):
        a("v_cvt_pk_bf16_f32 v%d, v%d, v%d" % (PF + k, SC + 2 * k, SC + 2 * k + 1))
    for r in range(32): a("v_mov_b32 v%d, 0" % (OA + r))
    stamp(3)
    a("s_add_u32 %s, %s, 32" % (sTH, sTH))
    lds_wait_ge(F_PROG, sTH, cache=sSEEN, vt="v6")
    for db in range(8):
        dh, dl = db >> 2, db & 3
        for t in range(2):
            a("ds_read_b64_tr_b16 v[%d:%d], v%d offset:%d" % (VF + 4 * db + 2 * t, VF + 4 * db + 2 * t + 1, 12 + dl, dh * 128 + t * 4 * VP))
    for db in range(8):
        a("s_waitcnt lgkmcnt(%d)" % min(15, 14 - 2 * db))
        a("v_mfma_f32_16x16x32_bf16 v[%d:%d], v[%d:%d], v[%d:%d], v[%d:%d]" % (
            OA + 4 * db, OA + 4 * db + 3, VF + 4 * db, VF + 4 * db + 3, PF, PF + 3, OA + 4 * db, OA + 4 * db + 3))
    a("v_lshlrev_b32 v11, 9, v9\nv_lshl_add_u32 v11, v8, 4, v11")
    a("s_lshl_b32 %s, %s, 10\nv_add_u32 v11, %s, v11" % (sT3, sA, sT3))
    a("v_lshlrev_b32 v10, 3, v9\ns_lshl_b32 %s, %s, 4\nv_add_u32 v10, %s, v10" % (sT3, sA, sT3))
    a("v_cmp_gt_u32 vcc, 2, v9\ns_and_saveexec_b64 s[46:47], vcc")
    a("ds_write_b64 v10, v[4:5] offset:%d" % ML)
    a("s_nop 1")
    for db in range(8):
        a("ds_write_b128 v11, v[%d:%d] offset:%d" % (OA + 4 * db, OA + 4 * db + 3, OPART + db * 64))
    a("s_mov_b64 exec, 1\nv_mov_b32 v6, 1")
    a("ds_add_rtn_u32 v6, v3, v6 offset:%d" % F_ACNT)
    a("s_mov_b64 exec, -1")
    a("s_waitcnt lgkmcnt(0)")
    a("v_readfirstlane_b32 %s, v6" % sT3)
    a("s_cmp_lg_u32 %s, 3\ns_cbranch_scc1 L_a_prep" % sT3)
    a("v_lshlrev_b32 v11, 4, v0")
    a("v_lshrrev_b32 v10, 5, v0\nv_lshlrev_b32 v10, 3, v10")
    for k in range(4):
        a("ds_read_b64 v[%d:%d], v10 offset:%d" % (48 + 2 * k, 49 + 2 * k, ML + 16 * k))
    for k in range(4):
        a("ds_read_b128 v[%d:%d], v11 offset:%d" % (16 + 4 * k, 19 + 4 * k, OPART + 1024 * k))
    a("s_waitcnt lgkmcnt(4)")
    a("v_max3_f32 v4, v48, v50, v52\nv_max_f32 v4, v4, v54")
    for k in range(4): a("v_sub_f32 v%d, v%d, v4" % (48 + 2 * k, 48 + 2 * k))
    for k in range(4): a("v_exp_f32 v%d, v%d" % (48 + 2 * k, 48 + 2 * k))
    a("s_nop 0")
    a("v_mul_f32 v5, v48, v49\nv_fmac_f32 v5, v50, v51\nv_fmac_f32 v5, v52, v53\nv_fmac_f32 v5, v54, v55")
    a("v_rcp_f32 v6, v5\nv_log_f32 v7, v5")
    a("s_waitcnt lgkmcnt(0)")
    for r in range(4):
        a("v_mul_f32 v%d, v48, v%d" % (32 + r, 16 + r))
        for k in range(1, 4): a("v_fmac_f32 v%d, v%d, v%d" % (32 + r, 48 + 2 * k, 16 + 4 * k + r))
        a("v_mul_f32 v%d, v%d, v6" % (32 + r, 32 + r))
    a("v_add_f32 v39, v4, v7")
    a("v_cvt_pk_bf16_f32 v36, v32, v33\nv_cvt_pk_bf16_f32 v37, v34, v35\nv_mov_b32 v38, %s" % sTAG)
    a("s_lshl_b32 %s, %s, 4\ns_add_u32 %s, %s, %s\ns_lshl_b32 %s, %s, 10\ns_add_u32 %s, %s, %d" % (sT0, sG, sT0, sT0, sI, sT0, sT0, sT0, sT0, W_O))
    a("buffer_store_dwordx4 v[36:39], v11, %s, %s offen sc1" % (srd(RW), sT0))
    a("L_a_prep:")
    stamp(4)
    a("s_cmp_eq_u32 %s, 0\ns_cbranch_scc1 L_a_red" % sNS2)
    a("s_cmp_ge_u32 %s, 16\ns_cbranch_scc1 L_a_hprep" % sTEAM)
    a("s_mov_b32 %s, %d" % (sT0, o.opoll))
    lds_wait_ge(F_PROG, sT0, cache=sSEEN)
    a("s_mov_b32 exec_hi, 0")
    a("v_lshlrev_b32 v11, 4, v0")
    a("s_lshl_b32 %s, %s, 14\ns_lshr_b32 %s, %s, 1\ns_lshl_b32 %s, %s, 13\ns_add_u32 %s, %s, %s" % (sT0, sG, sT1, sA, sT1, sT1, sT0, sT0, sT1))
    a("s_and_b32 %s, %s, 1\ns_lshl_b32 %s, %s, 9\ns_add_u32 %s, %s, %s\ns_add_u32 %s, %s, %d" % (sT1, sA, sT1, sT1, sT0, sT0, sT1, sT0, sT0, W_O))
    a("s_add_u32 %s, %s, 4096" % (sT1, sT0))
    a("s_mov_b32 %s, 0" % sTMO)
    def oloads(fl):
        for s in range(8):
            a("buffer_load_dwordx4 v[%d:%d], v11, %s, %s offen offset:%d %s" % (16 + 4 * s, 19 + 4 * s, srd(RW), sT0 if s < 4 else sT1, (s & 3) * 1024, fl))
    if o.oplain:
        oloads("")
        a("s_branch L_a_ochk")
    a("L_a_opoll:")
    oloads("sc1")
    a("L_a_ochk:")
    a("s_add_u32 %s, %s, 1\ns_cmp_gt_u32 %s, 0x8000\ns_cbranch_scc1 L_a_ook" % (sTMO, sTMO, sTMO))
    a("s_waitcnt vmcnt(0)")
    a("v_xor_b32 v4, %s, v18" % sTAG)
    for s in range(1, 8):
        a("v_xor_b32 v5, %s, v%d\nv_or_b32 v4, v4, v5" % (sTAG, 18 + 4 * s))
    a("v_cmp_ne_u32 vcc, 0, v4\ns_cbranch_vccnz L_a_opoll")
    a("L_a_ook:")
    a("s_waitcnt vmcnt(0)")
    stamp(5)
    a("v_max3_f32 v4, v19, v23, v27\nv_max3_f32 v5, v31, v35, v39\nv_max3_f32 v4, v4, v43, v47\nv_max_f32 v4, v4, v5")
    for s in range(8): a("v_sub_f32 v%d, v%d, v4" % (19 + 4 * s, 19 + 4 * s))
    for s in range(8): a("v_exp_f32 v%d, v%d" % (19 + 4 * s, 19 + 4 * s))
    a("s_mov_b32 %s, 0xffff0000" % sT0)
    for r in range(4): a("v_mov_b32 v%d, 0" % (48 + r))
    a("v_mov_b32 v5, 0")
    for s in range(8):
        w = 19 + 4 * s
        a("v_add_f32 v5, v5, v%d" % w)
        a("v_lshlrev_b32 v6, 16, v%d\nv_and_b32 v7, %s, v%d\nv_fmac_f32 v48, v%d, v6\nv_fmac_f32 v49, v%d, v7" % (16 + 4 * s, sT0, 16 + 4 * s, w, w))
        a("v_lshlrev_b32 v6, 16, v%d\nv_and_b32 v7, %s, v%d\nv_fmac_f32 v50, v%d, v6\nv_fmac_f32 v51, v%d, v7" % (17 + 4 * s, sT0, 17 + 4 * s, w, w))
    a("v_rcp_f32 v5, v5\ns_nop 0")
    for r in range(4): a("v_mul_f32 v%d, v%d, v5" % (48 + r, 48 + r))
    a("v_cvt_pk_bf16_f32 v4, v48, v49\nv_cvt_pk_bf16_f32 v5, v50, v51")
    a("s_lshr_b32 %s, %s, 1\ns_mul_i32 %s, %s, %d\ns_and_b32 %s, %s, 1\ns_lshl_b32 %s, %s, 8\ns_add_u32 %s, %s, %s" % (sT0, sA, sT0, sT0, VEC2_P, sT1, sA, sT1, sT1, sT0, sT0, sT1))
    a("v_lshlrev_b32 v11, 3, v0\nv_add_u32 v11, %s, v11" % sT0)
    a("ds_write_b64 v11, v[4:5] offset:%d" % VEC2)
    a("s_mov_b64 exec, 1\nv_mov_b32 v6, 1\nds_add_u32 v3, v6 offset:%d\ns_mov_b64 exec, -1" % F_VRDY)
    a("s_branch L_a_end")
    a("L_a_hprep:")
    a("s_cmp_ge_u32 %s, 3\ns_cbranch_scc1 L_a_red" % sA)
    a("s_add_u32 %s, %s, %d" % (sT0, sB2, o.hpoll))
    lds_wait_ge(F_PROG, sT0, cache=sSEEN)
    a("v_lshlrev_b32 v11, 4, v0")
    a("s_mul_i32 %s, %s, 3072\ns_lshl_b32 %s, %s, 10\ns_add_u32 %s, %s, %s\ns_add_u32 %s, %s, %d" % (sT0, sTEAM, sT1, sA, sT0, sT0, sT1, sT0, sT0, W_S1 + 64 * 512 - 16 * 3072))
    a("s_add_u32 %s, %s, %d" % (sT1, sT0, 72 * 512))
    a("v_and_b32 v10, 1, v8\nv_mul_u32_u24 v10, %d, v10\nv_lshl_add_u32 v10, v9, 3, v10" % VEC2_P)
    a("v_lshrrev_b32 v12, 5, v0\nv_lshl_add_u32 v10, v12, 7, v10\ns_lshl_b32 %s, %s, 8\nv_add_u32 v10, %s, v10" % (sT2, sA, sT2))
    a("s_mov_b32 %s, 0" % sTMO)
    a("L_a_hpoll:")
    a("buffer_load_dwordx4 v[16:19], v11, %s, %s offen sc1" % (srd(RW), sT0))
    a("buffer_load_dwordx4 v[20:23], v11, %s, %s offen sc1" % (srd(RW), sT1))
    a("s_add_u32 %s, %s, 1\ns_cmp_gt_u32 %s, 0x8000\ns_cbranch_scc1 L_a_hok" % (sTMO, sTMO, sTMO))
    a("s_waitcnt vmcnt(0)")
    a("v_xor_b32 v4, %s, v18\nv_xor_b32 v5, %s, v22\nv_or_b32 v4, v4, v5" % (sTAG, sTAG))
    a("v_cmp_ne_u32 vcc, 0, v4\ns_and_b64 exec, exec, vcc\ns_cbranch_vccnz L_a_hpoll")
    a("L_a_hok:")
    a("s_mov_b64 exec, -1")
    a("s_waitcnt vmcnt(0)")
    stamp(5)
    a("s_mov_b32 %s, 0xffff0000" % sT0)
    a("v_lshlrev_b32 v24, 16, v16\nv_and_b32 v25, %s, v16\nv_lshlrev_b32 v26, 16, v17\nv_and_b32 v27, %s, v17" % (sT0, sT0))
    a("v_lshlrev_b32 v28, 16, v20\nv_and_b32 v29, %s, v20\nv_lshlrev_b32 v30, 16, v21\nv_and_b32 v31, %s, v21" % (sT0, sT0))
    import math, struct
    c1 = -2.0 * math.sqrt(2.0 / math.pi) * math.log2(math.e)
    f2u = lambda f: struct.unpack("<I", struct.pack("<f", f))[0]
    a("s_mov_b32 %s, 0x%08x\nv_mov_b32 v4, 0x%08x" % (sT1, f2u(c1 * 0.044715), f2u(c1)))
    for r in range(4): a("v_mul_f32 v%d, v%d, v%d" % (32 + r, 24 + r, 24 + r))
    for r in range(4): a("v_fma_f32 v%d, v%d, %s, v4" % (32 + r, 32 + r, sT1))
    for r in range(4): a("v_mul_f32 v%d, v%d, v%d" % (32 + r, 32 + r, 24 + r))
    for r in range(4): a("v_exp_f32 v%d, v%d" % (32 + r, 32 + r))
    a("s_nop 0")
    for r in range(4): a("v_add_f32 v%d, 1.0, v%d" % (32 + r, 32 + r))
    for r in range(4): a("v_rcp_f32 v%d, v%d" % (32 + r, 32 + r))
    a("s_nop 0")
    for r in range(4): a("v_mul_f32 v%d, v%d, v%d" % (32 + r, 32 + r, 24 + r))
    a("v_cvt_pk_bf16_f32 v4, v32, v33\nv_cvt_pk_bf16_f32 v5, v34, v35")
    a("v_lshlrev_b32 v32, 16, v4\nv_and_b32 v33, %s, v4\nv_lshlrev_b32 v34, 16, v5\nv_and_b32 v35, %s, v5" % (sT0, sT0))
    for r in range(4): a("v_mul_f32 v%d, v%d, v%d" % (32 + r, 32 + r, 28 + r))
    a("v_cvt_pk_bf16_f32 v4, v32, v33\nv_cvt_pk_bf16_f32 v5, v34, v35")
    a("ds_write_b64 v10, v[4:5] offset:%d" % VEC2)
    a("s_mov_b64 exec, 1\nv_mov_b32 v6, 1\nds_add_u32 v3, v6 offset:%d\ns_mov_b64 exec, -1" % F_VRDY)
    a("L_a_red:")
    stamp(6)
    a("s_cmp_lg_u32 %s, 2\ns_cbranch_scc1 L_a_end" % sTY)
    a("s_mul_i32 %s, %s, 3\ns_add_u32 %s, %s, %s\ns_sub_u32 %s, %s, 13" % (sT0, sG, sT0, sT0, sI, sT0, sT0))
    a("s_cmp_ge_u32 %s, 36\ns_cbranch_scc1 L_a_end" % sT0)
    a("s_lshl_b32 %s, %s, 2\ns_add_u32 s93, %s, %s" % (sT0, sT0, sT0, sA))
    mk_srd(R0, 4, 2304)
    mk_srd(R1, 22, 2304)
    a("v_and_b32 v12, 1, v0\nv_mul_u32_u24 v12, 1152, v12\ns_lshl_b32 s98, s93, 3")
    a("buffer_load_dwordx2 v[14:15], v12, %s, s98 offen" % srd(R0))
    a("s_lshl_b32 %s, s93, 10\ns_add_u32 %s, %s, %d" % (sT0, sT0, sT0, W_F))
    a("v_lshlrev_b32 v11, 4, v0")
    a("s_and_b32 s94, %s, 0xff\ns_bfe_u32 s95, %s, 0x80008\ns_bfe_u32 s96, %s, 0x80010\ns_lshr_b32 s97, %s, 24" % (sTAG, sTAG, sTAG, sTAG))
    for r in range(4): a("v_mov_b32 v%d, 0" % (16 + r))
    a("s_mov_b32 exec_hi, 0x00ffffff")
    a("s_mov_b32 %s, 0" % sTMO)
    a("L_a_fpoll:")
    a("buffer_load_dwordx4 v[16:19], v11, %s, %s offen sc1" % (srd(RW), sT0))
    a("s_add_u32 %s, %s, 1\ns_cmp_gt_u32 %s, 0x8000\ns_cbranch_scc1 L_a_fok" % (sTMO, sTMO, sTMO))
    a("s_waitcnt vmcnt(0)")
    a("v_xor_b32 v4, s94, v16\nv_xor_b32 v5, s95, v17\nv_xor_b32 v6, s96, v18\nv_xor_b32 v7, s97, v19")
    a("v_or3_b32 v4, v4, v5, v6\nv_or_b32 v4, v4, v7\nv_and_b32 v4, 0xff, v4")
    a("v_cmp_ne_u32 vcc, 0, v4\ns_and_b64 exec, exec, vcc\ns_cbranch_vccnz L_a_fpoll")
    a("L_a_fok:")
    a("s_mov_b64 exec, -1")
    a("s_waitcnt vmcnt(0)")
    stamp(7)
    for dp in ("quad_perm:[2,3,0,1]", "row_ror:4", "row_ror:8"):
        for r in range(4):
            a("v_add_f32_dpp v%d, v%d, v%d %s row_mask:0xf bank_mask:0xf" % (16 + r, 16 + r, 16 + r, dp))
    for r in range(4): a("v_mov_b32 v%d, v%d" % (20 + r, 16 + r))
    for r in range(4): a("v_permlane16_swap_b32 v%d, v%d" % (16 + r, 20 + r))
    for r in range(4): a("v_add_f32 v%d, v%d, v%d" % (16 + r, 16 + r, 20 + r))
    a("v_cvt_pk_bf16_f32 v16, v16, v17\nv_cvt_pk_bf16_f32 v17, v18, v19")
    a("v_mov_b32 v18, v16\nv_mov_b32 v19, v17\ns_mov_b32 %s, 0xffff0000\ns_nop 0" % sT1)
    a("v_permlane32_swap_b32 v16, v18\nv_permlane32_swap_b32 v17, v19")
    for k in range(2):
        a("v_lshlrev_b32 v4, 16, v%d\nv_and_b32 v5, %s, v%d" % (14 + k, sT1, 14 + k))
        a("v_lshlrev_b32 v6, 16, v%d\nv_and_b32 v7, %s, v%d" % (16 + k, sT1, 16 + k))
        a("v_add_f32 v4, v4, v6\nv_add_f32 v5, v5, v7\nv_cvt_pk_bf16_f32 v4, v4, v5")
        a("v_and_b32 v5, %s, v4\nv_lshlrev_b32 v4, 16, v4" % sT1)
        a("v_lshlrev_b32 v6, 16, v%d\nv_and_b32 v7, %s, v%d" % (18 + k, sT1, 18 + k))
        a("v_add_f32 v4, v4, v6\nv_add_f32 v5, v5, v7\nv_cvt_pk_bf16_f32 v%d, v4, v5" % (20 + k))
    a("s_mov_b64 exec, 3")
    a("buffer_store_dwordx2 v[20:21], v12, %s, s98 offen" % srd(R1))
    a("s_cmp_lg_u32 s93, 0\ns_cbranch_scc1 L_a_end")
    a("s_mov_b64 exec, 1\nv_mov_b32 v4, %s" % sTAG)
    a("buffer_store_dword v4, v3, %s, 0 offen sc1" % srd(RW))
    a("L_a_end:")
    stamps_out(2)
    a("L_end:")
    a("s_endpgm")

    hdr = open(__file__.replace("gen.py", "header.txt")).read()
    hdr += "; @launch grid=(256,1,1) block=(576,1,1) lds=%d\n" % LDS_TOTAL
    hdr += '.amdgcn_target "amdgcn-amd-amdhsa--gfx950"\n.text\n.globl %s\n.p2align 8\n.type %s,@function\n' % (NAME, NAME)
    ftr = """.section .rodata,"a"
.p2align 6
.amdhsa_kernel %s
  .amdhsa_next_free_vgpr 128
  .amdhsa_next_free_sgpr 102
  .amdhsa_accum_offset 128
  .amdhsa_group_segment_fixed_size 0
  .amdhsa_kernarg_size 96
  .amdhsa_user_sgpr_count 2
  .amdhsa_user_sgpr_kernarg_segment_ptr 1
  .amdhsa_system_sgpr_workgroup_id_x 1
  .amdhsa_float_denorm_mode_32 3
.end_amdhsa_kernel
""" % NAME
    return hdr + a.text() + ftr

def parser():
    p = argparse.ArgumentParser()
    p.add_argument("-o", default="-")
    p.add_argument("--depth", type=int, default=32)
    p.add_argument("--depthq", type=int, default=32)
    p.add_argument("--diag", type=int, default=0)
    p.add_argument("--gumap", type=int, default=0)
    p.add_argument("--gfirst", type=int, default=0)
    p.add_argument("--qpoll", type=int, default=48)
    p.add_argument("--opoll", type=int, default=120)
    p.add_argument("--hpoll", type=int, default=0)
    p.add_argument("--oplain", type=int, default=0)
    p.add_argument("--ldonly", type=int, default=0)
    p.add_argument("--pol", default="nt")
    p.add_argument("--tlb", type=int, default=0)
    p.add_argument("--sleep", type=int, default=0)
    return p

if __name__ == "__main__":
    o = parser().parse_args()
    t = gen(o)
    if o.o == "-": sys.stdout.write(t)
    else: open(o.o, "w").write(t)
```

```python
import sys, argparse

NAME = "parallel_sum__sliding_block_cached__geglu_ffn__decode_kernel"

class Asm:
    def __init__(self):
        self.lines = []
        self.n = 0
    def __call__(self, s):
        for ln in s.strip("\n").split("\n"):
            ln = ln.strip()
            if not ln: continue
            if ln.endswith(":"): self.lines.append(ln)
            else: self.lines.append("    " + ln)
    def lab(self, p="L"):
        self.n += 1
        return "%s_%d" % (p, self.n)
    def text(self): return "\n".join(self.lines) + "\n"

F_PROG, F_TAG, F_QRDY, F_ACNT, F_VRDY, F_C1, F_C2 = 0, 8, 16, 20, 24, 28, 32
XN, XN_P = 256, 1152
QV = 2560
VEC2, VEC2_P = 3072, 1280
ML = 5632
OPART = 5888
RA = 10240
RK = RA + 72 * 1024
KP = 1088
RV = RK + 32 * KP
VP = 1152
LDS_TOTAL = RV + 32 * VP
W_EPOCH = 0
W_S1 = 4096
W_O = W_S1 + 208 * 512
W_F = W_O + 256 * 1024
W_END = W_F + 144 * 1024
W_DIAG = 1 << 20

def gen(o):
    a = Asm()
    D = o.depth
    DQ = o.depthq
    diag = o.diag
    sG, sI, sWV, sTY = "s28", "s29", "s30", "s31"
    sU = "s32"
    sTEAM, sCB, sNS2 = "s33", "s34", "s35"
    sBS, sBK, sB2 = "s36", "s37", "s38"
    sT0, sT1, sT2, sT3 = "s39", "s40", "s41", "s42"
    sSEEN, sTMO, sTAG = "s43", "s44", "s45"
    R0, R1, R2, R3 = 48, 52, 56, 60
    RW = 64
    ST = 72
    def srd(r): return "s[%d:%d]" % (r, r + 3)
    def mk_srd(r, lo, size):
        a("s_mov_b32 s%d, s%d\ns_mov_b32 s%d, s%d\ns_mov_b32 s%d, 0x%x\ns_mov_b32 s%d, 0x00020000" % (r, lo, r + 1, lo + 1, r + 2, size, r + 3))
    def stamp(k):
        if diag: a("s_memrealtime s[%d:%d]" % (ST + 2 * k, ST + 2 * k + 1))
    def stamps_out(role=0):
        if not diag: return
        if diag == 2:
            a("s_waitcnt lgkmcnt(0)")
            a("s_mov_b64 exec, 1")
            a("s_not_b32 %s, s%d" % (sT0, ST))
            a("v_mov_b32 v4, %s\nglobal_atomic_umax v3, v4, s[24:25]" % sT0)
            sel = {0: [(0, 1), (1, 2), (3, 3)], 1: [(1, 4), (3, 5), (5, 6), (7, 7)], 2: [(1, 8), (2, 9), (4, 10), (5, 11), (7, 12)]}[role]
            for k, wd in sel:
                a("v_mov_b32 v4, s%d\nglobal_atomic_umax v3, v4, s[24:25] offset:%d" % (ST + 2 * k, 4 * wd))
            if role == 0:
                Lq = a.lab("LC")
                a("s_cmp_lg_u32 s2, 0\ns_cbranch_scc1 %s" % Lq)
                a("s_memtime s[98:99]\ns_waitcnt lgkmcnt(0)\ns_sub_u32 %s, s98, s100\nv_mov_b32 v4, %s" % (sT0, sT0))
                a("global_store_dword v3, v4, s[24:25] offset:56")
                a("s_sub_u32 %s, s%d, s%d\nv_mov_b32 v4, %s\nglobal_store_dword v3, v4, s[24:25] offset:60" % (sT0, ST + 6, ST, sT0))
                a("%s:" % Lq)
            return
        a("s_waitcnt lgkmcnt(0)")
        a("s_mov_b64 exec, -1")
        a("s_lshl_b32 %s, s2, 4\ns_add_u32 %s, %s, %s\ns_lshl_b32 %s, %s, 6\ns_add_u32 %s, %s, 0x%x" % (sT0, sT0, sT0, sWV, sT0, sT0, sT0, sT0, W_DIAG))
        a("v_mov_b32 v1, %s" % sT0)
        for k in range(4):
            for j in range(4): a("v_mov_b32 v%d, s%d" % (4 + j, ST + 4 * k + j))
            a("global_store_dwordx4 v1, v[4:7], s[26:27] offset:%d" % (16 * k))
            a("s_nop 1")
    def lds_wait_ge(off, thr, cache=None, vt="v2", vz="v3"):
        L, E = a.lab("LW"), a.lab("LE")
        c = cache or sT3
        if cache:
            a("s_cmp_ge_i32 %s, %s\ns_cbranch_scc1 %s" % (c, thr, E))
        a("s_mov_b32 %s, 0" % sTMO)
        a("%s:" % L)
        if o.sleep: a("s_sleep %d" % o.sleep)
        a("ds_read_b32 %s, %s offset:%d" % (vt, vz, off))
        a("s_add_u32 %s, %s, 1" % (sTMO, sTMO))
        a("s_cmp_gt_u32 %s, 0x80000\ns_cbranch_scc1 %s" % (sTMO, E))
        a("s_waitcnt lgkmcnt(0)")
        a("v_readfirstlane_b32 %s, %s" % (c, vt))
        a("s_cmp_lt_i32 %s, %s\ns_cbranch_scc1 %s" % (c, thr, L))
        a("%s:" % E)
    def get_tag():
        L, E = a.lab("LT"), a.lab("LE")
        a("s_mov_b32 %s, 0" % sTMO)
        a("%s:" % L)
        a("ds_read_b64 v[4:5], v3 offset:%d" % F_TAG)
        a("s_add_u32 %s, %s, 1" % (sTMO, sTMO))
        a("s_waitcnt lgkmcnt(0)")
        a("v_readfirstlane_b32 %s, v4\nv_readfirstlane_b32 %s, v5" % (sTAG, sT3))
        a("s_cmp_gt_u32 %s, 0x80000\ns_cbranch_scc1 %s" % (sTMO, E))
        a("s_cmp_eq_u32 %s, 0\ns_cbranch_scc1 %s" % (sT3, L))
        a("%s:" % E)

    a("%s:" % NAME)
    stamp(0)
    if diag == 2: a("s_memtime s[100:101]")
    if o.hold: a("s_memrealtime s[100:101]")
    if diag:
        for k in range(1, 8): a("s_mov_b64 s[%d:%d], 0" % (ST + 2 * k, ST + 2 * k + 1))
    a("""
    s_load_dwordx16 s[4:19], s[0:1], 0
    s_load_dwordx8 s[20:27], s[0:1], 64
    s_cmp_ge_u32 s2, 256
    s_cbranch_scc1 L_end
    v_lshrrev_b32 v1, 6, v0
    v_and_b32 v0, 63, v0
    v_mov_b32 v3, 0
    """)
    a("v_readfirstlane_b32 %s, v1" % sWV)
    a("s_and_b32 %s, s2, 7\ns_lshl_b32 %s, %s, 1\ns_lshr_b32 %s, s2, 7\ns_add_u32 %s, %s, %s" % (sG, sG, sG, sT0, sG, sG, sT0))
    a("s_bfe_u32 %s, s2, 0x40003" % sI)
    a("s_mov_b32 %s, 0" % sTY)
    a("s_cmp_ge_u32 %s, 4\ns_addc_u32 %s, %s, 0" % (sI, sTY, sTY))
    a("s_cmp_ge_u32 %s, 13\ns_addc_u32 %s, %s, 0" % (sI, sTY, sTY))
    a("s_lshl_b32 %s, %s, 2\ns_add_u32 %s, %s, %s" % (sT0, sG, sT0, sT0, sI))
    if o.gumap == 0:
        a("s_mul_i32 %s, %s, 9\ns_add_u32 %s, %s, %s\ns_add_u32 %s, %s, 60" % (sT1, sG, sT1, sT1, sI, sT1, sT1))
    else:
        a("s_lshl_b32 %s, %s, 4\ns_add_u32 %s, %s, %s" % (sT1, sI, sT1, sT1, sG))
    a("s_cmp_eq_u32 %s, 0\ns_cselect_b32 %s, %s, %s" % (sTY, sU, sT0, sT1))
    a("s_mul_i32 %s, %s, 7\ns_add_u32 %s, %s, %s\ns_sub_u32 %s, %s, 9" % (sT0, sG, sT0, sT0, sI, sT0, sT0))
    a("s_mul_i32 %s, %s, 7282\ns_lshr_b32 %s, %s, 16" % (sT1, sT0, sT1, sT1))
    a("s_mul_i32 %s, %s, 9\ns_sub_u32 %s, %s, %s" % (sT2, sT1, sT2, sT0, sT2))
    a("s_cmp_lt_u32 %s, 12\ns_cselect_b32 %s, 48, 0" % (sT1, sNS2))
    a("s_add_u32 %s, %s, 16" % (sT1, sT1))
    a("s_cmp_lt_u32 %s, 9" % sI)
    a("s_cselect_b32 %s, %s, %s\ns_cselect_b32 %s, %s, %s\ns_cselect_b32 %s, 32, %s" % (sTEAM, sG, sT1, sCB, sI, sT2, sNS2, sNS2))
    if o.gfirst:
        a("s_cmp_le_u32 %s, 1" % sTY)
    else:
        a("s_cmp_eq_u32 %s, 0" % sTY)
    a("s_cselect_b32 %s, 0, 64\ns_cselect_b32 %s, 72, 0" % (sBS, sBK))
    a("s_cmp_eq_u32 %s, 2\ns_cselect_b32 %s, 64, 136" % (sTY, sB2))
    a("s_mov_b32 %s, -1000" % sSEEN)
    a("s_cmp_lg_u32 %s, 0\ns_cbranch_scc1 L_cons" % sWV)

    sOFF, sSTEP, sCNT, sISS, sDM = "s90", "s91", "s92", "s93", "s94"
    a("s_setprio 3")
    a("v_mov_b32 v4, 0\nv_mov_b32 v5, 0\nv_mov_b32 v6, 0\nv_mov_b32 v7, 0")
    a("v_lshlrev_b32 v2, 4, v0")
    a("ds_write_b128 v2, v[4:7]")
    a("""
    v_lshrrev_b32 v8, 3, v0
    v_lshrrev_b32 v9, 4, v0
    v_lshlrev_b32 v9, 1, v9
    v_and_b32 v10, 7, v0
    v_xor_b32 v10, v10, v9
    v_lshlrev_b32 v10, 4, v10
    """)
    a("s_cmp_eq_u32 %s, 0\ns_mov_b32 %s, 9216\ns_cselect_b32 %s, 8192, %s" % (sTY, sSTEP, sSTEP, sSTEP))
    a("v_mul_lo_u32 v11, v8, %s\nv_add_u32 v11, v11, v10" % sSTEP)
    a("v_mul_u32_u24 v12, 1152, v8\nv_add_u32 v12, v12, v10")
    a("""
    v_lshrrev_b32 v8, 4, v0
    v_xor_b32 v13, v0, v8
    v_lshlrev_b32 v13, 4, v13
    v_xor_b32 v14, v0, v9
    v_lshlrev_b32 v14, 4, v14
    """)
    a("s_mov_b32 %s, 0" % sISS)
    a("s_cmp_eq_u32 %s, 0\ns_cselect_b64 vcc, -1, 0\ns_cselect_b32 %s, %d, %d" % (sTY, sDM, DQ - 4, D - 4))
    a("s_waitcnt lgkmcnt(0)")
    a("s_barrier")
    a("s_cmp_ge_u32 %s, 136\ns_cselect_b32 s%d, s18, s16\ns_cselect_b32 s%d, s19, s17" % (sU, R0, R0 + 1))
    a("s_cselect_b32 %s, 136, 64" % sT0)
    a("s_cmp_eq_u32 %s, 0\ns_cselect_b32 s%d, s10, s%d\ns_cselect_b32 s%d, s11, s%d" % (sTY, R0, R0, R0 + 1, R0 + 1))
    a("s_cselect_b32 %s, 0, %s" % (sT0, sT0))
    a("s_mov_b32 s%d, 0x510000\ns_cselect_b32 s%d, 0x480000, s%d\ns_mov_b32 s%d, 0x00020000" % (R0 + 2, R0 + 2, R0 + 2, R0 + 3))
    a("s_sub_u32 %s, %s, %s\ns_lshl_b32 s95, %s, 7" % (sT0, sU, sT0, sT0))
    mk_srd(R1, 6, 0x2000000)
    mk_srd(R2, 8, 0x2000000)
    a("s_lshr_b32 %s, %s, 3\ns_lshl_b32 %s, %s, 4\ns_add_u32 %s, %s, %s\ns_lshl_b32 %s, %s, 20" % (sT0, sI, sT0, sT0, sT0, sT0, sG, sT0, sT0))
    a("s_and_b32 %s, %s, 7\ns_lshl_b32 %s, %s, 15\ns_add_u32 %s, %s, %s\ns_add_u32 s96, %s, 0xc0000" % (sT1, sI, sT1, sT1, sT0, sT0, sT1, sT0))

    def dma_loop(r, voff, pitch, step, groups_expr, check=None):
        L = a.lab("LD")
        a("%s:" % L)
        if check: check()
        for k in range(4):
            a("s_add_u32 m0, m0, %d" % pitch)
            a("s_add_u32 %s, %s, %s" % (sOFF, sOFF, step))
            a("buffer_load_dwordx4 %s, %s, %s offen %s lds" % (voff, srd(r), sOFF, o.pol))
        a("s_add_u32 %s, %s, 4" % (sISS, sISS))
        a("s_sub_u32 %s, %s, %s" % (sT0, sISS, sDM))
        a("v_mov_b32 v4, %s" % sT0)
        if DQ != D:
            L2, L3 = a.lab("LQ"), a.lab("LQ")
            a("s_cbranch_vccnz %s" % L2)
            a("s_waitcnt vmcnt(%d)" % (D - 4))
            a("%s:" % L2)
            a("s_waitcnt vmcnt(%d)" % (DQ - 4))
        else:
            a("s_waitcnt vmcnt(%d)" % (D - 4))
        a("ds_write_b32 v3, v4 offset:%d" % F_PROG)
        a("s_sub_u32 %s, %s, 1\ns_cmp_lg_u32 %s, 0\ns_cbranch_scc1 %s" % (sCNT, sCNT, sCNT, L))

    a("s_cmp_eq_u32 %s, 0\ns_cbranch_scc1 L_ld_slab" % sBS)
    a("L_ld_kv:")
    a("s_mov_b32 m0, %d\ns_sub_u32 %s, s96, 1024\ns_mov_b32 %s, 8" % (RK - KP, sOFF, sCNT))
    dma_loop(R1, "v13", KP, "1024", 8)
    a("s_mov_b32 m0, %d\ns_sub_u32 %s, s96, 1024\ns_mov_b32 %s, 8" % (RV - VP, sOFF, sCNT))
    dma_loop(R2, "v14", VP, "1024", 8)
    a("s_cmp_eq_u32 %s, 2\ns_cbranch_scc1 L_ld_s2" % sTY)
    a("s_cmp_eq_u32 %s, 0\ns_cbranch_scc1 L_ld_s2" % sBS)
    a("L_ld_slab:")
    a("s_lshl_b32 s97, %s, 3" % sSTEP)
    a("s_mov_b32 m0, %d\ns_sub_u32 %s, s95, s97\ns_mov_b32 %s, 18" % (RA - 1024, sOFF, sCNT))
    dma_loop(R0, "v11", 1024, "s97", 18)
    a("s_cmp_eq_u32 %s, 0\ns_cbranch_scc1 L_ld_kv" % sBS)
    a("L_ld_s2:")
    stamp(1)
    a("s_cmp_eq_u32 %s, 0\ns_cbranch_scc1 L_ld_drain" % sNS2)
    a("s_cmp_lt_u32 %s, 16" % sTEAM)
    a("s_cselect_b32 s%d, s12, s20\ns_cselect_b32 s%d, s13, s21\ns_mov_b32 s%d, 0x510000\ns_cselect_b32 s%d, 0x480000, s%d\ns_mov_b32 s%d, 0x00020000" % (R3, R3 + 1, R3 + 2, R3 + 2, R3 + 2, R3 + 3))
    a("s_mov_b32 %s, %d\ns_cselect_b32 %s, %d, %s" % (sT0, 384 * 1152, sT0, 256 * 1152, sT0))
    a("s_and_b32 %s, %s, 15\ns_mul_i32 %s, %s, %s" % (sT1, sTEAM, sOFF, sT0, sT1))
    a("s_lshl_b32 %s, %s, 7\ns_add_u32 %s, %s, %s\ns_sub_u32 %s, %s, %d" % (sT1, sCB, sOFF, sOFF, sT1, sOFF, sOFF, 8 * 1152))
    a("s_mov_b32 m0, %d" % (RA - 1024))
    a("s_cmp_eq_u32 %s, 2\ns_cselect_b32 s97, 0, %d" % (sTY, 0 if o.ldonly else 4))
    lds_wait_ge(F_C1, "s97")
    a("s_mov_b32 %s, 6" % sCNT)
    dma_loop(R3, "v12", 1024, str(8 * 1152), 6)
    lds_wait_ge(F_C2, "s97")
    a("s_lshr_b32 %s, %s, 2\ns_sub_u32 %s, %s, 6" % (sCNT, sNS2, sCNT, sCNT))
    dma_loop(R3, "v12", 1024, str(8 * 1152), 6)
    a("L_ld_drain:")
    stamp(2)
    for k in range(max(D, DQ) - 8, -1, -4):
        a("s_sub_u32 %s, %s, %d\nv_mov_b32 v4, %s\ns_waitcnt vmcnt(%d)\nds_write_b32 v3, v4 offset:%d" % (sT0, sISS, k, sT0, k, F_PROG))
    stamp(3)
    stamps_out()
    if o.hold:
        a("s_cmp_lg_u32 s2, %d\ns_cbranch_scc1 L_end" % o.holdwg)
        a("s_memrealtime s[98:99]\ns_waitcnt lgkmcnt(0)\ns_sub_u32 %s, s98, s100\ns_mul_i32 %s, %s, %d\ns_add_u32 %s, %s, %d" % (sT1, sT1, sT1, o.holdmul, sT1, sT1, o.hold))
        a("L_hold:\ns_memrealtime s[98:99]\ns_waitcnt lgkmcnt(0)\ns_sub_u32 %s, s98, s100\ns_cmp_lt_u32 %s, %s\ns_cbranch_scc1 L_hold" % (sT0, sT0, sT1))
    a("s_endpgm")

    a("L_cons:")
    a("s_barrier")
    if o.tlb:
        Lt = a.lab("LTL")
        a("s_waitcnt lgkmcnt(0)")
        a("s_cmp_lg_u32 %s, 8\ns_cbranch_scc1 %s" % (sWV, Lt))
        step = o.tlb << 10
        n = 0
        a("s_lshr_b32 %s, %s, 3\ns_lshl_b32 %s, %s, 4\ns_add_u32 %s, %s, %s\ns_lshl_b32 %s, %s, 20\ns_add_u32 %s, %s, 0xc0000" % (sT0, sI, sT0, sT0, sT0, sT0, sG, sT0, sT0, sT0, sT0))
        a("s_load_dword s90, s[8:9], %s" % sT0)
        a("s_load_dword s90, s[6:7], %s" % sT0)
        for base, size in ((10, 0x480000), (16, 0x510000), (18, 0x510000), (12, 0x480000), (20, 0x510000)):
            for off in range(0, size, step):
                a("s_mov_b32 %s, 0x%x\ns_load_dword s90, s[%d:%d], %s" % (sT1, off, base, base + 1, sT1))
        a("s_load_dword s90, s[26:27], 0x1000")
        a("s_waitcnt lgkmcnt(0)")
        a("%s:" % Lt)
    if o.ldonly: a("s_endpgm")
    a("s_waitcnt lgkmcnt(0)")
    mk_srd(RW, 26, W_END)
    a("v_lshrrev_b32 v8, 4, v0\nv_and_b32 v9, 15, v0")
    a("s_cmp_ge_u32 %s, 5\ns_cbranch_scc1 L_att" % sWV)

    sW = "s90"
    a("s_sub_u32 %s, %s, 1" % (sW, sWV))
    a("""
    v_lshrrev_b32 v10, 2, v0
    v_lshrrev_b32 v11, 3, v0
    v_and_b32 v11, 3, v11
    """)
    a("v_xor_b32 v11, %s, v11" % sW)
    a("""
    v_lshlrev_b32 v10, 7, v10
    v_lshl_add_u32 v10, v11, 5, v10
    v_and_b32 v11, 3, v0
    v_lshl_add_u32 v10, v11, 3, v10
    """)
    a("v_add_u32 v10, %d, v10" % RA)
    a("v_and_b32 v12, 1, v0")
    a("s_cmp_eq_u32 %s, 2\ns_cbranch_scc1 L_w_s2" % sTY)
    mk_srd(R0, 4, 2304)
    a("v_mul_u32_u24 v13, 36, v0")
    a("buffer_load_dwordx4 v[16:19], v13, %s, 0 offen" % srd(R0))
    a("buffer_load_dwordx4 v[20:23], v13, %s, 0 offen offset:16" % srd(R0))
    a("buffer_load_dword v24, v13, %s, 0 offen offset:32" % srd(R0))
    a("s_mov_b32 %s, 0xffff0000" % sT0)
    a("s_waitcnt vmcnt(0)")
    stamp(1)
    X = 28
    for k in range(9):
        a("v_lshlrev_b32 v%d, 16, v%d\nv_and_b32 v%d, %s, v%d" % (X + 2 * k, 16 + k, X + 2 * k + 1, sT0, 16 + k))
    def half_allreduce_add(v, t):
        a("s_nop 1")
        a("v_add_f32_dpp %s, %s, %s quad_perm:[1,0,3,2] row_mask:0xf bank_mask:0xf" % (v, v, v))
        a("s_nop 1")
        a("v_add_f32_dpp %s, %s, %s quad_perm:[2,3,0,1] row_mask:0xf bank_mask:0xf" % (v, v, v))
        a("s_nop 1")
        a("v_add_f32_dpp %s, %s, %s row_ror:4 row_mask:0xf bank_mask:0xf" % (v, v, v))
        a("s_nop 1")
        a("v_add_f32_dpp %s, %s, %s row_ror:8 row_mask:0xf bank_mask:0xf" % (v, v, v))
        a("v_mov_b32 %s, %s" % (t, v))
        a("s_nop 1")
        a("v_permlane16_swap_b32 %s, %s" % (v, t))
        a("v_add_f32 %s, %s, %s" % (v, v, t))
    a("v_add_f32 v14, v%d, v%d" % (X, X + 1))
    a("v_add_f32 v15, v%d, v%d" % (X + 2, X + 3))
    for k in range(4, 18, 2):
        a("v_add_f32 v14, v14, v%d\nv_add_f32 v15, v15, v%d" % (X + k, X + k + 1))
    a("v_add_f32 v14, v14, v15")
    half_allreduce_add("v14", "v15")
    a("v_mul_f32 v14, 0x3ae38e39, v14")
    a("v_mov_b32 v15, 0\nv_mov_b32 v25, 0")
    for k in range(0, 18, 2):
        a("v_sub_f32 v26, v%d, v14\nv_sub_f32 v27, v%d, v14\nv_fmac_f32 v15, v26, v26\nv_fmac_f32 v25, v27, v27" % (X + k, X + k + 1))
    a("v_add_f32 v15, v15, v25")
    half_allreduce_add("v15", "v25")
    a("v_mul_f32 v15, 0x3ae38e39, v15")
    a("v_cvt_pk_bf16_f32 v14, v14, v15")
    a("v_and_b32 v15, %s, v14\nv_lshlrev_b32 v14, 16, v14" % sT0)
    a("v_add_f32 v15, 0x3727c5ac, v15")
    a("v_cvt_pk_bf16_f32 v15, v15, v15\nv_lshlrev_b32 v15, 16, v15")
    a("v_sqrt_f32 v15, v15\ns_nop 0")
    a("v_cvt_pk_bf16_f32 v15, v15, v15\nv_lshlrev_b32 v15, 16, v15")
    a("v_rcp_f32 v15, v15")
    for k in range(9):
        a("v_sub_f32 v26, v%d, v14\nv_sub_f32 v27, v%d, v14" % (X + 2 * k, X + 2 * k + 1))
        a("v_cvt_pk_bf16_f32 v26, v26, v27")
        a("v_and_b32 v27, %s, v26\nv_lshlrev_b32 v26, 16, v26" % sT0)
        a("v_mul_f32 v26, v26, v15\nv_mul_f32 v27, v27, v15")
        a("v_cvt_pk_bf16_f32 v%d, v26, v27" % (16 + k))
    for k in range(0, 8, 2):
        a("ds_write2_b32 v13, v%d, v%d offset0:%d offset1:%d" % (16 + k, 17 + k, XN // 4 + k, XN // 4 + k + 1))
    a("ds_write_b32 v13, v24 offset:%d" % (XN + 32))
    a("v_mul_u32_u24 v11, %d, v12\nv_lshl_add_u32 v11, v8, 3, v11\nv_add_u32 v11, %d, v11" % (XN_P, XN))
    a("v_mov_b32 v13, v10")
    for r in range(4): a("v_mov_b32 v%d, 0" % (48 + r))
    a("v_mov_b32 v14, 1")
    stamp(2)
    sIT, sTH = "s91", "s92"
    a("s_mov_b32 %s, 0\ns_add_u32 %s, %s, 8" % (sIT, sTH, sBS))
    a("L_slab:")
    lds_wait_ge(F_PROG, sTH, cache=sSEEN)
    a("""
    ds_read_b64_tr_b16 v[16:17], v13
    ds_read_b64_tr_b16 v[18:19], v13 offset:2048
    ds_read2_b64 v[24:27], v11 offset0:0 offset1:4
    ds_read_b64_tr_b16 v[20:21], v13 offset:4096
    ds_read_b64_tr_b16 v[22:23], v13 offset:6144
    ds_read2_b64 v[28:31], v11 offset0:8 offset1:12
    v_add_u32 v13, 8192, v13
    v_add_u32 v11, 128, v11
    """)
    a("s_add_u32 %s, %s, 8\ns_add_u32 %s, %s, 1" % (sTH, sTH, sIT, sIT))
    a("""
    s_waitcnt lgkmcnt(3)
    v_mfma_f32_16x16x32_bf16 v[48:51], v[16:19], v[24:27], v[48:51]
    s_waitcnt lgkmcnt(0)
    v_mfma_f32_16x16x32_bf16 v[48:51], v[20:23], v[28:31], v[48:51]
    """)
    Ln = a.lab("LN")
    a("s_cmp_eq_u32 %s, 3\ns_cbranch_scc1 L_slab_c1" % sIT)
    a("s_cmp_eq_u32 %s, 6\ns_cbranch_scc1 L_slab_c2" % sIT)
    a("L_slab_n:")
    a("s_cmp_lt_u32 %s, 9\ns_cbranch_scc1 L_slab" % sIT)
    stamp(3)
    get_tag()
    a("v_lshlrev_b32 v13, 8, v9\nv_lshl_add_u32 v13, v8, 4, v13")
    a("s_lshl_b32 %s, %s, 9\ns_lshl_b32 %s, %s, 6\ns_add_u32 %s, %s, %s\ns_add_u32 %s, %s, %d" % (sT0, sU, sT1, sW, sT0, sT0, sT1, sT0, sT0, W_S1))
    a("v_cvt_pk_bf16_f32 v16, v48, v49\nv_cvt_pk_bf16_f32 v17, v50, v51")
    a("v_mov_b32 v18, %s\nv_mov_b32 v19, 0" % sTAG)
    a("v_cmp_gt_u32 vcc, 2, v9\ns_and_saveexec_b64 s[46:47], vcc")
    a("buffer_store_dwordx4 v[16:19], v13, %s, %s offen sc1" % (srd(RW), sT0))
    a("s_mov_b64 exec, s[46:47]")
    stamp(4)
    a("L_w_s2:")
    a("s_cmp_eq_u32 %s, 0\ns_cbranch_scc1 L_w_end" % sNS2)
    get_tag()
    WF = 16
    VF = 64
    AC = 112
    a("v_mul_u32_u24 v11, %d, v12\nv_lshl_add_u32 v11, v8, 3, v11\nv_add_u32 v11, %d, v11" % (VEC2_P, VEC2))
    for r in range(4): a("v_mov_b32 v%d, 0" % (AC + r))
    a("v_lshlrev_b32 v13, 10, v8\nv_lshl_add_u32 v13, v9, 4, v13")
    a("s_lshl_b32 %s, %s, 2\ns_add_u32 %s, %s, %s\ns_lshl_b32 %s, %s, 12\ns_lshl_b32 %s, %s, 5\ns_add_u32 %s, %s, %s\ns_add_u32 s93, %s, %d" % (
        sT0, sCB, sT0, sT0, sW, sT0, sT0, sT1, sTEAM, sT0, sT0, sT1, sT0, W_F))
    a("v_mov_b32 v14, 0xffffff00")
    a("s_and_b32 s94, %s, 0xff\ns_bfe_u32 s95, %s, 0x80008\ns_bfe_u32 s96, %s, 0x80010\ns_lshr_b32 s97, %s, 24" % (sTAG, sTAG, sTAG, sTAG))
    for s in range(0, 12, 2):
        if s == 8:
            a("s_cmp_eq_u32 %s, 32\ns_cbranch_scc1 L_s2_v8" % sNS2)
        a("s_add_u32 %s, %s, %d" % (sTH, sB2, 4 * s + 8))
        lds_wait_ge(F_PROG, sTH, cache=sSEEN)
        for q in range(4):
            a("ds_read_b64_tr_b16 v[%d:%d], v10 offset:%d" % (WF + 4 * s + 2 * q, WF + 4 * s + 2 * q + 1, s * 4096 + q * 2048))
    def s2_tail(n, nthr):
        stamp(5)
        lds_wait_ge(F_VRDY, str(nthr))
        stamp(6)
        for s in range(n):
            a("ds_read2_b64 v[%d:%d], v11 offset0:%d offset1:%d" % (VF + 4 * s, VF + 4 * s + 3, 8 * s, 8 * s + 4))
        for s in range(n):
            a("s_waitcnt lgkmcnt(%d)" % (n - 1 - s))
            a("v_mfma_f32_16x16x32_bf16 v[%d:%d], v[%d:%d], v[%d:%d], v[%d:%d]" % (AC, AC + 3, WF + 4 * s, WF + 4 * s + 3, VF + 4 * s, VF + 4 * s + 3, AC, AC + 3))
    s2_tail(12, 3)
    a("s_branch L_s2_pub")
    a("L_s2_v8:")
    s2_tail(8, 4)
    a("L_s2_pub:")
    a("v_cmp_gt_u32 vcc, 2, v9\ns_and_saveexec_b64 s[46:47], vcc")
    a("s_nop 6")
    for r in range(4):
        a("v_and_or_b32 v%d, v%d, v14, s%d" % (AC + r, AC + r, 94 + r))
    a("buffer_store_dwordx4 v[%d:%d], v13, %s, s93 offen sc1" % (AC, AC + 3, srd(RW)))
    a("L_w_end:")
    stamp(7)
    stamps_out(1)
    a("s_endpgm")
    for nm, off in (("L_slab_c1", F_C1), ("L_slab_c2", F_C2)):
        a("%s:" % nm)
        a("s_mov_b64 exec, 1\nds_add_u32 v3, v14 offset:%d\ns_mov_b64 exec, -1\ns_branch L_slab_n" % off)

    sA = "s90"
    sTH = "s92"
    a("L_att:")
    a("s_sub_u32 %s, %s, 5" % (sA, sWV))
    a("s_cmp_lg_u32 %s, 0\ns_cbranch_scc1 L_a_noep" % sA)
    a("buffer_load_dword v4, v3, %s, 0 offen sc1" % srd(RW))
    a("s_waitcnt vmcnt(0)")
    a("v_readfirstlane_b32 %s, v4" % sTAG)
    a("s_mul_i32 %s, %s, 1664525\ns_add_u32 %s, %s, 1013904223" % (sTAG, sTAG, sTAG, sTAG))
    a("v_mov_b32 v4, %s\nv_mov_b32 v5, 1" % sTAG)
    a("ds_write_b64 v3, v[4:5] offset:%d" % F_TAG)
    a("L_a_noep:")
    a("v_lshrrev_b32 v10, 2, v9\nv_mul_u32_u24 v10, %d, v10" % KP)
    a("v_and_b32 v11, 3, v0\nv_lshl_add_u32 v10, v11, 8, v10\nv_xor_b32 v11, v11, v8\nv_lshl_add_u32 v10, v11, 4, v10")
    a("s_mul_i32 %s, %s, %d\ns_add_u32 %s, %s, %d\nv_add_u32 v10, %s, v10" % (sT0, sA, 8 * KP, sT0, sT0, RK, sT0))
    a("v_mul_u32_u24 v12, %d, v8" % VP)
    a("v_lshrrev_b32 v11, 2, v9\nv_lshl_add_u32 v12, v11, 8, v12\nv_lshl_add_u32 v12, v11, 5, v12")
    a("v_and_b32 v11, 3, v0\nv_lshl_add_u32 v12, v11, 3, v12")
    a("s_mul_i32 %s, %s, %d\ns_add_u32 %s, %s, %d\nv_add_u32 v12, %s, v12" % (sT0, sA, 8 * VP, sT0, sT0, RV, sT0))
    a("v_xor_b32 v13, 32, v12\nv_xor_b32 v14, 64, v12\nv_xor_b32 v15, 0x60, v12")
    KF, VF, QF, SC, OA = 16, 48, 80, 96, 16
    a("s_lshl_b32 %s, %s, 3\ns_add_u32 %s, %s, %s\ns_add_u32 %s, %s, 8" % (sTH, sA, sTH, sTH, sBK, sTH, sTH))
    lds_wait_ge(F_PROG, sTH, cache=sSEEN)
    for t in range(2):
        for c in range(4):
            a("ds_read_b128 v[%d:%d], v10 offset:%d" % (KF + 16 * t + 4 * c, KF + 16 * t + 4 * c + 3, t * 4 * KP + c * 64))
    stamp(1)
    get_tag()
    a("s_cmp_lg_u32 %s, 0\ns_cbranch_scc1 L_a_qwait" % sA)
    a("s_add_u32 %s, %s, %d" % (sT0, sBK, o.qpoll))
    a("s_cmp_eq_u32 %s, 0\ns_cselect_b32 %s, 0, %s" % (sBS, sT0, sT0))
    lds_wait_ge(F_PROG, sT0, cache=sSEEN)
    a("v_lshlrev_b32 v11, 9, v8\nv_lshl_add_u32 v11, v9, 4, v11")
    a("s_lshl_b32 %s, %s, 11\ns_lshr_b32 %s, %s, 3\ns_lshl_b32 %s, %s, 8\ns_add_u32 %s, %s, %s\ns_add_u32 %s, %s, %d" % (sT0, sG, sT1, sI, sT1, sT1, sT0, sT0, sT1, sT0, sT0, W_S1))
    a("s_mov_b32 %s, 0" % sTMO)
    a("L_a_qpoll:")
    a("buffer_load_dwordx4 v[4:7], v11, %s, %s offen sc1" % (srd(RW), sT0))
    a("s_add_u32 %s, %s, 1\ns_cmp_gt_u32 %s, 0x8000\ns_cbranch_scc1 L_a_qok" % (sTMO, sTMO, sTMO))
    a("s_waitcnt vmcnt(0)")
    a("v_cmp_ne_u32 vcc, %s, v6\ns_cbranch_vccnz L_a_qpoll" % sTAG)
    a("L_a_qok:")
    a("s_waitcnt vmcnt(0)")
    a("v_lshlrev_b32 v11, 3, v0\nv_mov_b32 v6, 1")
    a("ds_write_b64 v11, v[4:5] offset:%d" % QV)
    a("ds_write_b32 v3, v6 offset:%d" % F_QRDY)
    a("L_a_qwait:")
    lds_wait_ge(F_QRDY, "1")
    stamp(2)
    a("v_and_b32 v11, 1, v0\nv_lshlrev_b32 v11, 8, v11\nv_lshl_add_u32 v11, v8, 4, v11")
    for c in range(4):
        a("ds_read_b128 v[%d:%d], v11 offset:%d" % (QF + 4 * c, QF + 4 * c + 3, QV + c * 64))
    for r in range(8): a("v_mov_b32 v%d, 0" % (SC + r))
    a("s_waitcnt lgkmcnt(0)")
    for c in range(4):
        for t in range(2):
            a("v_mfma_f32_16x16x32_bf16 v[%d:%d], v[%d:%d], v[%d:%d], v[%d:%d]" % (
                SC + 4 * t, SC + 4 * t + 3, KF + 16 * t + 4 * c, KF + 16 * t + 4 * c + 3, QF + 4 * c, QF + 4 * c + 3, SC + 4 * t, SC + 4 * t + 3))
    a("s_mov_b32 %s, 0xffff0000\ns_mov_b32 %s, 0x3db504f3\ns_mov_b32 %s, 0x3fb8aa3b" % (sT0, sT1, sT2))
    a("s_nop 7")
    for k in range(0, 8, 2):
        a("v_cvt_pk_bf16_f32 v4, v%d, v%d" % (SC + k, SC + k + 1))
        a("v_and_b32 v5, %s, v4\nv_lshlrev_b32 v4, 16, v4" % sT0)
        a("v_mul_f32 v4, %s, v4\nv_mul_f32 v5, %s, v5" % (sT1, sT1))
        a("v_cvt_pk_bf16_f32 v4, v4, v5")
        a("v_and_b32 v%d, %s, v4\nv_lshlrev_b32 v%d, 16, v4" % (SC + k + 1, sT0, SC + k))
    a("v_max3_f32 v4, v%d, v%d, v%d\nv_max3_f32 v5, v%d, v%d, v%d\nv_max3_f32 v4, v4, v%d, v%d\nv_max_f32 v4, v4, v5" % tuple(SC + k for k in range(8)))
    def rows_allreduce(op, v, t):
        a("v_mov_b32 %s, %s\ns_nop 1\nv_permlane16_swap_b32 %s, %s\n%s %s, %s, %s" % (t, v, v, t, op, v, v, t))
        a("v_mov_b32 %s, %s\ns_nop 1\nv_permlane32_swap_b32 %s, %s\n%s %s, %s, %s" % (t, v, v, t, op, v, v, t))
    rows_allreduce("v_max_f32", "v4", "v5")
    a("v_mul_f32 v4, %s, v4" % sT2)
    for k in range(8):
        a("v_fma_f32 v%d, v%d, %s, -v4" % (SC + k, SC + k, sT2))
    for k in range(8):
        a("v_exp_f32 v%d, v%d" % (SC + k, SC + k))
    a("s_nop 0")
    a("v_add_f32 v5, v%d, v%d\nv_add_f32 v6, v%d, v%d" % (SC, SC + 1, SC + 2, SC + 3))
    a("v_add_f32 v5, v5, v%d\nv_add_f32 v6, v6, v%d\nv_add_f32 v5, v5, v%d\nv_add_f32 v6, v6, v%d\nv_add_f32 v5, v5, v6" % (SC + 4, SC + 5, SC + 6, SC + 7))
    rows_allreduce("v_add_f32", "v5", "v6")
    PF = 104
    for k in range(4):
        a("v_cvt_pk_bf16_f32 v%d, v%d, v%d" % (PF + k, SC + 2 * k, SC + 2 * k + 1))
    for r in range(32): a("v_mov_b32 v%d, 0" % (OA + r))
    stamp(3)
    a("s_add_u32 %s, %s, 32" % (sTH, sTH))
    lds_wait_ge(F_PROG, sTH, cache=sSEEN, vt="v6")
    for db in range(8):
        dh, dl = db >> 2, db & 3
        for t in range(2):
            a("ds_read_b64_tr_b16 v[%d:%d], v%d offset:%d" % (VF + 4 * db + 2 * t, VF + 4 * db + 2 * t + 1, 12 + dl, dh * 128 + t * 4 * VP))
    for db in range(8):
        a("s_waitcnt lgkmcnt(%d)" % min(15, 14 - 2 * db))
        a("v_mfma_f32_16x16x32_bf16 v[%d:%d], v[%d:%d], v[%d:%d], v[%d:%d]" % (
            OA + 4 * db, OA + 4 * db + 3, VF + 4 * db, VF + 4 * db + 3, PF, PF + 3, OA + 4 * db, OA + 4 * db + 3))
    a("v_lshlrev_b32 v11, 9, v9\nv_lshl_add_u32 v11, v8, 4, v11")
    a("s_lshl_b32 %s, %s, 10\nv_add_u32 v11, %s, v11" % (sT3, sA, sT3))
    a("v_lshlrev_b32 v10, 3, v9\ns_lshl_b32 %s, %s, 4\nv_add_u32 v10, %s, v10" % (sT3, sA, sT3))
    a("v_cmp_gt_u32 vcc, 2, v9\ns_and_saveexec_b64 s[46:47], vcc")
    a("ds_write_b64 v10, v[4:5] offset:%d" % ML)
    a("s_nop 1")
    for db in range(8):
        a("ds_write_b128 v11, v[%d:%d] offset:%d" % (OA + 4 * db, OA + 4 * db + 3, OPART + db * 64))
    a("s_mov_b64 exec, 1\nv_mov_b32 v6, 1")
    a("ds_add_rtn_u32 v6, v3, v6 offset:%d" % F_ACNT)
    a("s_mov_b64 exec, -1")
    a("s_waitcnt lgkmcnt(0)")
    a("v_readfirstlane_b32 %s, v6" % sT3)
    a("s_cmp_lg_u32 %s, 3\ns_cbranch_scc1 L_a_prep" % sT3)
    a("v_lshlrev_b32 v11, 4, v0")
    a("v_lshrrev_b32 v10, 5, v0\nv_lshlrev_b32 v10, 3, v10")
    for k in range(4):
        a("ds_read_b64 v[%d:%d], v10 offset:%d" % (48 + 2 * k, 49 + 2 * k, ML + 16 * k))
    for k in range(4):
        a("ds_read_b128 v[%d:%d], v11 offset:%d" % (16 + 4 * k, 19 + 4 * k, OPART + 1024 * k))
    a("s_waitcnt lgkmcnt(4)")
    a("v_max3_f32 v4, v48, v50, v52\nv_max_f32 v4, v4, v54")
    for k in range(4): a("v_sub_f32 v%d, v%d, v4" % (48 + 2 * k, 48 + 2 * k))
    for k in range(4): a("v_exp_f32 v%d, v%d" % (48 + 2 * k, 48 + 2 * k))
    a("s_nop 0")
    a("v_mul_f32 v5, v48, v49\nv_fmac_f32 v5, v50, v51\nv_fmac_f32 v5, v52, v53\nv_fmac_f32 v5, v54, v55")
    a("v_rcp_f32 v6, v5\nv_log_f32 v7, v5")
    a("s_waitcnt lgkmcnt(0)")
    for r in range(4):
        a("v_mul_f32 v%d, v48, v%d" % (32 + r, 16 + r))
        for k in range(1, 4): a("v_fmac_f32 v%d, v%d, v%d" % (32 + r, 48 + 2 * k, 16 + 4 * k + r))
        a("v_mul_f32 v%d, v%d, v6" % (32 + r, 32 + r))
    a("v_add_f32 v39, v4, v7")
    a("v_cvt_pk_bf16_f32 v36, v32, v33\nv_cvt_pk_bf16_f32 v37, v34, v35\nv_mov_b32 v38, %s" % sTAG)
    a("s_lshl_b32 %s, %s, 4\ns_add_u32 %s, %s, %s\ns_lshl_b32 %s, %s, 10\ns_add_u32 %s, %s, %d" % (sT0, sG, sT0, sT0, sI, sT0, sT0, sT0, sT0, W_O))
    a("buffer_store_dwordx4 v[36:39], v11, %s, %s offen sc1" % (srd(RW), sT0))
    a("L_a_prep:")
    stamp(4)
    a("s_cmp_eq_u32 %s, 0\ns_cbranch_scc1 L_a_red" % sNS2)
    a("s_cmp_ge_u32 %s, 16\ns_cbranch_scc1 L_a_hprep" % sTEAM)
    a("s_mov_b32 %s, %d" % (sT0, o.opoll))
    lds_wait_ge(F_PROG, sT0, cache=sSEEN)
    a("s_mov_b32 exec_hi, 0")
    a("v_lshlrev_b32 v11, 4, v0")
    a("s_lshl_b32 %s, %s, 14\ns_lshr_b32 %s, %s, 1\ns_lshl_b32 %s, %s, 13\ns_add_u32 %s, %s, %s" % (sT0, sG, sT1, sA, sT1, sT1, sT0, sT0, sT1))
    a("s_and_b32 %s, %s, 1\ns_lshl_b32 %s, %s, 9\ns_add_u32 %s, %s, %s\ns_add_u32 %s, %s, %d" % (sT1, sA, sT1, sT1, sT0, sT0, sT1, sT0, sT0, W_O))
    a("s_add_u32 %s, %s, 4096" % (sT1, sT0))
    a("s_mov_b32 %s, 0" % sTMO)
    def oloads(fl):
        for s in range(8):
            a("buffer_load_dwordx4 v[%d:%d], v11, %s, %s offen offset:%d %s" % (16 + 4 * s, 19 + 4 * s, srd(RW), sT0 if s < 4 else sT1, (s & 3) * 1024, fl))
    if o.oplain:
        oloads("")
        a("s_branch L_a_ochk")
    a("L_a_opoll:")
    oloads("sc1")
    a("L_a_ochk:")
    a("s_add_u32 %s, %s, 1\ns_cmp_gt_u32 %s, 0x8000\ns_cbranch_scc1 L_a_ook" % (sTMO, sTMO, sTMO))
    a("s_waitcnt vmcnt(0)")
    a("v_xor_b32 v4, %s, v18" % sTAG)
    for s in range(1, 8):
        a("v_xor_b32 v5, %s, v%d\nv_or_b32 v4, v4, v5" % (sTAG, 18 + 4 * s))
    a("v_cmp_ne_u32 vcc, 0, v4\ns_cbranch_vccnz L_a_opoll")
    a("L_a_ook:")
    a("s_waitcnt vmcnt(0)")
    stamp(5)
    a("v_max3_f32 v4, v19, v23, v27\nv_max3_f32 v5, v31, v35, v39\nv_max3_f32 v4, v4, v43, v47\nv_max_f32 v4, v4, v5")
    for s in range(8): a("v_sub_f32 v%d, v%d, v4" % (19 + 4 * s, 19 + 4 * s))
    for s in range(8): a("v_exp_f32 v%d, v%d" % (19 + 4 * s, 19 + 4 * s))
    a("s_mov_b32 %s, 0xffff0000" % sT0)
    for r in range(4): a("v_mov_b32 v%d, 0" % (48 + r))
    a("v_mov_b32 v5, 0")
    for s in range(8):
        w = 19 + 4 * s
        a("v_add_f32 v5, v5, v%d" % w)
        a("v_lshlrev_b32 v6, 16, v%d\nv_and_b32 v7, %s, v%d\nv_fmac_f32 v48, v%d, v6\nv_fmac_f32 v49, v%d, v7" % (16 + 4 * s, sT0, 16 + 4 * s, w, w))
        a("v_lshlrev_b32 v6, 16, v%d\nv_and_b32 v7, %s, v%d\nv_fmac_f32 v50, v%d, v6\nv_fmac_f32 v51, v%d, v7" % (17 + 4 * s, sT0, 17 + 4 * s, w, w))
    a("v_rcp_f32 v5, v5\ns_nop 0")
    for r in range(4): a("v_mul_f32 v%d, v%d, v5" % (48 + r, 48 + r))
    a("v_cvt_pk_bf16_f32 v4, v48, v49\nv_cvt_pk_bf16_f32 v5, v50, v51")
    a("s_lshr_b32 %s, %s, 1\ns_mul_i32 %s, %s, %d\ns_and_b32 %s, %s, 1\ns_lshl_b32 %s, %s, 8\ns_add_u32 %s, %s, %s" % (sT0, sA, sT0, sT0, VEC2_P, sT1, sA, sT1, sT1, sT0, sT0, sT1))
    a("v_lshlrev_b32 v11, 3, v0\nv_add_u32 v11, %s, v11" % sT0)
    a("ds_write_b64 v11, v[4:5] offset:%d" % VEC2)
    a("s_mov_b64 exec, 1\nv_mov_b32 v6, 1\nds_add_u32 v3, v6 offset:%d\ns_mov_b64 exec, -1" % F_VRDY)
    a("s_branch L_a_end")
    a("L_a_hprep:")
    a("s_cmp_ge_u32 %s, 3\ns_cbranch_scc1 L_a_red" % sA)
    a("s_add_u32 %s, %s, %d" % (sT0, sB2, o.hpoll))
    lds_wait_ge(F_PROG, sT0, cache=sSEEN)
    a("v_lshlrev_b32 v11, 4, v0")
    a("s_mul_i32 %s, %s, 3072\ns_lshl_b32 %s, %s, 10\ns_add_u32 %s, %s, %s\ns_add_u32 %s, %s, %d" % (sT0, sTEAM, sT1, sA, sT0, sT0, sT1, sT0, sT0, W_S1 + 64 * 512 - 16 * 3072))
    a("s_add_u32 %s, %s, %d" % (sT1, sT0, 72 * 512))
    a("v_and_b32 v10, 1, v8\nv_mul_u32_u24 v10, %d, v10\nv_lshl_add_u32 v10, v9, 3, v10" % VEC2_P)
    a("v_lshrrev_b32 v12, 5, v0\nv_lshl_add_u32 v10, v12, 7, v10\ns_lshl_b32 %s, %s, 8\nv_add_u32 v10, %s, v10" % (sT2, sA, sT2))
    a("s_mov_b32 %s, 0" % sTMO)
    a("L_a_hpoll:")
    a("buffer_load_dwordx4 v[16:19], v11, %s, %s offen sc1" % (srd(RW), sT0))
    a("buffer_load_dwordx4 v[20:23], v11, %s, %s offen sc1" % (srd(RW), sT1))
    a("s_add_u32 %s, %s, 1\ns_cmp_gt_u32 %s, 0x8000\ns_cbranch_scc1 L_a_hok" % (sTMO, sTMO, sTMO))
    a("s_waitcnt vmcnt(0)")
    a("v_xor_b32 v4, %s, v18\nv_xor_b32 v5, %s, v22\nv_or_b32 v4, v4, v5" % (sTAG, sTAG))
    a("v_cmp_ne_u32 vcc, 0, v4\ns_and_b64 exec, exec, vcc\ns_cbranch_vccnz L_a_hpoll")
    a("L_a_hok:")
    a("s_mov_b64 exec, -1")
    a("s_waitcnt vmcnt(0)")
    stamp(5)
    a("s_mov_b32 %s, 0xffff0000" % sT0)
    a("v_lshlrev_b32 v24, 16, v16\nv_and_b32 v25, %s, v16\nv_lshlrev_b32 v26, 16, v17\nv_and_b32 v27, %s, v17" % (sT0, sT0))
    a("v_lshlrev_b32 v28, 16, v20\nv_and_b32 v29, %s, v20\nv_lshlrev_b32 v30, 16, v21\nv_and_b32 v31, %s, v21" % (sT0, sT0))
    import math, struct
    c1 = -2.0 * math.sqrt(2.0 / math.pi) * math.log2(math.e)
    f2u = lambda f: struct.unpack("<I", struct.pack("<f", f))[0]
    a("s_mov_b32 %s, 0x%08x\nv_mov_b32 v4, 0x%08x" % (sT1, f2u(c1 * 0.044715), f2u(c1)))
    for r in range(4): a("v_mul_f32 v%d, v%d, v%d" % (32 + r, 24 + r, 24 + r))
    for r in range(4): a("v_fma_f32 v%d, v%d, %s, v4" % (32 + r, 32 + r, sT1))
    for r in range(4): a("v_mul_f32 v%d, v%d, v%d" % (32 + r, 32 + r, 24 + r))
    for r in range(4): a("v_exp_f32 v%d, v%d" % (32 + r, 32 + r))
    a("s_nop 0")
    for r in range(4): a("v_add_f32 v%d, 1.0, v%d" % (32 + r, 32 + r))
    for r in range(4): a("v_rcp_f32 v%d, v%d" % (32 + r, 32 + r))
    a("s_nop 0")
    for r in range(4): a("v_mul_f32 v%d, v%d, v%d" % (32 + r, 32 + r, 24 + r))
    a("v_cvt_pk_bf16_f32 v4, v32, v33\nv_cvt_pk_bf16_f32 v5, v34, v35")
    a("v_lshlrev_b32 v32, 16, v4\nv_and_b32 v33, %s, v4\nv_lshlrev_b32 v34, 16, v5\nv_and_b32 v35, %s, v5" % (sT0, sT0))
    for r in range(4): a("v_mul_f32 v%d, v%d, v%d" % (32 + r, 32 + r, 28 + r))
    a("v_cvt_pk_bf16_f32 v4, v32, v33\nv_cvt_pk_bf16_f32 v5, v34, v35")
    a("ds_write_b64 v10, v[4:5] offset:%d" % VEC2)
    a("s_mov_b64 exec, 1\nv_mov_b32 v6, 1\nds_add_u32 v3, v6 offset:%d\ns_mov_b64 exec, -1" % F_VRDY)
    a("L_a_red:")
    stamp(6)
    a("s_cmp_lg_u32 %s, 2\ns_cbranch_scc1 L_a_end" % sTY)
    a("s_mul_i32 %s, %s, 3\ns_add_u32 %s, %s, %s\ns_sub_u32 %s, %s, 13" % (sT0, sG, sT0, sT0, sI, sT0, sT0))
    a("s_cmp_ge_u32 %s, 36\ns_cbranch_scc1 L_a_end" % sT0)
    a("s_lshl_b32 %s, %s, 2\ns_add_u32 s93, %s, %s" % (sT0, sT0, sT0, sA))
    mk_srd(R0, 4, 2304)
    mk_srd(R1, 22, 2304)
    a("v_and_b32 v12, 1, v0\nv_mul_u32_u24 v12, 1152, v12\ns_lshl_b32 s98, s93, 3")
    a("buffer_load_dwordx2 v[14:15], v12, %s, s98 offen" % srd(R0))
    a("s_lshl_b32 %s, s93, 10\ns_add_u32 %s, %s, %d" % (sT0, sT0, sT0, W_F))
    a("v_lshlrev_b32 v11, 4, v0")
    a("s_and_b32 s94, %s, 0xff\ns_bfe_u32 s95, %s, 0x80008\ns_bfe_u32 s96, %s, 0x80010\ns_lshr_b32 s97, %s, 24" % (sTAG, sTAG, sTAG, sTAG))
    for r in range(4): a("v_mov_b32 v%d, 0" % (16 + r))
    a("s_mov_b32 exec_hi, 0x00ffffff")
    a("s_mov_b32 %s, 0" % sTMO)
    a("L_a_fpoll:")
    a("buffer_load_dwordx4 v[16:19], v11, %s, %s offen sc1" % (srd(RW), sT0))
    a("s_add_u32 %s, %s, 1\ns_cmp_gt_u32 %s, 0x8000\ns_cbranch_scc1 L_a_fok" % (sTMO, sTMO, sTMO))
    a("s_waitcnt vmcnt(0)")
    a("v_xor_b32 v4, s94, v16\nv_xor_b32 v5, s95, v17\nv_xor_b32 v6, s96, v18\nv_xor_b32 v7, s97, v19")
    a("v_or3_b32 v4, v4, v5, v6\nv_or_b32 v4, v4, v7\nv_and_b32 v4, 0xff, v4")
    a("v_cmp_ne_u32 vcc, 0, v4\ns_and_b64 exec, exec, vcc\ns_cbranch_vccnz L_a_fpoll")
    a("L_a_fok:")
    a("s_mov_b64 exec, -1")
    a("s_waitcnt vmcnt(0)")
    stamp(7)
    for dp in ("quad_perm:[2,3,0,1]", "row_ror:4", "row_ror:8"):
        for r in range(4):
            a("v_add_f32_dpp v%d, v%d, v%d %s row_mask:0xf bank_mask:0xf" % (16 + r, 16 + r, 16 + r, dp))
    for r in range(4): a("v_mov_b32 v%d, v%d" % (20 + r, 16 + r))
    for r in range(4): a("v_permlane16_swap_b32 v%d, v%d" % (16 + r, 20 + r))
    for r in range(4): a("v_add_f32 v%d, v%d, v%d" % (16 + r, 16 + r, 20 + r))
    a("v_cvt_pk_bf16_f32 v16, v16, v17\nv_cvt_pk_bf16_f32 v17, v18, v19")
    a("v_mov_b32 v18, v16\nv_mov_b32 v19, v17\ns_mov_b32 %s, 0xffff0000\ns_nop 0" % sT1)
    a("v_permlane32_swap_b32 v16, v18\nv_permlane32_swap_b32 v17, v19")
    for k in range(2):
        a("v_lshlrev_b32 v4, 16, v%d\nv_and_b32 v5, %s, v%d" % (14 + k, sT1, 14 + k))
        a("v_lshlrev_b32 v6, 16, v%d\nv_and_b32 v7, %s, v%d" % (16 + k, sT1, 16 + k))
        a("v_add_f32 v4, v4, v6\nv_add_f32 v5, v5, v7\nv_cvt_pk_bf16_f32 v4, v4, v5")
        a("v_and_b32 v5, %s, v4\nv_lshlrev_b32 v4, 16, v4" % sT1)
        a("v_lshlrev_b32 v6, 16, v%d\nv_and_b32 v7, %s, v%d" % (18 + k, sT1, 18 + k))
        a("v_add_f32 v4, v4, v6\nv_add_f32 v5, v5, v7\nv_cvt_pk_bf16_f32 v%d, v4, v5" % (20 + k))
    a("s_mov_b64 exec, 3")
    a("buffer_store_dwordx2 v[20:21], v12, %s, s98 offen" % srd(R1))
    a("s_cmp_lg_u32 s93, 0\ns_cbranch_scc1 L_a_end")
    a("s_mov_b64 exec, 1\nv_mov_b32 v4, %s" % sTAG)
    a("buffer_store_dword v4, v3, %s, 0 offen sc1" % srd(RW))
    a("L_a_end:")
    stamps_out(2)
    a("L_end:")
    a("s_endpgm")

    hdr = open(__file__.replace("gen.py", "header.txt")).read()
    hdr += "; @launch grid=(256,1,1) block=(576,1,1) lds=%d\n" % LDS_TOTAL
    hdr += '.amdgcn_target "amdgcn-amd-amdhsa--gfx950"\n.text\n.globl %s\n.p2align 8\n.type %s,@function\n' % (NAME, NAME)
    ftr = """.section .rodata,"a"
.p2align 6
.amdhsa_kernel %s
  .amdhsa_next_free_vgpr 128
  .amdhsa_next_free_sgpr 102
  .amdhsa_accum_offset 128
  .amdhsa_group_segment_fixed_size 0
  .amdhsa_kernarg_size 96
  .amdhsa_user_sgpr_count 2
  .amdhsa_user_sgpr_kernarg_segment_ptr 1
  .amdhsa_system_sgpr_workgroup_id_x 1
  .amdhsa_float_denorm_mode_32 3
.end_amdhsa_kernel
""" % NAME
    return hdr + a.text() + ftr

def parser():
    p = argparse.ArgumentParser()
    p.add_argument("-o", default="-")
    p.add_argument("--depth", type=int, default=32)
    p.add_argument("--depthq", type=int, default=32)
    p.add_argument("--diag", type=int, default=0)
    p.add_argument("--gumap", type=int, default=0)
    p.add_argument("--gfirst", type=int, default=0)
    p.add_argument("--qpoll", type=int, default=48)
    p.add_argument("--opoll", type=int, default=120)
    p.add_argument("--hpoll", type=int, default=0)
    p.add_argument("--oplain", type=int, default=0)
    p.add_argument("--ldonly", type=int, default=0)
    p.add_argument("--hold", type=int, default=0)
    p.add_argument("--holdmul", type=int, default=0)
    p.add_argument("--holdwg", type=int, default=0)
    p.add_argument("--pol", default="nt")
    p.add_argument("--tlb", type=int, default=0)
    p.add_argument("--sleep", type=int, default=0)
    return p

if __name__ == "__main__":
    o = parser().parse_args()
    t = gen(o)
    if o.o == "-": sys.stdout.write(t)
    else: open(o.o, "w").write(t)
```

```python
import sys, argparse, math, struct, os

NAME = "parallel_sum__sliding_block_cached__geglu_ffn__decode_kernel"
f2u = lambda f: struct.unpack("<I", struct.pack("<f", f))[0]

class Asm:
    def __init__(self):
        self.lines = []
        self.n = 0
    def __call__(self, s, *args):
        if args: s = s % args
        for ln in s.strip("\n").split("\n"):
            ln = ln.strip()
            if not ln: continue
            if ln.endswith(":"): self.lines.append(ln)
            else: self.lines.append("    " + ln)
    def lab(self, p="L"):
        self.n += 1
        return "%s_%d" % (p, self.n)
    def text(self): return "\n".join(self.lines) + "\n"

F_PROG, F_QRDY, F_A1, F_A2, F_VRDY, F_C1, F_VER = 0, 16, 20, 8, 24, 28, 32
XN, XN_P = 256, 1152
QV = 2560
VEC2, VEC2_P = 3072, 1280
MX = 5632
LS = 5664
PB = 5888
RA = 10240
RWQ = RA + 48 * 1024
RK = RA + 80 * 1024
KP = 1088
RV = RK + 32 * KP
VP = 1152
LDS_TOTAL = RV + 32 * VP
assert LDS_TOTAL <= 163840
W_EPOCH = 0
W_V = 1024
W_Q = 4096
W_G = W_Q + 16 * 8192
W_O = W_G + 6 * 36864
W_AEND = W_O + 256 * 1024
BOFF = 0xa0000
assert W_AEND - W_Q <= BOFF
W_F = W_AEND + BOFF
W_END = W_F + 36 * 4096
W_DIAG = 2 << 20
assert W_END <= W_DIAG
P_G = 26

def gen(o):
    a = Asm()
    D = o.depth
    diag = o.diag
    sX, sIDX, sG, sI, sWV = "s28", "s29", "s30", "s31", "s32"
    sTEAM, sCB, sNS2, sB2, sR0 = "s33", "s34", "s35", "s36", "s37"
    sD3, sM3 = "s38", "s39"
    sT0, sT1, sT2, sT3 = "s40", "s41", "s42", "s43"
    sSEEN, sTMO, sTAG, sVER = "s44", "s45", "s46", "s47"
    sEX = "s[68:69]"
    R0, R1, R2, R3, R4 = 48, 52, 56, 60, 64
    RW = 64
    RB = 60
    ST = 72
    def srd(r): return "s[%d:%d]" % (r, r + 3)
    def mk_srd(r, lo, size):
        a("s_mov_b32 s%d, s%d\ns_mov_b32 s%d, s%d\ns_mov_b32 s%d, 0x%x\ns_mov_b32 s%d, 0x00020000", r, lo, r + 1, lo + 1, r + 2, size, r + 3)
    def stamp(k):
        if diag: a("s_memrealtime s[%d:%d]", ST + 2 * k, ST + 2 * k + 1)
    def stamps_out():
        if not diag: return
        a("s_waitcnt lgkmcnt(0)")
        a("s_mov_b64 exec, -1")
        a("s_lshl_b32 %s, s2, 4\ns_add_u32 %s, %s, %s\ns_lshl_b32 %s, %s, 6\ns_add_u32 %s, %s, 0x%x", sT0, sT0, sT0, sWV, sT0, sT0, sT0, sT0, W_DIAG)
        a("v_mov_b32 v1, %s", sT0)
        for k in range(4):
            for j in range(4): a("v_mov_b32 v%d, s%d", 4 + j, ST + 4 * k + j)
            a("global_store_dwordx4 v1, v[4:7], s[26:27] offset:%d", 16 * k)
            a("s_nop 1")
    def lds_wait_ge(off, thr, cache=None, vt="v2", vz="v3", sleep=0):
        L, E = a.lab("LW"), a.lab("LE")
        c = cache or sT3
        if cache:
            a("s_cmp_ge_i32 %s, %s\ns_cbranch_scc1 %s", c, thr, E)
        a("s_mov_b32 %s, 0", sTMO)
        a("%s:" % L)
        if o.sleep: a("s_sleep %d", o.sleep)
        a("ds_read_b32 %s, %s offset:%d", vt, vz, off)
        a("s_add_u32 %s, %s, 1", sTMO, sTMO)
        a("s_cmp_gt_u32 %s, 0x80000\ns_cbranch_scc1 %s", sTMO, E)
        a("s_waitcnt lgkmcnt(0)")
        a("v_readfirstlane_b32 %s, %s", c, vt)
        a("s_cmp_lt_i32 %s, %s\ns_cbranch_scc1 %s", c, thr, L)
        a("%s:" % E)
    def get_tag():
        a("s_waitcnt lgkmcnt(0)")
        a("s_mul_i32 %s, %s, 1664525\ns_add_u32 %s, %s, 1013904223", sTAG, sTAG, sTAG, sTAG)
        a("s_and_b32 s94, %s, 0xff\ns_bfe_u32 s95, %s, 0x80008\ns_bfe_u32 s96, %s, 0x80010\ns_lshr_b32 s97, %s, 24", sTAG, sTAG, sTAG, sTAG)
    def tag_merge(r, rnd=True):
        for k in range(4):
            if rnd: a("v_add_u32 v%d, 0x80, v%d", r + k, r + k)
        for k in range(4):
            a("v_and_or_b32 v%d, v%d, v14, s%d", r + k, r + k, 94 + k)
    def tag_bad(dst, r, first):
        a("v_xor_b32 v5, s94, v%d\nv_xor_b32 v6, s95, v%d\nv_xor_b32 v7, s96, v%d", r, r + 1, r + 2)
        if first: a("v_or3_b32 %s, v5, v6, v7", dst)
        else: a("v_or3_b32 %s, %s, v5, v6\nv_or_b32 %s, %s, v7", dst, dst, dst, dst)
        a("v_xor_b32 v5, s97, v%d\nv_or_b32 %s, %s, v5", r + 3, dst, dst)
    def flag_add(off, vt="v6"):
        a("s_mov_b64 exec, 1\nv_mov_b32 %s, 1\nds_add_u32 v3, %s offset:%d\ns_mov_b64 exec, -1", vt, vt, off)
    ool = []
    def get_ver():
        lds_wait_ge(F_VER, "1", cache=sVER)
    def two_way(fast, slow):
        Ls, Lr = a.lab("LS"), a.lab("LB")
        a("s_cmp_lg_u32 %s, 1\ns_cbranch_scc1 %s", sVER, Ls)
        fast()
        a("%s:" % Lr)
        ool.append((Ls, slow, Lr))
    def flush_ool():
        for Ls, slow, Lr in ool:
            a("%s:" % Ls)
            slow()
            a("s_branch %s", Lr)
        del ool[:]
    def pub(items):
        def fast():
            for regs, so, off in items:
                a("buffer_store_dwordx4 %s, v1, %s, %s offen offset:%d", regs, srd(RW), so, off)
        def slow():
            for regs, so, off in items:
                a("buffer_store_dwordx4 %s, v1, %s, %s offen offset:%d sc1", regs, srd(RB), so, off)
        two_way(fast, slow)
    def fetch(items):
        def go(r, fl):
            for d, vo, so, off in items:
                a("buffer_load_dwordx4 v[%d:%d], %s, %s, %s offen offset:%d %s", d, d + 3, vo, srd(r), so, off, fl)
        two_way(lambda: go(RW, "nt"), lambda: go(RB, "sc1"))
    def mfma(d, A, B):
        a("v_mfma_f32_16x16x32_bf16 v[%d:%d], v[%d:%d], v[%d:%d], v[%d:%d]", d, d + 3, A, A + 3, B, B + 3, d, d + 3)

    a("%s:" % NAME)
    stamp(0)
    if diag:
        for k in range(1, 8): a("s_mov_b64 s[%d:%d], 0", ST + 2 * k, ST + 2 * k + 1)
    a("""
    s_load_dwordx16 s[4:19], s[0:1], 0
    s_load_dwordx8 s[20:27], s[0:1], 64
    s_cmp_ge_u32 s2, 256
    s_cbranch_scc1 L_end
    v_lshrrev_b32 v1, 6, v0
    v_and_b32 v0, 63, v0
    v_mov_b32 v3, 0
    """)
    a("v_readfirstlane_b32 %s, v1", sWV)
    a("s_and_b32 %s, s2, 7\ns_lshr_b32 %s, s2, 3", sX, sIDX)
    a("s_lshr_b32 %s, s2, 7\ns_lshl1_add_u32 %s, %s, %s\ns_and_b32 %s, %s, 15", sT0, sG, sX, sT0, sI, sIDX)
    a("s_cmp_eq_u32 %s, 0\ns_cbranch_scc1 L_loader", sWV)
    a("v_mul_u32_u24 v13, 36, v0")
    a("s_cmp_ge_u32 %s, 5", sWV)
    a("s_waitcnt lgkmcnt(0)")
    a("s_load_dword %s, s[26:27], 0", sTAG)
    a("s_cbranch_scc1 L_cons2")
    a("global_load_dwordx4 v[16:19], v13, s[4:5]")
    a("global_load_dwordx4 v[20:23], v13, s[4:5] offset:16")
    a("global_load_dword v24, v13, s[4:5] offset:32")
    a("L_cons2:")
    if o.cpf:
        Lc = a.lab("LCP")
        a("s_cmp_lg_u32 %s, 8\ns_cbranch_scc1 %s", sWV, Lc)
        a("s_lshl_b32 %s, %s, 10\ns_cmp_ge_u32 %s, L_code_end-%s\ns_cbranch_scc1 %s", sT0, sI, sT0, NAME, Lc)
        a("s_getpc_b64 s[88:89]")
        a("L_pc:")
        a("s_sub_u32 s88, s88, L_pc-%s\ns_subb_u32 s89, s89, 0", NAME)
        a("v_lshlrev_b32 v4, 4, v0\nv_add_u32 v4, %s, v4", sT0)
        a("global_load_dwordx4 v[76:79], v4, s[88:89]")
        a("%s:" % Lc)
    a("s_branch L_cons3")
    a("L_loader:")

    sOFF, sCNT, sISS, sKV, sRQ = "s90", "s91", "s92", "s93", "s98"
    sO2, sMG = "s99", "s100"
    def prog(depth):
        a("s_add_u32 %s, %s, 4\nv_mov_b32 v4, %s", sISS, sISS, sISS)
        a("s_waitcnt vmcnt(%d)", depth - 4)
        a("ds_write_b32 v3, v4 offset:%d", F_PROG)
    def loop_end(L):
        a("s_sub_u32 %s, %s, 1\ns_cmp_lg_u32 %s, 0\ns_cbranch_scc1 %s", sCNT, sCNT, sCNT, L)
    def kv_group(r, voff, base, pitch, wait=True):
        a("s_mul_i32 %s, %s, %d\ns_add_u32 m0, %s, %d", sT0, sRQ, 4 * pitch, sT0, base)
        a("s_lshl_b32 %s, %s, 12\ns_add_u32 %s, %s, %s", sT1, sRQ, sT1, sT1, sKV)
        for k in range(4):
            a("buffer_load_dwordx4 %s, %s, %s offen %s lds", voff, srd(r), sT1, o.pol)
            if k < 3: a("s_add_u32 m0, m0, %d\ns_add_u32 %s, %s, s101", pitch, sT1, sT1)
        a("s_add_u32 %s, %s, 1\ns_and_b32 %s, %s, 7", sRQ, sRQ, sRQ, sRQ)
        if wait: prog(D)
    def kv_loop(r, voff, base, pitch):
        L = a.lab("LD")
        a("%s:" % L)
        kv_group(r, voff, base, pitch)
        loop_end(L)
    def pair_group(ra, rb, voff, step, depth):
        for k in range(4):
            so = sOFF if k % 2 == 0 else sO2
            a("buffer_load_dwordx4 %s, %s, %s offen %s lds", voff, srd(ra if k % 2 == 0 else rb), so, o.pol)
            a("s_add_u32 m0, m0, s101\ns_add_u32 %s, %s, %d", so, so, step)
        prog(depth)
    def roles():
        a("s_mul_i32 %s, %s, 43\ns_lshr_b32 %s, %s, 7\ns_mul_i32 %s, %s, 3\ns_sub_u32 %s, %s, %s", sD3, sIDX, sD3, sD3, sT0, sD3, sM3, sIDX, sT0)
        a("s_mul_i32 %s, %s, 57\ns_lshr_b32 %s, %s, 9", sT0, sIDX, sT0, sT0)
        a("s_mul_i32 %s, %s, 9\ns_sub_u32 %s, %s, %s", sT1, sT0, sCB, sIDX, sT1)
        a("s_lshl1_add_u32 %s, %s, %s\ns_lshl_b32 %s, %s, 8", sTEAM, sX, sT0, sR0, sTEAM)
        a("s_mov_b32 %s, 32\ns_mov_b32 %s, %d", sNS2, sB2, 130)
        Ld = a.lab("LR")
        a("s_cmp_lt_u32 %s, 2\ns_cbranch_scc1 %s", sT0, Ld)
        a("s_mul_i32 %s, %s, 576\ns_lshl3_add_u32 %s, %s, %s", sR0, sX, sTEAM, sT0, sX)
        a("s_cmp_eq_u32 %s, 2\ns_cbranch_scc1 %s", sT0, Ld)
        a("s_add_u32 %s, %s, 256\ns_lshl_b32 %s, %s, 1\ns_mov_b32 %s, 80\ns_mov_b32 %s, 82", sR0, sR0, sCB, sCB, sNS2, sB2)
        a("%s:" % Ld)
    def gu_img(h, smt, sfb):
        a("s_lshl_b32 %s, %s, 1\ns_add_u32 %s, %s, %d", sfb, sD3, sfb, sfb, h)
        a("s_cmp_ge_u32 %s, 9\ns_cselect_b32 %s, 1, 0\ns_cselect_b32 %s, 9, 0\ns_sub_u32 %s, %s, %s", sfb, smt, sT3, sfb, sfb, sT3)
        a("s_mul_i32 %s, %s, 9\ns_add_u32 %s, %s, %s", sT3, sX, sfb, sfb, sT3)

    a("s_setprio 3")
    a("v_mov_b32 v4, 0\nv_mov_b32 v5, 0\nv_lshlrev_b32 v2, 3, v0")
    a("ds_write_b64 v2, v[4:5]")
    a("""
    v_lshrrev_b32 v8, 3, v0
    v_lshrrev_b32 v15, 4, v0
    v_lshlrev_b32 v9, 1, v15
    v_and_b32 v10, 7, v0
    v_xor_b32 v10, v10, v9
    v_lshlrev_b32 v10, 4, v10
    v_lshl_add_u32 v16, v8, 13, v10
    v_xor_b32 v13, v0, v15
    v_lshlrev_b32 v13, 4, v13
    """)
    a("s_lshr_b32 %s, %s, 2\ns_mul_i32 %s, %s, %d", sT0, sI, sOFF, sT0, 144 * 8192)
    a("s_and_b32 %s, %s, 3\ns_lshl2_add_u32 %s, %s, %s\ns_lshl_b32 %s, %s, 7\ns_add_u32 %s, %s, %s", sT0, sI, sT0, sG, sT0, sT0, sT0, sOFF, sOFF, sT0)
    a("s_mov_b32 s%d, 0x480000\ns_mov_b32 s%d, 0x00020000", R0 + 2, R0 + 3)
    a("s_mov_b32 s%d, 0x2000000\ns_mov_b32 s%d, 0x00020000", R1 + 2, R1 + 3)
    a("s_lshr_b32 %s, %s, 3\ns_lshl4_add_u32 %s, %s, %s\ns_lshl_b32 %s, %s, 20", sT0, sI, sT0, sT0, sG, sT0, sT0)
    a("s_and_b32 %s, %s, 7\ns_lshl_b32 %s, %s, 15\ns_add_u32 %s, %s, %s\ns_add_u32 %s, %s, 0xc0000", sT1, sI, sT1, sT1, sT0, sT0, sT1, sKV, sT0)
    a("s_and_b32 %s, %s, 3\ns_lshl_b32 %s, %s, 1", sRQ, sIDX, sRQ, sRQ)
    a("s_movk_i32 s101, 0x400\ns_mov_b32 %s, 0x10000", sT2)
    a("s_mov_b32 m0, %d", RWQ)
    a("s_waitcnt lgkmcnt(0)")
    if o.sdiag: stamp(5)
    a("s_mov_b32 s%d, s10\ns_mov_b32 s%d, s11", R0, R0 + 1)
    for k in range(18):
        a("buffer_load_dwordx4 v16, %s, %s offen %s lds", srd(R0), sOFF, o.pol)
        if k < 17: a("s_add_u32 m0, m0, s101\ns_add_u32 %s, %s, %s", sOFF, sOFF, sT2)
    if o.sdiag: stamp(6)
    a("s_mov_b32 s%d, s6\ns_mov_b32 s%d, s7", R1, R1 + 1)
    kv_group(R1, "v13", RK, KP, False)
    if D >= 26: kv_group(R1, "v13", RK, KP, False)
    if o.sdiag: stamp(7)
    a("s_barrier")
    a("""
    v_mul_u32_u24 v12, 1152, v8
    v_add_u32 v12, v12, v10
    v_mul_u32_u24 v11, 9216, v8
    v_add_u32 v11, v11, v10
    v_xor_b32 v14, v0, v9
    v_lshlrev_b32 v14, 4, v14
    """)
    mk_srd(R2, 8, 0x2000000)
    a("s_mov_b32 %s, %d", sISS, (26 if D >= 26 else 22) - (D - 4))
    roles()
    if D < 26:
        a("s_waitcnt vmcnt(%d)", D - 4)
        kv_group(R1, "v13", RK, KP)
    a("s_mov_b32 %s, 6", sCNT)
    a("s_cmp_ge_u32 %s, 27\ns_cbranch_scc1 L_ld_kv", sIDX)
    for h, r, so in ((0, R0, sOFF), (1, R4, sO2)):
        gu_img(h, sT0, sT1)
        a("s_cmp_eq_u32 %s, 1\ns_cselect_b32 s%d, s18, s16\ns_cselect_b32 s%d, s19, s17\ns_mov_b32 s%d, 0x510000\ns_mov_b32 s%d, 0x00020000", sT0, r, r + 1, r + 2, r + 3)
        a("s_mul_i32 %s, %s, %d\ns_lshl_b32 %s, %s, 7\ns_add_u32 %s, %s, %s", so, sM3, 192 * 9216, sT1, sT1, so, so, sT1)
    M = o.mix
    a("s_mov_b32 %s, %d\ns_mov_b32 %s, %d", sMG, RA, sCNT, 6 // M)
    a("L_ld_gu:")
    a("s_mov_b32 m0, %s\ns_add_u32 %s, %s, %d", sMG, sMG, sMG, 8192 * M)
    if M == 1:
        pair_group(R0, R4, "v11", 8 * 9216, D)
        pair_group(R0, R4, "v11", 8 * 9216, D)
    else:
        a("s_mov_b32 %s, %d", sT2, 2 * M)
        a("L_ld_gi:")
        pair_group(R0, R4, "v11", 8 * 9216, D)
        a("s_sub_u32 %s, %s, 1\ns_cmp_lg_u32 %s, 0\ns_cbranch_scc1 L_ld_gi", sT2, sT2, sT2)
    kv_group(R1, "v13", RK, KP)
    loop_end("L_ld_gu")
    if M == 1: a("s_branch L_ld_v")
    else: a("s_mov_b32 %s, %d", sCNT, 6 - 6 // M)
    a("L_ld_kv:")
    kv_loop(R1, "v13", RK, KP)
    a("L_ld_v:")
    stamp(1)
    a("s_mov_b32 %s, 8", sCNT)
    kv_loop(R2, "v14", RV, VP)
    a("L_ld_s2:")
    stamp(2)
    a("s_cmp_lt_u32 %s, 16", sTEAM)
    a("s_cselect_b32 s%d, s12, s20\ns_cselect_b32 s%d, s13, s21\ns_mov_b32 s%d, 0x510000\ns_cselect_b32 s%d, 0x480000, s%d\ns_mov_b32 s%d, 0x00020000",
      R3, R3 + 1, R3 + 2, R3 + 2, R3 + 2, R3 + 3)
    a("s_mul_i32 %s, %s, 1152\ns_lshl_b32 %s, %s, 7\ns_add_u32 %s, %s, %s", sOFF, sR0, sT1, sCB, sOFF, sOFF, sT1)
    if not o.ldonly: lds_wait_ge(F_C1, "4")
    a("s_cmp_eq_u32 %s, 80\ns_cbranch_scc1 L_ld_lt", sNS2)
    D2 = o.depth2
    for k in range(D - 8, D2 - 8, -4):
        a("s_add_u32 %s, %s, 4\nv_mov_b32 v4, %s\ns_waitcnt vmcnt(%d)\nds_write_b32 v3, v4 offset:%d", sISS, sISS, sISS, k, F_PROG)
    a("s_mov_b32 m0, %d\ns_add_u32 %s, %s, %d\ns_mov_b32 %s, 8", RWQ, sO2, sOFF, 8 * 1152, sCNT)
    a("L_ld_s2h:")
    pair_group(R3, R3, "v12", 16 * 1152, D2)
    loop_end("L_ld_s2h")
    stamp(3)
    a("s_branch L_ld_drain2")
    a("L_ld_lt:")
    a("s_add_u32 %s, %s, 128\ns_cmp_eq_u32 %s, 8\ns_cselect_b32 %s, 0x70000000, %s", sO2, sOFF, sCB, sO2, sO2)
    a("s_mov_b32 m0, %d\ns_mov_b32 %s, 20", RA, sCNT)
    a("L_ld_s2l:")
    pair_group(R3, R3, "v12", 8 * 1152, D)
    loop_end("L_ld_s2l")
    stamp(3)
    for k in range(D - 8, -1, -4):
        if k == D2 - 8: a("L_ld_drain2:")
        a("s_add_u32 %s, %s, 4\nv_mov_b32 v4, %s\ns_waitcnt vmcnt(%d)\nds_write_b32 v3, v4 offset:%d", sISS, sISS, sISS, k, F_PROG)
    stamp(4)
    stamps_out()
    a("s_endpgm")

    a("L_cons3:")
    a("s_barrier")
    if o.ldonly: a("s_endpgm")
    mk_srd(RW, 26, W_END)
    a("s_add_u32 s%d, s26, 0x%x\ns_addc_u32 s%d, s27, 0\ns_mov_b32 s%d, 0x%x\ns_mov_b32 s%d, 0x00020000", RB, BOFF, RB + 1, RB + 2, W_AEND, RB + 3)
    a("s_mov_b32 %s, 0", sVER)
    a("s_mov_b32 %s, -1000", sSEEN)
    a("v_lshrrev_b32 v8, 4, v0\nv_and_b32 v9, 15, v0\nv_mov_b32 v14, 0xffffff00")
    roles()
    a("s_cmp_ge_u32 %s, 5\ns_cbranch_scc1 L_att", sWV)

    sW, sIT, sTH = "s90", "s91", "s92"
    a("s_sub_u32 %s, %s, 1", sW, sWV)
    a("v_lshrrev_b32 v11, 3, v0\nv_and_b32 v11, 3, v11\nv_xor_b32 v11, %s, v11", sW)
    a("v_lshlrev_b32 v11, 5, v11\nv_and_b32 v12, 3, v0\nv_lshl_add_u32 v11, v12, 3, v11")
    a("v_lshrrev_b32 v10, 2, v0\nv_lshl_add_u32 v10, v10, 7, v11")
    a("v_lshrrev_b32 v15, 5, v0\nv_lshl_add_u32 v15, v15, 10, v10")
    a("v_add_u32 v15, %d, v15", RA)
    a("v_and_b32 v12, 1, v0")
    a("s_mov_b32 %s, 0xffff0000", sT0)
    a("s_waitcnt vmcnt(0)")
    stamp(1)
    X = 28
    for k in range(9):
        a("v_lshlrev_b32 v%d, 16, v%d\nv_and_b32 v%d, %s, v%d", X + 2 * k, 16 + k, X + 2 * k + 1, sT0, 16 + k)
    def half_allreduce_add(v, t):
        for dp in ("quad_perm:[1,0,3,2]", "quad_perm:[2,3,0,1]", "row_ror:4", "row_ror:8"):
            a("s_nop 1\nv_add_f32_dpp %s, %s, %s %s row_mask:0xf bank_mask:0xf", v, v, v, dp)
        a("v_mov_b32 %s, %s\ns_nop 1\nv_permlane16_swap_b32 %s, %s\nv_add_f32 %s, %s, %s", t, v, v, t, v, v, t)
    a("v_add_f32 v4, v%d, v%d\nv_add_f32 v5, v%d, v%d", X, X + 1, X + 2, X + 3)
    for k in range(4, 18, 2):
        a("v_add_f32 v4, v4, v%d\nv_add_f32 v5, v5, v%d", X + k, X + k + 1)
    a("v_add_f32 v4, v4, v5")
    half_allreduce_add("v4", "v5")
    a("v_mul_f32 v4, 0x3ae38e39, v4\nv_mov_b32 v5, 0\nv_mov_b32 v25, 0")
    for k in range(0, 18, 2):
        a("v_sub_f32 v26, v%d, v4\nv_sub_f32 v27, v%d, v4\nv_fmac_f32 v5, v26, v26\nv_fmac_f32 v25, v27, v27", X + k, X + k + 1)
    a("v_add_f32 v5, v5, v25")
    half_allreduce_add("v5", "v25")
    a("v_mul_f32 v5, 0x3ae38e39, v5")
    a("v_cvt_pk_bf16_f32 v4, v4, v5")
    a("v_and_b32 v5, %s, v4\nv_lshlrev_b32 v4, 16, v4", sT0)
    a("v_add_f32 v5, 0x3727c5ac, v5")
    a("v_cvt_pk_bf16_f32 v5, v5, v5\nv_lshlrev_b32 v5, 16, v5")
    a("v_sqrt_f32 v5, v5\ns_nop 0")
    a("v_cvt_pk_bf16_f32 v5, v5, v5\nv_lshlrev_b32 v5, 16, v5")
    a("v_rcp_f32 v5, v5")
    for k in range(9):
        a("v_sub_f32 v26, v%d, v4\nv_sub_f32 v27, v%d, v4", X + 2 * k, X + 2 * k + 1)
        a("v_cvt_pk_bf16_f32 v26, v26, v27")
        a("v_and_b32 v27, %s, v26\nv_lshlrev_b32 v26, 16, v26", sT0)
        a("v_mul_f32 v26, v26, v5\nv_mul_f32 v27, v27, v5")
        a("v_cvt_pk_bf16_f32 v%d, v26, v27", 16 + k)
    for k in range(0, 8, 2):
        a("ds_write2_b32 v13, v%d, v%d offset0:%d offset1:%d", 16 + k, 17 + k, XN // 4 + k, XN // 4 + k + 1)
    a("ds_write_b32 v13, v24 offset:%d", XN + 32)
    a("v_mul_u32_u24 v11, %d, v12\nv_lshl_add_u32 v11, v8, 3, v11\nv_add_u32 v11, %d, v11", XN_P, XN)
    a("s_lshr_b32 %s, %s, 2\ns_mul_i32 %s, %s, 288\nv_add_u32 v13, %s, v11", sT0, sI, sT0, sT0, sT0)
    for s in range(4):
        a("ds_read2_b64 v[%d:%d], v13 offset0:%d offset1:%d", 40 + 4 * s, 43 + 4 * s, 8 * s, 8 * s + 4)
    a("ds_read_b64 v[56:57], v13 offset:256")
    for r in range(8): a("v_mov_b32 v%d, 0", 60 + r)
    a("v_add_u32 v13, %d, v10", RWQ)
    stamp(2)
    get_tag()
    a("v_lshlrev_b32 v1, 6, v9\nv_lshl_add_u32 v1, v8, 4, v1")
    a("s_lshl2_add_u32 %s, %s, %s\ns_lshl_b32 %s, %s, 7\ns_lshl_b32 %s, %s, 13\ns_add_u32 %s, %s, %s\ns_add_u32 s93, %s, %d", sT0, sI, sW, sT0, sT0, sT1, sG, sT0, sT0, sT1, sT0, W_Q)
    a("v_cmp_gt_u32 vcc, 2, v9\ns_mov_b64 %s, vcc", sEX)
    lds_wait_ge(F_PROG, "18", cache=sSEEN)
    for q in range(9):
        a("ds_read_b64_tr_b16 v[%d:%d], v13 offset:%d", 16 + 2 * q, 17 + 2 * q, q * 2048)
    for s in range(4):
        a("s_waitcnt lgkmcnt(%d)", 7 - 2 * s)
        mfma(60, 16 + 4 * s, 40 + 4 * s)
    a("s_waitcnt lgkmcnt(0)")
    a("v_mfma_f32_16x16x16_bf16 v[64:67], v[32:33], v[56:57], v[64:67]")
    flag_add(F_C1)
    a("s_nop 4")
    for r in range(4): a("v_add_f32 v%d, v%d, v%d", 72 + r, 60 + r, 64 + r)
    tag_merge(72)
    a("s_mov_b64 exec, %s", sEX)
    a("buffer_store_dwordx4 v[72:75], v1, %s, s93 offen", srd(RW))
    a("s_mov_b64 exec, -1")
    a("s_mov_b32 s99, s93")
    stamp(3)
    def q_republish():
        get_ver()
        two_way(lambda: None, lambda: a("s_mov_b64 exec, %s\nbuffer_store_dwordx4 v[72:75], v1, %s, s99 offen sc1\ns_mov_b64 exec, -1", sEX, srd(RB)))
    Lh = a.lab("LH")
    a("s_cmp_lt_u32 %s, 27\ns_cbranch_scc1 %s", sIDX, Lh)
    q_republish()
    a("s_branch L_w_s2")
    a("%s:" % Lh)
    a("s_mul_i32 %s, %s, 384\nv_add_u32 v13, %s, v11", sT0, sM3, sT0)
    for s in range(6):
        a("ds_read2_b64 v[%d:%d], v13 offset0:%d offset1:%d", 40 + 4 * s, 43 + 4 * s, 8 * s, 8 * s + 4)
    for r in range(8): a("v_mov_b32 v%d, 0", 64 + r)
    for h, sd in ((0, "s93"), (1, "s98")):
        gu_img(h, sT0, sT1)
        a("s_mul_i32 %s, %s, 3\ns_add_u32 %s, %s, %s\ns_mul_i32 %s, %s, 36864", sT0, sT0, sT0, sT0, sM3, sT0, sT0)
        a("s_lshl2_add_u32 %s, %s, %s\ns_lshl_b32 %s, %s, 7\ns_add_u32 %s, %s, %s\ns_add_u32 %s, %s, %d", sT1, sT1, sW, sT1, sT1, sT0, sT0, sT1, sd, sT0, W_G)
    for s in range(6):
        if s == 3: q_republish()
        lds_wait_ge(F_PROG, str(P_G + 8 * s + 8 + 4 * (s // o.mix)), cache=sSEEN)
        for h in range(2):
            for q in range(2):
                a("ds_read_b64_tr_b16 v[%d:%d], v15 offset:%d", 16 + 4 * h + 2 * q, 17 + 4 * h + 2 * q, s * 8192 + q * 4096 + h * 1024)
        a("s_waitcnt lgkmcnt(2)")
        mfma(64, 16, 40 + 4 * s)
        a("s_waitcnt lgkmcnt(0)")
        mfma(68, 20, 40 + 4 * s)
    stamp(4)
    a("s_nop 5")
    tag_merge(64)
    tag_merge(68)
    a("s_mov_b64 exec, %s", sEX)
    pub([("v[64:67]", "s93", 0), ("v[68:71]", "s98", 0)])
    a("s_mov_b64 exec, -1")
    a("L_w_s2:")
    WF, VF, AC = 16, 48, 80
    a("v_mul_u32_u24 v11, %d, v12\nv_lshl_add_u32 v11, v8, 3, v11\nv_add_u32 v11, %d, v11", VEC2_P, VEC2)
    for r in range(8): a("v_mov_b32 v%d, 0", AC + r)
    a("v_add_u32 v10, %d, v10", RWQ)
    a("s_lshl2_add_u32 %s, %s, %s\ns_lshl_b32 %s, %s, 12\ns_lshl_b32 %s, %s, 7\ns_add_u32 %s, %s, %s\ns_add_u32 s93, %s, %d", sT0, sCB, sW, sT0, sT0, sT1, sTEAM, sT0, sT0, sT1, sT0, W_F)
    a("s_cmp_ge_u32 %s, 16\ns_cbranch_scc1 L_w_dn", sTEAM)
    for s_ in range(0, 8, 2):
        lds_wait_ge(F_PROG, str(130 + 4 * s_ + 8), cache=sSEEN)
        for q in range(4):
            a("ds_read_b64_tr_b16 v[%d:%d], v10 offset:%d", WF + 4 * s_ + 2 * q, WF + 4 * s_ + 2 * q + 1, s_ * 4096 + q * 2048)
    stamp(5)
    lds_wait_ge(F_VRDY, "4")
    stamp(6)
    for s_ in range(8):
        a("ds_read2_b64 v[%d:%d], v11 offset0:%d offset1:%d", VF + 4 * s_, VF + 4 * s_ + 3, 8 * s_, 8 * s_ + 4)
    for s_ in range(8):
        a("s_waitcnt lgkmcnt(%d)", 7 - s_)
        mfma(AC, WF + 4 * s_, VF + 4 * s_)
    a("L_s2_pub:")
    a("s_mov_b64 exec, %s", sEX)
    a("s_nop 6")
    tag_merge(AC, rnd=False)
    a("buffer_store_dwordx4 v[%d:%d], v1, %s, s93 offen sc1", AC, AC + 3, srd(RW))
    a("L_w_end:")
    stamp(7)
    stamps_out()
    a("s_endpgm")
    flush_ool()

    a("L_w_dn:")
    HA, HA2, HW, HW2, HC = "v60", "v61", "v62", "v63", "v64"
    a("v_lshrrev_b32 v4, 5, v0\nv_mul_u32_u24 %s, 110592, v4\nv_and_b32 v4, 31, v0\nv_lshl_add_u32 %s, v4, 4, %s", HA, HA, HA)
    a("s_lshl_b32 %s, %s, 3\ns_lshl_b32 %s, %s, 9\ns_add_u32 %s, %s, %s\ns_add_u32 s48, %s, %d", sT0, sR0, sT1, sW, sT0, sT0, sT1, sT0, W_G)
    a("s_add_u32 s49, s48, 36864\ns_add_u32 s50, s48, 73728")
    a("v_bfe_u32 v4, v0, 2, 1\nv_mul_u32_u24 %s, %d, v4\nv_bfe_u32 v4, v0, 3, 2\nv_lshl_add_u32 %s, v4, 5, %s\nv_and_b32 v4, 3, v0\nv_lshl_add_u32 %s, v4, 3, %s", HW, VEC2_P, HW, HW, HW, HW)
    a("s_lshl_b32 %s, %s, 7\nv_add_u32 %s, %s, %s", sT2, sW, HW, sT2, HW)
    c1 = -2.0 * math.sqrt(2.0 / math.pi) * math.log2(math.e)
    a("s_mov_b32 s51, 0x%08x\nv_mov_b32 %s, 0x%08x\ns_mov_b32 s52, 0xffff0000", f2u(c1 * 0.044715), HC, f2u(c1))
    a("s_cmp_eq_u32 %s, 0\ns_cselect_b32 %s, 2048, 0\ns_cselect_b32 %s, 512, 0", sW, sT1, sT2)
    a("v_add_u32 %s, %s, %s\nv_add_u32 %s, %s, %s", HA2, sT1, HA, HW2, sT2, HW)
    lds_wait_ge(F_PROG, str(o.hpoll), cache=sSEEN)
    a("s_mov_b32 %s, 0", sTMO)
    if o.nopoll & 2: a("s_branch L_h_ok")
    a("L_h_poll:")
    for r in range(2):
        if r == 1: a("s_cmp_eq_u32 %s, 32\ns_cbranch_scc1 L_h_w", sNS2)
        fetch([(16 + 12 * r + 4 * sl, HA if r < 1 else HA2, "s%d" % (48 + sl), 0) for sl in range(3)])
    a("L_h_w:")
    a("s_add_u32 %s, %s, 1\ns_cmp_gt_u32 %s, 0x8000\ns_cbranch_scc1 L_h_ok", sTMO, sTMO, sTMO)
    a("s_waitcnt vmcnt(0)")
    for k in range(6):
        if k == 3: a("s_cmp_eq_u32 %s, 32\ns_cbranch_scc1 L_h_c", sNS2)
        tag_bad("v4", 16 + 4 * k, k == 0)
    a("L_h_c:")
    a("v_and_b32 v4, 0xff, v4\nv_cmp_ne_u32 vcc, 0, v4\ns_and_b64 exec, exec, vcc\ns_cbranch_vccnz L_h_poll")
    a("L_h_ok:")
    a("s_mov_b64 exec, -1")
    a("s_waitcnt vmcnt(0)")
    for r in range(2):
        if r == 1: a("s_cmp_eq_u32 %s, 32\ns_cbranch_scc1 L_h_done", sNS2)
        B = 16 + 12 * r
        for k in range(12): a("v_and_b32 v%d, v14, v%d", B + k, B + k)
        for k in range(4): a("v_add_f32 v%d, v%d, v%d", B + k, B + k, B + 4 + k)
        for k in range(4): a("v_add_f32 v%d, v%d, v%d", B + k, B + k, B + 8 + k)
        a("v_cvt_pk_bf16_f32 v%d, v%d, v%d\nv_cvt_pk_bf16_f32 v%d, v%d, v%d", B, B, B + 1, B + 1, B + 2, B + 3)
        a("v_mov_b32 v%d, v%d\nv_mov_b32 v%d, v%d\ns_nop 1", B + 2, B, B + 3, B + 1)
        a("v_permlane32_swap_b32 v%d, v%d\nv_permlane32_swap_b32 v%d, v%d", B, B + 2, B + 1, B + 3)
        G, U, T = B + 4, B + 8, 4
        a("v_lshlrev_b32 v%d, 16, v%d\nv_and_b32 v%d, s52, v%d\nv_lshlrev_b32 v%d, 16, v%d\nv_and_b32 v%d, s52, v%d", G, B, G + 1, B, G + 2, B + 1, G + 3, B + 1)
        a("v_lshlrev_b32 v%d, 16, v%d\nv_and_b32 v%d, s52, v%d\nv_lshlrev_b32 v%d, 16, v%d\nv_and_b32 v%d, s52, v%d", U, B + 2, U + 1, B + 2, U + 2, B + 3, U + 3, B + 3)
        for k in range(4): a("v_mul_f32 v%d, v%d, v%d", T + k, G + k, G + k)
        for k in range(4): a("v_fma_f32 v%d, v%d, s51, %s", T + k, T + k, HC)
        for k in range(4): a("v_mul_f32 v%d, v%d, v%d", T + k, T + k, G + k)
        for k in range(4): a("v_exp_f32 v%d, v%d", T + k, T + k)
        a("s_nop 0")
        for k in range(4): a("v_add_f32 v%d, 1.0, v%d", T + k, T + k)
        for k in range(4): a("v_rcp_f32 v%d, v%d", T + k, T + k)
        a("s_nop 0")
        for k in range(4): a("v_mul_f32 v%d, v%d, v%d", T + k, T + k, G + k)
        a("v_cvt_pk_bf16_f32 v%d, v%d, v%d\nv_cvt_pk_bf16_f32 v%d, v%d, v%d", B, T, T + 1, B + 1, T + 2, T + 3)
        a("v_lshlrev_b32 v%d, 16, v%d\nv_and_b32 v%d, s52, v%d\nv_lshlrev_b32 v%d, 16, v%d\nv_and_b32 v%d, s52, v%d", T, B, T + 1, B, T + 2, B + 1, T + 3, B + 1)
        for k in range(4): a("v_mul_f32 v%d, v%d, v%d", T + k, T + k, U + k)
        a("v_cvt_pk_bf16_f32 v%d, v%d, v%d\nv_cvt_pk_bf16_f32 v%d, v%d, v%d", B, T, T + 1, B + 1, T + 2, T + 3)
        a("ds_write_b64 %s, v[%d:%d] offset:%d", HW if r < 1 else HW2, B, B + 1, VEC2)
    a("L_h_done:")
    flag_add(F_VRDY)
    stamp(5)
    lds_wait_ge(F_VRDY, "4")
    stamp(6)
    a("s_add_u32 %s, %s, 8", sTH, sB2)
    a("s_cmp_eq_u32 %s, 80\ns_cbranch_scc1 L_lt", sNS2)
    def dn_reads(R, it):
        lds_wait_ge(F_PROG, sTH, cache=sSEEN)
        a("s_add_u32 %s, %s, 8", sTH, sTH)
        a("ds_read_b64_tr_b16 v[%d:%d], v10 offset:%d", R, R + 1, it * 8192)
        a("ds_read_b64_tr_b16 v[%d:%d], v10 offset:%d", R + 2, R + 3, it * 8192 + 2048)
        a("ds_read2_b64 v[%d:%d], v11 offset0:%d offset1:%d", R + 8, R + 11, 16 * it, 16 * it + 4)
        a("ds_read_b64_tr_b16 v[%d:%d], v10 offset:%d", R + 4, R + 5, it * 8192 + 4096)
        a("ds_read_b64_tr_b16 v[%d:%d], v10 offset:%d", R + 6, R + 7, it * 8192 + 6144)
        a("ds_read2_b64 v[%d:%d], v11 offset0:%d offset1:%d", R + 12, R + 15, 16 * it + 8, 16 * it + 12)
    dn_reads(16, 0)
    for it in range(4):
        R = 16 + 16 * (it & 1)
        if it < 3: dn_reads(16 + 16 * ((it + 1) & 1), it + 1)
        n = 6 if it < 3 else 0
        a("s_waitcnt lgkmcnt(%d)", n + 3)
        mfma(AC, R, R + 8)
        a("s_waitcnt lgkmcnt(%d)", n)
        mfma(AC, R + 4, R + 12)
    a("s_branch L_s2_pub")
    def lt_reads(R, off):
        lds_wait_ge(F_PROG, sTH, cache=sSEEN)
        a("s_add_u32 %s, %s, 8", sTH, sTH)
        a("ds_read2_b64 v[%d:%d], v11 offset0:%d offset1:%d", R + 8, R + 11, 8 * off, 8 * off + 4)
        a("ds_read_b64_tr_b16 v[%d:%d], v15 offset:%d", R, R + 1, off * 8192)
        a("ds_read_b64_tr_b16 v[%d:%d], v15 offset:%d", R + 2, R + 3, off * 8192 + 4096)
        a("ds_read_b64_tr_b16 v[%d:%d], v15 offset:%d", R + 4, R + 5, off * 8192 + 1024)
        a("ds_read_b64_tr_b16 v[%d:%d], v15 offset:%d", R + 6, R + 7, off * 8192 + 5120)
    def lt_mm(R, n):
        a("s_waitcnt lgkmcnt(%d)", n + 2)
        mfma(AC, R, R + 8)
        a("s_waitcnt lgkmcnt(%d)", n)
        mfma(AC + 4, R + 4, R + 8)
    a("L_lt:")
    a("s_mov_b32 %s, 4", sIT)
    lt_reads(16, 0)
    a("L_lt_loop:")
    lt_reads(32, 1)
    lt_mm(16, 5)
    lt_reads(16, 2)
    a("v_add_u32 v15, 16384, v15\nv_add_u32 v11, 128, v11\ns_sub_u32 %s, %s, 1", sIT, sIT)
    lt_mm(32, 5)
    a("s_cmp_lg_u32 %s, 0\ns_cbranch_scc1 L_lt_loop", sIT)
    lt_reads(32, 1)
    lt_mm(16, 5)
    lt_mm(32, 0)
    a("s_cmp_eq_u32 %s, 8\ns_cbranch_scc1 L_s2_pub", sCB)
    a("s_mov_b64 exec, %s\ns_add_u32 %s, s93, 16384\ns_nop 4", sEX, sT0)
    tag_merge(AC + 4, rnd=False)
    a("buffer_store_dwordx4 v[%d:%d], v1, %s, %s offen sc1", AC + 4, AC + 7, srd(RW), sT0)
    a("s_branch L_s2_pub")
    flush_ool()

    sA = "s90"
    a("L_att:")
    a("s_sub_u32 %s, %s, 5", sA, sWV)
    a("v_lshrrev_b32 v10, 2, v9\nv_mul_u32_u24 v10, %d, v10", KP)
    a("v_and_b32 v11, 3, v0\nv_lshl_add_u32 v10, v11, 8, v10\nv_xor_b32 v11, v11, v8\nv_lshl_add_u32 v10, v11, 4, v10")
    a("s_mul_i32 %s, %s, %d\ns_add_u32 %s, %s, %d\nv_add_u32 v10, %s, v10", sT0, sA, 8 * KP, sT0, sT0, RK, sT0)
    VA = 72
    a("v_mul_u32_u24 v12, %d, v8", VP)
    a("v_lshrrev_b32 v11, 2, v9\nv_lshl_add_u32 v12, v11, 8, v12\nv_lshlrev_b32 v11, 5, v11")
    a("s_lshl_b32 %s, %s, 6\nv_xor_b32 v11, %s, v11\nv_add_u32 v12, v12, v11", sT0, sA, sT0)
    a("v_and_b32 v11, 3, v0\nv_lshl_add_u32 v12, v11, 3, v12")
    a("v_add_u32 v%d, %d, v12", VA, RV)
    a("v_xor_b32 v%d, 32, v%d", VA + 1, VA)
    KF, QF, SC, PF, VF, OA = 16, 48, 64, 16, 32, 40
    a("v_lshlrev_b32 v1, 6, v9\nv_lshl_add_u32 v1, v8, 4, v1")
    a("v_cmp_gt_u32 vcc, 2, v9\ns_mov_b64 %s, vcc", sEX)
    get_tag()
    a("s_cmp_lg_u32 %s, 1\ns_cbranch_scc1 L_a_nov", sA)
    a("s_getreg_b32 %s, hwreg(HW_REG_XCC_ID, 0, 4)", sT2)
    a("s_lshl_b32 %s, %s, 8\ns_add_u32 %s, %s, %d\ns_lshl3_add_u32 %s, %s, %s", sT0, sX, sT0, sT0, W_V, sT1, sIDX, sT0)
    a("v_mov_b32 v4, %s\nv_mov_b32 v5, %s\nv_lshlrev_b32 v11, 3, v0", sTAG, sT2)
    a("s_mov_b64 exec, 1\nbuffer_store_dwordx2 v[4:5], v3, %s, %s offen sc1\ns_mov_b64 exec, -1", srd(RW), sT1)
    lds_wait_ge(F_PROG, str(o.vpoll), cache=sSEEN)
    a("s_mov_b32 exec_hi, 0\ns_mov_b32 %s, 0", sTMO)
    a("L_a_vpoll:")
    a("buffer_load_dwordx2 v[6:7], v11, %s, %s offen sc1", srd(RW), sT0)
    a("s_add_u32 %s, %s, 1\ns_cmp_gt_u32 %s, 0x8000\ns_cbranch_scc1 L_a_vok", sTMO, sTMO, sTMO)
    a("s_waitcnt vmcnt(0)")
    a("v_cmp_ne_u32 vcc, %s, v6\ns_cbranch_vccnz L_a_vpoll", sTAG)
    a("L_a_vok:")
    a("s_waitcnt vmcnt(0)")
    a("v_cmp_ne_u32 vcc, %s, v7\ns_mov_b64 exec, -1", sT2)
    a("s_cmp_eq_u64 vcc, 0\ns_cselect_b32 %s, %d, 2\nv_mov_b32 v4, %s", sT0, 1 if o.local else 2, sT0)
    a("ds_write_b32 v3, v4 offset:%d", F_VER)
    a("L_a_nov:")
    get_ver()
    a("s_cmp_lg_u32 %s, 0\ns_cbranch_scc1 L_a_k", sA)
    lds_wait_ge(F_PROG, str(o.qpoll), cache=sSEEN)
    a("v_lshrrev_b32 v11, 2, v0\nv_lshlrev_b32 v11, 7, v11\nv_and_b32 v12, 3, v0\nv_lshl_add_u32 v11, v12, 4, v11")
    a("s_lshl_b32 %s, %s, 13\ns_lshr_b32 %s, %s, 3\ns_lshl_b32 %s, %s, 6\ns_add_u32 %s, %s, %s\ns_add_u32 %s, %s, %d\ns_add_u32 %s, %s, 4096",
      sT0, sG, sT1, sI, sT1, sT1, sT0, sT0, sT1, sT0, sT0, W_Q, sT1, sT0)
    a("s_mov_b32 %s, 0", sTMO)
    if o.nopoll & 1: a("s_branch L_a_qok")
    a("L_a_qpoll:")
    fetch([(16 + 4 * r, "v11", sT0 if r < 2 else sT1, (r & 1) * 2048) for r in range(4)])
    a("s_add_u32 %s, %s, 1\ns_cmp_gt_u32 %s, 0x8000\ns_cbranch_scc1 L_a_qok", sTMO, sTMO, sTMO)
    a("s_waitcnt vmcnt(0)")
    for r in range(4): tag_bad("v4", 16 + 4 * r, r == 0)
    a("v_and_b32 v4, 0xff, v4\nv_cmp_ne_u32 vcc, 0, v4\ns_and_b64 exec, exec, vcc\ns_cbranch_vccnz L_a_qpoll")
    a("L_a_qok:")
    a("s_mov_b64 exec, -1")
    a("s_waitcnt vmcnt(0)")
    for r in range(16): a("v_and_b32 v%d, v14, v%d", 16 + r, 16 + r)
    for k in range(4):
        a("v_add_f32 v%d, v%d, v%d\nv_add_f32 v%d, v%d, v%d\nv_add_f32 v%d, v%d, v%d", 16 + k, 16 + k, 20 + k, 24 + k, 24 + k, 28 + k, 16 + k, 16 + k, 24 + k)
    a("v_cvt_pk_bf16_f32 v4, v16, v17\nv_cvt_pk_bf16_f32 v5, v18, v19")
    a("v_lshlrev_b32 v11, 3, v0\nv_mov_b32 v6, 1")
    a("ds_write_b64 v11, v[4:5] offset:%d", QV)
    a("ds_write_b32 v3, v6 offset:%d", F_QRDY)
    a("L_a_k:")
    lds_wait_ge(F_QRDY, "1")
    stamp(1)
    a("v_and_b32 v12, 1, v0\nv_lshlrev_b32 v11, 8, v12\nv_lshl_add_u32 v11, v8, 4, v11")
    for c in range(4):
        a("ds_read_b128 v[%d:%d], v11 offset:%d", QF + 4 * c, QF + 4 * c + 3, QV + c * 64)
    for r in range(8): a("v_mov_b32 v%d, 0", SC + r)
    a("s_sub_u32 %s, %s, 32", sTH, sB2)
    lds_wait_ge(F_PROG, sTH, cache=sSEEN)
    stamp(2)
    for c in range(4):
        for t in range(2):
            a("ds_read_b128 v[%d:%d], v10 offset:%d", KF + 16 * t + 4 * c, KF + 16 * t + 4 * c + 3, t * 4 * KP + c * 64)
    for c in range(4):
        for t in range(2):
            a("s_waitcnt lgkmcnt(%d)", 7 - 2 * c - t)
            mfma(SC + 4 * t, KF + 16 * t + 4 * c, QF + 4 * c)
    a("s_mov_b32 %s, 0xffff0000\ns_mov_b32 %s, 0x3db504f3\ns_mov_b32 %s, 0x3fb8aa3b", sT0, sT1, sT2)
    a("v_lshlrev_b32 v12, 2, v12\ns_lshl_b32 %s, %s, 3\nv_add_u32 v13, %s, v12", sT3, sA, sT3)
    a("s_nop 4")
    for k in range(0, 8, 2):
        a("v_cvt_pk_bf16_f32 v4, v%d, v%d", SC + k, SC + k + 1)
        a("v_and_b32 v5, %s, v4\nv_lshlrev_b32 v4, 16, v4", sT0)
        a("v_mul_f32 v4, %s, v4\nv_mul_f32 v5, %s, v5", sT1, sT1)
        a("v_cvt_pk_bf16_f32 v4, v4, v5")
        a("v_and_b32 v%d, %s, v4\nv_lshlrev_b32 v%d, 16, v4", SC + k + 1, sT0, SC + k)
    a("v_max3_f32 v4, v%d, v%d, v%d\nv_max3_f32 v5, v%d, v%d, v%d\nv_max3_f32 v4, v4, v%d, v%d\nv_max_f32 v4, v4, v5", *[SC + k for k in range(8)])
    def rows_allreduce(op, v, t):
        a("v_mov_b32 %s, %s\ns_nop 1\nv_permlane16_swap_b32 %s, %s\n%s %s, %s, %s", t, v, v, t, op, v, v, t)
        a("v_mov_b32 %s, %s\ns_nop 1\nv_permlane32_swap_b32 %s, %s\n%s %s, %s, %s", t, v, v, t, op, v, v, t)
    rows_allreduce("v_max_f32", "v4", "v5")
    a("ds_write_b32 v13, v4 offset:%d", MX)
    flag_add(F_A1)
    lds_wait_ge(F_A1, "4")
    a("ds_read2_b32 v[4:5], v12 offset0:%d offset1:%d\nds_read2_b32 v[6:7], v12 offset0:%d offset1:%d" % (0, 2, 4, 6) if False else
      "v_add_u32 v11, %d, v12\nds_read2_b32 v[4:5], v11 offset0:0 offset1:2\nds_read2_b32 v[6:7], v11 offset0:4 offset1:6" % MX)
    a("s_waitcnt lgkmcnt(0)")
    a("v_max3_f32 v4, v4, v5, v6\nv_max_f32 v4, v4, v7")
    a("v_mul_f32 v15, %s, v4", sT2)
    for k in range(8): a("v_fma_f32 v%d, v%d, %s, -v15", SC + k, SC + k, sT2)
    for k in range(8): a("v_exp_f32 v%d, v%d", SC + k, SC + k)
    a("s_nop 0")
    a("v_add_f32 v5, v%d, v%d\nv_add_f32 v6, v%d, v%d", SC, SC + 1, SC + 2, SC + 3)
    a("v_add_f32 v5, v5, v%d\nv_add_f32 v6, v6, v%d\nv_add_f32 v5, v5, v%d\nv_add_f32 v6, v6, v%d\nv_add_f32 v5, v5, v6", SC + 4, SC + 5, SC + 6, SC + 7)
    rows_allreduce("v_add_f32", "v5", "v6")
    for k in range(4): a("v_cvt_pk_bf16_f32 v%d, v%d, v%d", 48 + k, SC + 2 * k, SC + 2 * k + 1)
    a("v_lshlrev_b32 v10, 4, v12\nv_lshl_add_u32 v10, v8, 4, v10")
    a("s_lshl_b32 %s, %s, 7\nv_add_u32 v7, %s, v10", sT3, sA, sT3)
    a("ds_write_b32 v13, v5 offset:%d", LS)
    a("ds_write_b128 v7, v[48:51] offset:%d", PB)
    flag_add(F_A2)
    for r in range(8): a("v_mov_b32 v%d, 0", OA + r)
    lds_wait_ge(F_A2, "4")
    a("ds_read2_b32 v[4:5], v11 offset0:8 offset1:10\nds_read2_b32 v[6:7], v11 offset0:12 offset1:14")
    for j in range(4):
        a("s_add_u32 s%d, %s, %d\ns_and_b32 s%d, s%d, 3\ns_lshl_b32 %s, s%d, 7\nv_add_u32 v13, %s, v10", 48 + j, sIDX, j, 48 + j, 48 + j, sT3, 48 + j, sT3)
        a("ds_read_b128 v[%d:%d], v13 offset:%d", PF + 4 * j, PF + 4 * j + 3, PB)
        a("s_mul_i32 s%d, s%d, %d", 48 + j, 48 + j, 8 * VP)
    a("s_waitcnt lgkmcnt(4)")
    a("v_add_f32 v4, v4, v5\nv_add_f32 v6, v6, v7\nv_add_f32 v4, v4, v6")
    a("v_log_f32 v5, v4\nv_rcp_f32 v13, v4")
    a("s_lshl4_add_u32 %s, %s, %s\ns_lshl2_add_u32 %s, %s, %s\ns_lshl_b32 %s, %s, 8\ns_add_u32 s93, %s, %d", sT0, sG, sI, sT0, sT0, sA, sT0, sT0, sT0, W_O)
    a("v_add_f32 v51, v15, v5\nv_add_f32 v55, v15, v5\nv_mov_b32 v50, %s\nv_mov_b32 v54, %s", sTAG, sTAG)
    stamp(3)
    a("s_sub_u32 %s, %s, 32", sTH, sB2)
    for j in range(4):
        a("s_add_u32 %s, %s, 8\nv_add_u32 v4, s%d, v%d\nv_add_u32 v5, s%d, v%d", sTH, sTH, 48 + j, VA, 48 + j, VA + 1)
        lds_wait_ge(F_PROG, sTH, cache=sSEEN)
        for d in range(2):
            for t in range(2):
                a("ds_read_b64_tr_b16 v[%d:%d], v%d offset:%d", VF + 4 * d + 2 * t, VF + 4 * d + 2 * t + 1, 4 + d, t * 4 * VP)
        a("s_waitcnt lgkmcnt(2)")
        mfma(OA, VF, PF + 4 * j)
        a("s_waitcnt lgkmcnt(0)")
        mfma(OA + 4, VF + 4, PF + 4 * j)
    a("s_mov_b64 exec, %s", sEX)
    a("s_nop 4")
    for r in range(8): a("v_mul_f32 v%d, v%d, v13", OA + r, OA + r)
    a("v_cvt_pk_bf16_f32 v48, v%d, v%d\nv_cvt_pk_bf16_f32 v49, v%d, v%d", OA, OA + 1, OA + 2, OA + 3)
    a("v_cvt_pk_bf16_f32 v52, v%d, v%d\nv_cvt_pk_bf16_f32 v53, v%d, v%d", OA + 4, OA + 5, OA + 6, OA + 7)
    pub([("v[48:51]", "s93", 0), ("v[52:55]", "s93", 128)])
    a("s_mov_b64 exec, -1")
    stamp(4)
    a("s_cmp_ge_u32 %s, 16\ns_cbranch_scc1 L_a_end", sTEAM)
    a("v_lshrrev_b32 v12, 5, v0\nv_and_b32 v11, 31, v0\nv_lshlrev_b32 v11, 4, v11\nv_lshl_add_u32 v11, v12, 12, v11")
    a("s_lshl_b32 %s, %s, 14\ns_lshr_b32 %s, %s, 1\ns_lshl_b32 %s, %s, 13\ns_add_u32 %s, %s, %s", sT0, sTEAM, sT1, sA, sT1, sT1, sT0, sT0, sT1)
    a("s_and_b32 %s, %s, 1\ns_lshl_b32 %s, %s, 9\ns_add_u32 %s, %s, %s\ns_add_u32 %s, %s, %d", sT1, sA, sT1, sT1, sT0, sT0, sT1, sT0, sT0, W_O)
    a("v_bfe_u32 v10, v0, 2, 1\nv_lshlrev_b32 v10, 8, v10\nv_lshl_add_u32 v10, v12, 2, v10\nv_bfe_u32 v12, v0, 3, 2\nv_lshl_add_u32 v10, v12, 5, v10\nv_and_b32 v12, 3, v0\nv_lshl_add_u32 v10, v12, 3, v10")
    a("s_lshr_b32 %s, %s, 1\ns_mul_i32 %s, %s, %d\ns_lshr_b32 %s, %s, 2\ns_add_u32 %s, %s, %s\nv_add_u32 v10, %s, v10", sT2, sA, sT2, sT2, VEC2_P, sT1, sT1, sT2, sT2, sT1, sT2)
    a("s_mov_b32 %s, 0xffff0000", sT1)
    if o.opoll: lds_wait_ge(F_PROG, str(o.opoll), cache=sSEEN)
    a("s_mov_b32 %s, 0", sTMO)
    if o.nopoll & 4: a("s_branch L_a_ook")
    a("L_a_opoll:")
    fetch([(16 + 4 * k, "v11", sT0, k * 1024) for k in range(4)])
    a("s_add_u32 %s, %s, 1\ns_cmp_gt_u32 %s, 0x8000\ns_cbranch_scc1 L_a_ook", sTMO, sTMO, sTMO)
    a("s_waitcnt vmcnt(0)")
    a("v_xor_b32 v4, %s, v18\nv_xor_b32 v5, %s, v22\nv_xor_b32 v6, %s, v26\nv_xor_b32 v7, %s, v30", sTAG, sTAG, sTAG, sTAG)
    a("v_or3_b32 v4, v4, v5, v6\nv_or_b32 v4, v4, v7")
    a("v_cmp_ne_u32 vcc, 0, v4\ns_and_b64 exec, exec, vcc\ns_cbranch_vccnz L_a_opoll")
    a("L_a_ook:")
    a("s_mov_b64 exec, -1")
    a("s_waitcnt vmcnt(0)")
    stamp(5)
    a("v_max3_f32 v4, v19, v23, v27\nv_max_f32 v4, v4, v31")
    a("v_mov_b32 v5, v4")
    a("v_lshlrev_b32 v32, 16, v16\nv_and_b32 v33, %s, v16", sT1)
    a("v_permlane32_swap_b32 v4, v5\nv_max_f32 v4, v4, v5")
    for k in range(4): a("v_sub_f32 v%d, v%d, v4", 19 + 4 * k, 19 + 4 * k)
    for k in range(4): a("v_exp_f32 v%d, v%d", 19 + 4 * k, 19 + 4 * k)
    a("v_lshlrev_b32 v34, 16, v17\nv_and_b32 v35, %s, v17", sT1)
    for r in range(4): a("v_mul_f32 v%d, v%d, v19", 32 + r, 32 + r)
    a("v_add_f32 v5, v19, v23\nv_add_f32 v6, v27, v31\nv_add_f32 v5, v5, v6\nv_mov_b32 v4, v5")
    for k in range(1, 4):
        w = 19 + 4 * k
        a("v_lshlrev_b32 v6, 16, v%d\nv_and_b32 v7, %s, v%d\nv_fmac_f32 v32, v%d, v6\nv_fmac_f32 v33, v%d, v7", 16 + 4 * k, sT1, 16 + 4 * k, w, w)
        if k == 1: a("v_permlane32_swap_b32 v4, v5\nv_add_f32 v4, v4, v5\nv_rcp_f32 v4, v4")
        a("v_lshlrev_b32 v6, 16, v%d\nv_and_b32 v7, %s, v%d\nv_fmac_f32 v34, v%d, v6\nv_fmac_f32 v35, v%d, v7", 17 + 4 * k, sT1, 17 + 4 * k, w, w)
    a("s_nop 1")
    a("v_permlane32_swap_b32 v32, v34\nv_permlane32_swap_b32 v33, v35")
    a("v_add_f32 v32, v32, v34\nv_add_f32 v33, v33, v35\nv_mul_f32 v32, v32, v4\nv_mul_f32 v33, v33, v4")
    a("v_cvt_pk_bf16_f32 v32, v32, v33")
    a("ds_write_b32 v10, v32 offset:%d", VEC2)
    flag_add(F_VRDY)
    stamp(6)
    a("s_cmp_lg_u32 %s, 3\ns_cbranch_scc1 L_a_end", sA)
    a("s_cmp_ge_u32 s2, 36\ns_cbranch_scc1 L_a_end")
    mk_srd(R1, 22, 2304)
    a("v_bfe_u32 v12, v0, 2, 1\nv_mul_u32_u24 v12, 1152, v12\nv_and_b32 v11, 3, v0\nv_lshl_add_u32 v12, v11, 3, v12")
    a("s_lshl_b32 %s, s2, 5\nv_add_u32 v12, %s, v12", sT1, sT1)
    a("global_load_dwordx2 v[40:41], v12, s[4:5]")
    a("s_lshl_b32 %s, s2, 12\ns_add_u32 %s, %s, %d", sT0, sT0, sT0, W_F)
    a("v_lshlrev_b32 v11, 4, v0")
    a("s_mov_b32 %s, 0", sTMO)
    if o.nopoll & 8: a("s_branch L_a_fok")
    a("L_a_fpoll:")
    for k in range(4):
        a("buffer_load_dwordx4 v[%d:%d], v11, %s, %s offen offset:%d sc1", 16 + 4 * k, 19 + 4 * k, srd(RW), sT0, k * 1024)
    a("s_add_u32 %s, %s, 1\ns_cmp_gt_u32 %s, 0x8000\ns_cbranch_scc1 L_a_fok", sTMO, sTMO, sTMO)
    a("s_waitcnt vmcnt(0)")
    for k in range(4): tag_bad("v4", 16 + 4 * k, k == 0)
    a("v_and_b32 v4, 0xff, v4\nv_cmp_ne_u32 vcc, 0, v4\ns_and_b64 exec, exec, vcc\ns_cbranch_vccnz L_a_fpoll")
    a("L_a_fok:")
    a("s_waitcnt vmcnt(0)")
    stamp(7)
    a("s_mov_b64 exec, -1")
    for r in range(4): a("v_add_f32 v%d, v%d, v%d", 24 + r, 24 + r, 28 + r)
    for r in range(4): a("v_add_f32 v%d, v%d, v%d", 16 + r, 16 + r, 20 + r)
    a("s_nop 0")
    for r in range(4): a("v_permlane32_swap_b32 v%d, v%d", 16 + r, 24 + r)
    for r in range(4): a("v_add_f32 v%d, v%d, v%d", 16 + r, 16 + r, 24 + r)
    for r in range(4): a("v_add_f32_dpp v%d, v%d, v%d row_ror:8 row_mask:0xf bank_mask:0xf", 16 + r, 16 + r, 16 + r)
    for r in range(4): a("v_mov_b32 v%d, v%d", 20 + r, 16 + r)
    for r in range(4): a("v_permlane16_swap_b32 v%d, v%d", 16 + r, 20 + r)
    for r in range(4): a("v_add_f32 v%d, v%d, v%d", 16 + r, 16 + r, 20 + r)
    a("v_cvt_pk_bf16_f32 v16, v16, v17\nv_cvt_pk_bf16_f32 v17, v18, v19")
    a("v_mov_b32 v18, v16\nv_mov_b32 v19, v17\ns_mov_b32 %s, 0xffff0000\ns_nop 0", sT1)
    a("v_permlane32_swap_b32 v16, v18\nv_permlane32_swap_b32 v17, v19")
    for k in range(2):
        a("v_lshlrev_b32 v4, 16, v%d\nv_and_b32 v5, %s, v%d", 40 + k, sT1, 40 + k)
        a("v_lshlrev_b32 v6, 16, v%d\nv_and_b32 v7, %s, v%d", 16 + k, sT1, 16 + k)
        a("v_add_f32 v4, v4, v6\nv_add_f32 v5, v5, v7\nv_cvt_pk_bf16_f32 v4, v4, v5")
        a("v_and_b32 v5, %s, v4\nv_lshlrev_b32 v4, 16, v4", sT1)
        a("v_lshlrev_b32 v6, 16, v%d\nv_and_b32 v7, %s, v%d", 18 + k, sT1, 18 + k)
        a("v_add_f32 v4, v4, v6\nv_add_f32 v5, v5, v7\nv_cvt_pk_bf16_f32 v%d, v4, v5", 20 + k)
    a("s_mov_b64 exec, 0xff")
    a("buffer_store_dwordx2 v[20:21], v12, %s, 0 offen", srd(R1))
    a("s_cmp_lg_u32 s2, 0\ns_cbranch_scc1 L_a_end")
    a("s_mov_b64 exec, 1\nv_mov_b32 v4, %s", sTAG)
    a("buffer_store_dword v4, v3, %s, 0 offen sc1", srd(RW))
    a("L_a_end:")
    stamps_out()
    a("L_end:")
    a("s_endpgm")
    flush_ool()
    a("L_code_end:")
    if o.cpf: a(".fill 256, 4, 0xbf800000")

    hdr = open(os.path.join(os.path.dirname(os.path.abspath(__file__)), "header.txt")).read()
    hdr += "; @launch grid=(256,1,1) block=(576,1,1) lds=%d\n" % LDS_TOTAL
    hdr += '.amdgcn_target "amdgcn-amd-amdhsa--gfx950"\n.text\n.globl %s\n.p2align 8\n.type %s,@function\n' % (NAME, NAME)
    ftr = """.section .rodata,"a"
.p2align 6
.amdhsa_kernel %s
  .amdhsa_next_free_vgpr 88
  .amdhsa_next_free_sgpr 102
  .amdhsa_accum_offset 88
  .amdhsa_group_segment_fixed_size 0
  .amdhsa_kernarg_size 96
  .amdhsa_user_sgpr_count 2
  .amdhsa_user_sgpr_kernarg_segment_ptr 1
  .amdhsa_system_sgpr_workgroup_id_x 1
  .amdhsa_float_denorm_mode_32 3
.end_amdhsa_kernel
""" % NAME
    body = a.text()
    if o.nostore:
        body = "\n".join(l for l in body.split("\n") if not ("buffer_store_dwordx4" in l and "sc1" in l))
    return hdr + body + ftr

def parser():
    p = argparse.ArgumentParser()
    p.add_argument("-o", default="-")
    p.add_argument("--depth", type=int, default=28)
    p.add_argument("--diag", type=int, default=0)
    p.add_argument("--qpoll", type=int, default=0)
    p.add_argument("--opoll", type=int, default=0)
    p.add_argument("--hpoll", type=int, default=114)
    p.add_argument("--cpf", type=int, default=1)
    p.add_argument("--sdiag", type=int, default=0)
    p.add_argument("--mix", type=int, default=1)
    p.add_argument("--local", type=int, default=1)
    p.add_argument("--vpoll", type=int, default=34)
    p.add_argument("--depth2", type=int, default=28)
    p.add_argument("--sleep", type=int, default=0)
    p.add_argument("--nopoll", type=int, default=0)
    p.add_argument("--nostore", type=int, default=0)
    p.add_argument("--rot", type=int, default=1)
    p.add_argument("--ldonly", type=int, default=0)
    p.add_argument("--pol", default="nt")
    return p

if __name__ == "__main__":
    o = parser().parse_args()
    t = gen(o)
    if o.o == "-": sys.stdout.write(t)
    else: open(o.o, "w").write(t)
```

```python
import sys, argparse, math, struct, os

NAME = "parallel_sum__sliding_block_cached__geglu_ffn__decode_kernel"
f2u = lambda f: struct.unpack("<I", struct.pack("<f", f))[0]

class Asm:
    def __init__(self):
        self.lines = []
        self.n = 0
    def __call__(self, s, *args):
        if args: s = s % args
        for ln in s.strip("\n").split("\n"):
            ln = ln.strip()
            if not ln: continue
            if ln.endswith(":"): self.lines.append(ln)
            else: self.lines.append("    " + ln)
    def lab(self, p="L"):
        self.n += 1
        return "%s_%d" % (p, self.n)
    def text(self): return "\n".join(self.lines) + "\n"

F_PROG, F_QRDY, F_A1, F_A2, F_VRDY, F_C1, F_VER = 0, 16, 20, 8, 24, 28, 32
XN, XN_P = 256, 1152
QV = 2560
VEC2, VEC2_P = 3072, 704
MX = 5632
LS = 5664
PB = 5888
RA = 10240
RWQ = RA + 48 * 1024
RK = RA + 80 * 1024
KP = 1088
RV = RK + 32 * KP
VP = 1152
LDS_TOTAL = RV + 32 * VP
assert LDS_TOTAL <= 163840
W_EPOCH = 0
W_V = 1024
W_Q = 4096
W_G = W_Q + 16 * 8192
W_O = W_G + 6 * 36864
W_AEND = W_O + 256 * 1024
BOFF = 0xa0000
assert W_AEND - W_Q <= BOFF
W_F = W_AEND + BOFF
W_END = W_F + 36 * 4096
W_DIAG = 2 << 20
assert W_END <= W_DIAG
P_G = 26

def gen(o):
    a = Asm()
    D = o.depth
    diag = o.diag
    sX, sIDX, sG, sI, sWV = "s28", "s29", "s30", "s31", "s32"
    sTEAM, sCB, sNS2, sB2, sR0 = "s33", "s34", "s35", "s36", "s37"
    sD3, sM3 = "s38", "s39"
    sT0, sT1, sT2, sT3 = "s40", "s41", "s42", "s43"
    sSEEN, sTMO, sTAG, sVER = "s44", "s45", "s46", "s47"
    sEX = "s[68:69]"
    R0, R1, R2, R3, R4 = 48, 52, 56, 60, 64
    RW = 64
    RB = 60
    ST = 72
    def srd(r): return "s[%d:%d]" % (r, r + 3)
    def mk_srd(r, lo, size):
        a("s_mov_b32 s%d, s%d\ns_mov_b32 s%d, s%d\ns_mov_b32 s%d, 0x%x\ns_mov_b32 s%d, 0x00020000", r, lo, r + 1, lo + 1, r + 2, size, r + 3)
    def stamp(k):
        if diag: a("s_memrealtime s[%d:%d]", ST + 2 * k, ST + 2 * k + 1)
    def stamps_out():
        if not diag: return
        a("s_waitcnt lgkmcnt(0)")
        a("s_mov_b64 exec, -1")
        a("s_lshl_b32 %s, s2, 4\ns_add_u32 %s, %s, %s\ns_lshl_b32 %s, %s, 6\ns_add_u32 %s, %s, 0x%x", sT0, sT0, sT0, sWV, sT0, sT0, sT0, sT0, W_DIAG)
        a("v_mov_b32 v1, %s", sT0)
        for k in range(4):
            for j in range(4): a("v_mov_b32 v%d, s%d", 4 + j, ST + 4 * k + j)
            a("global_store_dwordx4 v1, v[4:7], s[26:27] offset:%d", 16 * k)
            a("s_nop 1")
    ool = []
    def lds_wait_ge(off, thr, cache=None, vt="v2", vz="v3", hot=False):
        if hot:
            Ls, Lr = a.lab("LS"), a.lab("LB")
            a("s_cmp_lt_i32 %s, %s\ns_cbranch_scc1 %s", cache, thr, Ls)
            a("%s:" % Lr)
            ool.append((Ls, lambda: lds_wait_ge(off, thr, cache, vt, vz), Lr))
            return
        L, E = a.lab("LW"), a.lab("LE")
        c = cache or sT3
        if cache:
            a("s_cmp_ge_i32 %s, %s\ns_cbranch_scc1 %s", c, thr, E)
        a("s_mov_b32 %s, 0", sTMO)
        a("%s:" % L)
        if o.sleep: a("s_sleep %d", o.sleep)
        a("ds_read_b32 %s, %s offset:%d", vt, vz, off)
        a("s_add_u32 %s, %s, 1", sTMO, sTMO)
        a("s_cmp_gt_u32 %s, 0x80000\ns_cbranch_scc1 %s", sTMO, E)
        a("s_waitcnt lgkmcnt(0)")
        a("v_readfirstlane_b32 %s, %s", c, vt)
        a("s_cmp_lt_i32 %s, %s\ns_cbranch_scc1 %s", c, thr, L)
        a("%s:" % E)
    def get_tag():
        a("s_waitcnt lgkmcnt(0)")
        a("s_mul_i32 %s, %s, 1664525\ns_add_u32 %s, %s, 1013904223", sTAG, sTAG, sTAG, sTAG)
        a("s_and_b32 s94, %s, 0xff\ns_bfe_u32 s95, %s, 0x80008\ns_bfe_u32 s96, %s, 0x80010\ns_lshr_b32 s97, %s, 24", sTAG, sTAG, sTAG, sTAG)
    def tag_merge(r, rnd=True):
        for k in range(4):
            if rnd: a("v_add_u32 v%d, 0x80, v%d", r + k, r + k)
        for k in range(4):
            a("v_and_or_b32 v%d, v%d, v14, s%d", r + k, r + k, 94 + k)
    def tag_bad(dst, r, first):
        for k in range(4): a("v_xor_b32 v%d, s%d, v%d", r + k, 94 + k, r + k)
        if first: a("v_or3_b32 %s, v%d, v%d, v%d\nv_or_b32 %s, %s, v%d", dst, r, r + 1, r + 2, dst, dst, r + 3)
        else: a("v_or3_b32 %s, %s, v%d, v%d\nv_or3_b32 %s, %s, v%d, v%d", dst, dst, r, r + 1, dst, dst, r + 2, r + 3)
    def flag_add(off, vt="v6"):
        a("s_mov_b64 exec, 1\nv_mov_b32 %s, 1\nds_add_u32 v3, %s offset:%d\ns_mov_b64 exec, -1", vt, vt, off)
    def get_ver():
        lds_wait_ge(F_VER, "1", cache=sVER)
    def two_way(fast, slow):
        Ls, Lr = a.lab("LS"), a.lab("LB")
        a("s_cmp_lg_u32 %s, 1\ns_cbranch_scc1 %s", sVER, Ls)
        fast()
        a("%s:" % Lr)
        ool.append((Ls, slow, Lr))
    def flush_ool():
        for Ls, slow, Lr in ool:
            a("%s:" % Ls)
            slow()
            a("s_branch %s", Lr)
        del ool[:]
    def pub(items):
        def fast():
            for regs, so, off in items:
                a("buffer_store_dwordx4 %s, v1, %s, %s offen offset:%d", regs, srd(RW), so, off)
        def slow():
            for regs, so, off in items:
                a("buffer_store_dwordx4 %s, v1, %s, %s offen offset:%d sc1", regs, srd(RB), so, off)
        two_way(fast, slow)
    def fetch(items):
        def go(r, fl):
            for d, vo, so, off in items:
                a("buffer_load_dwordx4 v[%d:%d], %s, %s, %s offen offset:%d %s", d, d + 3, vo, srd(r), so, off, fl)
        two_way(lambda: go(RW, "nt"), lambda: go(RB, "sc1"))
    def mfma(d, A, B):
        a("v_mfma_f32_16x16x32_bf16 v[%d:%d], v[%d:%d], v[%d:%d], v[%d:%d]", d, d + 3, A, A + 3, B, B + 3, d, d + 3)

    a("%s:" % NAME)
    stamp(0)
    if diag:
        for k in range(1, 8): a("s_mov_b64 s[%d:%d], 0", ST + 2 * k, ST + 2 * k + 1)
    a("""
    s_load_dwordx16 s[4:19], s[0:1], 0
    s_load_dwordx8 s[20:27], s[0:1], 64
    s_cmp_ge_u32 s2, 256
    s_cbranch_scc1 L_end
    v_lshrrev_b32 v1, 6, v0
    v_and_b32 v0, 63, v0
    v_mov_b32 v3, 0
    """)
    a("v_readfirstlane_b32 %s, v1", sWV)
    a("s_and_b32 %s, s2, 7\ns_lshr_b32 %s, s2, 3", sX, sIDX)
    a("s_lshr_b32 %s, s2, 7\ns_lshl1_add_u32 %s, %s, %s\ns_and_b32 %s, %s, 15", sT0, sG, sX, sT0, sI, sIDX)
    a("s_cmp_eq_u32 %s, 0\ns_cbranch_scc1 L_loader", sWV)
    a("v_mul_u32_u24 v13, 36, v0")
    a("s_cmp_ge_u32 %s, 5", sWV)
    a("s_waitcnt lgkmcnt(0)")
    a("s_load_dword %s, s[26:27], 0", sTAG)
    a("s_cbranch_scc1 L_cons2")
    a("global_load_dwordx4 v[16:19], v13, s[4:5]")
    a("global_load_dwordx4 v[20:23], v13, s[4:5] offset:16")
    a("global_load_dword v24, v13, s[4:5] offset:32")
    a("L_cons2:")
    if o.cpf:
        Lc = a.lab("LCP")
        a("s_cmp_lg_u32 %s, 8\ns_cbranch_scc1 %s", sWV, Lc)
        a("s_lshl_b32 %s, %s, 10\ns_cmp_ge_u32 %s, L_code_end-%s\ns_cbranch_scc1 %s", sT0, sI, sT0, NAME, Lc)
        a("s_getpc_b64 s[88:89]")
        a("L_pc:")
        a("s_sub_u32 s88, s88, L_pc-%s\ns_subb_u32 s89, s89, 0", NAME)
        a("v_lshlrev_b32 v4, 4, v0\nv_add_u32 v4, %s, v4", sT0)
        a("global_load_dwordx4 v[76:79], v4, s[88:89]")
        a("%s:" % Lc)
    a("s_branch L_cons3")
    a("L_loader:")

    sOFF, sCNT, sISS, sKV, sRQ = "s90", "s91", "s92", "s93", "s98"
    sO2, sMG = "s99", "s100"
    def prog(depth):
        a("s_add_u32 %s, %s, 4\nv_max_i32 v4, %s, v4", sISS, sISS, sISS)
        a("s_waitcnt vmcnt(%d)", depth - 4)
        a("ds_write_b32 v3, v4 offset:%d", F_PROG)
    def loop_end(L):
        a("s_sub_u32 %s, %s, 1\ns_cmp_lg_u32 %s, 0\ns_cbranch_scc1 %s", sCNT, sCNT, sCNT, L)
    def kv_group(r, voff, base, pitch, wait=True, depth=None):
        a("s_mul_i32 %s, %s, %d\ns_add_u32 m0, %s, %d", sT0, sRQ, 4 * pitch, sT0, base)
        a("s_lshl_b32 %s, %s, 12\ns_add_u32 %s, %s, %s", sT1, sRQ, sT1, sT1, sKV)
        for k in range(4):
            a("buffer_load_dwordx4 %s, %s, %s offen %s lds", voff, srd(r), sT1, o.pol)
            if k < 3: a("s_add_u32 m0, m0, %d\ns_add_u32 %s, %s, s101", pitch, sT1, sT1)
        a("s_add_u32 %s, %s, 1\ns_and_b32 %s, %s, 7", sRQ, sRQ, sRQ, sRQ)
        if wait: prog(depth or D)
    def kv_loop(r, voff, base, pitch, depth=None):
        L = a.lab("LD")
        a("%s:" % L)
        kv_group(r, voff, base, pitch, True, depth)
        loop_end(L)
    def pair_group(ra, rb, voff, step, depth):
        for k in range(4):
            so = sOFF if k % 2 == 0 else sO2
            a("buffer_load_dwordx4 %s, %s, %s offen %s lds", voff, srd(ra if k % 2 == 0 else rb), so, o.pol)
            a("s_add_u32 m0, m0, s101\ns_add_u32 %s, %s, %d", so, so, step)
        prog(depth)
    def roles():
        a("s_mul_i32 %s, %s, 43\ns_lshr_b32 %s, %s, 7\ns_mul_i32 %s, %s, 3\ns_sub_u32 %s, %s, %s", sD3, sIDX, sD3, sD3, sT0, sD3, sM3, sIDX, sT0)
        a("s_mul_i32 %s, %s, 57\ns_lshr_b32 %s, %s, 9", sT0, sIDX, sT0, sT0)
        a("s_mul_i32 %s, %s, 9\ns_sub_u32 %s, %s, %s", sT1, sT0, sCB, sIDX, sT1)
        a("s_lshl1_add_u32 %s, %s, %s\ns_lshl_b32 %s, %s, 8", sTEAM, sX, sT0, sR0, sTEAM)
        a("s_mov_b32 %s, 32\ns_mov_b32 %s, %d", sNS2, sB2, 130)
        Ld = a.lab("LR")
        a("s_cmp_lt_u32 %s, 2\ns_cbranch_scc1 %s", sT0, Ld)
        a("s_mul_i32 %s, %s, 576\ns_lshl3_add_u32 %s, %s, %s", sR0, sX, sTEAM, sT0, sX)
        a("s_cmp_eq_u32 %s, 2\ns_cbranch_scc1 %s", sT0, Ld)
        a("s_add_u32 %s, %s, 256\ns_lshl_b32 %s, %s, 1\ns_mov_b32 %s, 80\ns_mov_b32 %s, 82", sR0, sR0, sCB, sCB, sNS2, sB2)
        a("%s:" % Ld)
    def gu_img(h, smt, sfb):
        a("s_lshl_b32 %s, %s, 1\ns_add_u32 %s, %s, %d", sfb, sD3, sfb, sfb, h)
        a("s_cmp_ge_u32 %s, 9\ns_cselect_b32 %s, 1, 0\ns_cselect_b32 %s, 9, 0\ns_sub_u32 %s, %s, %s", sfb, smt, sT3, sfb, sfb, sT3)
        a("s_mul_i32 %s, %s, 9\ns_add_u32 %s, %s, %s", sT3, sX, sfb, sfb, sT3)

    a("""
    v_lshrrev_b32 v8, 3, v0
    v_lshrrev_b32 v15, 4, v0
    v_lshlrev_b32 v9, 1, v15
    v_and_b32 v10, 7, v0
    v_xor_b32 v10, v10, v9
    v_lshlrev_b32 v10, 4, v10
    v_lshl_add_u32 v16, v8, 13, v10
    """)
    a("s_and_b32 %s, %s, 3\ns_mul_i32 %s, %s, %d", sT0, sIDX, sOFF, sT0, 144 * 8192)
    a("s_lshr_b32 %s, %s, 2\ns_xor_b32 %s, %s, %d\ns_lshl3_add_u32 %s, %s, %s\ns_lshl_b32 %s, %s, 7\ns_add_u32 %s, %s, %s", sT0, sIDX, sT0, sT0, o.wqx, sT0, sX, sT0, sT0, sT0, sOFF, sOFF, sT0)
    a("s_mov_b32 s%d, 0x480000\ns_mov_b32 s%d, 0x00020000", R0 + 2, R0 + 3)
    a("s_movk_i32 s101, 0x400\ns_mov_b32 %s, 0x10000", sT2)
    a("s_mov_b32 m0, %d", RWQ)
    a("s_setprio 3")
    a("s_waitcnt lgkmcnt(0)")
    if o.sdiag: stamp(5)
    a("s_mov_b32 s%d, s10\ns_mov_b32 s%d, s11", R0, R0 + 1)
    fill = ["v_mov_b32 v4, 0", "v_mov_b32 v5, 0", "v_lshlrev_b32 v2, 3, v0", "ds_write_b64 v2, v[4:5]",
            "v_xor_b32 v13, v0, v15", "v_lshlrev_b32 v13, 4, v13",
            "s_mov_b32 s%d, 0x2000000" % (R1 + 2), "s_mov_b32 s%d, 0x00020000" % (R1 + 3),
            "s_lshr_b32 %s, %s, 3" % (sT0, sI), "s_lshl4_add_u32 %s, %s, %s" % (sT0, sT0, sG), "s_lshl_b32 %s, %s, 20" % (sT0, sT0),
            "s_and_b32 %s, %s, 7" % (sT1, sI), "s_lshl_b32 %s, %s, 15" % (sT1, sT1), "s_add_u32 %s, %s, %s" % (sT0, sT0, sT1),
            "s_add_u32 %s, %s, 0xc0000" % (sKV, sT0), "s_and_b32 %s, %s, 3" % (sRQ, sIDX), "s_lshl_b32 %s, %s, 1" % (sRQ, sRQ)]
    for k in range(18):
        a("buffer_load_dwordx4 v16, %s, %s offen %s lds", srd(R0), sOFF, o.pol)
        if k < 17:
            a("s_add_u32 m0, m0, s101\ns_add_u32 %s, %s, %s", sOFF, sOFF, sT2)
            a(fill[k])
    if o.sdiag: stamp(6)
    a("s_mov_b32 s%d, s6\ns_mov_b32 s%d, s7", R1, R1 + 1)
    kv_group(R1, "v13", RK, KP, False)
    if D >= 26: kv_group(R1, "v13", RK, KP, False)
    if o.sdiag: stamp(7)
    a("s_waitcnt lgkmcnt(0)")
    a("s_barrier")
    a("""
    v_mul_u32_u24 v12, 1152, v8
    v_add_u32 v12, v12, v10
    v_mul_u32_u24 v11, 9216, v8
    v_add_u32 v11, v11, v10
    v_xor_b32 v14, v0, v9
    v_lshlrev_b32 v14, 4, v14
    """)
    mk_srd(R2, 8, 0x2000000)
    a("s_mov_b32 %s, %d", sISS, (26 if D >= 26 else 22) - (D - 4))
    roles()
    DV, D2, DL = o.depthv or D, o.depth2, o.depthl or D
    sS2 = "s89"
    def drain_step(k):
        a("s_add_u32 %s, %s, 4\nv_max_i32 v4, %s, v4\ns_waitcnt vmcnt(%d)\nds_write_b32 v3, v4 offset:%d", sISS, sISS, sISS, k, F_PROG)
    def redepth(old, new):
        if new > old: a("s_sub_u32 %s, %s, %d", sISS, sISS, new - old)
        for k in range(old - 8, new - 8, -4): drain_step(k)
    a("s_cmp_lt_u32 %s, 16", sTEAM)
    a("s_cselect_b32 s%d, s12, s20\ns_cselect_b32 s%d, s13, s21\ns_mov_b32 s%d, 0x510000\ns_cselect_b32 s%d, 0x480000, s%d\ns_mov_b32 s%d, 0x00020000",
      R3, R3 + 1, R3 + 2, R3 + 2, R3 + 2, R3 + 3)
    a("s_mul_i32 %s, %s, 1152\ns_lshl_b32 %s, %s, 7\ns_add_u32 %s, %s, %s", sS2, sR0, sT1, sCB, sS2, sS2, sT1)
    for h, r, so in ((0, R0, sOFF), (1, R4, sO2)):
        gu_img(h, sT0, sT1)
        a("s_cmp_eq_u32 %s, 1\ns_cselect_b32 s%d, s18, s16\ns_cselect_b32 s%d, s19, s17\ns_mov_b32 s%d, 0x510000\ns_mov_b32 s%d, 0x00020000", sT0, r, r + 1, r + 2, r + 3)
        a("s_mul_i32 %s, %s, %d\ns_lshl_b32 %s, %s, 7\ns_add_u32 %s, %s, %s", so, sM3, 192 * 9216, sT1, sT1, so, so, sT1)
    if D < 26:
        a("s_waitcnt vmcnt(%d)", D - 4)
        kv_group(R1, "v13", RK, KP)
    a("s_mov_b32 %s, 6", sCNT)
    a("s_cmp_ge_u32 %s, 27\ns_cbranch_scc1 L_ld_kv", sIDX)
    M = o.mix
    a("s_mov_b32 %s, %d\ns_mov_b32 %s, %d", sMG, RA, sCNT, 6 // M)
    a("L_ld_gu:")
    a("s_mov_b32 m0, %s\ns_add_u32 %s, %s, %d", sMG, sMG, sMG, 8192 * M)
    a("s_mov_b32 %s, %d", sT2, 2 * M)
    a("L_ld_gi:")
    pair_group(R0, R4, "v11", 8 * 9216, D)
    a("s_sub_u32 %s, %s, 1\ns_cmp_lg_u32 %s, 0\ns_cbranch_scc1 L_ld_gi", sT2, sT2, sT2)
    kv_group(R1, "v13", RK, KP)
    loop_end("L_ld_gu")
    if M == 1: a("s_branch L_ld_v")
    else: a("s_mov_b32 %s, %d", sCNT, 6 - 6 // M)
    a("L_ld_kv:")
    kv_loop(R1, "v13", RK, KP)
    a("L_ld_v:")
    stamp(1)
    redepth(D, DV)
    a("s_mov_b32 %s, 7", sCNT)
    kv_loop(R2, "v14", RV, VP, DV)
    a("ds_read_b32 v5, v3 offset:%d", F_C1)
    kv_group(R2, "v14", RV, VP, True, DV)
    stamp(2)
    if not o.ldonly:
        a("s_waitcnt lgkmcnt(0)\nv_readfirstlane_b32 %s, v5", sSEEN)
        lds_wait_ge(F_C1, "4", cache=sSEEN)
    a("s_mov_b32 %s, %s", sOFF, sS2)
    a("s_cmp_eq_u32 %s, 80\ns_cbranch_scc1 L_ld_lt", sNS2)
    redepth(DV, D2)
    a("s_mov_b32 m0, %d\ns_add_u32 %s, %s, %d\ns_mov_b32 %s, 8", RWQ, sO2, sOFF, 8 * 1152, sCNT)
    a("L_ld_s2h:")
    pair_group(R3, R3, "v12", 16 * 1152, D2)
    loop_end("L_ld_s2h")
    stamp(3)
    a("s_branch L_ld_drain2")
    a("L_ld_lt:")
    if o.ltwait and not o.ldonly:
        redepth(DV, 4)
        lds_wait_ge({1: F_QRDY, 2: F_A1, 3: F_A2}[o.ltwait], "1")
        redepth(4, DL)
    else:
        redepth(DV, DL)
    a("s_add_u32 %s, %s, 128\ns_cmp_eq_u32 %s, 8\ns_cselect_b32 %s, 0x70000000, %s", sO2, sOFF, sCB, sO2, sO2)
    a("s_mov_b32 m0, %d\ns_mov_b32 %s, 20", RA, sCNT)
    a("L_ld_s2l:")
    pair_group(R3, R3, "v12", 8 * 1152, DL)
    loop_end("L_ld_s2l")
    stamp(3)
    assert DL >= D2
    for k in range(DL - 8, -1, -4):
        if k == D2 - 8: a("L_ld_drain2:")
        drain_step(k)
    stamp(4)
    stamps_out()
    a("s_endpgm")

    a("L_cons3:")
    a("s_barrier")
    if o.ldonly: a("s_endpgm")
    mk_srd(RW, 26, W_END)
    a("s_add_u32 s%d, s26, 0x%x\ns_addc_u32 s%d, s27, 0\ns_mov_b32 s%d, 0x%x\ns_mov_b32 s%d, 0x00020000", RB, BOFF, RB + 1, RB + 2, W_AEND, RB + 3)
    a("s_mov_b32 %s, 0", sVER)
    a("s_mov_b32 %s, -1000", sSEEN)
    a("v_lshrrev_b32 v8, 4, v0\nv_and_b32 v9, 15, v0\nv_mov_b32 v14, 0xffffff00")
    roles()
    a("s_cmp_ge_u32 %s, 5\ns_cbranch_scc1 L_att", sWV)

    sW, sIT, sTH = "s90", "s91", "s92"
    a("s_sub_u32 %s, %s, 1", sW, sWV)
    a("v_lshrrev_b32 v11, 3, v0\nv_and_b32 v11, 3, v11\nv_xor_b32 v11, %s, v11", sW)
    a("v_lshlrev_b32 v11, 5, v11\nv_and_b32 v12, 3, v0\nv_lshl_add_u32 v11, v12, 3, v11")
    a("v_lshrrev_b32 v10, 2, v0\nv_lshl_add_u32 v10, v10, 7, v11")
    a("v_lshrrev_b32 v15, 5, v0\nv_lshl_add_u32 v15, v15, 10, v10")
    a("v_add_u32 v15, %d, v15", RA)
    a("v_and_b32 v12, 1, v0")
    a("s_mov_b32 %s, 0xffff0000", sT0)
    a("s_waitcnt vmcnt(0)")
    stamp(1)
    X = 28
    for k in range(9):
        a("v_lshlrev_b32 v%d, 16, v%d\nv_and_b32 v%d, %s, v%d", X + 2 * k, 16 + k, X + 2 * k + 1, sT0, 16 + k)
    def half_allreduce_add(v, t):
        for dp in ("quad_perm:[1,0,3,2]", "quad_perm:[2,3,0,1]", "row_ror:4", "row_ror:8"):
            a("s_nop 1\nv_add_f32_dpp %s, %s, %s %s row_mask:0xf bank_mask:0xf", v, v, v, dp)
        a("v_mov_b32 %s, %s\ns_nop 1\nv_permlane16_swap_b32 %s, %s\nv_add_f32 %s, %s, %s", t, v, v, t, v, v, t)
    a("v_add_f32 v4, v%d, v%d\nv_add_f32 v5, v%d, v%d", X, X + 1, X + 2, X + 3)
    for k in range(4, 18, 2):
        a("v_add_f32 v4, v4, v%d\nv_add_f32 v5, v5, v%d", X + k, X + k + 1)
    a("v_add_f32 v4, v4, v5")
    half_allreduce_add("v4", "v5")
    a("v_mul_f32 v4, 0x3ae38e39, v4\nv_mov_b32 v5, 0\nv_mov_b32 v25, 0")
    for k in range(0, 18, 2):
        a("v_sub_f32 v26, v%d, v4\nv_sub_f32 v27, v%d, v4\nv_fmac_f32 v5, v26, v26\nv_fmac_f32 v25, v27, v27", X + k, X + k + 1)
    a("v_add_f32 v5, v5, v25")
    half_allreduce_add("v5", "v25")
    a("v_mul_f32 v5, 0x3ae38e39, v5")
    a("v_cvt_pk_bf16_f32 v4, v4, v5")
    a("v_and_b32 v5, %s, v4\nv_lshlrev_b32 v4, 16, v4", sT0)
    a("v_add_f32 v5, 0x3727c5ac, v5")
    a("v_cvt_pk_bf16_f32 v5, v5, v5\nv_lshlrev_b32 v5, 16, v5")
    a("v_sqrt_f32 v5, v5\ns_nop 0")
    a("v_cvt_pk_bf16_f32 v5, v5, v5\nv_lshlrev_b32 v5, 16, v5")
    a("v_rcp_f32 v5, v5")
    for k in range(9):
        a("v_sub_f32 v26, v%d, v4\nv_sub_f32 v27, v%d, v4", X + 2 * k, X + 2 * k + 1)
        a("v_cvt_pk_bf16_f32 v26, v26, v27")
        a("v_and_b32 v27, %s, v26\nv_lshlrev_b32 v26, 16, v26", sT0)
        a("v_mul_f32 v26, v26, v5\nv_mul_f32 v27, v27, v5")
        a("v_cvt_pk_bf16_f32 v%d, v26, v27", 16 + k)
    for k in range(0, 8, 2):
        a("ds_write2_b32 v13, v%d, v%d offset0:%d offset1:%d", 16 + k, 17 + k, XN // 4 + k, XN // 4 + k + 1)
    a("ds_write_b32 v13, v24 offset:%d", XN + 32)
    a("v_mul_u32_u24 v11, %d, v12\nv_lshl_add_u32 v11, v8, 3, v11\nv_add_u32 v11, %d, v11", XN_P, XN)
    a("s_and_b32 %s, %s, 3\ns_mul_i32 %s, %s, 288\nv_add_u32 v13, %s, v11", sT0, sIDX, sT0, sT0, sT0)
    for s in range(4):
        a("ds_read2_b64 v[%d:%d], v13 offset0:%d offset1:%d", 40 + 4 * s, 43 + 4 * s, 8 * s, 8 * s + 4)
    a("ds_read_b64 v[56:57], v13 offset:256")
    for r in range(8): a("v_mov_b32 v%d, 0", 60 + r)
    a("v_add_u32 v13, %d, v10", RWQ)
    stamp(2)
    get_tag()
    a("v_lshlrev_b32 v1, 6, v9\nv_lshl_add_u32 v1, v8, 4, v1")
    a("s_lshr_b32 %s, %s, 2\ns_xor_b32 %s, %s, %d", sT0, sIDX, sT0, sT0, o.wqx)
    a("s_lshr_b32 %s, %s, 2\ns_lshl1_add_u32 %s, %s, %s\ns_and_b32 %s, %s, 3\ns_lshl2_add_u32 %s, %s, %s", sT1, sT0, sT1, sX, sT1, sT2, sIDX, sT1, sT1, sT2)
    a("s_and_b32 %s, %s, 3\ns_lshl2_add_u32 %s, %s, %s\ns_lshl2_add_u32 %s, %s, %s", sT0, sT0, sT1, sT1, sT0, sT1, sT1, sW)
    a("s_lshl_b32 %s, %s, 7\ns_add_u32 s93, %s, %d", sT1, sT1, sT1, W_Q)
    a("v_cmp_gt_u32 vcc, 2, v9\ns_mov_b64 %s, vcc", sEX)
    lds_wait_ge(F_PROG, "18", cache=sSEEN)
    for q in range(9):
        a("ds_read_b64_tr_b16 v[%d:%d], v13 offset:%d", 16 + 2 * q, 17 + 2 * q, q * 2048)
    for s in range(4):
        a("s_waitcnt lgkmcnt(%d)", 7 - 2 * s)
        mfma(60, 16 + 4 * s, 40 + 4 * s)
    a("s_waitcnt lgkmcnt(0)")
    a("v_mfma_f32_16x16x16_bf16 v[64:67], v[32:33], v[56:57], v[64:67]")
    flag_add(F_C1)
    a("s_nop 4")
    for r in range(4): a("v_add_f32 v%d, v%d, v%d", 72 + r, 60 + r, 64 + r)
    tag_merge(72)
    a("s_mov_b64 exec, %s", sEX)
    a("buffer_store_dwordx4 v[72:75], v1, %s, s93 offen", srd(RW))
    a("s_mov_b64 exec, -1")
    a("s_mov_b32 s99, s93")
    stamp(3)
    def q_republish():
        get_ver()
        two_way(lambda: None, lambda: a("s_mov_b64 exec, %s\nbuffer_store_dwordx4 v[72:75], v1, %s, s99 offen sc1\ns_mov_b64 exec, -1", sEX, srd(RB)))
    Lh = a.lab("LH")
    a("s_cmp_lt_u32 %s, 27\ns_cbranch_scc1 %s", sIDX, Lh)
    q_republish()
    a("s_branch L_w_s2")
    a("%s:" % Lh)
    a("s_mul_i32 %s, %s, 384\nv_add_u32 v13, %s, v11", sT0, sM3, sT0)
    for s in range(6):
        a("ds_read2_b64 v[%d:%d], v13 offset0:%d offset1:%d", 40 + 4 * s, 43 + 4 * s, 8 * s, 8 * s + 4)
    for r in range(8): a("v_mov_b32 v%d, 0", 64 + r)
    for h, sd in ((0, "s93"), (1, "s98")):
        gu_img(h, sT0, sT1)
        a("s_mul_i32 %s, %s, 3\ns_add_u32 %s, %s, %s\ns_mul_i32 %s, %s, 36864", sT0, sT0, sT0, sT0, sM3, sT0, sT0)
        a("s_lshl2_add_u32 %s, %s, %s\ns_lshl_b32 %s, %s, 7\ns_add_u32 %s, %s, %s\ns_add_u32 %s, %s, %d", sT1, sT1, sW, sT1, sT1, sT0, sT0, sT1, sd, sT0, W_G)
    for s in range(6):
        if s == 3: q_republish()
        lds_wait_ge(F_PROG, str(P_G + 8 * s + 8 + 4 * (s // o.mix)), cache=sSEEN)
        for h in range(2):
            for q in range(2):
                a("ds_read_b64_tr_b16 v[%d:%d], v15 offset:%d", 16 + 4 * h + 2 * q, 17 + 4 * h + 2 * q, s * 8192 + q * 4096 + h * 1024)
        a("s_waitcnt lgkmcnt(2)")
        mfma(64, 16, 40 + 4 * s)
        a("s_waitcnt lgkmcnt(0)")
        mfma(68, 20, 40 + 4 * s)
    stamp(4)
    a("s_nop 5")
    tag_merge(64)
    tag_merge(68)
    a("s_mov_b64 exec, %s", sEX)
    pub([("v[64:67]", "s93", 0), ("v[68:71]", "s98", 0)])
    a("s_mov_b64 exec, -1")
    a("L_w_s2:")
    WF, VF, AC = 16, 48, 80
    a("v_mul_u32_u24 v11, %d, v12\nv_lshl_add_u32 v11, v8, 4, v11", VEC2_P)
    for r in range(8): a("v_mov_b32 v%d, 0", AC + r)
    a("v_add_u32 v10, %d, v10", RWQ)
    a("s_lshl2_add_u32 %s, %s, %s\ns_lshl_b32 %s, %s, 12\ns_lshl_b32 %s, %s, 7\ns_add_u32 %s, %s, %s\ns_add_u32 s93, %s, %d", sT0, sCB, sW, sT0, sT0, sT1, sTEAM, sT0, sT0, sT1, sT0, W_F)
    a("s_cmp_ge_u32 %s, 16\ns_cbranch_scc1 L_w_dn", sTEAM)
    for s_ in range(0, 8, 2):
        lds_wait_ge(F_PROG, str(130 + 4 * s_ + 8), cache=sSEEN)
        for q in range(4):
            a("ds_read_b64_tr_b16 v[%d:%d], v10 offset:%d", WF + 4 * s_ + 2 * q, WF + 4 * s_ + 2 * q + 1, s_ * 4096 + q * 2048)
    stamp(5)
    if o.spec:
        a("s_mov_b32 %s, 0", sTMO)
        a("L_wo_spin:")
        a("s_waitcnt lgkmcnt(6)")
        a("ds_read_b32 v2, v3 offset:%d", F_VRDY)
        for s_ in range(8):
            a("ds_read_b128 v[%d:%d], v11 offset:%d", VF + 4 * s_, VF + 4 * s_ + 3, VEC2 + 64 * s_)
        a("s_add_u32 %s, %s, 1\ns_cmp_gt_u32 %s, 0x80000\ns_cbranch_scc1 L_wo_go", sTMO, sTMO, sTMO)
        a("s_waitcnt lgkmcnt(8)")
        a("v_readfirstlane_b32 %s, v2", sT3)
        a("s_cmp_lt_i32 %s, 4\ns_cbranch_scc1 L_wo_spin", sT3)
    else:
        lds_wait_ge(F_VRDY, "4")
        for s_ in range(8):
            a("ds_read_b128 v[%d:%d], v11 offset:%d", VF + 4 * s_, VF + 4 * s_ + 3, VEC2 + 64 * s_)
    a("L_wo_go:")
    for s_ in range(8):
        a("s_waitcnt lgkmcnt(%d)", 7 - s_)
        mfma(AC, WF + 4 * s_, VF + 4 * s_)
    stamp(6)
    a("L_s2_pub:")
    a("s_mov_b64 exec, %s", sEX)
    a("s_nop 6")
    tag_merge(AC, rnd=False)
    a("buffer_store_dwordx4 v[%d:%d], v1, %s, s93 offen sc1", AC, AC + 3, srd(RW))
    a("L_w_end:")
    stamp(7)
    stamps_out()
    a("s_endpgm")
    flush_ool()

    a("L_w_dn:")
    HA, HA2, HW, HW2, HC = "v60", "v61", "v62", "v63", "v64"
    a("v_lshrrev_b32 v4, 5, v0\nv_mul_u32_u24 %s, 110592, v4\nv_and_b32 v4, 31, v0\nv_lshl_add_u32 %s, v4, 4, %s", HA, HA, HA)
    a("s_lshl_b32 %s, %s, 3\ns_lshl_b32 %s, %s, 9\ns_add_u32 %s, %s, %s\ns_add_u32 s48, %s, %d", sT0, sR0, sT1, sW, sT0, sT0, sT1, sT0, W_G)
    a("s_add_u32 s49, s48, 36864\ns_add_u32 s50, s48, 73728")
    a("v_bfe_u32 v4, v0, 2, 1\nv_mul_u32_u24 %s, %d, v4\nv_bfe_u32 v4, v0, 4, 1\nv_lshl_add_u32 %s, v4, 6, %s\nv_and_b32 v4, 3, v0\nv_lshl_add_u32 %s, v4, 4, %s\nv_bfe_u32 v4, v0, 3, 1\nv_lshl_add_u32 %s, v4, 3, %s", HW, VEC2_P, HW, HW, HW, HW, HW, HW)
    a("s_lshl_b32 %s, %s, 7\nv_add_u32 %s, %s, %s", sT2, sW, HW, sT2, HW)
    c1 = -2.0 * math.sqrt(2.0 / math.pi) * math.log2(math.e)
    a("s_mov_b32 s51, 0x%08x\nv_mov_b32 %s, 0x%08x\ns_mov_b32 s52, 0xffff0000", f2u(c1 * 0.044715), HC, f2u(c1))
    a("s_cmp_eq_u32 %s, 0\ns_cselect_b32 %s, %s, 32", sW, sIT, sNS2)
    a("v_add_u32 %s, 2048, %s\nv_add_u32 %s, 512, %s", HA2, HA, HW2, HW)
    a("s_mov_b32 %s, %d\ns_cmp_eq_u32 %s, 80\ns_cselect_b32 %s, %d, %s", sTH, o.hpoll, sNS2, sTH, o.hpolll or o.hpoll, sTH)
    lds_wait_ge(F_PROG, sTH, cache=sSEEN)
    a("s_mov_b32 %s, 0", sTMO)
    if o.nopoll & 2: a("s_branch L_h_ok")
    a("L_h_poll:")
    for r in range(2):
        if r == 1: a("s_cmp_eq_u32 %s, 32\ns_cbranch_scc1 L_h_w", sIT)
        fetch([(16 + 12 * r + 4 * sl, HA if r < 1 else HA2, "s%d" % (48 + sl), 0) for sl in range(3)])
    a("L_h_w:")
    a("s_add_u32 %s, %s, 1\ns_cmp_gt_u32 %s, 0x8000\ns_cbranch_scc1 L_h_ok", sTMO, sTMO, sTMO)
    a("s_waitcnt vmcnt(0)")
    for k in range(6):
        if k == 3: a("s_cmp_eq_u32 %s, 32\ns_cbranch_scc1 L_h_c", sIT)
        tag_bad("v4", 16 + 4 * k, k == 0)
    a("L_h_c:")
    a("v_and_b32 v4, 0xff, v4\nv_cmp_ne_u32 vcc, 0, v4\ns_and_b64 exec, exec, vcc\ns_cbranch_vccnz L_h_poll")
    a("L_h_ok:")
    a("s_mov_b64 exec, -1")
    a("s_waitcnt vmcnt(0)")
    for r in range(2):
        if r == 1: a("s_cmp_eq_u32 %s, 32\ns_cbranch_scc1 L_h_done", sIT)
        B = 16 + 12 * r
        for k in range(4): a("v_add_f32 v%d, v%d, v%d", B + k, B + k, B + 4 + k)
        for k in range(4): a("v_add_f32 v%d, v%d, v%d", B + k, B + k, B + 8 + k)
        a("v_cvt_pk_bf16_f32 v%d, v%d, v%d\nv_cvt_pk_bf16_f32 v%d, v%d, v%d", B, B, B + 1, B + 1, B + 2, B + 3)
        a("v_mov_b32 v%d, v%d\nv_mov_b32 v%d, v%d\ns_nop 1", B + 2, B, B + 3, B + 1)
        a("v_permlane32_swap_b32 v%d, v%d\nv_permlane32_swap_b32 v%d, v%d", B, B + 2, B + 1, B + 3)
        G, U, T = B + 4, B + 8, 4
        a("v_lshlrev_b32 v%d, 16, v%d\nv_and_b32 v%d, s52, v%d\nv_lshlrev_b32 v%d, 16, v%d\nv_and_b32 v%d, s52, v%d", G, B, G + 1, B, G + 2, B + 1, G + 3, B + 1)
        a("v_lshlrev_b32 v%d, 16, v%d\nv_and_b32 v%d, s52, v%d\nv_lshlrev_b32 v%d, 16, v%d\nv_and_b32 v%d, s52, v%d", U, B + 2, U + 1, B + 2, U + 2, B + 3, U + 3, B + 3)
        for k in range(4): a("v_mul_f32 v%d, v%d, v%d", T + k, G + k, G + k)
        for k in range(4): a("v_fma_f32 v%d, v%d, s51, %s", T + k, T + k, HC)
        for k in range(4): a("v_mul_f32 v%d, v%d, v%d", T + k, T + k, G + k)
        for k in range(4): a("v_exp_f32 v%d, v%d", T + k, T + k)
        a("s_nop 0")
        for k in range(4): a("v_add_f32 v%d, 1.0, v%d", T + k, T + k)
        for k in range(4): a("v_rcp_f32 v%d, v%d", T + k, T + k)
        a("s_nop 0")
        for k in range(4): a("v_mul_f32 v%d, v%d, v%d", T + k, T + k, G + k)
        a("v_cvt_pk_bf16_f32 v%d, v%d, v%d\nv_cvt_pk_bf16_f32 v%d, v%d, v%d", B, T, T + 1, B + 1, T + 2, T + 3)
        a("v_lshlrev_b32 v%d, 16, v%d\nv_and_b32 v%d, s52, v%d\nv_lshlrev_b32 v%d, 16, v%d\nv_and_b32 v%d, s52, v%d", T, B, T + 1, B, T + 2, B + 1, T + 3, B + 1)
        for k in range(4): a("v_mul_f32 v%d, v%d, v%d", T + k, T + k, U + k)
        a("v_cvt_pk_bf16_f32 v%d, v%d, v%d\nv_cvt_pk_bf16_f32 v%d, v%d, v%d", B, T, T + 1, B + 1, T + 2, T + 3)
        a("ds_write_b64 %s, v[%d:%d] offset:%d", HW if r < 1 else HW2, B, B + 1, VEC2)
    a("L_h_done:")
    flag_add(F_VRDY)
    stamp(5)
    lds_wait_ge(F_VRDY, "4")
    stamp(6)
    a("s_add_u32 %s, %s, 8", sTH, sB2)
    a("s_cmp_eq_u32 %s, 80\ns_cbranch_scc1 L_lt", sNS2)
    def dn_reads(R, it):
        lds_wait_ge(F_PROG, str(130 + 8 * it + 8), cache=sSEEN, hot=(0 < it < 3))
        a("ds_read_b64_tr_b16 v[%d:%d], v10 offset:%d", R, R + 1, it * 8192)
        a("ds_read_b64_tr_b16 v[%d:%d], v10 offset:%d", R + 2, R + 3, it * 8192 + 2048)
        a("ds_read_b128 v[%d:%d], v11 offset:%d", R + 8, R + 11, VEC2 + 128 * it)
        a("ds_read_b64_tr_b16 v[%d:%d], v10 offset:%d", R + 4, R + 5, it * 8192 + 4096)
        a("ds_read_b64_tr_b16 v[%d:%d], v10 offset:%d", R + 6, R + 7, it * 8192 + 6144)
        a("ds_read_b128 v[%d:%d], v11 offset:%d", R + 12, R + 15, VEC2 + 128 * it + 64)
    dn_reads(16, 0)
    for it in range(4):
        R = 16 + 16 * (it & 1)
        if it < 3: dn_reads(16 + 16 * ((it + 1) & 1), it + 1)
        n = 6 if it < 3 else 0
        a("s_waitcnt lgkmcnt(%d)", n + 3)
        mfma(AC, R, R + 8)
        a("s_waitcnt lgkmcnt(%d)", n)
        mfma(AC, R + 4, R + 12)
    a("s_branch L_s2_pub")
    def lt_reads(st):
        R = 16 + 12 * (st % 4)
        va, off = ("v15", st) if st < 8 else ("v13", st - 8)
        lds_wait_ge(F_PROG, str(82 + 8 * st + 8), cache=sSEEN, hot=(0 < st < 9))
        a("ds_read_b128 v[%d:%d], v11 offset:%d", R + 8, R + 11, VEC2 + 64 * st)
        a("ds_read_b64_tr_b16 v[%d:%d], %s offset:%d", R, R + 1, va, off * 8192)
        a("ds_read_b64_tr_b16 v[%d:%d], %s offset:%d", R + 2, R + 3, va, off * 8192 + 4096)
        a("ds_read_b64_tr_b16 v[%d:%d], %s offset:%d", R + 4, R + 5, va, off * 8192 + 1024)
        a("ds_read_b64_tr_b16 v[%d:%d], %s offset:%d", R + 6, R + 7, va, off * 8192 + 5120)
    def lt_mm(st, n):
        R = 16 + 12 * (st % 4)
        a("s_waitcnt lgkmcnt(%d)", n + 2)
        mfma(AC, R, R + 8)
        a("s_waitcnt lgkmcnt(%d)", n)
        mfma(AC + 4, R + 4, R + 8)
    a("L_lt:")
    a("v_add_u32 v13, 0x10000, v15")
    AH = 2
    for st in range(10 + AH):
        if st < 10: lt_reads(st)
        if st >= AH: lt_mm(st - AH, 5 * (min(st, 9) - (st - AH)))
    a("s_cmp_eq_u32 %s, 8\ns_cbranch_scc1 L_s2_pub", sCB)
    a("s_mov_b64 exec, %s\ns_add_u32 %s, s93, 16384\ns_nop 4", sEX, sT0)
    tag_merge(AC + 4, rnd=False)
    a("buffer_store_dwordx4 v[%d:%d], v1, %s, %s offen sc1", AC + 4, AC + 7, srd(RW), sT0)
    a("s_branch L_s2_pub")
    flush_ool()

    sA = "s90"
    a("L_att:")
    a("s_sub_u32 %s, %s, 5", sA, sWV)
    a("v_lshrrev_b32 v10, 2, v9\nv_mul_u32_u24 v10, %d, v10", KP)
    a("v_and_b32 v11, 3, v0\nv_lshl_add_u32 v10, v11, 8, v10\nv_xor_b32 v11, v11, v8\nv_lshl_add_u32 v10, v11, 4, v10")
    a("s_mul_i32 %s, %s, %d\ns_add_u32 %s, %s, %d\nv_add_u32 v10, %s, v10", sT0, sA, 8 * KP, sT0, sT0, RK, sT0)
    VA = 72
    a("v_mul_u32_u24 v12, %d, v8", VP)
    a("v_lshrrev_b32 v11, 2, v9\nv_lshl_add_u32 v12, v11, 8, v12\nv_lshlrev_b32 v11, 5, v11")
    a("s_lshl_b32 %s, %s, 6\nv_xor_b32 v11, %s, v11\nv_add_u32 v12, v12, v11", sT0, sA, sT0)
    a("v_and_b32 v11, 3, v0\nv_lshl_add_u32 v12, v11, 3, v12")
    a("v_add_u32 v%d, %d, v12", VA, RV)
    a("v_xor_b32 v%d, 32, v%d", VA + 1, VA)
    KF, QF, SC, PF, VF, OA = 16, 48, 64, 16, 32, 40
    a("v_lshlrev_b32 v1, 6, v9\nv_lshl_add_u32 v1, v8, 4, v1")
    a("v_cmp_gt_u32 vcc, 2, v9\ns_mov_b64 %s, vcc", sEX)
    if o.touch:
        a("s_cmp_lg_u32 %s, 2\ns_cbranch_scc1 L_a_not", sA)
        a("v_lshlrev_b32 v11, 7, v0")
        a("s_lshl4_add_u32 %s, %s, %s\ns_lshl_b32 %s, %s, 9\ns_add_u32 %s, %s, %d\ns_lshl_b32 %s, %s, 10\ns_add_u32 %s, %s, %d", sT0, sG, sI, sT1, sT0, sT1, sT1, W_Q, sT0, sT0, sT0, sT0, W_O)
        a("s_mov_b64 exec, 0xf")
        if o.touch & 1: a("buffer_load_dword v76, v11, %s, %s offen nt", srd(RW), sT1)
        a("s_mov_b64 exec, 0xff")
        if o.touch & 4: a("buffer_load_dword v77, v11, %s, %s offen nt", srd(RW), sT0)
        a("s_mov_b64 exec, 0xf")
        if o.touch & 2:
            a("s_cmp_ge_u32 %s, 27\ns_cbranch_scc1 L_a_not", sIDX)
            for h in range(2):
                gu_img(h, sT0, sT1)
                a("s_mul_i32 %s, %s, 3\ns_add_u32 %s, %s, %s\ns_mul_i32 %s, %s, 36864", sT0, sT0, sT0, sT0, sM3, sT0, sT0)
                a("s_lshl_b32 %s, %s, 9\ns_add_u32 %s, %s, %s\ns_add_u32 %s, %s, %d", sT1, sT1, sT0, sT0, sT1, sT0, sT0, W_G)
                a("buffer_load_dword v%d, v11, %s, %s offen nt", 78 + h, srd(RW), sT0)
        a("L_a_not:")
        a("s_mov_b64 exec, -1")
    get_tag()
    a("s_cmp_lg_u32 %s, 1\ns_cbranch_scc1 L_a_nov", sA)
    if o.nover: a("v_mov_b32 v4, 1\nds_write_b32 v3, v4 offset:%d\ns_branch L_a_nov", F_VER)
    a("s_getreg_b32 %s, hwreg(HW_REG_XCC_ID, 0, 4)", sT2)
    a("s_lshl_b32 %s, %s, 8\ns_add_u32 %s, %s, %d\ns_lshl3_add_u32 %s, %s, %s", sT0, sX, sT0, sT0, W_V, sT1, sIDX, sT0)
    a("v_mov_b32 v4, %s\nv_mov_b32 v5, %s\nv_lshlrev_b32 v11, 3, v0", sTAG, sT2)
    a("s_mov_b64 exec, 1\nbuffer_store_dwordx2 v[4:5], v3, %s, %s offen sc1\ns_mov_b64 exec, -1", srd(RW), sT1)
    lds_wait_ge(F_PROG, str(o.vpoll), cache=sSEEN)
    a("s_mov_b32 exec_hi, 0\ns_mov_b32 %s, 0", sTMO)
    a("L_a_vpoll:")
    a("buffer_load_dwordx2 v[6:7], v11, %s, %s offen sc1", srd(RW), sT0)
    a("s_add_u32 %s, %s, 1\ns_cmp_gt_u32 %s, 0x8000\ns_cbranch_scc1 L_a_vok", sTMO, sTMO, sTMO)
    a("s_waitcnt vmcnt(0)")
    a("v_cmp_ne_u32 vcc, %s, v6\ns_cbranch_vccnz L_a_vpoll", sTAG)
    a("L_a_vok:")
    a("s_waitcnt vmcnt(0)")
    a("v_cmp_ne_u32 vcc, %s, v7\ns_mov_b64 exec, -1", sT2)
    a("s_cmp_eq_u64 vcc, 0\ns_cselect_b32 %s, %d, 2\nv_mov_b32 v4, %s", sT0, 1 if o.local else 2, sT0)
    a("ds_write_b32 v3, v4 offset:%d", F_VER)
    a("L_a_nov:")
    a("s_cmp_lg_u32 %s, 0\ns_cbranch_scc1 L_a_k", sA)
    lds_wait_ge(F_PROG, str(o.qpoll), cache=sSEEN)
    a("v_lshrrev_b32 v11, 2, v0\nv_lshlrev_b32 v11, 7, v11\nv_and_b32 v12, 3, v0\nv_lshl_add_u32 v11, v12, 4, v11")
    a("s_lshl_b32 %s, %s, 13\ns_lshr_b32 %s, %s, 3\ns_lshl_b32 %s, %s, 6\ns_add_u32 %s, %s, %s\ns_add_u32 %s, %s, %d\ns_add_u32 %s, %s, 4096",
      sT0, sG, sT1, sI, sT1, sT1, sT0, sT0, sT1, sT0, sT0, W_Q, sT1, sT0)
    a("s_mov_b32 %s, 0", sTMO)
    if o.nopoll & 1: a("s_branch L_a_qok")
    a("s_mov_b32 %s, 1\ns_mov_b32 s53, 0", sVER)
    a("L_a_qpoll:")
    fetch([(16 + 4 * r, "v11", sT0 if r < 2 else sT1, (r & 1) * 2048) for r in range(4)])
    a("s_add_u32 s53, s53, 1\ns_cmp_gt_u32 s53, 0x8000\ns_cbranch_scc1 L_a_qok")
    a("s_waitcnt vmcnt(0)")
    for r in range(4): tag_bad("v4", 16 + 4 * r, r == 0)
    a("v_and_b32 v4, 0xff, v4\nv_cmp_ne_u32 vcc, 0, v4\ns_cbranch_vccz L_a_qok")
    a("s_mov_b32 %s, 0", sVER)
    get_ver()
    a("s_branch L_a_qpoll")
    a("L_a_qok:")
    a("s_mov_b32 %s, 0", sVER)
    a("s_waitcnt vmcnt(0)")
    for k in range(4):
        a("v_add_f32 v%d, v%d, v%d\nv_add_f32 v%d, v%d, v%d\nv_add_f32 v%d, v%d, v%d", 16 + k, 16 + k, 20 + k, 24 + k, 24 + k, 28 + k, 16 + k, 16 + k, 24 + k)
    a("v_cvt_pk_bf16_f32 v4, v16, v17\nv_cvt_pk_bf16_f32 v5, v18, v19")
    a("v_lshlrev_b32 v11, 3, v0\nv_mov_b32 v6, 1")
    a("ds_write_b64 v11, v[4:5] offset:%d", QV)
    a("ds_write_b32 v3, v6 offset:%d", F_QRDY)
    a("L_a_k:")
    lds_wait_ge(F_QRDY, "1")
    stamp(1)
    a("v_and_b32 v12, 1, v0\nv_lshlrev_b32 v11, 8, v12\nv_lshl_add_u32 v11, v8, 4, v11")
    for c in range(4):
        a("ds_read_b128 v[%d:%d], v11 offset:%d", QF + 4 * c, QF + 4 * c + 3, QV + c * 64)
    for r in range(8): a("v_mov_b32 v%d, 0", SC + r)
    a("s_sub_u32 %s, %s, 32", sTH, sB2)
    lds_wait_ge(F_PROG, sTH, cache=sSEEN)
    stamp(2)
    for c in range(4):
        for t in range(2):
            a("ds_read_b128 v[%d:%d], v10 offset:%d", KF + 16 * t + 4 * c, KF + 16 * t + 4 * c + 3, t * 4 * KP + c * 64)
    for c in range(4):
        for t in range(2):
            a("s_waitcnt lgkmcnt(%d)", 7 - 2 * c - t)
            mfma(SC + 4 * t, KF + 16 * t + 4 * c, QF + 4 * c)
    a("s_mov_b32 %s, 0xffff0000\ns_mov_b32 %s, 0x3db504f3\ns_mov_b32 %s, 0x3fb8aa3b", sT0, sT1, sT2)
    a("v_lshlrev_b32 v12, 2, v12\ns_lshl_b32 %s, %s, 3\nv_add_u32 v13, %s, v12", sT3, sA, sT3)
    a("s_nop 4")
    for k in range(0, 8, 2):
        a("v_cvt_pk_bf16_f32 v4, v%d, v%d", SC + k, SC + k + 1)
        a("v_and_b32 v5, %s, v4\nv_lshlrev_b32 v4, 16, v4", sT0)
        a("v_mul_f32 v4, %s, v4\nv_mul_f32 v5, %s, v5", sT1, sT1)
        a("v_cvt_pk_bf16_f32 v4, v4, v5")
        a("v_and_b32 v%d, %s, v4\nv_lshlrev_b32 v%d, 16, v4", SC + k + 1, sT0, SC + k)
    a("v_max3_f32 v4, v%d, v%d, v%d\nv_max3_f32 v5, v%d, v%d, v%d\nv_max3_f32 v4, v4, v%d, v%d\nv_max_f32 v4, v4, v5", *[SC + k for k in range(8)])
    def rows_allreduce(op, v, t):
        a("v_mov_b32 %s, %s\ns_nop 1\nv_permlane16_swap_b32 %s, %s\n%s %s, %s, %s", t, v, v, t, op, v, v, t)
        a("v_mov_b32 %s, %s\ns_nop 1\nv_permlane32_swap_b32 %s, %s\n%s %s, %s, %s", t, v, v, t, op, v, v, t)
    rows_allreduce("v_max_f32", "v4", "v5")
    a("ds_write_b32 v13, v4 offset:%d", MX)
    flag_add(F_A1)
    lds_wait_ge(F_A1, "4")
    a("ds_read2_b32 v[4:5], v12 offset0:%d offset1:%d\nds_read2_b32 v[6:7], v12 offset0:%d offset1:%d" % (0, 2, 4, 6) if False else
      "v_add_u32 v11, %d, v12\nds_read2_b32 v[4:5], v11 offset0:0 offset1:2\nds_read2_b32 v[6:7], v11 offset0:4 offset1:6" % MX)
    a("s_waitcnt lgkmcnt(0)")
    a("v_max3_f32 v4, v4, v5, v6\nv_max_f32 v4, v4, v7")
    a("v_mul_f32 v15, %s, v4", sT2)
    for k in range(8): a("v_fma_f32 v%d, v%d, %s, -v15", SC + k, SC + k, sT2)
    for k in range(8): a("v_exp_f32 v%d, v%d", SC + k, SC + k)
    a("s_nop 0")
    a("v_add_f32 v5, v%d, v%d\nv_add_f32 v6, v%d, v%d", SC, SC + 1, SC + 2, SC + 3)
    a("v_add_f32 v5, v5, v%d\nv_add_f32 v6, v6, v%d\nv_add_f32 v5, v5, v%d\nv_add_f32 v6, v6, v%d\nv_add_f32 v5, v5, v6", SC + 4, SC + 5, SC + 6, SC + 7)
    rows_allreduce("v_add_f32", "v5", "v6")
    for k in range(4): a("v_cvt_pk_bf16_f32 v%d, v%d, v%d", 48 + k, SC + 2 * k, SC + 2 * k + 1)
    a("v_lshlrev_b32 v10, 4, v12\nv_lshl_add_u32 v10, v8, 4, v10")
    a("s_lshl_b32 %s, %s, 7\nv_add_u32 v7, %s, v10", sT3, sA, sT3)
    a("ds_write_b32 v13, v5 offset:%d", LS)
    a("ds_write_b128 v7, v[48:51] offset:%d", PB)
    flag_add(F_A2)
    for r in range(8): a("v_mov_b32 v%d, 0", OA + r)
    lds_wait_ge(F_A2, "4")
    a("ds_read2_b32 v[4:5], v11 offset0:8 offset1:10\nds_read2_b32 v[6:7], v11 offset0:12 offset1:14")
    for j in range(4):
        a("s_add_u32 s%d, %s, %d\ns_and_b32 s%d, s%d, 3\ns_lshl_b32 %s, s%d, 7\nv_add_u32 v13, %s, v10", 48 + j, sIDX, j, 48 + j, 48 + j, sT3, 48 + j, sT3)
        a("ds_read_b128 v[%d:%d], v13 offset:%d", PF + 4 * j, PF + 4 * j + 3, PB)
        a("s_mul_i32 s%d, s%d, %d", 48 + j, 48 + j, 8 * VP)
    a("s_waitcnt lgkmcnt(4)")
    a("v_add_f32 v4, v4, v5\nv_add_f32 v6, v6, v7\nv_add_f32 v4, v4, v6")
    a("v_log_f32 v5, v4\nv_rcp_f32 v13, v4")
    a("s_lshl4_add_u32 %s, %s, %s\ns_lshl2_add_u32 %s, %s, %s\ns_lshl_b32 %s, %s, 8\ns_add_u32 s93, %s, %d", sT0, sG, sI, sT0, sT0, sA, sT0, sT0, sT0, W_O)
    a("v_add_f32 v51, v15, v5\nv_add_f32 v55, v15, v5\nv_mov_b32 v50, %s\nv_mov_b32 v54, %s", sTAG, sTAG)
    get_ver()
    stamp(3)
    a("s_sub_u32 %s, %s, 32", sTH, sB2)
    for j in range(4):
        a("s_add_u32 %s, %s, 8\nv_add_u32 v4, s%d, v%d\nv_add_u32 v5, s%d, v%d", sTH, sTH, 48 + j, VA, 48 + j, VA + 1)
        lds_wait_ge(F_PROG, sTH, cache=sSEEN)
        for d in range(2):
            for t in range(2):
                a("ds_read_b64_tr_b16 v[%d:%d], v%d offset:%d", VF + 4 * d + 2 * t, VF + 4 * d + 2 * t + 1, 4 + d, t * 4 * VP)
        a("s_waitcnt lgkmcnt(2)")
        mfma(OA, VF, PF + 4 * j)
        a("s_waitcnt lgkmcnt(0)")
        mfma(OA + 4, VF + 4, PF + 4 * j)
    a("s_mov_b64 exec, %s", sEX)
    a("s_nop 4")
    for r in range(8): a("v_mul_f32 v%d, v%d, v13", OA + r, OA + r)
    a("v_cvt_pk_bf16_f32 v48, v%d, v%d\nv_cvt_pk_bf16_f32 v49, v%d, v%d", OA, OA + 1, OA + 2, OA + 3)
    a("v_cvt_pk_bf16_f32 v52, v%d, v%d\nv_cvt_pk_bf16_f32 v53, v%d, v%d", OA + 4, OA + 5, OA + 6, OA + 7)
    pub([("v[48:51]", "s93", 0), ("v[52:55]", "s93", 128)])
    a("s_mov_b64 exec, -1")
    stamp(4)
    a("s_cmp_ge_u32 %s, 16\ns_cbranch_scc1 L_a_end", sTEAM)
    a("v_lshrrev_b32 v12, 5, v0\nv_and_b32 v11, 31, v0\nv_lshlrev_b32 v11, 4, v11\nv_lshl_add_u32 v11, v12, 12, v11")
    a("s_lshl_b32 %s, %s, 14\ns_lshr_b32 %s, %s, 1\ns_lshl_b32 %s, %s, 13\ns_add_u32 %s, %s, %s", sT0, sTEAM, sT1, sA, sT1, sT1, sT0, sT0, sT1)
    a("s_and_b32 %s, %s, 1\ns_lshl_b32 %s, %s, 9\ns_add_u32 %s, %s, %s\ns_add_u32 %s, %s, %d", sT1, sA, sT1, sT1, sT0, sT0, sT1, sT0, sT0, W_O)
    a("v_bfe_u32 v10, v0, 2, 1\nv_lshlrev_b32 v10, 8, v10\nv_lshl_add_u32 v10, v12, 2, v10\nv_bfe_u32 v12, v0, 4, 1\nv_lshl_add_u32 v10, v12, 6, v10\nv_and_b32 v12, 3, v0\nv_lshl_add_u32 v10, v12, 4, v10\nv_bfe_u32 v12, v0, 3, 1\nv_lshl_add_u32 v10, v12, 3, v10")
    a("s_lshr_b32 %s, %s, 1\ns_mul_i32 %s, %s, %d\ns_lshr_b32 %s, %s, 2\ns_add_u32 %s, %s, %s\nv_add_u32 v10, %s, v10", sT2, sA, sT2, sT2, VEC2_P, sT1, sT1, sT2, sT2, sT1, sT2)
    a("s_mov_b32 %s, 0xffff0000", sT1)
    if o.opoll: lds_wait_ge(F_PROG, str(o.opoll), cache=sSEEN)
    a("s_mov_b32 %s, 0", sTMO)
    if o.nopoll & 4: a("s_branch L_a_ook")
    a("L_a_opoll:")
    fetch([(16 + 4 * k, "v11", sT0, k * 1024) for k in range(4)])
    a("s_add_u32 %s, %s, 1\ns_cmp_gt_u32 %s, 0x8000\ns_cbranch_scc1 L_a_ook", sTMO, sTMO, sTMO)
    a("s_waitcnt vmcnt(0)")
    a("v_xor_b32 v4, %s, v18\nv_xor_b32 v5, %s, v22\nv_xor_b32 v6, %s, v26\nv_xor_b32 v7, %s, v30", sTAG, sTAG, sTAG, sTAG)
    a("v_or3_b32 v4, v4, v5, v6\nv_or_b32 v4, v4, v7")
    a("v_cmp_ne_u32 vcc, 0, v4\ns_and_b64 exec, exec, vcc\ns_cbranch_vccnz L_a_opoll")
    a("L_a_ook:")
    a("s_mov_b64 exec, -1")
    a("s_waitcnt vmcnt(0)")
    stamp(5)
    a("v_max3_f32 v4, v19, v23, v27\nv_max_f32 v4, v4, v31")
    a("v_mov_b32 v5, v4")
    a("v_lshlrev_b32 v32, 16, v16\nv_and_b32 v33, %s, v16", sT1)
    a("v_permlane32_swap_b32 v4, v5\nv_max_f32 v4, v4, v5")
    for k in range(4): a("v_sub_f32 v%d, v%d, v4", 19 + 4 * k, 19 + 4 * k)
    for k in range(4): a("v_exp_f32 v%d, v%d", 19 + 4 * k, 19 + 4 * k)
    a("v_lshlrev_b32 v34, 16, v17\nv_and_b32 v35, %s, v17", sT1)
    for r in range(4): a("v_mul_f32 v%d, v%d, v19", 32 + r, 32 + r)
    a("v_add_f32 v5, v19, v23\nv_add_f32 v6, v27, v31\nv_add_f32 v5, v5, v6\nv_mov_b32 v4, v5")
    for k in range(1, 4):
        w = 19 + 4 * k
        a("v_lshlrev_b32 v6, 16, v%d\nv_and_b32 v7, %s, v%d\nv_fmac_f32 v32, v%d, v6\nv_fmac_f32 v33, v%d, v7", 16 + 4 * k, sT1, 16 + 4 * k, w, w)
        if k == 1: a("v_permlane32_swap_b32 v4, v5\nv_add_f32 v4, v4, v5\nv_rcp_f32 v4, v4")
        a("v_lshlrev_b32 v6, 16, v%d\nv_and_b32 v7, %s, v%d\nv_fmac_f32 v34, v%d, v6\nv_fmac_f32 v35, v%d, v7", 17 + 4 * k, sT1, 17 + 4 * k, w, w)
    a("s_nop 1")
    a("v_permlane32_swap_b32 v32, v34\nv_permlane32_swap_b32 v33, v35")
    a("v_add_f32 v32, v32, v34\nv_add_f32 v33, v33, v35\nv_mul_f32 v32, v32, v4\nv_mul_f32 v33, v33, v4")
    a("v_cvt_pk_bf16_f32 v32, v32, v33")
    a("ds_write_b32 v10, v32 offset:%d", VEC2)
    flag_add(F_VRDY)
    stamp(6)
    a("s_cmp_lg_u32 %s, 3\ns_cbranch_scc1 L_a_end", sA)
    a("s_cmp_ge_u32 s2, 36\ns_cbranch_scc1 L_a_end")
    mk_srd(R1, 22, 2304)
    a("v_bfe_u32 v12, v0, 2, 1\nv_mul_u32_u24 v12, 1152, v12\nv_and_b32 v11, 3, v0\nv_lshl_add_u32 v12, v11, 3, v12")
    a("v_and_b32 v11, 1, v8\nv_lshl_add_u32 v12, v11, 2, v12")
    a("s_lshl_b32 %s, s2, 5\nv_add_u32 v12, %s, v12", sT1, sT1)
    a("global_load_dword v40, v12, s[4:5]")
    a("s_lshl_b32 %s, s2, 12\ns_add_u32 %s, %s, %d", sT0, sT0, sT0, W_F)
    a("v_lshlrev_b32 v11, 4, v0")
    a("s_mov_b32 %s, 0xffff0000\ns_mov_b32 %s, 0", sT1, sTMO)
    a("s_waitcnt vmcnt(0)")
    a("v_and_b32 v41, %s, v40\nv_lshlrev_b32 v40, 16, v40", sT1)
    if o.nopoll & 8: a("s_branch L_a_fok")
    a("L_a_fpoll:")
    for k in range(4):
        a("buffer_load_dwordx4 v[%d:%d], v11, %s, %s offen offset:%d sc1", 16 + 4 * k, 19 + 4 * k, srd(RW), sT0, k * 1024)
    a("s_add_u32 %s, %s, 1\ns_cmp_gt_u32 %s, 0x8000\ns_cbranch_scc1 L_a_fok", sTMO, sTMO, sTMO)
    for k in range(4):
        a("s_waitcnt vmcnt(%d)", 3 - k)
        tag_bad("v4", 16 + 4 * k, k == 0)
    a("v_and_b32 v4, 0xff, v4\nv_cmp_ne_u32 vcc, 0, v4\ns_and_b64 exec, exec, vcc\ns_cbranch_vccnz L_a_fpoll")
    a("L_a_fok:")
    a("s_mov_b64 exec, -1")
    stamp(7)
    for r in range(4): a("v_add_f32 v%d, v%d, v%d", 16 + r, 16 + r, 20 + r)
    for r in range(4): a("v_add_f32 v%d, v%d, v%d", 24 + r, 24 + r, 28 + r)
    for r in range(4): a("v_permlane32_swap_b32 v%d, v%d", 16 + r, 24 + r)
    for r in (0, 2, 1, 3): a("v_add_f32 v%d, v%d, v%d", 16 + r, 16 + r, 24 + r)
    a("v_permlane16_swap_b32 v16, v18\ns_nop 0\nv_permlane16_swap_b32 v17, v19")
    a("v_add_f32 v16, v16, v18\nv_add_f32 v17, v17, v19\ns_nop 0")
    a("v_add_f32_dpp v16, v16, v16 row_ror:8 row_mask:0xf bank_mask:0xf\nv_add_f32_dpp v17, v17, v17 row_ror:8 row_mask:0xf bank_mask:0xf")
    a("v_cvt_pk_bf16_f32 v16, v16, v17\nv_mov_b32 v18, v16\ns_nop 1")
    a("v_permlane32_swap_b32 v16, v18")
    a("v_lshlrev_b32 v6, 16, v16\nv_and_b32 v7, %s, v16", sT1)
    a("v_add_f32 v4, v40, v6\nv_add_f32 v5, v41, v7\nv_cvt_pk_bf16_f32 v4, v4, v5")
    a("v_lshlrev_b32 v6, 16, v18\nv_and_b32 v7, %s, v18", sT1)
    a("v_and_b32 v5, %s, v4\nv_lshlrev_b32 v4, 16, v4", sT1)
    a("s_mov_b64 exec, 0xff00ff")
    a("v_add_f32 v4, v4, v6\nv_add_f32 v5, v5, v7\nv_cvt_pk_bf16_f32 v20, v4, v5")
    a("buffer_store_dword v20, v12, %s, 0 offen %s", srd(R1), o.outpol)
    a("s_cmp_lg_u32 s2, 0\ns_cbranch_scc1 L_a_end")
    a("s_mov_b64 exec, 1\nv_mov_b32 v4, %s", sTAG)
    a("buffer_store_dword v4, v3, %s, 0 offen sc1", srd(RW))
    a("L_a_end:")
    stamps_out()
    a("L_end:")
    a("s_endpgm")
    flush_ool()
    a("L_code_end:")
    if o.cpf: a(".fill 256, 4, 0xbf800000")

    hdr = open(os.path.join(os.path.dirname(os.path.abspath(__file__)), "header.txt")).read()
    hdr += "; @launch grid=(256,1,1) block=(576,1,1) lds=%d\n" % LDS_TOTAL
    hdr += '.amdgcn_target "amdgcn-amd-amdhsa--gfx950"\n.text\n.globl %s\n.p2align 8\n.type %s,@function\n' % (NAME, NAME)
    ftr = """.section .rodata,"a"
.p2align 6
.amdhsa_kernel %s
  .amdhsa_next_free_vgpr 88
  .amdhsa_next_free_sgpr 102
  .amdhsa_accum_offset 88
  .amdhsa_group_segment_fixed_size 0
  .amdhsa_kernarg_size 96
  .amdhsa_user_sgpr_count 2
  .amdhsa_user_sgpr_kernarg_segment_ptr 1
  .amdhsa_system_sgpr_workgroup_id_x 1
  .amdhsa_float_denorm_mode_32 3
.end_amdhsa_kernel
""" % NAME
    body = a.text()
    if o.nostore:
        body = "\n".join(l for l in body.split("\n") if not ("buffer_store_dwordx4" in l and (o.nostore & 2 or "sc1" in l)))
    return hdr + body + ftr

def parser():
    p = argparse.ArgumentParser()
    p.add_argument("-o", default="-")
    p.add_argument("--depth", type=int, default=24)
    p.add_argument("--diag", type=int, default=0)
    p.add_argument("--qpoll", type=int, default=42)
    p.add_argument("--opoll", type=int, default=0)
    p.add_argument("--hpoll", type=int, default=106)
    p.add_argument("--cpf", type=int, default=1)
    p.add_argument("--sdiag", type=int, default=0)
    p.add_argument("--mix", type=int, default=2)
    p.add_argument("--local", type=int, default=1)
    p.add_argument("--wqx", type=int, default=4)
    p.add_argument("--spec", type=int, default=0)
    p.add_argument("--outpol", default="")
    p.add_argument("--nover", type=int, default=0)
    p.add_argument("--depthv", type=int, default=0)
    p.add_argument("--depthl", type=int, default=0)
    p.add_argument("--ltwait", type=int, default=0)
    p.add_argument("--hpolll", type=int, default=0)
    p.add_argument("--touch", type=int, default=0)
    p.add_argument("--vpoll", type=int, default=34)
    p.add_argument("--depth2", type=int, default=24)
    p.add_argument("--sleep", type=int, default=0)
    p.add_argument("--nopoll", type=int, default=0)
    p.add_argument("--nostore", type=int, default=0)
    p.add_argument("--rot", type=int, default=1)
    p.add_argument("--ldonly", type=int, default=0)
    p.add_argument("--pol", default="nt")
    return p

if __name__ == "__main__":
    o = parser().parse_args()
    t = gen(o)
    if o.o == "-": sys.stdout.write(t)
    else: open(o.o, "w").write(t)
```

```python
import sys, argparse, math, struct, os

NAME = "parallel_sum__sliding_block_cached__geglu_ffn__decode_kernel"
f2u = lambda f: struct.unpack("<I", struct.pack("<f", f))[0]

class Asm:
    def __init__(self):
        self.lines = []
        self.n = 0
    def __call__(self, s, *args):
        if args: s = s % args
        for ln in s.strip("\n").split("\n"):
            ln = ln.strip()
            if not ln: continue
            if ln.endswith(":"): self.lines.append(ln)
            else: self.lines.append("    " + ln)
    def lab(self, p="L"):
        self.n += 1
        return "%s_%d" % (p, self.n)
    def text(self): return "\n".join(self.lines) + "\n"

F_PROG, F_QRDY, F_A1, F_A2, F_VRDY, F_C1, F_VER = 0, 16, 20, 8, 24, 28, 32
XN, XN_P = 256, 1152
QV = 2560
VEC2, VEC2_P = 3072, 704
MX = 5632
LS = 5664
PB = 5888
RA = 10240
RWQ = RA + 48 * 1024
RK = RA + 80 * 1024
KP = 1088
RV = RK + 32 * KP
VP = 1152
LDS_TOTAL = RV + 32 * VP
assert LDS_TOTAL <= 163840
W_EPOCH = 0
W_V = 1024
W_Q = 4096
W_G = W_Q + 16 * 8192
W_O = W_G + 6 * 36864
W_AEND = W_O + 256 * 1024
BOFF = 0xa0000
assert W_AEND - W_Q <= BOFF
W_F = W_AEND + BOFF
W_END = W_F + 36 * 4096
W_DIAG = 2 << 20
assert W_END <= W_DIAG
P_G = 26

def gen(o):
    a = Asm()
    D = o.depth
    diag = o.diag
    sX, sIDX, sG, sI, sWV = "s28", "s29", "s30", "s31", "s32"
    sTEAM, sCB, sNS2, sB2, sR0 = "s33", "s34", "s35", "s36", "s37"
    sD3, sM3 = "s38", "s39"
    sT0, sT1, sT2, sT3 = "s40", "s41", "s42", "s43"
    sSEEN, sTMO, sTAG, sVER = "s44", "s45", "s46", "s47"
    sEX = "s[68:69]"
    R0, R1, R2, R3, R4 = 48, 52, 56, 60, 64
    RW = 64
    RB = 60
    ST = 72
    def srd(r): return "s[%d:%d]" % (r, r + 3)
    def mk_srd(r, lo, size):
        a("s_mov_b32 s%d, s%d\ns_mov_b32 s%d, s%d\ns_mov_b32 s%d, 0x%x\ns_mov_b32 s%d, 0x00020000", r, lo, r + 1, lo + 1, r + 2, size, r + 3)
    def stamp(k):
        if diag: a("s_memrealtime s[%d:%d]", ST + 2 * k, ST + 2 * k + 1)
    def stamps_out():
        if not diag: return
        a("s_waitcnt lgkmcnt(0)")
        a("s_mov_b64 exec, -1")
        a("s_lshl_b32 %s, s2, 4\ns_add_u32 %s, %s, %s\ns_lshl_b32 %s, %s, 6\ns_add_u32 %s, %s, 0x%x", sT0, sT0, sT0, sWV, sT0, sT0, sT0, sT0, W_DIAG)
        a("v_mov_b32 v1, %s", sT0)
        for k in range(4):
            for j in range(4): a("v_mov_b32 v%d, s%d", 4 + j, ST + 4 * k + j)
            a("global_store_dwordx4 v1, v[4:7], s[26:27] offset:%d", 16 * k)
            a("s_nop 1")
    ool = []
    def lds_wait_ge(off, thr, cache=None, vt="v2", vz="v3", hot=False):
        if hot:
            Ls, Lr = a.lab("LS"), a.lab("LB")
            a("s_cmp_lt_i32 %s, %s\ns_cbranch_scc1 %s", cache, thr, Ls)
            a("%s:" % Lr)
            ool.append((Ls, lambda: lds_wait_ge(off, thr, cache, vt, vz), Lr))
            return
        L, E = a.lab("LW"), a.lab("LE")
        c = cache or sT3
        if cache:
            a("s_cmp_ge_i32 %s, %s\ns_cbranch_scc1 %s", c, thr, E)
        a("s_mov_b32 %s, 0", sTMO)
        a("%s:" % L)
        if o.sleep: a("s_sleep %d", o.sleep)
        a("ds_read_b32 %s, %s offset:%d", vt, vz, off)
        a("s_add_u32 %s, %s, 1", sTMO, sTMO)
        a("s_cmp_gt_u32 %s, 0x80000\ns_cbranch_scc1 %s", sTMO, E)
        a("s_waitcnt lgkmcnt(0)")
        a("v_readfirstlane_b32 %s, %s", c, vt)
        a("s_cmp_lt_i32 %s, %s\ns_cbranch_scc1 %s", c, thr, L)
        a("%s:" % E)
    def get_tag():
        a("s_waitcnt lgkmcnt(0)")
        a("s_mul_i32 %s, %s, 1664525\ns_add_u32 %s, %s, 1013904223", sTAG, sTAG, sTAG, sTAG)
        a("s_and_b32 s94, %s, 0xff\ns_bfe_u32 s95, %s, 0x80008\ns_bfe_u32 s96, %s, 0x80010\ns_lshr_b32 s97, %s, 24", sTAG, sTAG, sTAG, sTAG)
    def tag_merge(r, rnd=True):
        for k in range(4):
            if rnd: a("v_add_u32 v%d, 0x80, v%d", r + k, r + k)
        for k in range(4):
            a("v_and_or_b32 v%d, v%d, v14, s%d", r + k, r + k, 94 + k)
    def tag_bad(dst, r, first):
        for k in range(4): a("v_xor_b32 v%d, s%d, v%d", r + k, 94 + k, r + k)
        if first: a("v_or3_b32 %s, v%d, v%d, v%d\nv_or_b32 %s, %s, v%d", dst, r, r + 1, r + 2, dst, dst, r + 3)
        else: a("v_or3_b32 %s, %s, v%d, v%d\nv_or3_b32 %s, %s, v%d, v%d", dst, dst, r, r + 1, dst, dst, r + 2, r + 3)
    def flag_add(off, vt="v6"):
        a("s_mov_b64 exec, 1\nv_mov_b32 %s, 1\nds_add_u32 v3, %s offset:%d\ns_mov_b64 exec, -1", vt, vt, off)
    def get_ver():
        lds_wait_ge(F_VER, "1", cache=sVER)
    def two_way(fast, slow):
        Ls, Lr = a.lab("LS"), a.lab("LB")
        a("s_cmp_lg_u32 %s, 1\ns_cbranch_scc1 %s", sVER, Ls)
        fast()
        a("%s:" % Lr)
        ool.append((Ls, slow, Lr))
    def flush_ool():
        for Ls, slow, Lr in ool:
            a("%s:" % Ls)
            slow()
            a("s_branch %s", Lr)
        del ool[:]
    def pub(items):
        def fast():
            for regs, so, off in items:
                a("buffer_store_dwordx4 %s, v1, %s, %s offen offset:%d", regs, srd(RW), so, off)
        def slow():
            for regs, so, off in items:
                a("buffer_store_dwordx4 %s, v1, %s, %s offen offset:%d sc1", regs, srd(RB), so, off)
        two_way(fast, slow)
    def fetch(items):
        def go(r, fl):
            for d, vo, so, off in items:
                a("buffer_load_dwordx4 v[%d:%d], %s, %s, %s offen offset:%d %s", d, d + 3, vo, srd(r), so, off, fl)
        two_way(lambda: go(RW, "nt"), lambda: go(RB, "sc1"))
    def mfma(d, A, B):
        a("v_mfma_f32_16x16x32_bf16 v[%d:%d], v[%d:%d], v[%d:%d], v[%d:%d]", d, d + 3, A, A + 3, B, B + 3, d, d + 3)

    a("%s:" % NAME)
    stamp(0)
    if o.hold or o.holdf: a("s_memrealtime s[86:87]")
    if diag:
        for k in range(1, 8): a("s_mov_b64 s[%d:%d], 0", ST + 2 * k, ST + 2 * k + 1)
    a("""
    s_load_dwordx16 s[4:19], s[0:1], 0
    s_load_dwordx8 s[20:27], s[0:1], 64
    s_cmp_ge_u32 s2, 256
    s_cbranch_scc1 L_end
    v_lshrrev_b32 v1, 6, v0
    v_and_b32 v0, 63, v0
    v_mov_b32 v3, 0
    """)
    a("v_readfirstlane_b32 %s, v1", sWV)
    a("s_and_b32 %s, s2, 7\ns_lshr_b32 %s, s2, 3", sX, sIDX)
    a("s_lshr_b32 %s, s2, 7\ns_lshl1_add_u32 %s, %s, %s\ns_and_b32 %s, %s, 15", sT0, sG, sX, sT0, sI, sIDX)
    a("s_cmp_eq_u32 %s, 0\ns_cbranch_scc1 L_loader", sWV)
    a("v_mul_u32_u24 v13, 36, v0")
    a("s_cmp_ge_u32 %s, 5", sWV)
    a("s_waitcnt lgkmcnt(0)")
    a("s_load_dword %s, s[26:27], 0", sTAG)
    a("s_cbranch_scc1 L_cons2")
    a("global_load_dwordx4 v[16:19], v13, s[4:5]")
    a("global_load_dwordx4 v[20:23], v13, s[4:5] offset:16")
    a("global_load_dword v24, v13, s[4:5] offset:32")
    a("L_cons2:")
    if o.cpf:
        Lc = a.lab("LCP")
        a("s_cmp_lg_u32 %s, 8\ns_cbranch_scc1 %s", sWV, Lc)
        a("s_lshl_b32 %s, %s, 10\ns_cmp_ge_u32 %s, L_code_end-%s\ns_cbranch_scc1 %s", sT0, sI, sT0, NAME, Lc)
        a("s_getpc_b64 s[88:89]")
        a("L_pc:")
        a("s_sub_u32 s88, s88, L_pc-%s\ns_subb_u32 s89, s89, 0", NAME)
        a("v_lshlrev_b32 v4, 4, v0\nv_add_u32 v4, %s, v4", sT0)
        a("global_load_dwordx4 v[76:79], v4, s[88:89]")
        a("%s:" % Lc)
    a("s_branch L_cons3")
    a("L_loader:")

    sOFF, sCNT, sISS, sKV, sRQ = "s90", "s91", "s92", "s93", "s98"
    sO2, sMG = "s99", "s100"
    def prog(depth):
        a("s_add_u32 %s, %s, 4\nv_max_i32 v4, %s, v4", sISS, sISS, sISS)
        a("s_waitcnt vmcnt(%d)", depth - 4)
        a("ds_write_b32 v3, v4 offset:%d", F_PROG)
    def loop_end(L):
        a("s_sub_u32 %s, %s, 1\ns_cmp_lg_u32 %s, 0\ns_cbranch_scc1 %s", sCNT, sCNT, sCNT, L)
    def kv_group(r, voff, base, pitch, wait=True, depth=None):
        a("s_mul_i32 %s, %s, %d\ns_add_u32 m0, %s, %d", sT0, sRQ, 4 * pitch, sT0, base)
        a("s_lshl_b32 %s, %s, 12\ns_add_u32 %s, %s, %s", sT1, sRQ, sT1, sT1, sKV)
        for k in range(4):
            a("buffer_load_dwordx4 %s, %s, %s offen %s lds", voff, srd(r), sT1, o.pol)
            if k < 3: a("s_add_u32 m0, m0, %d\ns_add_u32 %s, %s, s101", pitch, sT1, sT1)
        a("s_add_u32 %s, %s, 1\ns_and_b32 %s, %s, 7", sRQ, sRQ, sRQ, sRQ)
        if wait: prog(depth or D)
    def kv_loop(r, voff, base, pitch, depth=None):
        L = a.lab("LD")
        a("%s:" % L)
        kv_group(r, voff, base, pitch, True, depth)
        loop_end(L)
    def pair_group(ra, rb, voff, step, depth):
        for k in range(4):
            so = sOFF if k % 2 == 0 else sO2
            a("buffer_load_dwordx4 %s, %s, %s offen %s lds", voff, srd(ra if k % 2 == 0 else rb), so, o.pol)
            a("s_add_u32 m0, m0, s101\ns_add_u32 %s, %s, %d", so, so, step)
        prog(depth)
    def roles():
        a("s_mul_i32 %s, %s, 43\ns_lshr_b32 %s, %s, 7\ns_mul_i32 %s, %s, 3\ns_sub_u32 %s, %s, %s", sD3, sIDX, sD3, sD3, sT0, sD3, sM3, sIDX, sT0)
        a("s_mul_i32 %s, %s, 57\ns_lshr_b32 %s, %s, 9", sT0, sIDX, sT0, sT0)
        a("s_mul_i32 %s, %s, 9\ns_sub_u32 %s, %s, %s", sT1, sT0, sCB, sIDX, sT1)
        a("s_lshl1_add_u32 %s, %s, %s\ns_lshl_b32 %s, %s, 8", sTEAM, sX, sT0, sR0, sTEAM)
        a("s_mov_b32 %s, 32\ns_mov_b32 %s, %d", sNS2, sB2, 130)
        Ld = a.lab("LR")
        a("s_cmp_lt_u32 %s, 2\ns_cbranch_scc1 %s", sT0, Ld)
        a("s_mul_i32 %s, %s, 576\ns_lshl3_add_u32 %s, %s, %s", sR0, sX, sTEAM, sT0, sX)
        a("s_cmp_eq_u32 %s, 2\ns_cbranch_scc1 %s", sT0, Ld)
        a("s_add_u32 %s, %s, 256\ns_lshl_b32 %s, %s, 1\ns_mov_b32 %s, 80\ns_mov_b32 %s, 82", sR0, sR0, sCB, sCB, sNS2, sB2)
        a("%s:" % Ld)
    def gu_img(h, smt, sfb):
        a("s_lshl_b32 %s, %s, 1\ns_add_u32 %s, %s, %d", sfb, sD3, sfb, sfb, h)
        a("s_cmp_ge_u32 %s, 9\ns_cselect_b32 %s, 1, 0\ns_cselect_b32 %s, 9, 0\ns_sub_u32 %s, %s, %s", sfb, smt, sT3, sfb, sfb, sT3)
        a("s_mul_i32 %s, %s, 9\ns_add_u32 %s, %s, %s", sT3, sX, sfb, sfb, sT3)

    a("""
    v_lshrrev_b32 v8, 3, v0
    v_lshrrev_b32 v15, 4, v0
    v_lshlrev_b32 v9, 1, v15
    v_and_b32 v10, 7, v0
    v_xor_b32 v10, v10, v9
    v_lshlrev_b32 v10, 4, v10
    v_lshl_add_u32 v16, v8, 13, v10
    """)
    a("s_and_b32 %s, %s, 3\ns_mul_i32 %s, %s, %d", sT0, sIDX, sOFF, sT0, 144 * 8192)
    a("s_lshr_b32 %s, %s, 2\ns_xor_b32 %s, %s, %d\ns_lshl3_add_u32 %s, %s, %s\ns_lshl_b32 %s, %s, 7\ns_add_u32 %s, %s, %s", sT0, sIDX, sT0, sT0, o.wqx, sT0, sX, sT0, sT0, sT0, sOFF, sOFF, sT0)
    a("s_mov_b32 s%d, 0x480000\ns_mov_b32 s%d, 0x00020000", R0 + 2, R0 + 3)
    a("s_movk_i32 s101, 0x400\ns_mov_b32 %s, 0x10000", sT2)
    a("s_mov_b32 m0, %d", RWQ)
    a("s_setprio 3")
    a("s_waitcnt lgkmcnt(0)")
    if o.sdiag: stamp(5)
    a("s_mov_b32 s%d, s10\ns_mov_b32 s%d, s11", R0, R0 + 1)
    fill = ["v_mov_b32 v4, 0", "v_mov_b32 v5, 0", "v_lshlrev_b32 v2, 3, v0", "ds_write_b64 v2, v[4:5]",
            "v_xor_b32 v13, v0, v15", "v_lshlrev_b32 v13, 4, v13",
            "s_mov_b32 s%d, 0x2000000" % (R1 + 2), "s_mov_b32 s%d, 0x00020000" % (R1 + 3),
            "s_lshr_b32 %s, %s, 3" % (sT0, sI), "s_lshl4_add_u32 %s, %s, %s" % (sT0, sT0, sG), "s_lshl_b32 %s, %s, 20" % (sT0, sT0),
            "s_and_b32 %s, %s, 7" % (sT1, sI), "s_lshl_b32 %s, %s, 15" % (sT1, sT1), "s_add_u32 %s, %s, %s" % (sT0, sT0, sT1),
            "s_add_u32 %s, %s, 0xc0000" % (sKV, sT0), "s_and_b32 %s, %s, 3" % (sRQ, sIDX), "s_lshl_b32 %s, %s, 1" % (sRQ, sRQ)]
    for k in range(18):
        a("buffer_load_dwordx4 v16, %s, %s offen %s lds", srd(R0), sOFF, o.pol)
        if k < 17:
            a("s_add_u32 m0, m0, s101\ns_add_u32 %s, %s, %s", sOFF, sOFF, sT2)
            a(fill[k])
    if o.sdiag: stamp(6)
    a("s_mov_b32 s%d, s6\ns_mov_b32 s%d, s7", R1, R1 + 1)
    kv_group(R1, "v13", RK, KP, False)
    if D >= 26: kv_group(R1, "v13", RK, KP, False)
    if o.sdiag: stamp(7)
    a("s_waitcnt lgkmcnt(0)")
    a("s_barrier")
    a("""
    v_mul_u32_u24 v12, 1152, v8
    v_add_u32 v12, v12, v10
    v_mul_u32_u24 v11, 9216, v8
    v_add_u32 v11, v11, v10
    v_xor_b32 v14, v0, v9
    v_lshlrev_b32 v14, 4, v14
    """)
    mk_srd(R2, 8, 0x2000000)
    a("s_mov_b32 %s, %d", sISS, (26 if D >= 26 else 22) - (D - 4))
    roles()
    DV, D2, DL = o.depthv or D, o.depth2, o.depthl or D
    sS2 = "s89"
    def drain_step(k):
        a("s_add_u32 %s, %s, 4\nv_max_i32 v4, %s, v4\ns_waitcnt vmcnt(%d)\nds_write_b32 v3, v4 offset:%d", sISS, sISS, sISS, k, F_PROG)
    def redepth(old, new):
        if new > old: a("s_sub_u32 %s, %s, %d", sISS, sISS, new - old)
        for k in range(old - 8, new - 8, -4): drain_step(k)
    a("s_cmp_lt_u32 %s, 16", sTEAM)
    a("s_cselect_b32 s%d, s12, s20\ns_cselect_b32 s%d, s13, s21\ns_mov_b32 s%d, 0x510000\ns_cselect_b32 s%d, 0x480000, s%d\ns_mov_b32 s%d, 0x00020000",
      R3, R3 + 1, R3 + 2, R3 + 2, R3 + 2, R3 + 3)
    a("s_mul_i32 %s, %s, 1152\ns_lshl_b32 %s, %s, 7\ns_add_u32 %s, %s, %s", sS2, sR0, sT1, sCB, sS2, sS2, sT1)
    for h, r, so in ((0, R0, sOFF), (1, R4, sO2)):
        gu_img(h, sT0, sT1)
        a("s_cmp_eq_u32 %s, 1\ns_cselect_b32 s%d, s18, s16\ns_cselect_b32 s%d, s19, s17\ns_mov_b32 s%d, 0x510000\ns_mov_b32 s%d, 0x00020000", sT0, r, r + 1, r + 2, r + 3)
        a("s_mul_i32 %s, %s, %d\ns_lshl_b32 %s, %s, 7\ns_add_u32 %s, %s, %s", so, sM3, 192 * 9216, sT1, sT1, so, so, sT1)
    if D < 26:
        a("s_waitcnt vmcnt(%d)", D - 4)
        kv_group(R1, "v13", RK, KP)
    a("s_mov_b32 %s, 6", sCNT)
    a("s_cmp_ge_u32 %s, 27\ns_cbranch_scc1 L_ld_kv", sIDX)
    M = o.mix
    a("s_mov_b32 %s, %d\ns_mov_b32 %s, %d", sMG, RA, sCNT, 6 // M)
    a("L_ld_gu:")
    a("s_mov_b32 m0, %s\ns_add_u32 %s, %s, %d", sMG, sMG, sMG, 8192 * M)
    a("s_mov_b32 %s, %d", sT2, 2 * M)
    a("L_ld_gi:")
    pair_group(R0, R4, "v11", 8 * 9216, D)
    a("s_sub_u32 %s, %s, 1\ns_cmp_lg_u32 %s, 0\ns_cbranch_scc1 L_ld_gi", sT2, sT2, sT2)
    kv_group(R1, "v13", RK, KP)
    loop_end("L_ld_gu")
    if M == 1: a("s_branch L_ld_v")
    else: a("s_mov_b32 %s, %d", sCNT, 6 - 6 // M)
    a("L_ld_kv:")
    kv_loop(R1, "v13", RK, KP)
    a("L_ld_v:")
    stamp(1)
    redepth(D, DV)
    a("s_mov_b32 %s, 7", sCNT)
    kv_loop(R2, "v14", RV, VP, DV)
    a("ds_read_b32 v5, v3 offset:%d", F_C1)
    kv_group(R2, "v14", RV, VP, True, DV)
    stamp(2)
    if not o.ldonly:
        a("s_waitcnt lgkmcnt(0)\nv_readfirstlane_b32 %s, v5", sSEEN)
        lds_wait_ge(F_C1, "4", cache=sSEEN)
    a("s_mov_b32 %s, %s", sOFF, sS2)
    a("s_cmp_eq_u32 %s, 80\ns_cbranch_scc1 L_ld_lt", sNS2)
    redepth(DV, D2)
    a("s_mov_b32 m0, %d\ns_add_u32 %s, %s, %d\ns_mov_b32 %s, 8", RWQ, sO2, sOFF, 8 * 1152, sCNT)
    a("L_ld_s2h:")
    pair_group(R3, R3, "v12", 16 * 1152, D2)
    loop_end("L_ld_s2h")
    stamp(3)
    a("s_branch L_ld_drain2")
    a("L_ld_lt:")
    if o.ltwait and not o.ldonly:
        redepth(DV, 4)
        lds_wait_ge({1: F_QRDY, 2: F_A1, 3: F_A2}[o.ltwait], "1")
        redepth(4, DL)
    else:
        redepth(DV, DL)
    a("s_add_u32 %s, %s, 128\ns_cmp_eq_u32 %s, 8\ns_cselect_b32 %s, 0x70000000, %s", sO2, sOFF, sCB, sO2, sO2)
    a("s_mov_b32 m0, %d\ns_mov_b32 %s, 20", RA, sCNT)
    a("L_ld_s2l:")
    pair_group(R3, R3, "v12", 8 * 1152, DL)
    loop_end("L_ld_s2l")
    stamp(3)
    assert DL >= D2
    for k in range(DL - 8, -1, -4):
        if k == D2 - 8: a("L_ld_drain2:")
        drain_step(k)
    stamp(4)
    stamps_out()
    if o.hold:
        a("s_cmp_lg_u32 s2, %d\ns_cbranch_scc1 L_end", o.holdwg)
        a("s_memrealtime s[70:71]\ns_waitcnt lgkmcnt(0)\ns_sub_u32 %s, s70, s86\ns_mul_i32 %s, %s, %d\ns_add_u32 %s, %s, %d", sT1, sT1, sT1, o.holdmul, sT1, sT1, o.hold)
        a("L_hold:\ns_memrealtime s[70:71]\ns_waitcnt lgkmcnt(0)\ns_sub_u32 %s, s70, s86\ns_cmp_lt_u32 %s, %s\ns_cbranch_scc1 L_hold", sT0, sT0, sT1)
    a("s_endpgm")

    a("L_cons3:")
    a("s_barrier")
    if o.ldonly: a("s_endpgm")
    mk_srd(RW, 26, W_END)
    a("s_add_u32 s%d, s26, 0x%x\ns_addc_u32 s%d, s27, 0\ns_mov_b32 s%d, 0x%x\ns_mov_b32 s%d, 0x00020000", RB, BOFF, RB + 1, RB + 2, W_AEND, RB + 3)
    a("s_mov_b32 %s, 0", sVER)
    a("s_mov_b32 %s, -1000", sSEEN)
    a("v_lshrrev_b32 v8, 4, v0\nv_and_b32 v9, 15, v0\nv_mov_b32 v14, 0xffffff00")
    roles()
    a("s_cmp_ge_u32 %s, 5\ns_cbranch_scc1 L_att", sWV)

    sW, sIT, sTH = "s90", "s91", "s92"
    a("s_sub_u32 %s, %s, 1", sW, sWV)
    a("v_lshrrev_b32 v11, 3, v0\nv_and_b32 v11, 3, v11\nv_xor_b32 v11, %s, v11", sW)
    a("v_lshlrev_b32 v11, 5, v11\nv_and_b32 v12, 3, v0\nv_lshl_add_u32 v11, v12, 3, v11")
    a("v_lshrrev_b32 v10, 2, v0\nv_lshl_add_u32 v10, v10, 7, v11")
    a("v_lshrrev_b32 v15, 5, v0\nv_lshl_add_u32 v15, v15, 10, v10")
    a("v_add_u32 v15, %d, v15", RA)
    a("v_and_b32 v12, 1, v0")
    a("s_mov_b32 %s, 0xffff0000", sT0)
    a("s_waitcnt vmcnt(0)")
    stamp(1)
    X = 28
    for k in range(9):
        a("v_lshlrev_b32 v%d, 16, v%d\nv_and_b32 v%d, %s, v%d", X + 2 * k, 16 + k, X + 2 * k + 1, sT0, 16 + k)
    def half_allreduce_add(v, t):
        for dp in ("quad_perm:[1,0,3,2]", "quad_perm:[2,3,0,1]", "row_ror:4", "row_ror:8"):
            a("s_nop 1\nv_add_f32_dpp %s, %s, %s %s row_mask:0xf bank_mask:0xf", v, v, v, dp)
        a("v_mov_b32 %s, %s\ns_nop 1\nv_permlane16_swap_b32 %s, %s\nv_add_f32 %s, %s, %s", t, v, v, t, v, v, t)
    a("v_add_f32 v4, v%d, v%d\nv_add_f32 v5, v%d, v%d", X, X + 1, X + 2, X + 3)
    for k in range(4, 18, 2):
        a("v_add_f32 v4, v4, v%d\nv_add_f32 v5, v5, v%d", X + k, X + k + 1)
    a("v_add_f32 v4, v4, v5")
    half_allreduce_add("v4", "v5")
    a("v_mul_f32 v4, 0x3ae38e39, v4\nv_mov_b32 v5, 0\nv_mov_b32 v25, 0")
    for k in range(0, 18, 2):
        a("v_sub_f32 v26, v%d, v4\nv_sub_f32 v27, v%d, v4\nv_fmac_f32 v5, v26, v26\nv_fmac_f32 v25, v27, v27", X + k, X + k + 1)
    a("v_add_f32 v5, v5, v25")
    half_allreduce_add("v5", "v25")
    a("v_mul_f32 v5, 0x3ae38e39, v5")
    a("v_cvt_pk_bf16_f32 v4, v4, v5")
    a("v_and_b32 v5, %s, v4\nv_lshlrev_b32 v4, 16, v4", sT0)
    a("v_add_f32 v5, 0x3727c5ac, v5")
    a("v_cvt_pk_bf16_f32 v5, v5, v5\nv_lshlrev_b32 v5, 16, v5")
    a("v_sqrt_f32 v5, v5\ns_nop 0")
    a("v_cvt_pk_bf16_f32 v5, v5, v5\nv_lshlrev_b32 v5, 16, v5")
    a("v_rcp_f32 v5, v5")
    for k in range(9):
        a("v_sub_f32 v26, v%d, v4\nv_sub_f32 v27, v%d, v4", X + 2 * k, X + 2 * k + 1)
        a("v_cvt_pk_bf16_f32 v26, v26, v27")
        a("v_and_b32 v27, %s, v26\nv_lshlrev_b32 v26, 16, v26", sT0)
        a("v_mul_f32 v26, v26, v5\nv_mul_f32 v27, v27, v5")
        a("v_cvt_pk_bf16_f32 v%d, v26, v27", 16 + k)
    for k in range(0, 8, 2):
        a("ds_write2_b32 v13, v%d, v%d offset0:%d offset1:%d", 16 + k, 17 + k, XN // 4 + k, XN // 4 + k + 1)
    a("ds_write_b32 v13, v24 offset:%d", XN + 32)
    a("v_mul_u32_u24 v11, %d, v12\nv_lshl_add_u32 v11, v8, 3, v11\nv_add_u32 v11, %d, v11", XN_P, XN)
    a("s_and_b32 %s, %s, 3\ns_mul_i32 %s, %s, 288\nv_add_u32 v13, %s, v11", sT0, sIDX, sT0, sT0, sT0)
    for s in range(4):
        a("ds_read2_b64 v[%d:%d], v13 offset0:%d offset1:%d", 40 + 4 * s, 43 + 4 * s, 8 * s, 8 * s + 4)
    a("ds_read_b64 v[56:57], v13 offset:256")
    for r in range(8): a("v_mov_b32 v%d, 0", 60 + r)
    a("v_add_u32 v13, %d, v10", RWQ)
    stamp(2)
    get_tag()
    a("v_lshlrev_b32 v1, 6, v9\nv_lshl_add_u32 v1, v8, 4, v1")
    a("s_lshr_b32 %s, %s, 2\ns_xor_b32 %s, %s, %d", sT0, sIDX, sT0, sT0, o.wqx)
    a("s_lshr_b32 %s, %s, 2\ns_lshl1_add_u32 %s, %s, %s\ns_and_b32 %s, %s, 3\ns_lshl2_add_u32 %s, %s, %s", sT1, sT0, sT1, sX, sT1, sT2, sIDX, sT1, sT1, sT2)
    a("s_and_b32 %s, %s, 3\ns_lshl2_add_u32 %s, %s, %s\ns_lshl2_add_u32 %s, %s, %s", sT0, sT0, sT1, sT1, sT0, sT1, sT1, sW)
    a("s_lshl_b32 %s, %s, 7\ns_add_u32 s93, %s, %d", sT1, sT1, sT1, W_Q)
    a("v_cmp_gt_u32 vcc, 2, v9\ns_mov_b64 %s, vcc", sEX)
    lds_wait_ge(F_PROG, "18", cache=sSEEN)
    for q in range(9):
        a("ds_read_b64_tr_b16 v[%d:%d], v13 offset:%d", 16 + 2 * q, 17 + 2 * q, q * 2048)
    for s in range(4):
        a("s_waitcnt lgkmcnt(%d)", 7 - 2 * s)
        mfma(60, 16 + 4 * s, 40 + 4 * s)
    a("s_waitcnt lgkmcnt(0)")
    a("v_mfma_f32_16x16x16_bf16 v[64:67], v[32:33], v[56:57], v[64:67]")
    flag_add(F_C1)
    a("s_nop 4")
    for r in range(4): a("v_add_f32 v%d, v%d, v%d", 72 + r, 60 + r, 64 + r)
    tag_merge(72)
    a("s_mov_b64 exec, %s", sEX)
    a("buffer_store_dwordx4 v[72:75], v1, %s, s93 offen", srd(RW))
    a("s_mov_b64 exec, -1")
    a("s_mov_b32 s99, s93")
    stamp(3)
    def q_republish():
        get_ver()
        two_way(lambda: None, lambda: a("s_mov_b64 exec, %s\nbuffer_store_dwordx4 v[72:75], v1, %s, s99 offen sc1\ns_mov_b64 exec, -1", sEX, srd(RB)))
    Lh = a.lab("LH")
    a("s_cmp_lt_u32 %s, 27\ns_cbranch_scc1 %s", sIDX, Lh)
    q_republish()
    a("s_branch L_w_s2")
    a("%s:" % Lh)
    a("s_mul_i32 %s, %s, 384\nv_add_u32 v13, %s, v11", sT0, sM3, sT0)
    for s in range(6):
        a("ds_read2_b64 v[%d:%d], v13 offset0:%d offset1:%d", 40 + 4 * s, 43 + 4 * s, 8 * s, 8 * s + 4)
    for r in range(8): a("v_mov_b32 v%d, 0", 64 + r)
    for h, sd in ((0, "s93"), (1, "s98")):
        gu_img(h, sT0, sT1)
        a("s_mul_i32 %s, %s, 3\ns_add_u32 %s, %s, %s\ns_mul_i32 %s, %s, 36864", sT0, sT0, sT0, sT0, sM3, sT0, sT0)
        a("s_lshl2_add_u32 %s, %s, %s\ns_lshl_b32 %s, %s, 7\ns_add_u32 %s, %s, %s\ns_add_u32 %s, %s, %d", sT1, sT1, sW, sT1, sT1, sT0, sT0, sT1, sd, sT0, W_G)
    for s in range(6):
        if s == 3: q_republish()
        lds_wait_ge(F_PROG, str(P_G + 8 * s + 8 + 4 * (s // o.mix)), cache=sSEEN)
        for h in range(2):
            for q in range(2):
                a("ds_read_b64_tr_b16 v[%d:%d], v15 offset:%d", 16 + 4 * h + 2 * q, 17 + 4 * h + 2 * q, s * 8192 + q * 4096 + h * 1024)
        a("s_waitcnt lgkmcnt(2)")
        mfma(64, 16, 40 + 4 * s)
        a("s_waitcnt lgkmcnt(0)")
        mfma(68, 20, 40 + 4 * s)
    stamp(4)
    a("s_nop 5")
    tag_merge(64)
    tag_merge(68)
    a("s_mov_b64 exec, %s", sEX)
    pub([("v[64:67]", "s93", 0), ("v[68:71]", "s98", 0)])
    a("s_mov_b64 exec, -1")
    a("L_w_s2:")
    WF, VF, AC = 16, 48, 80
    a("v_mul_u32_u24 v11, %d, v12\nv_lshl_add_u32 v11, v8, 4, v11", VEC2_P)
    for r in range(8): a("v_mov_b32 v%d, 0", AC + r)
    a("v_add_u32 v10, %d, v10", RWQ)
    a("s_lshl2_add_u32 %s, %s, %s\ns_lshl_b32 %s, %s, 12\ns_lshl_b32 %s, %s, 7\ns_add_u32 %s, %s, %s\ns_add_u32 s93, %s, %d", sT0, sCB, sW, sT0, sT0, sT1, sTEAM, sT0, sT0, sT1, sT0, W_F)
    a("s_cmp_ge_u32 %s, 16\ns_cbranch_scc1 L_w_dn", sTEAM)
    for s_ in range(0, 8, 2):
        lds_wait_ge(F_PROG, str(130 + 4 * s_ + 8), cache=sSEEN)
        for q in range(4):
            a("ds_read_b64_tr_b16 v[%d:%d], v10 offset:%d", WF + 4 * s_ + 2 * q, WF + 4 * s_ + 2 * q + 1, s_ * 4096 + q * 2048)
    stamp(5)
    if o.spec:
        a("s_mov_b32 %s, 0", sTMO)
        a("L_wo_spin:")
        a("s_waitcnt lgkmcnt(6)")
        a("ds_read_b32 v2, v3 offset:%d", F_VRDY)
        for s_ in range(8):
            a("ds_read_b128 v[%d:%d], v11 offset:%d", VF + 4 * s_, VF + 4 * s_ + 3, VEC2 + 64 * s_)
        a("s_add_u32 %s, %s, 1\ns_cmp_gt_u32 %s, 0x80000\ns_cbranch_scc1 L_wo_go", sTMO, sTMO, sTMO)
        a("s_waitcnt lgkmcnt(8)")
        a("v_readfirstlane_b32 %s, v2", sT3)
        a("s_cmp_lt_i32 %s, 4\ns_cbranch_scc1 L_wo_spin", sT3)
    else:
        lds_wait_ge(F_VRDY, "4")
        for s_ in range(8):
            a("ds_read_b128 v[%d:%d], v11 offset:%d", VF + 4 * s_, VF + 4 * s_ + 3, VEC2 + 64 * s_)
    a("L_wo_go:")
    for s_ in range(8):
        a("s_waitcnt lgkmcnt(%d)", 7 - s_)
        mfma(AC, WF + 4 * s_, VF + 4 * s_)
    stamp(6)
    a("L_s2_pub:")
    a("s_mov_b64 exec, %s", sEX)
    a("s_nop 6")
    tag_merge(AC, rnd=False)
    a("buffer_store_dwordx4 v[%d:%d], v1, %s, s93 offen sc1", AC, AC + 3, srd(RW))
    a("L_w_end:")
    stamp(7)
    stamps_out()
    a("s_endpgm")
    flush_ool()

    a("L_w_dn:")
    HA, HA2, HW, HW2, HC = "v60", "v61", "v62", "v63", "v64"
    a("v_lshrrev_b32 v4, 5, v0\nv_mul_u32_u24 %s, 110592, v4\nv_and_b32 v4, 31, v0\nv_lshl_add_u32 %s, v4, 4, %s", HA, HA, HA)
    a("s_lshl_b32 %s, %s, 3\ns_lshl_b32 %s, %s, 9\ns_add_u32 %s, %s, %s\ns_add_u32 s48, %s, %d", sT0, sR0, sT1, sW, sT0, sT0, sT1, sT0, W_G)
    a("s_add_u32 s49, s48, 36864\ns_add_u32 s50, s48, 73728")
    a("v_bfe_u32 v4, v0, 2, 1\nv_mul_u32_u24 %s, %d, v4\nv_bfe_u32 v4, v0, 4, 1\nv_lshl_add_u32 %s, v4, 6, %s\nv_and_b32 v4, 3, v0\nv_lshl_add_u32 %s, v4, 4, %s\nv_bfe_u32 v4, v0, 3, 1\nv_lshl_add_u32 %s, v4, 3, %s", HW, VEC2_P, HW, HW, HW, HW, HW, HW)
    a("s_lshl_b32 %s, %s, 7\nv_add_u32 %s, %s, %s", sT2, sW, HW, sT2, HW)
    c1 = -2.0 * math.sqrt(2.0 / math.pi) * math.log2(math.e)
    a("s_mov_b32 s51, 0x%08x\nv_mov_b32 %s, 0x%08x\ns_mov_b32 s52, 0xffff0000", f2u(c1 * 0.044715), HC, f2u(c1))
    a("s_cmp_eq_u32 %s, 0\ns_cselect_b32 %s, %s, 32", sW, sIT, sNS2)
    a("v_add_u32 %s, 2048, %s\nv_add_u32 %s, 512, %s", HA2, HA, HW2, HW)
    a("s_mov_b32 %s, %d\ns_cmp_eq_u32 %s, 80\ns_cselect_b32 %s, %d, %s", sTH, o.hpoll, sNS2, sTH, o.hpolll or o.hpoll, sTH)
    lds_wait_ge(F_PROG, sTH, cache=sSEEN)
    a("s_mov_b32 %s, 0", sTMO)
    if o.nopoll & 2: a("s_branch L_h_ok")
    a("L_h_poll:")
    for r in range(2):
        if r == 1: a("s_cmp_eq_u32 %s, 32\ns_cbranch_scc1 L_h_w", sIT)
        fetch([(16 + 12 * r + 4 * sl, HA if r < 1 else HA2, "s%d" % (48 + sl), 0) for sl in range(3)])
    a("L_h_w:")
    a("s_add_u32 %s, %s, 1\ns_cmp_gt_u32 %s, 0x8000\ns_cbranch_scc1 L_h_ok", sTMO, sTMO, sTMO)
    a("s_waitcnt vmcnt(0)")
    for k in range(6):
        if k == 3: a("s_cmp_eq_u32 %s, 32\ns_cbranch_scc1 L_h_c", sIT)
        tag_bad("v4", 16 + 4 * k, k == 0)
    a("L_h_c:")
    a("v_and_b32 v4, 0xff, v4\nv_cmp_ne_u32 vcc, 0, v4\ns_and_b64 exec, exec, vcc\ns_cbranch_vccnz L_h_poll")
    a("L_h_ok:")
    a("s_mov_b64 exec, -1")
    a("s_waitcnt vmcnt(0)")
    for r in range(2):
        if r == 1: a("s_cmp_eq_u32 %s, 32\ns_cbranch_scc1 L_h_done", sIT)
        B = 16 + 12 * r
        for k in range(4): a("v_add_f32 v%d, v%d, v%d", B + k, B + k, B + 4 + k)
        for k in range(4): a("v_add_f32 v%d, v%d, v%d", B + k, B + k, B + 8 + k)
        a("v_cvt_pk_bf16_f32 v%d, v%d, v%d\nv_cvt_pk_bf16_f32 v%d, v%d, v%d", B, B, B + 1, B + 1, B + 2, B + 3)
        a("v_mov_b32 v%d, v%d\nv_mov_b32 v%d, v%d\ns_nop 1", B + 2, B, B + 3, B + 1)
        a("v_permlane32_swap_b32 v%d, v%d\nv_permlane32_swap_b32 v%d, v%d", B, B + 2, B + 1, B + 3)
        G, U, T = B + 4, B + 8, 4
        a("v_lshlrev_b32 v%d, 16, v%d\nv_and_b32 v%d, s52, v%d\nv_lshlrev_b32 v%d, 16, v%d\nv_and_b32 v%d, s52, v%d", G, B, G + 1, B, G + 2, B + 1, G + 3, B + 1)
        a("v_lshlrev_b32 v%d, 16, v%d\nv_and_b32 v%d, s52, v%d\nv_lshlrev_b32 v%d, 16, v%d\nv_and_b32 v%d, s52, v%d", U, B + 2, U + 1, B + 2, U + 2, B + 3, U + 3, B + 3)
        for k in range(4): a("v_mul_f32 v%d, v%d, v%d", T + k, G + k, G + k)
        for k in range(4): a("v_fma_f32 v%d, v%d, s51, %s", T + k, T + k, HC)
        for k in range(4): a("v_mul_f32 v%d, v%d, v%d", T + k, T + k, G + k)
        for k in range(4): a("v_exp_f32 v%d, v%d", T + k, T + k)
        a("s_nop 0")
        for k in range(4): a("v_add_f32 v%d, 1.0, v%d", T + k, T + k)
        for k in range(4): a("v_rcp_f32 v%d, v%d", T + k, T + k)
        a("s_nop 0")
        for k in range(4): a("v_mul_f32 v%d, v%d, v%d", T + k, T + k, G + k)
        a("v_cvt_pk_bf16_f32 v%d, v%d, v%d\nv_cvt_pk_bf16_f32 v%d, v%d, v%d", B, T, T + 1, B + 1, T + 2, T + 3)
        a("v_lshlrev_b32 v%d, 16, v%d\nv_and_b32 v%d, s52, v%d\nv_lshlrev_b32 v%d, 16, v%d\nv_and_b32 v%d, s52, v%d", T, B, T + 1, B, T + 2, B + 1, T + 3, B + 1)
        for k in range(4): a("v_mul_f32 v%d, v%d, v%d", T + k, T + k, U + k)
        a("v_cvt_pk_bf16_f32 v%d, v%d, v%d\nv_cvt_pk_bf16_f32 v%d, v%d, v%d", B, T, T + 1, B + 1, T + 2, T + 3)
        a("ds_write_b64 %s, v[%d:%d] offset:%d", HW if r < 1 else HW2, B, B + 1, VEC2)
    a("L_h_done:")
    flag_add(F_VRDY)
    stamp(5)
    lds_wait_ge(F_VRDY, "4")
    stamp(6)
    a("s_add_u32 %s, %s, 8", sTH, sB2)
    a("s_cmp_eq_u32 %s, 80\ns_cbranch_scc1 L_lt", sNS2)
    def dn_reads(R, it):
        lds_wait_ge(F_PROG, str(130 + 8 * it + 8), cache=sSEEN, hot=(0 < it < 3))
        a("ds_read_b64_tr_b16 v[%d:%d], v10 offset:%d", R, R + 1, it * 8192)
        a("ds_read_b64_tr_b16 v[%d:%d], v10 offset:%d", R + 2, R + 3, it * 8192 + 2048)
        a("ds_read_b128 v[%d:%d], v11 offset:%d", R + 8, R + 11, VEC2 + 128 * it)
        a("ds_read_b64_tr_b16 v[%d:%d], v10 offset:%d", R + 4, R + 5, it * 8192 + 4096)
        a("ds_read_b64_tr_b16 v[%d:%d], v10 offset:%d", R + 6, R + 7, it * 8192 + 6144)
        a("ds_read_b128 v[%d:%d], v11 offset:%d", R + 12, R + 15, VEC2 + 128 * it + 64)
    dn_reads(16, 0)
    for it in range(4):
        R = 16 + 16 * (it & 1)
        if it < 3: dn_reads(16 + 16 * ((it + 1) & 1), it + 1)
        n = 6 if it < 3 else 0
        a("s_waitcnt lgkmcnt(%d)", n + 3)
        mfma(AC, R, R + 8)
        a("s_waitcnt lgkmcnt(%d)", n)
        mfma(AC, R + 4, R + 12)
    a("s_branch L_s2_pub")
    def lt_reads(st):
        R = 16 + 12 * (st % 4)
        va, off = ("v15", st) if st < 8 else ("v13", st - 8)
        lds_wait_ge(F_PROG, str(82 + 8 * st + 8), cache=sSEEN, hot=(0 < st < 9))
        a("ds_read_b128 v[%d:%d], v11 offset:%d", R + 8, R + 11, VEC2 + 64 * st)
        a("ds_read_b64_tr_b16 v[%d:%d], %s offset:%d", R, R + 1, va, off * 8192)
        a("ds_read_b64_tr_b16 v[%d:%d], %s offset:%d", R + 2, R + 3, va, off * 8192 + 4096)
        a("ds_read_b64_tr_b16 v[%d:%d], %s offset:%d", R + 4, R + 5, va, off * 8192 + 1024)
        a("ds_read_b64_tr_b16 v[%d:%d], %s offset:%d", R + 6, R + 7, va, off * 8192 + 5120)
    def lt_mm(st, n):
        R = 16 + 12 * (st % 4)
        a("s_waitcnt lgkmcnt(%d)", n + 2)
        mfma(AC, R, R + 8)
        a("s_waitcnt lgkmcnt(%d)", n)
        mfma(AC + 4, R + 4, R + 8)
    a("L_lt:")
    a("v_add_u32 v13, 0x10000, v15")
    AH = 2
    for st in range(10 + AH):
        if st < 10: lt_reads(st)
        if st >= AH: lt_mm(st - AH, 5 * (min(st, 9) - (st - AH)))
    a("s_cmp_eq_u32 %s, 8\ns_cbranch_scc1 L_s2_pub", sCB)
    a("s_mov_b64 exec, %s\ns_add_u32 %s, s93, 16384\ns_nop 4", sEX, sT0)
    tag_merge(AC + 4, rnd=False)
    a("buffer_store_dwordx4 v[%d:%d], v1, %s, %s offen sc1", AC + 4, AC + 7, srd(RW), sT0)
    a("s_branch L_s2_pub")
    flush_ool()

    sA = "s90"
    a("L_att:")
    a("s_sub_u32 %s, %s, 5", sA, sWV)
    a("v_lshrrev_b32 v10, 2, v9\nv_mul_u32_u24 v10, %d, v10", KP)
    a("v_and_b32 v11, 3, v0\nv_lshl_add_u32 v10, v11, 8, v10\nv_xor_b32 v11, v11, v8\nv_lshl_add_u32 v10, v11, 4, v10")
    a("s_mul_i32 %s, %s, %d\ns_add_u32 %s, %s, %d\nv_add_u32 v10, %s, v10", sT0, sA, 8 * KP, sT0, sT0, RK, sT0)
    VA = 72
    a("v_mul_u32_u24 v12, %d, v8", VP)
    a("v_lshrrev_b32 v11, 2, v9\nv_lshl_add_u32 v12, v11, 8, v12\nv_lshlrev_b32 v11, 5, v11")
    a("s_lshl_b32 %s, %s, 6\nv_xor_b32 v11, %s, v11\nv_add_u32 v12, v12, v11", sT0, sA, sT0)
    a("v_and_b32 v11, 3, v0\nv_lshl_add_u32 v12, v11, 3, v12")
    a("v_add_u32 v%d, %d, v12", VA, RV)
    a("v_xor_b32 v%d, 32, v%d", VA + 1, VA)
    KF, QF, SC, PF, VF, OA = 16, 48, 64, 16, 32, 40
    a("v_lshlrev_b32 v1, 6, v9\nv_lshl_add_u32 v1, v8, 4, v1")
    a("v_cmp_gt_u32 vcc, 2, v9\ns_mov_b64 %s, vcc", sEX)
    if o.touch:
        a("s_cmp_lg_u32 %s, 2\ns_cbranch_scc1 L_a_not", sA)
        a("v_lshlrev_b32 v11, 7, v0")
        a("s_lshl4_add_u32 %s, %s, %s\ns_lshl_b32 %s, %s, 9\ns_add_u32 %s, %s, %d\ns_lshl_b32 %s, %s, 10\ns_add_u32 %s, %s, %d", sT0, sG, sI, sT1, sT0, sT1, sT1, W_Q, sT0, sT0, sT0, sT0, W_O)
        a("s_mov_b64 exec, 0xf")
        if o.touch & 1: a("buffer_load_dword v76, v11, %s, %s offen nt", srd(RW), sT1)
        a("s_mov_b64 exec, 0xff")
        if o.touch & 4: a("buffer_load_dword v77, v11, %s, %s offen nt", srd(RW), sT0)
        a("s_mov_b64 exec, 0xf")
        if o.touch & 2:
            a("s_cmp_ge_u32 %s, 27\ns_cbranch_scc1 L_a_not", sIDX)
            for h in range(2):
                gu_img(h, sT0, sT1)
                a("s_mul_i32 %s, %s, 3\ns_add_u32 %s, %s, %s\ns_mul_i32 %s, %s, 36864", sT0, sT0, sT0, sT0, sM3, sT0, sT0)
                a("s_lshl_b32 %s, %s, 9\ns_add_u32 %s, %s, %s\ns_add_u32 %s, %s, %d", sT1, sT1, sT0, sT0, sT1, sT0, sT0, W_G)
                a("buffer_load_dword v%d, v11, %s, %s offen nt", 78 + h, srd(RW), sT0)
        a("L_a_not:")
        a("s_mov_b64 exec, -1")
    get_tag()
    a("s_cmp_lg_u32 %s, 1\ns_cbranch_scc1 L_a_nov", sA)
    if o.nover: a("v_mov_b32 v4, 1\nds_write_b32 v3, v4 offset:%d\ns_branch L_a_nov", F_VER)
    a("s_getreg_b32 %s, hwreg(HW_REG_XCC_ID, 0, 4)", sT2)
    a("s_lshl_b32 %s, %s, 8\ns_add_u32 %s, %s, %d\ns_lshl3_add_u32 %s, %s, %s", sT0, sX, sT0, sT0, W_V, sT1, sIDX, sT0)
    a("v_mov_b32 v4, %s\nv_mov_b32 v5, %s\nv_lshlrev_b32 v11, 3, v0", sTAG, sT2)
    a("s_mov_b64 exec, 1\nbuffer_store_dwordx2 v[4:5], v3, %s, %s offen sc1\ns_mov_b64 exec, -1", srd(RW), sT1)
    lds_wait_ge(F_PROG, str(o.vpoll), cache=sSEEN)
    a("s_mov_b32 exec_hi, 0\ns_mov_b32 %s, 0", sTMO)
    a("L_a_vpoll:")
    a("buffer_load_dwordx2 v[6:7], v11, %s, %s offen sc1", srd(RW), sT0)
    a("s_add_u32 %s, %s, 1\ns_cmp_gt_u32 %s, 0x8000\ns_cbranch_scc1 L_a_vok", sTMO, sTMO, sTMO)
    a("s_waitcnt vmcnt(0)")
    a("v_cmp_ne_u32 vcc, %s, v6\ns_cbranch_vccnz L_a_vpoll", sTAG)
    a("L_a_vok:")
    a("s_waitcnt vmcnt(0)")
    a("v_cmp_ne_u32 vcc, %s, v7\ns_mov_b64 exec, -1", sT2)
    a("s_cmp_eq_u64 vcc, 0\ns_cselect_b32 %s, %d, 2\nv_mov_b32 v4, %s", sT0, 1 if o.local else 2, sT0)
    a("ds_write_b32 v3, v4 offset:%d", F_VER)
    a("L_a_nov:")
    a("s_cmp_lg_u32 %s, 0\ns_cbranch_scc1 L_a_k", sA)
    lds_wait_ge(F_PROG, str(o.qpoll), cache=sSEEN)
    a("v_lshrrev_b32 v11, 2, v0\nv_lshlrev_b32 v11, 7, v11\nv_and_b32 v12, 3, v0\nv_lshl_add_u32 v11, v12, 4, v11")
    a("s_lshl_b32 %s, %s, 13\ns_lshr_b32 %s, %s, 3\ns_lshl_b32 %s, %s, 6\ns_add_u32 %s, %s, %s\ns_add_u32 %s, %s, %d\ns_add_u32 %s, %s, 4096",
      sT0, sG, sT1, sI, sT1, sT1, sT0, sT0, sT1, sT0, sT0, W_Q, sT1, sT0)
    a("s_mov_b32 %s, 0", sTMO)
    if o.nopoll & 1: a("s_branch L_a_qok")
    a("s_mov_b32 %s, 1\ns_mov_b32 s53, 0", sVER)
    a("L_a_qpoll:")
    fetch([(16 + 4 * r, "v11", sT0 if r < 2 else sT1, (r & 1) * 2048) for r in range(4)])
    a("s_add_u32 s53, s53, 1\ns_cmp_gt_u32 s53, 0x8000\ns_cbranch_scc1 L_a_qok")
    a("s_waitcnt vmcnt(0)")
    for r in range(4): tag_bad("v4", 16 + 4 * r, r == 0)
    a("v_and_b32 v4, 0xff, v4\nv_cmp_ne_u32 vcc, 0, v4\ns_cbranch_vccz L_a_qok")
    a("s_mov_b32 %s, 0", sVER)
    get_ver()
    a("s_branch L_a_qpoll")
    a("L_a_qok:")
    a("s_mov_b32 %s, 0", sVER)
    a("s_waitcnt vmcnt(0)")
    for k in range(4):
        a("v_add_f32 v%d, v%d, v%d\nv_add_f32 v%d, v%d, v%d\nv_add_f32 v%d, v%d, v%d", 16 + k, 16 + k, 20 + k, 24 + k, 24 + k, 28 + k, 16 + k, 16 + k, 24 + k)
    a("v_cvt_pk_bf16_f32 v4, v16, v17\nv_cvt_pk_bf16_f32 v5, v18, v19")
    a("v_lshlrev_b32 v11, 3, v0\nv_mov_b32 v6, 1")
    a("ds_write_b64 v11, v[4:5] offset:%d", QV)
    a("ds_write_b32 v3, v6 offset:%d", F_QRDY)
    a("L_a_k:")
    lds_wait_ge(F_QRDY, "1")
    stamp(1)
    a("v_and_b32 v12, 1, v0\nv_lshlrev_b32 v11, 8, v12\nv_lshl_add_u32 v11, v8, 4, v11")
    for c in range(4):
        a("ds_read_b128 v[%d:%d], v11 offset:%d", QF + 4 * c, QF + 4 * c + 3, QV + c * 64)
    for r in range(8): a("v_mov_b32 v%d, 0", SC + r)
    a("s_sub_u32 %s, %s, 32", sTH, sB2)
    lds_wait_ge(F_PROG, sTH, cache=sSEEN)
    stamp(2)
    for c in range(4):
        for t in range(2):
            a("ds_read_b128 v[%d:%d], v10 offset:%d", KF + 16 * t + 4 * c, KF + 16 * t + 4 * c + 3, t * 4 * KP + c * 64)
    for c in range(4):
        for t in range(2):
            a("s_waitcnt lgkmcnt(%d)", 7 - 2 * c - t)
            mfma(SC + 4 * t, KF + 16 * t + 4 * c, QF + 4 * c)
    a("s_mov_b32 %s, 0xffff0000\ns_mov_b32 %s, 0x3db504f3\ns_mov_b32 %s, 0x3fb8aa3b", sT0, sT1, sT2)
    a("v_lshlrev_b32 v12, 2, v12\ns_lshl_b32 %s, %s, 3\nv_add_u32 v13, %s, v12", sT3, sA, sT3)
    a("s_nop 4")
    for k in range(0, 8, 2):
        a("v_cvt_pk_bf16_f32 v4, v%d, v%d", SC + k, SC + k + 1)
        a("v_and_b32 v5, %s, v4\nv_lshlrev_b32 v4, 16, v4", sT0)
        a("v_mul_f32 v4, %s, v4\nv_mul_f32 v5, %s, v5", sT1, sT1)
        a("v_cvt_pk_bf16_f32 v4, v4, v5")
        a("v_and_b32 v%d, %s, v4\nv_lshlrev_b32 v%d, 16, v4", SC + k + 1, sT0, SC + k)
    a("v_max3_f32 v4, v%d, v%d, v%d\nv_max3_f32 v5, v%d, v%d, v%d\nv_max3_f32 v4, v4, v%d, v%d\nv_max_f32 v4, v4, v5", *[SC + k for k in range(8)])
    def rows_allreduce(op, v, t):
        a("v_mov_b32 %s, %s\ns_nop 1\nv_permlane16_swap_b32 %s, %s\n%s %s, %s, %s", t, v, v, t, op, v, v, t)
        a("v_mov_b32 %s, %s\ns_nop 1\nv_permlane32_swap_b32 %s, %s\n%s %s, %s, %s", t, v, v, t, op, v, v, t)
    rows_allreduce("v_max_f32", "v4", "v5")
    a("ds_write_b32 v13, v4 offset:%d", MX)
    flag_add(F_A1)
    lds_wait_ge(F_A1, "4")
    a("ds_read2_b32 v[4:5], v12 offset0:%d offset1:%d\nds_read2_b32 v[6:7], v12 offset0:%d offset1:%d" % (0, 2, 4, 6) if False else
      "v_add_u32 v11, %d, v12\nds_read2_b32 v[4:5], v11 offset0:0 offset1:2\nds_read2_b32 v[6:7], v11 offset0:4 offset1:6" % MX)
    a("s_waitcnt lgkmcnt(0)")
    a("v_max3_f32 v4, v4, v5, v6\nv_max_f32 v4, v4, v7")
    a("v_mul_f32 v15, %s, v4", sT2)
    for k in range(8): a("v_fma_f32 v%d, v%d, %s, -v15", SC + k, SC + k, sT2)
    for k in range(8): a("v_exp_f32 v%d, v%d", SC + k, SC + k)
    a("s_nop 0")
    a("v_add_f32 v5, v%d, v%d\nv_add_f32 v6, v%d, v%d", SC, SC + 1, SC + 2, SC + 3)
    a("v_add_f32 v5, v5, v%d\nv_add_f32 v6, v6, v%d\nv_add_f32 v5, v5, v%d\nv_add_f32 v6, v6, v%d\nv_add_f32 v5, v5, v6", SC + 4, SC + 5, SC + 6, SC + 7)
    rows_allreduce("v_add_f32", "v5", "v6")
    for k in range(4): a("v_cvt_pk_bf16_f32 v%d, v%d, v%d", 48 + k, SC + 2 * k, SC + 2 * k + 1)
    a("v_lshlrev_b32 v10, 4, v12\nv_lshl_add_u32 v10, v8, 4, v10")
    a("s_lshl_b32 %s, %s, 7\nv_add_u32 v7, %s, v10", sT3, sA, sT3)
    a("ds_write_b32 v13, v5 offset:%d", LS)
    a("ds_write_b128 v7, v[48:51] offset:%d", PB)
    flag_add(F_A2)
    for r in range(8): a("v_mov_b32 v%d, 0", OA + r)
    lds_wait_ge(F_A2, "4")
    a("ds_read2_b32 v[4:5], v11 offset0:8 offset1:10\nds_read2_b32 v[6:7], v11 offset0:12 offset1:14")
    for j in range(4):
        a("s_add_u32 s%d, %s, %d\ns_and_b32 s%d, s%d, 3\ns_lshl_b32 %s, s%d, 7\nv_add_u32 v13, %s, v10", 48 + j, sIDX, j, 48 + j, 48 + j, sT3, 48 + j, sT3)
        a("ds_read_b128 v[%d:%d], v13 offset:%d", PF + 4 * j, PF + 4 * j + 3, PB)
        a("s_mul_i32 s%d, s%d, %d", 48 + j, 48 + j, 8 * VP)
    a("s_waitcnt lgkmcnt(4)")
    a("v_add_f32 v4, v4, v5\nv_add_f32 v6, v6, v7\nv_add_f32 v4, v4, v6")
    a("v_log_f32 v5, v4\nv_rcp_f32 v13, v4")
    a("s_lshl4_add_u32 %s, %s, %s\ns_lshl2_add_u32 %s, %s, %s\ns_lshl_b32 %s, %s, 8\ns_add_u32 s93, %s, %d", sT0, sG, sI, sT0, sT0, sA, sT0, sT0, sT0, W_O)
    a("v_add_f32 v51, v15, v5\nv_add_f32 v55, v15, v5\nv_mov_b32 v50, %s\nv_mov_b32 v54, %s", sTAG, sTAG)
    get_ver()
    stamp(3)
    a("s_sub_u32 %s, %s, 32", sTH, sB2)
    for j in range(4):
        a("s_add_u32 %s, %s, 8\nv_add_u32 v4, s%d, v%d\nv_add_u32 v5, s%d, v%d", sTH, sTH, 48 + j, VA, 48 + j, VA + 1)
        lds_wait_ge(F_PROG, sTH, cache=sSEEN)
        for d in range(2):
            for t in range(2):
                a("ds_read_b64_tr_b16 v[%d:%d], v%d offset:%d", VF + 4 * d + 2 * t, VF + 4 * d + 2 * t + 1, 4 + d, t * 4 * VP)
        a("s_waitcnt lgkmcnt(2)")
        mfma(OA, VF, PF + 4 * j)
        a("s_waitcnt lgkmcnt(0)")
        mfma(OA + 4, VF + 4, PF + 4 * j)
    a("s_mov_b64 exec, %s", sEX)
    a("s_nop 4")
    for r in range(8): a("v_mul_f32 v%d, v%d, v13", OA + r, OA + r)
    a("v_cvt_pk_bf16_f32 v48, v%d, v%d\nv_cvt_pk_bf16_f32 v49, v%d, v%d", OA, OA + 1, OA + 2, OA + 3)
    a("v_cvt_pk_bf16_f32 v52, v%d, v%d\nv_cvt_pk_bf16_f32 v53, v%d, v%d", OA + 4, OA + 5, OA + 6, OA + 7)
    pub([("v[48:51]", "s93", 0), ("v[52:55]", "s93", 128)])
    a("s_mov_b64 exec, -1")
    stamp(4)
    a("s_cmp_ge_u32 %s, 16\ns_cbranch_scc1 L_a_end", sTEAM)
    a("v_lshrrev_b32 v12, 5, v0\nv_and_b32 v11, 31, v0\nv_lshlrev_b32 v11, 4, v11\nv_lshl_add_u32 v11, v12, 12, v11")
    a("s_lshl_b32 %s, %s, 14\ns_lshr_b32 %s, %s, 1\ns_lshl_b32 %s, %s, 13\ns_add_u32 %s, %s, %s", sT0, sTEAM, sT1, sA, sT1, sT1, sT0, sT0, sT1)
    a("s_and_b32 %s, %s, 1\ns_lshl_b32 %s, %s, 9\ns_add_u32 %s, %s, %s\ns_add_u32 %s, %s, %d", sT1, sA, sT1, sT1, sT0, sT0, sT1, sT0, sT0, W_O)
    a("v_bfe_u32 v10, v0, 2, 1\nv_lshlrev_b32 v10, 8, v10\nv_lshl_add_u32 v10, v12, 2, v10\nv_bfe_u32 v12, v0, 4, 1\nv_lshl_add_u32 v10, v12, 6, v10\nv_and_b32 v12, 3, v0\nv_lshl_add_u32 v10, v12, 4, v10\nv_bfe_u32 v12, v0, 3, 1\nv_lshl_add_u32 v10, v12, 3, v10")
    a("s_lshr_b32 %s, %s, 1\ns_mul_i32 %s, %s, %d\ns_lshr_b32 %s, %s, 2\ns_add_u32 %s, %s, %s\nv_add_u32 v10, %s, v10", sT2, sA, sT2, sT2, VEC2_P, sT1, sT1, sT2, sT2, sT1, sT2)
    a("s_mov_b32 %s, 0xffff0000", sT1)
    if o.opoll: lds_wait_ge(F_PROG, str(o.opoll), cache=sSEEN)
    a("s_mov_b32 %s, 0", sTMO)
    if o.nopoll & 4: a("s_branch L_a_ook")
    a("L_a_opoll:")
    fetch([(16 + 4 * k, "v11", sT0, k * 1024) for k in range(4)])
    a("s_add_u32 %s, %s, 1\ns_cmp_gt_u32 %s, 0x8000\ns_cbranch_scc1 L_a_ook", sTMO, sTMO, sTMO)
    a("s_waitcnt vmcnt(0)")
    a("v_xor_b32 v4, %s, v18\nv_xor_b32 v5, %s, v22\nv_xor_b32 v6, %s, v26\nv_xor_b32 v7, %s, v30", sTAG, sTAG, sTAG, sTAG)
    a("v_or3_b32 v4, v4, v5, v6\nv_or_b32 v4, v4, v7")
    a("v_cmp_ne_u32 vcc, 0, v4\ns_and_b64 exec, exec, vcc\ns_cbranch_vccnz L_a_opoll")
    a("L_a_ook:")
    a("s_mov_b64 exec, -1")
    a("s_waitcnt vmcnt(0)")
    stamp(5)
    a("v_max3_f32 v4, v19, v23, v27\nv_max_f32 v4, v4, v31")
    a("v_mov_b32 v5, v4")
    a("v_lshlrev_b32 v32, 16, v16\nv_and_b32 v33, %s, v16", sT1)
    a("v_permlane32_swap_b32 v4, v5\nv_max_f32 v4, v4, v5")
    for k in range(4): a("v_sub_f32 v%d, v%d, v4", 19 + 4 * k, 19 + 4 * k)
    for k in range(4): a("v_exp_f32 v%d, v%d", 19 + 4 * k, 19 + 4 * k)
    a("v_lshlrev_b32 v34, 16, v17\nv_and_b32 v35, %s, v17", sT1)
    for r in range(4): a("v_mul_f32 v%d, v%d, v19", 32 + r, 32 + r)
    a("v_add_f32 v5, v19, v23\nv_add_f32 v6, v27, v31\nv_add_f32 v5, v5, v6\nv_mov_b32 v4, v5")
    for k in range(1, 4):
        w = 19 + 4 * k
        a("v_lshlrev_b32 v6, 16, v%d\nv_and_b32 v7, %s, v%d\nv_fmac_f32 v32, v%d, v6\nv_fmac_f32 v33, v%d, v7", 16 + 4 * k, sT1, 16 + 4 * k, w, w)
        if k == 1: a("v_permlane32_swap_b32 v4, v5\nv_add_f32 v4, v4, v5\nv_rcp_f32 v4, v4")
        a("v_lshlrev_b32 v6, 16, v%d\nv_and_b32 v7, %s, v%d\nv_fmac_f32 v34, v%d, v6\nv_fmac_f32 v35, v%d, v7", 17 + 4 * k, sT1, 17 + 4 * k, w, w)
    a("s_nop 1")
    a("v_permlane32_swap_b32 v32, v34\nv_permlane32_swap_b32 v33, v35")
    a("v_add_f32 v32, v32, v34\nv_add_f32 v33, v33, v35\nv_mul_f32 v32, v32, v4\nv_mul_f32 v33, v33, v4")
    a("v_cvt_pk_bf16_f32 v32, v32, v33")
    a("ds_write_b32 v10, v32 offset:%d", VEC2)
    flag_add(F_VRDY)
    stamp(6)
    a("s_cmp_lg_u32 %s, 3\ns_cbranch_scc1 L_a_end", sA)
    a("s_cmp_ge_u32 s2, 36\ns_cbranch_scc1 L_a_end")
    mk_srd(R1, 22, 2304)
    a("v_bfe_u32 v12, v0, 2, 1\nv_mul_u32_u24 v12, 1152, v12\nv_and_b32 v11, 3, v0\nv_lshl_add_u32 v12, v11, 3, v12")
    a("v_and_b32 v11, 1, v8\nv_lshl_add_u32 v12, v11, 2, v12")
    a("s_lshl_b32 %s, s2, 5\nv_add_u32 v12, %s, v12", sT1, sT1)
    a("global_load_dword v40, v12, s[4:5]")
    a("s_lshl_b32 %s, s2, 12\ns_add_u32 %s, %s, %d", sT0, sT0, sT0, W_F)
    a("v_lshlrev_b32 v11, 4, v0")
    a("s_mov_b32 %s, 0xffff0000\ns_mov_b32 %s, 0", sT1, sTMO)
    a("s_waitcnt vmcnt(0)")
    a("v_and_b32 v41, %s, v40\nv_lshlrev_b32 v40, 16, v40", sT1)
    if o.nopoll & 8: a("s_branch L_a_fok")
    a("L_a_fpoll:")
    for k in range(4):
        a("buffer_load_dwordx4 v[%d:%d], v11, %s, %s offen offset:%d sc1", 16 + 4 * k, 19 + 4 * k, srd(RW), sT0, k * 1024)
    a("s_add_u32 %s, %s, 1\ns_cmp_gt_u32 %s, 0x8000\ns_cbranch_scc1 L_a_fok", sTMO, sTMO, sTMO)
    for k in range(4):
        a("s_waitcnt vmcnt(%d)", 3 - k)
        tag_bad("v4", 16 + 4 * k, k == 0)
    a("v_and_b32 v4, 0xff, v4\nv_cmp_ne_u32 vcc, 0, v4\ns_and_b64 exec, exec, vcc\ns_cbranch_vccnz L_a_fpoll")
    a("L_a_fok:")
    a("s_mov_b64 exec, -1")
    stamp(7)
    for r in range(4): a("v_add_f32 v%d, v%d, v%d", 16 + r, 16 + r, 20 + r)
    for r in range(4): a("v_add_f32 v%d, v%d, v%d", 24 + r, 24 + r, 28 + r)
    for r in range(4): a("v_permlane32_swap_b32 v%d, v%d", 16 + r, 24 + r)
    for r in (0, 2, 1, 3): a("v_add_f32 v%d, v%d, v%d", 16 + r, 16 + r, 24 + r)
    a("v_permlane16_swap_b32 v16, v18\ns_nop 0\nv_permlane16_swap_b32 v17, v19")
    a("v_add_f32 v16, v16, v18\nv_add_f32 v17, v17, v19\ns_nop 0")
    a("v_add_f32_dpp v16, v16, v16 row_ror:8 row_mask:0xf bank_mask:0xf\nv_add_f32_dpp v17, v17, v17 row_ror:8 row_mask:0xf bank_mask:0xf")
    a("v_cvt_pk_bf16_f32 v16, v16, v17\nv_mov_b32 v18, v16\ns_nop 1")
    a("v_permlane32_swap_b32 v16, v18")
    a("v_lshlrev_b32 v6, 16, v16\nv_and_b32 v7, %s, v16", sT1)
    a("v_add_f32 v4, v40, v6\nv_add_f32 v5, v41, v7\nv_cvt_pk_bf16_f32 v4, v4, v5")
    a("v_lshlrev_b32 v6, 16, v18\nv_and_b32 v7, %s, v18", sT1)
    a("v_and_b32 v5, %s, v4\nv_lshlrev_b32 v4, 16, v4", sT1)
    a("s_mov_b64 exec, 0xff00ff")
    a("v_add_f32 v4, v4, v6\nv_add_f32 v5, v5, v7\nv_cvt_pk_bf16_f32 v20, v4, v5")
    a("buffer_store_dword v20, v12, %s, 0 offen %s", srd(R1), o.outpol)
    a("s_cmp_lg_u32 s2, 0\ns_cbranch_scc1 %s", "L_a_end2" if o.holdf else "L_a_end")
    a("s_mov_b64 exec, 1\nv_mov_b32 v4, %s", sTAG)
    a("buffer_store_dword v4, v3, %s, 0 offen sc1", srd(RW))
    if o.holdf:
        a("s_branch L_a_end2")
    a("L_a_end:")
    stamps_out()
    a("L_end:")
    a("s_endpgm")
    if o.holdf:
        a("L_a_end2:")
        a("s_cmp_lg_u32 s2, %d\ns_cbranch_scc1 L_end", o.holdwg)
        a("s_memrealtime s[70:71]\ns_waitcnt lgkmcnt(0)\ns_sub_u32 %s, s70, s86\ns_mul_i32 %s, %s, %d\ns_add_u32 %s, %s, %d", sT1, sT1, sT1, o.holdmul, sT1, sT1, o.holdf)
        a("L_holdf:\ns_memrealtime s[70:71]\ns_waitcnt lgkmcnt(0)\ns_sub_u32 %s, s70, s86\ns_cmp_lt_u32 %s, %s\ns_cbranch_scc1 L_holdf", sT0, sT0, sT1)
        a("s_endpgm")
    flush_ool()
    a("L_code_end:")
    if o.cpf: a(".fill 256, 4, 0xbf800000")

    hdr = open(os.path.join(os.path.dirname(os.path.abspath(__file__)), "header.txt")).read()
    hdr += "; @launch grid=(256,1,1) block=(576,1,1) lds=%d\n" % LDS_TOTAL
    hdr += '.amdgcn_target "amdgcn-amd-amdhsa--gfx950"\n.text\n.globl %s\n.p2align 8\n.type %s,@function\n' % (NAME, NAME)
    ftr = """.section .rodata,"a"
.p2align 6
.amdhsa_kernel %s
  .amdhsa_next_free_vgpr 88
  .amdhsa_next_free_sgpr 102
  .amdhsa_accum_offset 88
  .amdhsa_group_segment_fixed_size 0
  .amdhsa_kernarg_size 96
  .amdhsa_user_sgpr_count 2
  .amdhsa_user_sgpr_kernarg_segment_ptr 1
  .amdhsa_system_sgpr_workgroup_id_x 1
  .amdhsa_float_denorm_mode_32 3
.end_amdhsa_kernel
""" % NAME
    body = a.text()
    if o.nostore:
        body = "\n".join(l for l in body.split("\n") if not ("buffer_store_dwordx4" in l and (o.nostore & 2 or "sc1" in l)))
    return hdr + body + ftr

def parser():
    p = argparse.ArgumentParser()
    p.add_argument("-o", default="-")
    p.add_argument("--depth", type=int, default=24)
    p.add_argument("--diag", type=int, default=0)
    p.add_argument("--qpoll", type=int, default=42)
    p.add_argument("--opoll", type=int, default=0)
    p.add_argument("--hpoll", type=int, default=114)
    p.add_argument("--cpf", type=int, default=1)
    p.add_argument("--sdiag", type=int, default=0)
    p.add_argument("--mix", type=int, default=2)
    p.add_argument("--local", type=int, default=1)
    p.add_argument("--hold", type=int, default=0)
    p.add_argument("--holdf", type=int, default=0)
    p.add_argument("--holdmul", type=int, default=0)
    p.add_argument("--holdwg", type=int, default=0)
    p.add_argument("--wqx", type=int, default=4)
    p.add_argument("--spec", type=int, default=0)
    p.add_argument("--outpol", default="")
    p.add_argument("--nover", type=int, default=0)
    p.add_argument("--depthv", type=int, default=0)
    p.add_argument("--depthl", type=int, default=0)
    p.add_argument("--ltwait", type=int, default=0)
    p.add_argument("--hpolll", type=int, default=0)
    p.add_argument("--touch", type=int, default=0)
    p.add_argument("--vpoll", type=int, default=34)
    p.add_argument("--depth2", type=int, default=24)
    p.add_argument("--sleep", type=int, default=0)
    p.add_argument("--nopoll", type=int, default=0)
    p.add_argument("--nostore", type=int, default=0)
    p.add_argument("--rot", type=int, default=1)
    p.add_argument("--ldonly", type=int, default=0)
    p.add_argument("--pol", default="nt")
    return p

if __name__ == "__main__":
    o = parser().parse_args()
    t = gen(o)
    if o.o == "-": sys.stdout.write(t)
    else: open(o.o, "w").write(t)
```

```python
import sys, argparse, math, struct, os

NAME = "parallel_sum__sliding_block_cached__geglu_ffn__decode_kernel"
f2u = lambda f: struct.unpack("<I", struct.pack("<f", f))[0]

class Asm:
    def __init__(self):
        self.lines = []
        self.n = 0
    def __call__(self, s, *args):
        if args: s = s % args
        for ln in s.strip("\n").split("\n"):
            ln = ln.strip()
            if not ln: continue
            if ln.endswith(":"): self.lines.append(ln)
            else: self.lines.append("    " + ln)
    def lab(self, p="L"):
        self.n += 1
        return "%s_%d" % (p, self.n)
    def text(self): return "\n".join(self.lines) + "\n"

F_PROG, F_QRDY, F_A1, F_A2, F_VRDY, F_C1, F_VER, F_PUB, F_HOK = 0, 16, 20, 8, 24, 28, 32, 36, 40
XN, XN_P = 256, 1152
QV = 2560
VEC2, VEC2_P = 3072, 704
MX = 5632
LS = 5664
PB = 5888
RA = 10240
RWQ = RA + 48 * 1024
RK = RA + 80 * 1024
KP = 1088
RV = RK + 32 * KP
VP = 1152
LDS_TOTAL = RV + 32 * VP
assert LDS_TOTAL <= 163840
W_EPOCH = 0
W_V = 1024
W_Q = 4096
W_G = W_Q + 16 * 8192
W_O = W_G + 6 * 36864
W_AEND = W_O + 256 * 1024
BOFF = 0xa0000
assert W_AEND - W_Q <= BOFF
W_F = W_AEND + BOFF
W_END = W_F + 36 * 4096
W_DIAG = 2 << 20
assert W_END <= W_DIAG
P_G = 26

def gen(o):
    a = Asm()
    D = o.depth
    diag = o.diag
    sX, sIDX, sG, sI, sWV = "s28", "s29", "s30", "s31", "s32"
    sTEAM, sCB, sNS2, sB2, sR0 = "s33", "s34", "s35", "s36", "s37"
    sD3, sM3 = "s38", "s39"
    sT0, sT1, sT2, sT3 = "s40", "s41", "s42", "s43"
    sSEEN, sTMO, sTAG, sVER = "s44", "s45", "s46", "s47"
    sEX = "s[68:69]"
    R0, R1, R2, R3, R4 = 48, 52, 56, 60, 64
    RW = 64
    RB = 60
    ST = 72
    def srd(r): return "s[%d:%d]" % (r, r + 3)
    def mk_srd(r, lo, size):
        a("s_mov_b32 s%d, s%d\ns_mov_b32 s%d, s%d\ns_mov_b32 s%d, 0x%x\ns_mov_b32 s%d, 0x00020000", r, lo, r + 1, lo + 1, r + 2, size, r + 3)
    def stamp(k):
        if diag: a("s_memrealtime s[%d:%d]", ST + 2 * k, ST + 2 * k + 1)
    def stamps_out():
        if not diag: return
        a("s_waitcnt lgkmcnt(0)")
        a("s_mov_b64 exec, -1")
        a("s_lshl_b32 %s, s2, 4\ns_add_u32 %s, %s, %s\ns_lshl_b32 %s, %s, 6\ns_add_u32 %s, %s, 0x%x", sT0, sT0, sT0, sWV, sT0, sT0, sT0, sT0, W_DIAG)
        a("v_mov_b32 v1, %s", sT0)
        for k in range(4):
            for j in range(4): a("v_mov_b32 v%d, s%d", 4 + j, ST + 4 * k + j)
            a("global_store_dwordx4 v1, v[4:7], s[26:27] offset:%d", 16 * k)
            a("s_nop 1")
    ool = []
    def lds_wait_ge(off, thr, cache=None, vt="v2", vz="v3", hot=False):
        if hot:
            Ls, Lr = a.lab("LS"), a.lab("LB")
            a("s_cmp_lt_i32 %s, %s\ns_cbranch_scc1 %s", cache, thr, Ls)
            a("%s:" % Lr)
            ool.append((Ls, lambda: lds_wait_ge(off, thr, cache, vt, vz), Lr))
            return
        L, E = a.lab("LW"), a.lab("LE")
        c = cache or sT3
        if cache:
            a("s_cmp_ge_i32 %s, %s\ns_cbranch_scc1 %s", c, thr, E)
        a("s_mov_b32 %s, 0", sTMO)
        a("%s:" % L)
        if o.sleep: a("s_sleep %d", o.sleep)
        a("ds_read_b32 %s, %s offset:%d", vt, vz, off)
        a("s_add_u32 %s, %s, 1", sTMO, sTMO)
        a("s_cmp_gt_u32 %s, 0x80000\ns_cbranch_scc1 %s", sTMO, E)
        a("s_waitcnt lgkmcnt(0)")
        a("v_readfirstlane_b32 %s, %s", c, vt)
        a("s_cmp_lt_i32 %s, %s\ns_cbranch_scc1 %s", c, thr, L)
        a("%s:" % E)
    def get_tag():
        a("s_waitcnt lgkmcnt(0)")
        a("s_mul_i32 %s, %s, 1664525\ns_add_u32 %s, %s, 1013904223", sTAG, sTAG, sTAG, sTAG)
        a("s_and_b32 s94, %s, 0xff\ns_bfe_u32 s95, %s, 0x80008\ns_bfe_u32 s96, %s, 0x80010\ns_lshr_b32 s97, %s, 24", sTAG, sTAG, sTAG, sTAG)
    def tag_merge(r, rnd=True):
        for k in range(4):
            if rnd: a("v_add_u32 v%d, 0x80, v%d", r + k, r + k)
        for k in range(4):
            a("v_and_or_b32 v%d, v%d, v14, s%d", r + k, r + k, 94 + k)
    def tag_bad(dst, r, first):
        for k in range(4): a("v_xor_b32 v%d, s%d, v%d", r + k, 94 + k, r + k)
        if first: a("v_or3_b32 %s, v%d, v%d, v%d\nv_or_b32 %s, %s, v%d", dst, r, r + 1, r + 2, dst, dst, r + 3)
        else: a("v_or3_b32 %s, %s, v%d, v%d\nv_or3_b32 %s, %s, v%d, v%d", dst, dst, r, r + 1, dst, dst, r + 2, r + 3)
    def flag_add(off, vt="v6"):
        a("s_mov_b64 exec, 1\nv_mov_b32 %s, 1\nds_add_u32 v3, %s offset:%d\ns_mov_b64 exec, -1", vt, vt, off)
    def get_ver():
        lds_wait_ge(F_VER, "1", cache=sVER)
    def two_way(fast, slow):
        Ls, Lr = a.lab("LS"), a.lab("LB")
        a("s_cmp_lg_u32 %s, 1\ns_cbranch_scc1 %s", sVER, Ls)
        fast()
        a("%s:" % Lr)
        ool.append((Ls, slow, Lr))
    def flush_ool():
        for Ls, slow, Lr in ool:
            a("%s:" % Ls)
            slow()
            a("s_branch %s", Lr)
        del ool[:]
    def pub(items):
        def fast():
            for regs, so, off in items:
                a("buffer_store_dwordx4 %s, v1, %s, %s offen offset:%d", regs, srd(RW), so, off)
        def slow():
            for regs, so, off in items:
                a("buffer_store_dwordx4 %s, v1, %s, %s offen offset:%d sc1", regs, srd(RB), so, off)
        two_way(fast, slow)
    def fetch(items):
        def go(r, fl):
            for d, vo, so, off in items:
                a("buffer_load_dwordx4 v[%d:%d], %s, %s, %s offen offset:%d %s", d, d + 3, vo, srd(r), so, off, fl)
        two_way(lambda: go(RW, "nt"), lambda: go(RB, "sc1"))
    def mfma(d, A, B):
        a("v_mfma_f32_16x16x32_bf16 v[%d:%d], v[%d:%d], v[%d:%d], v[%d:%d]", d, d + 3, A, A + 3, B, B + 3, d, d + 3)

    a("%s:" % NAME)
    stamp(0)
    if o.hold or o.holdf: a("s_memrealtime s[86:87]")
    if diag:
        for k in range(1, 8): a("s_mov_b64 s[%d:%d], 0", ST + 2 * k, ST + 2 * k + 1)
    a("""
    s_load_dwordx16 s[4:19], s[0:1], 0
    s_load_dwordx8 s[20:27], s[0:1], 64
    s_cmp_ge_u32 s2, 256
    s_cbranch_scc1 L_end
    v_lshrrev_b32 v1, 6, v0
    v_and_b32 v0, 63, v0
    v_mov_b32 v3, 0
    """)
    a("v_readfirstlane_b32 %s, v1", sWV)
    a("s_and_b32 %s, s2, 7\ns_lshr_b32 %s, s2, 3", sX, sIDX)
    a("s_lshr_b32 %s, s2, 7\ns_lshl1_add_u32 %s, %s, %s\ns_and_b32 %s, %s, 15", sT0, sG, sX, sT0, sI, sIDX)
    a("s_cmp_eq_u32 %s, 0\ns_cbranch_scc1 L_loader", sWV)
    a("v_mul_u32_u24 v13, 36, v0")
    a("s_cmp_ge_u32 %s, 5", sWV)
    a("s_waitcnt lgkmcnt(0)")
    a("s_load_dword %s, s[26:27], 0", sTAG)
    a("s_cbranch_scc1 L_cons2")
    a("global_load_dwordx4 v[16:19], v13, s[4:5]")
    a("global_load_dwordx4 v[20:23], v13, s[4:5] offset:16")
    a("global_load_dword v24, v13, s[4:5] offset:32")
    a("L_cons2:")
    if o.cpf:
        Lc = a.lab("LCP")
        a("s_cmp_lg_u32 %s, 8\ns_cbranch_scc1 %s", sWV, Lc)
        a("s_lshl_b32 %s, %s, 10\ns_cmp_ge_u32 %s, L_code_end-%s\ns_cbranch_scc1 %s", sT0, sI, sT0, NAME, Lc)
        a("s_getpc_b64 s[88:89]")
        a("L_pc:")
        a("s_sub_u32 s88, s88, L_pc-%s\ns_subb_u32 s89, s89, 0", NAME)
        a("v_lshlrev_b32 v4, 4, v0\nv_add_u32 v4, %s, v4", sT0)
        a("global_load_dwordx4 v[76:79], v4, s[88:89]")
        a("%s:" % Lc)
    a("s_branch L_cons3")
    a("L_loader:")

    sOFF, sCNT, sISS, sKV, sRQ = "s90", "s91", "s92", "s93", "s98"
    sO2, sMG = "s99", "s100"
    def prog(depth):
        a("s_add_u32 %s, %s, 4\nv_max_i32 v4, %s, v4", sISS, sISS, sISS)
        a("s_waitcnt vmcnt(%d)", depth - 4)
        a("ds_write_b32 v3, v4 offset:%d", F_PROG)
    def loop_end(L):
        a("s_sub_u32 %s, %s, 1\ns_cmp_lg_u32 %s, 0\ns_cbranch_scc1 %s", sCNT, sCNT, sCNT, L)
    def kv_group(r, voff, base, pitch, wait=True, depth=None):
        a("s_mul_i32 %s, %s, %d\ns_add_u32 m0, %s, %d", sT0, sRQ, 4 * pitch, sT0, base)
        a("s_lshl_b32 %s, %s, 12\ns_add_u32 %s, %s, %s", sT1, sRQ, sT1, sT1, sKV)
        for k in range(4):
            a("buffer_load_dwordx4 %s, %s, %s offen %s lds", voff, srd(r), sT1, o.pol)
            if k < 3: a("s_add_u32 m0, m0, %d\ns_add_u32 %s, %s, s101", pitch, sT1, sT1)
        a("s_add_u32 %s, %s, 1\ns_and_b32 %s, %s, 7", sRQ, sRQ, sRQ, sRQ)
        if wait: prog(depth or D)
    def kv_loop(r, voff, base, pitch, depth=None):
        L = a.lab("LD")
        a("%s:" % L)
        kv_group(r, voff, base, pitch, True, depth)
        loop_end(L)
    def pair_group(ra, rb, voff, step, depth):
        for k in range(4):
            so = sOFF if k % 2 == 0 else sO2
            a("buffer_load_dwordx4 %s, %s, %s offen %s lds", voff, srd(ra if k % 2 == 0 else rb), so, o.pol)
            a("s_add_u32 m0, m0, s101\ns_add_u32 %s, %s, %d", so, so, step)
        prog(depth)
    def roles():
        a("s_mul_i32 %s, %s, 43\ns_lshr_b32 %s, %s, 7\ns_mul_i32 %s, %s, 3\ns_sub_u32 %s, %s, %s", sD3, sIDX, sD3, sD3, sT0, sD3, sM3, sIDX, sT0)
        a("s_mul_i32 %s, %s, 57\ns_lshr_b32 %s, %s, 9", sT0, sIDX, sT0, sT0)
        a("s_mul_i32 %s, %s, 9\ns_sub_u32 %s, %s, %s", sT1, sT0, sCB, sIDX, sT1)
        a("s_lshl1_add_u32 %s, %s, %s\ns_lshl_b32 %s, %s, 8", sTEAM, sX, sT0, sR0, sTEAM)
        a("s_mov_b32 %s, 32\ns_mov_b32 %s, %d", sNS2, sB2, 130)
        Ld = a.lab("LR")
        a("s_cmp_lt_u32 %s, 2\ns_cbranch_scc1 %s", sT0, Ld)
        a("s_mul_i32 %s, %s, 576\ns_lshl3_add_u32 %s, %s, %s", sR0, sX, sTEAM, sT0, sX)
        a("s_cmp_eq_u32 %s, 2\ns_cbranch_scc1 %s", sT0, Ld)
        a("s_add_u32 %s, %s, 256\ns_lshl_b32 %s, %s, 1\ns_mov_b32 %s, 80\ns_mov_b32 %s, 82", sR0, sR0, sCB, sCB, sNS2, sB2)
        a("%s:" % Ld)
    def gu_img(h, smt, sfb):
        a("s_lshl_b32 %s, %s, 1\ns_add_u32 %s, %s, %d", sfb, sD3, sfb, sfb, h)
        a("s_cmp_ge_u32 %s, 9\ns_cselect_b32 %s, 1, 0\ns_cselect_b32 %s, 9, 0\ns_sub_u32 %s, %s, %s", sfb, smt, sT3, sfb, sfb, sT3)
        a("s_mul_i32 %s, %s, 9\ns_add_u32 %s, %s, %s", sT3, sX, sfb, sfb, sT3)

    a("""
    v_lshrrev_b32 v8, 3, v0
    v_lshrrev_b32 v15, 4, v0
    v_lshlrev_b32 v9, 1, v15
    v_and_b32 v10, 7, v0
    v_xor_b32 v10, v10, v9
    v_lshlrev_b32 v10, 4, v10
    v_lshl_add_u32 v16, v8, 13, v10
    """)
    a("s_and_b32 %s, %s, 3\ns_mul_i32 %s, %s, %d", sT0, sIDX, sOFF, sT0, 144 * 8192)
    a("s_lshr_b32 %s, %s, 2\ns_xor_b32 %s, %s, %d\ns_lshl3_add_u32 %s, %s, %s\ns_lshl_b32 %s, %s, 7\ns_add_u32 %s, %s, %s", sT0, sIDX, sT0, sT0, o.wqx, sT0, sX, sT0, sT0, sT0, sOFF, sOFF, sT0)
    a("s_mov_b32 s%d, 0x480000\ns_mov_b32 s%d, 0x00020000", R0 + 2, R0 + 3)
    a("s_movk_i32 s101, 0x400\ns_mov_b32 %s, 0x10000", sT2)
    a("s_mov_b32 m0, %d", RWQ)
    a("s_setprio 3")
    a("s_waitcnt lgkmcnt(0)")
    if o.sdiag: stamp(5)
    a("s_mov_b32 s%d, s10\ns_mov_b32 s%d, s11", R0, R0 + 1)
    fill = ["v_mov_b32 v4, 0", "v_mov_b32 v5, 0", "v_lshlrev_b32 v2, 3, v0", "ds_write_b64 v2, v[4:5]",
            "v_xor_b32 v13, v0, v15", "v_lshlrev_b32 v13, 4, v13",
            "s_mov_b32 s%d, 0x2000000" % (R1 + 2), "s_mov_b32 s%d, 0x00020000" % (R1 + 3),
            "s_lshr_b32 %s, %s, 3" % (sT0, sI), "s_lshl4_add_u32 %s, %s, %s" % (sT0, sT0, sG), "s_lshl_b32 %s, %s, 20" % (sT0, sT0),
            "s_and_b32 %s, %s, 7" % (sT1, sI), "s_lshl_b32 %s, %s, 15" % (sT1, sT1), "s_add_u32 %s, %s, %s" % (sT0, sT0, sT1),
            "s_add_u32 %s, %s, 0xc0000" % (sKV, sT0), "s_and_b32 %s, %s, 3" % (sRQ, sIDX), "s_lshl_b32 %s, %s, 1" % (sRQ, sRQ)]
    for k in range(18):
        a("buffer_load_dwordx4 v16, %s, %s offen %s lds", srd(R0), sOFF, o.pol)
        if k < 17:
            a("s_add_u32 m0, m0, s101\ns_add_u32 %s, %s, %s", sOFF, sOFF, sT2)
            a(fill[k])
    if o.sdiag: stamp(6)
    a("s_mov_b32 s%d, s6\ns_mov_b32 s%d, s7", R1, R1 + 1)
    kv_group(R1, "v13", RK, KP, False)
    if D >= 26: kv_group(R1, "v13", RK, KP, False)
    if o.sdiag: stamp(7)
    a("s_waitcnt lgkmcnt(0)")
    a("s_barrier")
    a("""
    v_mul_u32_u24 v12, 1152, v8
    v_add_u32 v12, v12, v10
    v_mul_u32_u24 v11, 9216, v8
    v_add_u32 v11, v11, v10
    v_xor_b32 v14, v0, v9
    v_lshlrev_b32 v14, 4, v14
    """)
    mk_srd(R2, 8, 0x2000000)
    a("s_mov_b32 %s, %d", sISS, (26 if D >= 26 else 22) - (D - 4))
    roles()
    DV, D2, DL = o.depthv or D, o.depth2, o.depthl or D
    sS2 = "s89"
    def drain_step(k):
        a("s_add_u32 %s, %s, 4\nv_max_i32 v4, %s, v4\ns_waitcnt vmcnt(%d)\nds_write_b32 v3, v4 offset:%d", sISS, sISS, sISS, k, F_PROG)
    def redepth(old, new):
        if new > old: a("s_sub_u32 %s, %s, %d", sISS, sISS, new - old)
        for k in range(old - 8, new - 8, -4): drain_step(k)
    a("s_cmp_lt_u32 %s, 16", sTEAM)
    a("s_cselect_b32 s%d, s12, s20\ns_cselect_b32 s%d, s13, s21\ns_mov_b32 s%d, 0x510000\ns_cselect_b32 s%d, 0x480000, s%d\ns_mov_b32 s%d, 0x00020000",
      R3, R3 + 1, R3 + 2, R3 + 2, R3 + 2, R3 + 3)
    a("s_mul_i32 %s, %s, 1152\ns_lshl_b32 %s, %s, 7\ns_add_u32 %s, %s, %s", sS2, sR0, sT1, sCB, sS2, sS2, sT1)
    for h, r, so in ((0, R0, sOFF), (1, R4, sO2)):
        gu_img(h, sT0, sT1)
        a("s_cmp_eq_u32 %s, 1\ns_cselect_b32 s%d, s18, s16\ns_cselect_b32 s%d, s19, s17\ns_mov_b32 s%d, 0x510000\ns_mov_b32 s%d, 0x00020000", sT0, r, r + 1, r + 2, r + 3)
        a("s_mul_i32 %s, %s, %d\ns_lshl_b32 %s, %s, 7\ns_add_u32 %s, %s, %s", so, sM3, 192 * 9216, sT1, sT1, so, so, sT1)
    if o.tlb:
        a("s_mov_b64 exec, 3")
        a("v_mul_u32_u24 v20, %d, v0\nv_mul_u32_u24 v21, %d, v0", 191 * 9216, 255 * 1152)
        a("buffer_load_dword v22, v3, %s, %s offen nt", srd(R2), sKV)
        a("buffer_load_dword v22, v20, %s, %s offen nt", srd(R0), sOFF)
        a("buffer_load_dword v22, v20, %s, %s offen nt", srd(R4), sO2)
        a("buffer_load_dword v22, v21, %s, %s offen nt", srd(R3), sS2)
        a("s_mov_b64 exec, -1")
    if D < 26:
        a("s_waitcnt vmcnt(%d)", D - 4 + (4 if o.tlb else 0))
        kv_group(R1, "v13", RK, KP)
    a("s_mov_b32 %s, 6", sCNT)
    a("s_cmp_ge_u32 %s, 27\ns_cbranch_scc1 L_ld_kv", sIDX)
    M = o.mix
    a("s_mov_b32 %s, %d\ns_mov_b32 %s, %d", sMG, RA, sCNT, 6 // M)
    a("L_ld_gu:")
    a("s_mov_b32 m0, %s\ns_add_u32 %s, %s, %d", sMG, sMG, sMG, 8192 * M)
    a("s_mov_b32 %s, %d", sT2, 2 * M)
    a("L_ld_gi:")
    pair_group(R0, R4, "v11", 8 * 9216, D)
    a("s_sub_u32 %s, %s, 1\ns_cmp_lg_u32 %s, 0\ns_cbranch_scc1 L_ld_gi", sT2, sT2, sT2)
    kv_group(R1, "v13", RK, KP)
    loop_end("L_ld_gu")
    if M == 1: a("s_branch L_ld_v")
    else: a("s_mov_b32 %s, %d", sCNT, 6 - 6 // M)
    a("L_ld_kv:")
    kv_loop(R1, "v13", RK, KP)
    a("L_ld_v:")
    stamp(1)
    redepth(D, DV)
    a("s_mov_b32 %s, 7", sCNT)
    kv_loop(R2, "v14", RV, VP, DV)
    a("ds_read_b32 v5, v3 offset:%d", F_C1)
    kv_group(R2, "v14", RV, VP, True, DV)
    stamp(2)
    if not o.ldonly:
        a("s_waitcnt lgkmcnt(0)\nv_readfirstlane_b32 %s, v5", sSEEN)
        lds_wait_ge(F_C1, "4", cache=sSEEN)
    a("s_mov_b32 %s, %s", sOFF, sS2)
    a("s_cmp_eq_u32 %s, 80\ns_cbranch_scc1 L_ld_lt", sNS2)
    a("s_mov_b32 m0, %d\ns_add_u32 %s, %s, %d", RWQ, sO2, sOFF, 8 * 1152)
    NA = o.burst
    if NA and not o.ldonly:
        def burst(n):
            for k in range(n):
                so = sOFF if k % 2 == 0 else sO2
                a("buffer_load_dwordx4 v12, %s, %s offen %s lds", srd(R3), so, o.pol)
                a("s_add_u32 m0, m0, s101\ns_add_u32 %s, %s, %d", so, so, 16 * 1152)
        burst(NA)
        for k in range(DV - 8 + NA, NA - 4, -4): drain_step(k)
        a("s_cmp_lt_u32 %s, 16\ns_cselect_b32 %s, 8, 4", sTEAM, sT2)
        lds_wait_ge(F_PUB, sT2)
        burst(32 - NA)
        stamp(3)
        for k in range(28, D2 - 8, -4): drain_step(k)
    else:
        redepth(DV, D2)
        a("s_mov_b32 %s, 8", sCNT)
        a("L_ld_s2h:")
        pair_group(R3, R3, "v12", 16 * 1152, D2)
        loop_end("L_ld_s2h")
        stamp(3)
    a("s_branch L_ld_drain2")
    a("L_ld_lt:")
    if o.ltwait and not o.ldonly:
        redepth(DV, 4)
        lds_wait_ge({1: F_QRDY, 2: F_A1, 3: F_A2}[o.ltwait], "1")
        redepth(4, DL)
    else:
        redepth(DV, DL)
    a("s_add_u32 %s, %s, 128\ns_cmp_eq_u32 %s, 8\ns_cselect_b32 %s, 0x70000000, %s", sO2, sOFF, sCB, sO2, sO2)
    NL = o.ltsplit if not o.ldonly else 0
    a("s_mov_b32 m0, %d\ns_mov_b32 %s, %d", RA, sCNT, NL or 20)
    a("L_ld_s2l:")
    pair_group(R3, R3, "v12", 8 * 1152, DL)
    loop_end("L_ld_s2l")
    if NL:
        redepth(DL, 4)
        lds_wait_ge(F_HOK, "4")
        DL = o.depthl2
        redepth(4, DL)
        a("s_mov_b32 %s, %d", sCNT, 20 - NL)
        a("L_ld_s2m:")
        pair_group(R3, R3, "v12", 8 * 1152, DL)
        loop_end("L_ld_s2m")
    stamp(3)
    assert DL >= D2
    for k in range(DL - 8, -1, -4):
        if k == D2 - 8: a("L_ld_drain2:")
        drain_step(k)
    stamp(4)
    stamps_out()
    if o.hold:
        a("s_cmp_lg_u32 s2, %d\ns_cbranch_scc1 L_end", o.holdwg)
        a("s_memrealtime s[70:71]\ns_waitcnt lgkmcnt(0)\ns_sub_u32 %s, s70, s86\ns_mul_i32 %s, %s, %d\ns_add_u32 %s, %s, %d", sT1, sT1, sT1, o.holdmul, sT1, sT1, o.hold)
        a("L_hold:\ns_memrealtime s[70:71]\ns_waitcnt lgkmcnt(0)\ns_sub_u32 %s, s70, s86\ns_cmp_lt_u32 %s, %s\ns_cbranch_scc1 L_hold", sT0, sT0, sT1)
    a("s_endpgm")

    a("L_cons3:")
    a("s_barrier")
    if o.ldonly: a("s_endpgm")
    mk_srd(RW, 26, W_END)
    a("s_add_u32 s%d, s26, 0x%x\ns_addc_u32 s%d, s27, 0\ns_mov_b32 s%d, 0x%x\ns_mov_b32 s%d, 0x00020000", RB, BOFF, RB + 1, RB + 2, W_AEND, RB + 3)
    a("s_mov_b32 %s, 0", sVER)
    a("s_mov_b32 %s, -1000", sSEEN)
    a("v_lshrrev_b32 v8, 4, v0\nv_and_b32 v9, 15, v0\nv_mov_b32 v14, 0xffffff00")
    roles()
    a("s_cmp_ge_u32 %s, 5\ns_cbranch_scc1 L_att", sWV)

    sW, sIT, sTH = "s90", "s91", "s92"
    a("s_sub_u32 %s, %s, 1", sW, sWV)
    a("v_lshrrev_b32 v11, 3, v0\nv_and_b32 v11, 3, v11\nv_xor_b32 v11, %s, v11", sW)
    a("v_lshlrev_b32 v11, 5, v11\nv_and_b32 v12, 3, v0\nv_lshl_add_u32 v11, v12, 3, v11")
    a("v_lshrrev_b32 v10, 2, v0\nv_lshl_add_u32 v10, v10, 7, v11")
    a("v_lshrrev_b32 v15, 5, v0\nv_lshl_add_u32 v15, v15, 10, v10")
    a("v_add_u32 v15, %d, v15", RA)
    a("v_and_b32 v12, 1, v0")
    a("s_mov_b32 %s, 0xffff0000", sT0)
    a("s_waitcnt vmcnt(0)")
    stamp(1)
    X = 28
    for k in range(9):
        a("v_lshlrev_b32 v%d, 16, v%d\nv_and_b32 v%d, %s, v%d", X + 2 * k, 16 + k, X + 2 * k + 1, sT0, 16 + k)
    def half_allreduce_add(v, t):
        for dp in ("quad_perm:[1,0,3,2]", "quad_perm:[2,3,0,1]", "row_ror:4", "row_ror:8"):
            a("s_nop 1\nv_add_f32_dpp %s, %s, %s %s row_mask:0xf bank_mask:0xf", v, v, v, dp)
        a("v_mov_b32 %s, %s\ns_nop 1\nv_permlane16_swap_b32 %s, %s\nv_add_f32 %s, %s, %s", t, v, v, t, v, v, t)
    a("v_add_f32 v4, v%d, v%d\nv_add_f32 v5, v%d, v%d", X, X + 1, X + 2, X + 3)
    for k in range(4, 18, 2):
        a("v_add_f32 v4, v4, v%d\nv_add_f32 v5, v5, v%d", X + k, X + k + 1)
    a("v_add_f32 v4, v4, v5")
    half_allreduce_add("v4", "v5")
    a("v_mul_f32 v4, 0x3ae38e39, v4\nv_mov_b32 v5, 0\nv_mov_b32 v25, 0")
    for k in range(0, 18, 2):
        a("v_sub_f32 v26, v%d, v4\nv_sub_f32 v27, v%d, v4\nv_fmac_f32 v5, v26, v26\nv_fmac_f32 v25, v27, v27", X + k, X + k + 1)
    a("v_add_f32 v5, v5, v25")
    half_allreduce_add("v5", "v25")
    a("v_mul_f32 v5, 0x3ae38e39, v5")
    a("v_cvt_pk_bf16_f32 v4, v4, v5")
    a("v_and_b32 v5, %s, v4\nv_lshlrev_b32 v4, 16, v4", sT0)
    a("v_add_f32 v5, 0x3727c5ac, v5")
    a("v_cvt_pk_bf16_f32 v5, v5, v5\nv_lshlrev_b32 v5, 16, v5")
    a("v_sqrt_f32 v5, v5\ns_nop 0")
    a("v_cvt_pk_bf16_f32 v5, v5, v5\nv_lshlrev_b32 v5, 16, v5")
    a("v_rcp_f32 v5, v5")
    for k in range(9):
        a("v_sub_f32 v26, v%d, v4\nv_sub_f32 v27, v%d, v4", X + 2 * k, X + 2 * k + 1)
        a("v_cvt_pk_bf16_f32 v26, v26, v27")
        a("v_and_b32 v27, %s, v26\nv_lshlrev_b32 v26, 16, v26", sT0)
        a("v_mul_f32 v26, v26, v5\nv_mul_f32 v27, v27, v5")
        a("v_cvt_pk_bf16_f32 v%d, v26, v27", 16 + k)
    for k in range(0, 8, 2):
        a("ds_write2_b32 v13, v%d, v%d offset0:%d offset1:%d", 16 + k, 17 + k, XN // 4 + k, XN // 4 + k + 1)
    a("ds_write_b32 v13, v24 offset:%d", XN + 32)
    a("v_mul_u32_u24 v11, %d, v12\nv_lshl_add_u32 v11, v8, 3, v11\nv_add_u32 v11, %d, v11", XN_P, XN)
    a("s_and_b32 %s, %s, 3\ns_mul_i32 %s, %s, 288\nv_add_u32 v13, %s, v11", sT0, sIDX, sT0, sT0, sT0)
    for s in range(4):
        a("ds_read2_b64 v[%d:%d], v13 offset0:%d offset1:%d", 40 + 4 * s, 43 + 4 * s, 8 * s, 8 * s + 4)
    a("ds_read_b64 v[56:57], v13 offset:256")
    for r in range(8): a("v_mov_b32 v%d, 0", 60 + r)
    a("v_add_u32 v13, %d, v10", RWQ)
    stamp(2)
    get_tag()
    a("v_lshlrev_b32 v1, 6, v9\nv_lshl_add_u32 v1, v8, 4, v1")
    a("s_lshr_b32 %s, %s, 2\ns_xor_b32 %s, %s, %d", sT0, sIDX, sT0, sT0, o.wqx)
    a("s_lshr_b32 %s, %s, 2\ns_lshl1_add_u32 %s, %s, %s\ns_and_b32 %s, %s, 3\ns_lshl2_add_u32 %s, %s, %s", sT1, sT0, sT1, sX, sT1, sT2, sIDX, sT1, sT1, sT2)
    a("s_and_b32 %s, %s, 3\ns_lshl2_add_u32 %s, %s, %s\ns_lshl2_add_u32 %s, %s, %s", sT0, sT0, sT1, sT1, sT0, sT1, sT1, sW)
    a("s_lshl_b32 %s, %s, 7\ns_add_u32 s93, %s, %d", sT1, sT1, sT1, W_Q)
    a("v_cmp_gt_u32 vcc, 2, v9\ns_mov_b64 %s, vcc", sEX)
    lds_wait_ge(F_PROG, "18", cache=sSEEN)
    for q in range(9):
        a("ds_read_b64_tr_b16 v[%d:%d], v13 offset:%d", 16 + 2 * q, 17 + 2 * q, q * 2048)
    for s in range(4):
        a("s_waitcnt lgkmcnt(%d)", 7 - 2 * s)
        mfma(60, 16 + 4 * s, 40 + 4 * s)
    a("s_waitcnt lgkmcnt(0)")
    a("v_mfma_f32_16x16x16_bf16 v[64:67], v[32:33], v[56:57], v[64:67]")
    flag_add(F_C1)
    a("s_nop 4")
    for r in range(4): a("v_add_f32 v%d, v%d, v%d", 72 + r, 60 + r, 64 + r)
    tag_merge(72)
    a("s_mov_b64 exec, %s", sEX)
    a("buffer_store_dwordx4 v[72:75], v1, %s, s93 offen", srd(RW))
    a("s_mov_b64 exec, -1")
    a("s_mov_b32 s99, s93")
    stamp(3)
    def q_republish():
        get_ver()
        two_way(lambda: None, lambda: a("s_mov_b64 exec, %s\nbuffer_store_dwordx4 v[72:75], v1, %s, s99 offen sc1\ns_mov_b64 exec, -1", sEX, srd(RB)))
    Lh = a.lab("LH")
    a("s_cmp_lt_u32 %s, 27\ns_cbranch_scc1 %s", sIDX, Lh)
    q_republish()
    a("s_branch L_w_s2")
    a("%s:" % Lh)
    a("s_mul_i32 %s, %s, 384\nv_add_u32 v13, %s, v11", sT0, sM3, sT0)
    for s in range(6):
        a("ds_read2_b64 v[%d:%d], v13 offset0:%d offset1:%d", 40 + 4 * s, 43 + 4 * s, 8 * s, 8 * s + 4)
    for r in range(8): a("v_mov_b32 v%d, 0", 64 + r)
    for h, sd in ((0, "s93"), (1, "s98")):
        gu_img(h, sT0, sT1)
        a("s_mul_i32 %s, %s, 3\ns_add_u32 %s, %s, %s\ns_mul_i32 %s, %s, 36864", sT0, sT0, sT0, sT0, sM3, sT0, sT0)
        a("s_lshl2_add_u32 %s, %s, %s\ns_lshl_b32 %s, %s, 7\ns_add_u32 %s, %s, %s\ns_add_u32 %s, %s, %d", sT1, sT1, sW, sT1, sT1, sT0, sT0, sT1, sd, sT0, W_G)
    for s in range(6):
        if s == 3: q_republish()
        lds_wait_ge(F_PROG, str(P_G + 8 * s + 8 + 4 * (s // o.mix)), cache=sSEEN)
        for h in range(2):
            for q in range(2):
                a("ds_read_b64_tr_b16 v[%d:%d], v15 offset:%d", 16 + 4 * h + 2 * q, 17 + 4 * h + 2 * q, s * 8192 + q * 4096 + h * 1024)
        a("s_waitcnt lgkmcnt(2)")
        mfma(64, 16, 40 + 4 * s)
        a("s_waitcnt lgkmcnt(0)")
        mfma(68, 20, 40 + 4 * s)
    stamp(4)
    a("s_nop 5")
    tag_merge(64)
    tag_merge(68)
    a("s_mov_b64 exec, %s", sEX)
    pub([("v[64:67]", "s93", 0), ("v[68:71]", "s98", 0)])
    a("s_mov_b64 exec, -1")
    a("L_w_s2:")
    WF, VF, AC = 16, 48, 80
    a("v_mul_u32_u24 v11, %d, v12\nv_lshl_add_u32 v11, v8, 4, v11", VEC2_P)
    for r in range(8): a("v_mov_b32 v%d, 0", AC + r)
    a("v_add_u32 v10, %d, v10", RWQ)
    a("s_lshl2_add_u32 %s, %s, %s\ns_lshl_b32 %s, %s, 12\ns_lshl_b32 %s, %s, 7\ns_add_u32 %s, %s, %s\ns_add_u32 s93, %s, %d", sT0, sCB, sW, sT0, sT0, sT1, sTEAM, sT0, sT0, sT1, sT0, W_F)
    a("s_cmp_ge_u32 %s, 16\ns_cbranch_scc1 L_w_dn", sTEAM)
    for s_ in range(0, 8, 2):
        lds_wait_ge(F_PROG, str(130 + 4 * s_ + 8), cache=sSEEN)
        for q in range(4):
            a("ds_read_b64_tr_b16 v[%d:%d], v10 offset:%d", WF + 4 * s_ + 2 * q, WF + 4 * s_ + 2 * q + 1, s_ * 4096 + q * 2048)
    stamp(5)
    if o.spec:
        a("s_mov_b32 %s, 0", sTMO)
        a("L_wo_spin:")
        a("s_waitcnt lgkmcnt(6)")
        a("ds_read_b32 v2, v3 offset:%d", F_VRDY)
        for s_ in range(8):
            a("ds_read_b128 v[%d:%d], v11 offset:%d", VF + 4 * s_, VF + 4 * s_ + 3, VEC2 + 64 * s_)
        a("s_add_u32 %s, %s, 1\ns_cmp_gt_u32 %s, 0x80000\ns_cbranch_scc1 L_wo_go", sTMO, sTMO, sTMO)
        a("s_waitcnt lgkmcnt(8)")
        a("v_readfirstlane_b32 %s, v2", sT3)
        a("s_cmp_lt_i32 %s, 4\ns_cbranch_scc1 L_wo_spin", sT3)
    else:
        lds_wait_ge(F_VRDY, "4")
        for s_ in range(8):
            a("ds_read_b128 v[%d:%d], v11 offset:%d", VF + 4 * s_, VF + 4 * s_ + 3, VEC2 + 64 * s_)
    a("L_wo_go:")
    for s_ in range(8):
        a("s_waitcnt lgkmcnt(%d)", 7 - s_)
        mfma(AC, WF + 4 * s_, VF + 4 * s_)
    stamp(6)
    a("L_s2_pub:")
    a("s_mov_b64 exec, %s", sEX)
    a("s_nop 6")
    tag_merge(AC, rnd=False)
    a("buffer_store_dwordx4 v[%d:%d], v1, %s, s93 offen sc1", AC, AC + 3, srd(RW))
    if o.wb & 3 == 2:
        a("s_cmp_lg_u32 %s, %d\ns_cbranch_scc1 L_w_end", sCB, o.wbcb)
        a("s_cmp_lg_u32 %s, 0\ns_cbranch_scc1 L_w_end", sW)
        a("s_cmp_ge_u32 %s, 16\ns_cbranch_scc1 L_w_end", sTEAM)
        a("s_waitcnt vmcnt(0)")
        a("buffer_wbl2 sc1")
    a("L_w_end:")
    stamp(7)
    stamps_out()
    a("s_endpgm")
    flush_ool()

    a("L_w_dn:")
    HA, HA2, HW, HW2, HC = "v60", "v61", "v62", "v63", "v64"
    a("v_lshrrev_b32 v4, 5, v0\nv_mul_u32_u24 %s, 110592, v4\nv_and_b32 v4, 31, v0\nv_lshl_add_u32 %s, v4, 4, %s", HA, HA, HA)
    a("s_lshl_b32 %s, %s, 3\ns_lshl_b32 %s, %s, 9\ns_add_u32 %s, %s, %s\ns_add_u32 s48, %s, %d", sT0, sR0, sT1, sW, sT0, sT0, sT1, sT0, W_G)
    a("s_add_u32 s49, s48, 36864\ns_add_u32 s50, s48, 73728")
    a("v_bfe_u32 v4, v0, 2, 1\nv_mul_u32_u24 %s, %d, v4\nv_bfe_u32 v4, v0, 4, 1\nv_lshl_add_u32 %s, v4, 6, %s\nv_and_b32 v4, 3, v0\nv_lshl_add_u32 %s, v4, 4, %s\nv_bfe_u32 v4, v0, 3, 1\nv_lshl_add_u32 %s, v4, 3, %s", HW, VEC2_P, HW, HW, HW, HW, HW, HW)
    a("s_lshl_b32 %s, %s, 7\nv_add_u32 %s, %s, %s", sT2, sW, HW, sT2, HW)
    c1 = -2.0 * math.sqrt(2.0 / math.pi) * math.log2(math.e)
    a("s_mov_b32 s51, 0x%08x\nv_mov_b32 %s, 0x%08x\ns_mov_b32 s52, 0xffff0000", f2u(c1 * 0.044715), HC, f2u(c1))
    a("s_cmp_eq_u32 %s, 0\ns_cselect_b32 %s, %s, 32", sW, sIT, sNS2)
    a("v_add_u32 %s, 2048, %s\nv_add_u32 %s, 512, %s", HA2, HA, HW2, HW)
    a("s_mov_b32 %s, %d\ns_cmp_eq_u32 %s, 80\ns_cselect_b32 %s, %d, %s", sTH, o.hpoll, sNS2, sTH, o.hpolll or o.hpoll, sTH)
    lds_wait_ge(F_PROG, sTH, cache=sSEEN)
    a("s_mov_b32 %s, 0", sTMO)
    if o.nopoll & 2: a("s_branch L_h_ok")
    a("L_h_poll:")
    for r in range(2):
        if r == 1: a("s_cmp_eq_u32 %s, 32\ns_cbranch_scc1 L_h_w", sIT)
        fetch([(16 + 12 * r + 4 * sl, HA if r < 1 else HA2, "s%d" % (48 + sl), 0) for sl in range(3)])
    a("L_h_w:")
    a("s_add_u32 %s, %s, 1\ns_cmp_gt_u32 %s, 0x8000\ns_cbranch_scc1 L_h_ok", sTMO, sTMO, sTMO)
    a("s_waitcnt vmcnt(0)")
    for k in range(6):
        if k == 3: a("s_cmp_eq_u32 %s, 32\ns_cbranch_scc1 L_h_c", sIT)
        tag_bad("v4", 16 + 4 * k, k == 0)
    a("L_h_c:")
    a("v_and_b32 v4, 0xff, v4\nv_cmp_ne_u32 vcc, 0, v4\ns_and_b64 exec, exec, vcc\ns_cbranch_vccnz L_h_poll")
    a("L_h_ok:")
    if o.ltsplit: flag_add(F_HOK)
    a("s_mov_b64 exec, -1")
    a("s_waitcnt vmcnt(0)")
    for r in range(2):
        if r == 1: a("s_cmp_eq_u32 %s, 32\ns_cbranch_scc1 L_h_done", sIT)
        B = 16 + 12 * r
        for k in range(4): a("v_add_f32 v%d, v%d, v%d", B + k, B + k, B + 4 + k)
        for k in range(4): a("v_add_f32 v%d, v%d, v%d", B + k, B + k, B + 8 + k)
        a("v_cvt_pk_bf16_f32 v%d, v%d, v%d\nv_cvt_pk_bf16_f32 v%d, v%d, v%d", B, B, B + 1, B + 1, B + 2, B + 3)
        a("v_mov_b32 v%d, v%d\nv_mov_b32 v%d, v%d\ns_nop 1", B + 2, B, B + 3, B + 1)
        a("v_permlane32_swap_b32 v%d, v%d\nv_permlane32_swap_b32 v%d, v%d", B, B + 2, B + 1, B + 3)
        G, U, T = B + 4, B + 8, 4
        a("v_lshlrev_b32 v%d, 16, v%d\nv_and_b32 v%d, s52, v%d\nv_lshlrev_b32 v%d, 16, v%d\nv_and_b32 v%d, s52, v%d", G, B, G + 1, B, G + 2, B + 1, G + 3, B + 1)
        a("v_lshlrev_b32 v%d, 16, v%d\nv_and_b32 v%d, s52, v%d\nv_lshlrev_b32 v%d, 16, v%d\nv_and_b32 v%d, s52, v%d", U, B + 2, U + 1, B + 2, U + 2, B + 3, U + 3, B + 3)
        for k in range(4): a("v_mul_f32 v%d, v%d, v%d", T + k, G + k, G + k)
        for k in range(4): a("v_fma_f32 v%d, v%d, s51, %s", T + k, T + k, HC)
        for k in range(4): a("v_mul_f32 v%d, v%d, v%d", T + k, T + k, G + k)
        for k in range(4): a("v_exp_f32 v%d, v%d", T + k, T + k)
        a("s_nop 0")
        for k in range(4): a("v_add_f32 v%d, 1.0, v%d", T + k, T + k)
        for k in range(4): a("v_rcp_f32 v%d, v%d", T + k, T + k)
        a("s_nop 0")
        for k in range(4): a("v_mul_f32 v%d, v%d, v%d", T + k, T + k, G + k)
        a("v_cvt_pk_bf16_f32 v%d, v%d, v%d\nv_cvt_pk_bf16_f32 v%d, v%d, v%d", B, T, T + 1, B + 1, T + 2, T + 3)
        a("v_lshlrev_b32 v%d, 16, v%d\nv_and_b32 v%d, s52, v%d\nv_lshlrev_b32 v%d, 16, v%d\nv_and_b32 v%d, s52, v%d", T, B, T + 1, B, T + 2, B + 1, T + 3, B + 1)
        for k in range(4): a("v_mul_f32 v%d, v%d, v%d", T + k, T + k, U + k)
        a("v_cvt_pk_bf16_f32 v%d, v%d, v%d\nv_cvt_pk_bf16_f32 v%d, v%d, v%d", B, T, T + 1, B + 1, T + 2, T + 3)
        a("ds_write_b64 %s, v[%d:%d] offset:%d", HW if r < 1 else HW2, B, B + 1, VEC2)
    a("L_h_done:")
    if o.wb & 4:
        Lb2 = a.lab("LWB")
        a("s_cmp_lg_u32 %s, 31\ns_cbranch_scc1 %s", sIDX, Lb2)
        a("s_cmp_lg_u32 %s, 1\ns_cbranch_scc1 %s", sW, Lb2)
        a("buffer_wbl2 sc1")
        a("%s:" % Lb2)
    flag_add(F_VRDY)
    stamp(5)
    lds_wait_ge(F_VRDY, "4")
    stamp(6)
    a("s_add_u32 %s, %s, 8", sTH, sB2)
    a("s_cmp_eq_u32 %s, 80\ns_cbranch_scc1 L_lt", sNS2)
    def dn_reads(R, it):
        lds_wait_ge(F_PROG, str(130 + 8 * it + 8), cache=sSEEN, hot=(0 < it < 3))
        a("ds_read_b64_tr_b16 v[%d:%d], v10 offset:%d", R, R + 1, it * 8192)
        a("ds_read_b64_tr_b16 v[%d:%d], v10 offset:%d", R + 2, R + 3, it * 8192 + 2048)
        a("ds_read_b128 v[%d:%d], v11 offset:%d", R + 8, R + 11, VEC2 + 128 * it)
        a("ds_read_b64_tr_b16 v[%d:%d], v10 offset:%d", R + 4, R + 5, it * 8192 + 4096)
        a("ds_read_b64_tr_b16 v[%d:%d], v10 offset:%d", R + 6, R + 7, it * 8192 + 6144)
        a("ds_read_b128 v[%d:%d], v11 offset:%d", R + 12, R + 15, VEC2 + 128 * it + 64)
    dn_reads(16, 0)
    for it in range(4):
        R = 16 + 16 * (it & 1)
        if it < 3: dn_reads(16 + 16 * ((it + 1) & 1), it + 1)
        n = 6 if it < 3 else 0
        a("s_waitcnt lgkmcnt(%d)", n + 3)
        mfma(AC, R, R + 8)
        a("s_waitcnt lgkmcnt(%d)", n)
        mfma(AC, R + 4, R + 12)
    a("s_branch L_s2_pub")
    def lt_reads(st):
        R = 16 + 12 * (st % 4)
        va, off = ("v15", st) if st < 8 else ("v13", st - 8)
        lds_wait_ge(F_PROG, str(82 + 8 * st + 8), cache=sSEEN, hot=(0 < st < 9))
        a("ds_read_b128 v[%d:%d], v11 offset:%d", R + 8, R + 11, VEC2 + 64 * st)
        a("ds_read_b64_tr_b16 v[%d:%d], %s offset:%d", R, R + 1, va, off * 8192)
        a("ds_read_b64_tr_b16 v[%d:%d], %s offset:%d", R + 2, R + 3, va, off * 8192 + 4096)
        a("ds_read_b64_tr_b16 v[%d:%d], %s offset:%d", R + 4, R + 5, va, off * 8192 + 1024)
        a("ds_read_b64_tr_b16 v[%d:%d], %s offset:%d", R + 6, R + 7, va, off * 8192 + 5120)
    def lt_mm(st, n):
        R = 16 + 12 * (st % 4)
        a("s_waitcnt lgkmcnt(%d)", n + 2)
        mfma(AC, R, R + 8)
        a("s_waitcnt lgkmcnt(%d)", n)
        mfma(AC + 4, R + 4, R + 8)
    a("L_lt:")
    a("v_add_u32 v13, 0x10000, v15")
    AH = 2
    for st in range(10 + AH):
        if st < 10: lt_reads(st)
        if st >= AH: lt_mm(st - AH, 5 * (min(st, 9) - (st - AH)))
    a("s_cmp_eq_u32 %s, 8\ns_cbranch_scc1 L_s2_pub", sCB)
    a("s_mov_b64 exec, %s\ns_add_u32 %s, s93, 16384\ns_nop 4", sEX, sT0)
    tag_merge(AC + 4, rnd=False)
    a("buffer_store_dwordx4 v[%d:%d], v1, %s, %s offen sc1", AC + 4, AC + 7, srd(RW), sT0)
    a("s_branch L_s2_pub")
    flush_ool()

    sA = "s90"
    a("L_att:")
    a("s_sub_u32 %s, %s, 5", sA, sWV)
    a("v_lshrrev_b32 v10, 2, v9\nv_mul_u32_u24 v10, %d, v10", KP)
    a("v_and_b32 v11, 3, v0\nv_lshl_add_u32 v10, v11, 8, v10\nv_xor_b32 v11, v11, v8\nv_lshl_add_u32 v10, v11, 4, v10")
    a("s_mul_i32 %s, %s, %d\ns_add_u32 %s, %s, %d\nv_add_u32 v10, %s, v10", sT0, sA, 8 * KP, sT0, sT0, RK, sT0)
    VA = 72
    a("v_mul_u32_u24 v12, %d, v8", VP)
    a("v_lshrrev_b32 v11, 2, v9\nv_lshl_add_u32 v12, v11, 8, v12\nv_lshlrev_b32 v11, 5, v11")
    a("s_lshl_b32 %s, %s, 6\nv_xor_b32 v11, %s, v11\nv_add_u32 v12, v12, v11", sT0, sA, sT0)
    a("v_and_b32 v11, 3, v0\nv_lshl_add_u32 v12, v11, 3, v12")
    a("v_add_u32 v%d, %d, v12", VA, RV)
    a("v_xor_b32 v%d, 32, v%d", VA + 1, VA)
    KF, QF, SC, PF, VF, OA = 16, 48, 64, 16, 32, 40
    a("v_lshlrev_b32 v1, 6, v9\nv_lshl_add_u32 v1, v8, 4, v1")
    a("v_cmp_gt_u32 vcc, 2, v9\ns_mov_b64 %s, vcc", sEX)
    if o.touch:
        a("s_cmp_lg_u32 %s, 2\ns_cbranch_scc1 L_a_not", sA)
        a("v_lshlrev_b32 v11, 7, v0")
        a("s_lshl4_add_u32 %s, %s, %s\ns_lshl_b32 %s, %s, 9\ns_add_u32 %s, %s, %d\ns_lshl_b32 %s, %s, 10\ns_add_u32 %s, %s, %d", sT0, sG, sI, sT1, sT0, sT1, sT1, W_Q, sT0, sT0, sT0, sT0, W_O)
        a("s_mov_b64 exec, 0xf")
        if o.touch & 1: a("buffer_load_dword v76, v11, %s, %s offen nt", srd(RW), sT1)
        a("s_mov_b64 exec, 0xff")
        if o.touch & 4: a("buffer_load_dword v77, v11, %s, %s offen nt", srd(RW), sT0)
        a("s_mov_b64 exec, 0xf")
        if o.touch & 2:
            a("s_cmp_ge_u32 %s, 27\ns_cbranch_scc1 L_a_not", sIDX)
            for h in range(2):
                gu_img(h, sT0, sT1)
                a("s_mul_i32 %s, %s, 3\ns_add_u32 %s, %s, %s\ns_mul_i32 %s, %s, 36864", sT0, sT0, sT0, sT0, sM3, sT0, sT0)
                a("s_lshl_b32 %s, %s, 9\ns_add_u32 %s, %s, %s\ns_add_u32 %s, %s, %d", sT1, sT1, sT0, sT0, sT1, sT0, sT0, W_G)
                a("buffer_load_dword v%d, v11, %s, %s offen nt", 78 + h, srd(RW), sT0)
        a("L_a_not:")
        a("s_mov_b64 exec, -1")
    get_tag()
    a("s_cmp_lg_u32 %s, 1\ns_cbranch_scc1 L_a_nov", sA)
    if o.nover: a("v_mov_b32 v4, 1\nds_write_b32 v3, v4 offset:%d\ns_branch L_a_nov", F_VER)
    a("s_getreg_b32 %s, hwreg(HW_REG_XCC_ID, 0, 4)", sT2)
    a("s_lshl_b32 %s, %s, 8\ns_add_u32 %s, %s, %d\ns_lshl3_add_u32 %s, %s, %s", sT0, sX, sT0, sT0, W_V, sT1, sIDX, sT0)
    a("v_mov_b32 v4, %s\nv_mov_b32 v5, %s\nv_lshlrev_b32 v11, 3, v0", sTAG, sT2)
    a("s_mov_b64 exec, 1\nbuffer_store_dwordx2 v[4:5], v3, %s, %s offen sc1\ns_mov_b64 exec, -1", srd(RW), sT1)
    lds_wait_ge(F_PROG, str(o.vpoll), cache=sSEEN)
    a("s_mov_b32 exec_hi, 0\ns_mov_b32 %s, 0", sTMO)
    a("L_a_vpoll:")
    a("buffer_load_dwordx2 v[6:7], v11, %s, %s offen sc1", srd(RW), sT0)
    a("s_add_u32 %s, %s, 1\ns_cmp_gt_u32 %s, 0x8000\ns_cbranch_scc1 L_a_vok", sTMO, sTMO, sTMO)
    a("s_waitcnt vmcnt(0)")
    a("v_cmp_ne_u32 vcc, %s, v6\ns_cbranch_vccnz L_a_vpoll", sTAG)
    a("L_a_vok:")
    a("s_waitcnt vmcnt(0)")
    a("v_cmp_ne_u32 vcc, %s, v7\ns_mov_b64 exec, -1", sT2)
    a("s_cmp_eq_u64 vcc, 0\ns_cselect_b32 %s, %d, 2\nv_mov_b32 v4, %s", sT0, 1 if o.local else 2, sT0)
    a("ds_write_b32 v3, v4 offset:%d", F_VER)
    a("L_a_nov:")
    a("s_cmp_lg_u32 %s, 0\ns_cbranch_scc1 L_a_k", sA)
    lds_wait_ge(F_PROG, str(o.qpoll), cache=sSEEN)
    a("v_lshrrev_b32 v11, 2, v0\nv_lshlrev_b32 v11, 7, v11\nv_and_b32 v12, 3, v0\nv_lshl_add_u32 v11, v12, 4, v11")
    a("s_lshl_b32 %s, %s, 13\ns_lshr_b32 %s, %s, 3\ns_lshl_b32 %s, %s, 6\ns_add_u32 %s, %s, %s\ns_add_u32 %s, %s, %d\ns_add_u32 %s, %s, 4096",
      sT0, sG, sT1, sI, sT1, sT1, sT0, sT0, sT1, sT0, sT0, W_Q, sT1, sT0)
    a("s_mov_b32 %s, 0", sTMO)
    if o.nopoll & 1: a("s_branch L_a_qok")
    a("s_mov_b32 %s, 1\ns_mov_b32 s53, 0", sVER)
    a("L_a_qpoll:")
    fetch([(16 + 4 * r, "v11", sT0 if r < 2 else sT1, (r & 1) * 2048) for r in range(4)])
    a("s_add_u32 s53, s53, 1\ns_cmp_gt_u32 s53, 0x8000\ns_cbranch_scc1 L_a_qok")
    a("s_waitcnt vmcnt(0)")
    for r in range(4): tag_bad("v4", 16 + 4 * r, r == 0)
    a("v_and_b32 v4, 0xff, v4\nv_cmp_ne_u32 vcc, 0, v4\ns_cbranch_vccz L_a_qok")
    a("s_mov_b32 %s, 0", sVER)
    get_ver()
    a("s_branch L_a_qpoll")
    a("L_a_qok:")
    a("s_mov_b32 %s, 0", sVER)
    a("s_waitcnt vmcnt(0)")
    for k in range(4):
        a("v_add_f32 v%d, v%d, v%d\nv_add_f32 v%d, v%d, v%d\nv_add_f32 v%d, v%d, v%d", 16 + k, 16 + k, 20 + k, 24 + k, 24 + k, 28 + k, 16 + k, 16 + k, 24 + k)
    a("v_cvt_pk_bf16_f32 v4, v16, v17\nv_cvt_pk_bf16_f32 v5, v18, v19")
    a("v_lshlrev_b32 v11, 3, v0\nv_mov_b32 v6, 1")
    a("ds_write_b64 v11, v[4:5] offset:%d", QV)
    a("ds_write_b32 v3, v6 offset:%d", F_QRDY)
    a("L_a_k:")
    lds_wait_ge(F_QRDY, "1")
    stamp(1)
    a("v_and_b32 v12, 1, v0\nv_lshlrev_b32 v11, 8, v12\nv_lshl_add_u32 v11, v8, 4, v11")
    for c in range(4):
        a("ds_read_b128 v[%d:%d], v11 offset:%d", QF + 4 * c, QF + 4 * c + 3, QV + c * 64)
    for r in range(8): a("v_mov_b32 v%d, 0", SC + r)
    a("s_sub_u32 %s, %s, 32", sTH, sB2)
    lds_wait_ge(F_PROG, sTH, cache=sSEEN)
    stamp(2)
    for c in range(4):
        for t in range(2):
            a("ds_read_b128 v[%d:%d], v10 offset:%d", KF + 16 * t + 4 * c, KF + 16 * t + 4 * c + 3, t * 4 * KP + c * 64)
    for c in range(4):
        for t in range(2):
            a("s_waitcnt lgkmcnt(%d)", 7 - 2 * c - t)
            mfma(SC + 4 * t, KF + 16 * t + 4 * c, QF + 4 * c)
    a("s_mov_b32 %s, 0xffff0000\ns_mov_b32 %s, 0x3db504f3\ns_mov_b32 %s, 0x3fb8aa3b", sT0, sT1, sT2)
    a("v_lshlrev_b32 v12, 2, v12\ns_lshl_b32 %s, %s, 3\nv_add_u32 v13, %s, v12", sT3, sA, sT3)
    a("s_nop 4")
    for k in range(0, 8, 2):
        a("v_cvt_pk_bf16_f32 v4, v%d, v%d", SC + k, SC + k + 1)
        a("v_and_b32 v5, %s, v4\nv_lshlrev_b32 v4, 16, v4", sT0)
        a("v_mul_f32 v4, %s, v4\nv_mul_f32 v5, %s, v5", sT1, sT1)
        a("v_cvt_pk_bf16_f32 v4, v4, v5")
        a("v_and_b32 v%d, %s, v4\nv_lshlrev_b32 v%d, 16, v4", SC + k + 1, sT0, SC + k)
    a("v_max3_f32 v4, v%d, v%d, v%d\nv_max3_f32 v5, v%d, v%d, v%d\nv_max3_f32 v4, v4, v%d, v%d\nv_max_f32 v4, v4, v5", *[SC + k for k in range(8)])
    def rows_allreduce(op, v, t):
        a("v_mov_b32 %s, %s\ns_nop 1\nv_permlane16_swap_b32 %s, %s\n%s %s, %s, %s", t, v, v, t, op, v, v, t)
        a("v_mov_b32 %s, %s\ns_nop 1\nv_permlane32_swap_b32 %s, %s\n%s %s, %s, %s", t, v, v, t, op, v, v, t)
    rows_allreduce("v_max_f32", "v4", "v5")
    a("ds_write_b32 v13, v4 offset:%d", MX)
    flag_add(F_A1)
    lds_wait_ge(F_A1, "4")
    a("ds_read2_b32 v[4:5], v12 offset0:%d offset1:%d\nds_read2_b32 v[6:7], v12 offset0:%d offset1:%d" % (0, 2, 4, 6) if False else
      "v_add_u32 v11, %d, v12\nds_read2_b32 v[4:5], v11 offset0:0 offset1:2\nds_read2_b32 v[6:7], v11 offset0:4 offset1:6" % MX)
    a("s_waitcnt lgkmcnt(0)")
    a("v_max3_f32 v4, v4, v5, v6\nv_max_f32 v4, v4, v7")
    a("v_mul_f32 v15, %s, v4", sT2)
    for k in range(8): a("v_fma_f32 v%d, v%d, %s, -v15", SC + k, SC + k, sT2)
    for k in range(8): a("v_exp_f32 v%d, v%d", SC + k, SC + k)
    a("s_nop 0")
    a("v_add_f32 v5, v%d, v%d\nv_add_f32 v6, v%d, v%d", SC, SC + 1, SC + 2, SC + 3)
    a("v_add_f32 v5, v5, v%d\nv_add_f32 v6, v6, v%d\nv_add_f32 v5, v5, v%d\nv_add_f32 v6, v6, v%d\nv_add_f32 v5, v5, v6", SC + 4, SC + 5, SC + 6, SC + 7)
    rows_allreduce("v_add_f32", "v5", "v6")
    for k in range(4): a("v_cvt_pk_bf16_f32 v%d, v%d, v%d", 48 + k, SC + 2 * k, SC + 2 * k + 1)
    a("v_lshlrev_b32 v10, 4, v12\nv_lshl_add_u32 v10, v8, 4, v10")
    a("s_lshl_b32 %s, %s, 7\nv_add_u32 v7, %s, v10", sT3, sA, sT3)
    a("ds_write_b32 v13, v5 offset:%d", LS)
    a("ds_write_b128 v7, v[48:51] offset:%d", PB)
    flag_add(F_A2)
    for r in range(8): a("v_mov_b32 v%d, 0", OA + r)
    lds_wait_ge(F_A2, "4")
    a("ds_read2_b32 v[4:5], v11 offset0:8 offset1:10\nds_read2_b32 v[6:7], v11 offset0:12 offset1:14")
    for j in range(4):
        a("s_add_u32 s%d, %s, %d\ns_and_b32 s%d, s%d, 3\ns_lshl_b32 %s, s%d, 7\nv_add_u32 v13, %s, v10", 48 + j, sIDX, j, 48 + j, 48 + j, sT3, 48 + j, sT3)
        a("ds_read_b128 v[%d:%d], v13 offset:%d", PF + 4 * j, PF + 4 * j + 3, PB)
        a("s_mul_i32 s%d, s%d, %d", 48 + j, 48 + j, 8 * VP)
    a("s_waitcnt lgkmcnt(4)")
    a("v_add_f32 v4, v4, v5\nv_add_f32 v6, v6, v7\nv_add_f32 v4, v4, v6")
    a("v_log_f32 v5, v4\nv_rcp_f32 v13, v4")
    a("s_lshl4_add_u32 %s, %s, %s\ns_lshl2_add_u32 %s, %s, %s\ns_lshl_b32 %s, %s, 8\ns_add_u32 s93, %s, %d", sT0, sG, sI, sT0, sT0, sA, sT0, sT0, sT0, W_O)
    a("v_add_f32 v51, v15, v5\nv_add_f32 v55, v15, v5\nv_mov_b32 v50, %s\nv_mov_b32 v54, %s", sTAG, sTAG)
    get_ver()
    a("v_lshrrev_b32 v12, 5, v0\nv_and_b32 v11, 31, v0\nv_lshlrev_b32 v11, 4, v11\nv_lshl_add_u32 v11, v12, 12, v11")
    a("s_lshl_b32 %s, %s, 14\ns_lshr_b32 %s, %s, 1\ns_lshl_b32 %s, %s, 13\ns_add_u32 %s, %s, %s", sT0, sTEAM, sT1, sA, sT1, sT1, sT0, sT0, sT1)
    a("s_and_b32 %s, %s, 1\ns_lshl_b32 %s, %s, 9\ns_add_u32 %s, %s, %s\ns_add_u32 %s, %s, %d", sT1, sA, sT1, sT1, sT0, sT0, sT1, sT0, sT0, W_O)
    a("v_bfe_u32 v10, v0, 2, 1\nv_lshlrev_b32 v10, 8, v10\nv_lshl_add_u32 v10, v12, 2, v10\nv_bfe_u32 v12, v0, 4, 1\nv_lshl_add_u32 v10, v12, 6, v10\nv_and_b32 v12, 3, v0\nv_lshl_add_u32 v10, v12, 4, v10\nv_bfe_u32 v12, v0, 3, 1\nv_lshl_add_u32 v10, v12, 3, v10")
    a("s_lshr_b32 %s, %s, 1\ns_mul_i32 %s, %s, %d\ns_lshr_b32 %s, %s, 2\ns_add_u32 %s, %s, %s\nv_add_u32 v10, %s, v10", sT2, sA, sT2, sT2, VEC2_P, sT1, sT1, sT2, sT2, sT1, sT2)
    a("s_mov_b32 %s, 0xffff0000", sT1)
    stamp(3)
    a("s_sub_u32 %s, %s, 32", sTH, sB2)
    for j in range(4):
        a("s_add_u32 %s, %s, 8\nv_add_u32 v4, s%d, v%d\nv_add_u32 v5, s%d, v%d", sTH, sTH, 48 + j, VA, 48 + j, VA + 1)
        lds_wait_ge(F_PROG, sTH, cache=sSEEN)
        for d in range(2):
            for t in range(2):
                a("ds_read_b64_tr_b16 v[%d:%d], v%d offset:%d", VF + 4 * d + 2 * t, VF + 4 * d + 2 * t + 1, 4 + d, t * 4 * VP)
        a("s_waitcnt lgkmcnt(2)")
        mfma(OA, VF, PF + 4 * j)
        a("s_waitcnt lgkmcnt(0)")
        mfma(OA + 4, VF + 4, PF + 4 * j)
    a("s_mov_b64 exec, %s", sEX)
    a("s_nop 4")
    for r in range(8): a("v_mul_f32 v%d, v%d, v13", OA + r, OA + r)
    a("v_cvt_pk_bf16_f32 v48, v%d, v%d\nv_cvt_pk_bf16_f32 v49, v%d, v%d", OA, OA + 1, OA + 2, OA + 3)
    a("v_cvt_pk_bf16_f32 v52, v%d, v%d\nv_cvt_pk_bf16_f32 v53, v%d, v%d", OA + 4, OA + 5, OA + 6, OA + 7)
    pub([("v[48:51]", "s93", 0), ("v[52:55]", "s93", 128)])
    a("s_mov_b64 exec, -1")
    stamp(4)
    if o.burst:
        flag_add(F_PUB)
    a("s_cmp_ge_u32 %s, 16\ns_cbranch_scc1 %s", sTEAM, "L_a_red" if o.redbase else "L_a_end")
    if o.burst: lds_wait_ge(F_PUB, "4")
    if o.opoll: lds_wait_ge(F_PROG, str(o.opoll), cache=sSEEN)
    a("s_mov_b32 %s, 0", sTMO)
    if o.nopoll & 4: a("s_branch L_a_ook")
    if o.burst:
        fetch([(16 + 4 * k, "v11", sT0, k * 1024) for k in range(4)])
        flag_add(F_PUB)
        a("s_branch L_a_ochk")
    a("L_a_opoll:")
    fetch([(16 + 4 * k, "v11", sT0, k * 1024) for k in range(4)])
    a("L_a_ochk:")
    a("s_add_u32 %s, %s, 1\ns_cmp_gt_u32 %s, 0x8000\ns_cbranch_scc1 L_a_ook", sTMO, sTMO, sTMO)
    a("s_waitcnt vmcnt(0)")
    a("v_xor_b32 v4, %s, v18\nv_xor_b32 v5, %s, v22\nv_xor_b32 v6, %s, v26\nv_xor_b32 v7, %s, v30", sTAG, sTAG, sTAG, sTAG)
    a("v_or3_b32 v4, v4, v5, v6\nv_or_b32 v4, v4, v7")
    a("v_cmp_ne_u32 vcc, 0, v4\ns_and_b64 exec, exec, vcc\ns_cbranch_vccnz L_a_opoll")
    a("L_a_ook:")
    a("s_mov_b64 exec, -1")
    a("s_waitcnt vmcnt(0)")
    stamp(5)
    a("v_max3_f32 v4, v19, v23, v27\nv_max_f32 v4, v4, v31")
    a("v_mov_b32 v5, v4")
    a("v_lshlrev_b32 v32, 16, v16\nv_and_b32 v33, %s, v16", sT1)
    a("v_permlane32_swap_b32 v4, v5\nv_max_f32 v4, v4, v5")
    for k in range(4): a("v_sub_f32 v%d, v%d, v4", 19 + 4 * k, 19 + 4 * k)
    for k in range(4): a("v_exp_f32 v%d, v%d", 19 + 4 * k, 19 + 4 * k)
    a("v_lshlrev_b32 v34, 16, v17\nv_and_b32 v35, %s, v17", sT1)
    for r in range(4): a("v_mul_f32 v%d, v%d, v19", 32 + r, 32 + r)
    a("v_add_f32 v5, v19, v23\nv_add_f32 v6, v27, v31\nv_add_f32 v5, v5, v6\nv_mov_b32 v4, v5")
    for k in range(1, 4):
        w = 19 + 4 * k
        a("v_lshlrev_b32 v6, 16, v%d\nv_and_b32 v7, %s, v%d\nv_fmac_f32 v32, v%d, v6\nv_fmac_f32 v33, v%d, v7", 16 + 4 * k, sT1, 16 + 4 * k, w, w)
        if k == 1: a("v_permlane32_swap_b32 v4, v5\nv_add_f32 v4, v4, v5\nv_rcp_f32 v4, v4")
        a("v_lshlrev_b32 v6, 16, v%d\nv_and_b32 v7, %s, v%d\nv_fmac_f32 v34, v%d, v6\nv_fmac_f32 v35, v%d, v7", 17 + 4 * k, sT1, 17 + 4 * k, w, w)
    a("s_nop 1")
    a("v_permlane32_swap_b32 v32, v34\nv_permlane32_swap_b32 v33, v35")
    a("v_add_f32 v32, v32, v34\nv_add_f32 v33, v33, v35\nv_mul_f32 v32, v32, v4\nv_mul_f32 v33, v33, v4")
    a("v_cvt_pk_bf16_f32 v32, v32, v33")
    a("ds_write_b32 v10, v32 offset:%d", VEC2)
    flag_add(F_VRDY)
    stamp(6)
    if o.wb & 3 == 1:
        Lb = a.lab("LWB")
        a("s_cmp_lg_u32 %s, %d\ns_cbranch_scc1 %s", sCB, o.wbcb, Lb)
        a("s_cmp_lg_u32 %s, 0\ns_cbranch_scc1 %s", sA, Lb)
        lds_wait_ge(F_VRDY, "4")
        a("buffer_wbl2 sc1")
        a("%s:" % Lb)
    sRU = "s56"
    a("L_a_red:")
    a("s_cmp_lg_u32 %s, 3\ns_cbranch_scc1 L_a_end", sA)
    a("s_sub_u32 %s, s2, %d\ns_cmp_ge_u32 %s, 36\ns_cbranch_scc1 L_a_end", sRU, o.redbase, sRU)
    if o.fpoll: lds_wait_ge(F_PROG, str(o.fpoll), cache=sSEEN)
    mk_srd(R1, 22, 2304)
    a("v_bfe_u32 v12, v0, 2, 1\nv_mul_u32_u24 v12, 1152, v12\nv_and_b32 v11, 3, v0\nv_lshl_add_u32 v12, v11, 3, v12")
    a("v_and_b32 v11, 1, v8\nv_lshl_add_u32 v12, v11, 2, v12")
    a("s_lshl_b32 %s, %s, 5\nv_add_u32 v12, %s, v12", sT1, sRU, sT1)
    a("global_load_dword v40, v12, s[4:5]")
    if o.outpre: a("buffer_load_dword v42, v12, %s, 0 offen", srd(R1))
    a("s_lshl_b32 %s, %s, 12\ns_add_u32 %s, %s, %d", sT0, sRU, sT0, sT0, W_F)
    a("v_lshlrev_b32 v11, 4, v0")
    a("s_mov_b32 %s, 0xffff0000\ns_mov_b32 %s, 0", sT1, sTMO)
    a("s_waitcnt vmcnt(0)")
    a("v_and_b32 v41, %s, v40\nv_lshlrev_b32 v40, 16, v40", sT1)
    if o.nopoll & 8: a("s_branch L_a_fok")
    a("L_a_fpoll:")
    for k in range(4):
        a("buffer_load_dwordx4 v[%d:%d], v11, %s, %s offen offset:%d sc1", 16 + 4 * k, 19 + 4 * k, srd(RW), sT0, k * 1024)
    a("s_add_u32 %s, %s, 1\ns_cmp_gt_u32 %s, 0x8000\ns_cbranch_scc1 L_a_fok", sTMO, sTMO, sTMO)
    for k in range(4):
        a("s_waitcnt vmcnt(%d)", 3 - k)
        tag_bad("v4", 16 + 4 * k, k == 0)
    a("v_and_b32 v4, 0xff, v4\nv_cmp_ne_u32 vcc, 0, v4\ns_and_b64 exec, exec, vcc\ns_cbranch_vccnz L_a_fpoll")
    a("L_a_fok:")
    a("s_mov_b64 exec, -1")
    stamp(7)
    for r in range(4): a("v_add_f32 v%d, v%d, v%d", 16 + r, 16 + r, 20 + r)
    for r in range(4): a("v_add_f32 v%d, v%d, v%d", 24 + r, 24 + r, 28 + r)
    for r in range(4): a("v_permlane32_swap_b32 v%d, v%d", 16 + r, 24 + r)
    for r in (0, 2, 1, 3): a("v_add_f32 v%d, v%d, v%d", 16 + r, 16 + r, 24 + r)
    a("v_permlane16_swap_b32 v16, v18\ns_nop 0\nv_permlane16_swap_b32 v17, v19")
    a("v_add_f32 v16, v16, v18\nv_add_f32 v17, v17, v19\ns_nop 0")
    a("v_add_f32_dpp v16, v16, v16 row_ror:8 row_mask:0xf bank_mask:0xf\nv_add_f32_dpp v17, v17, v17 row_ror:8 row_mask:0xf bank_mask:0xf")
    a("v_cvt_pk_bf16_f32 v16, v16, v17\nv_mov_b32 v18, v16\ns_nop 1")
    a("v_permlane32_swap_b32 v16, v18")
    a("v_lshlrev_b32 v6, 16, v16\nv_and_b32 v7, %s, v16", sT1)
    a("v_add_f32 v4, v40, v6\nv_add_f32 v5, v41, v7\nv_cvt_pk_bf16_f32 v4, v4, v5")
    a("v_lshlrev_b32 v6, 16, v18\nv_and_b32 v7, %s, v18", sT1)
    a("v_and_b32 v5, %s, v4\nv_lshlrev_b32 v4, 16, v4", sT1)
    a("s_mov_b64 exec, 0xff00ff")
    a("v_add_f32 v4, v4, v6\nv_add_f32 v5, v5, v7\nv_cvt_pk_bf16_f32 v20, v4, v5")
    a("buffer_store_dword v20, v12, %s, 0 offen %s", srd(R1), o.outpol)
    a("s_cmp_lg_u32 %s, 0\ns_cbranch_scc1 %s", sRU, "L_a_end2" if o.holdf else "L_a_end")
    a("s_mov_b64 exec, 1\nv_mov_b32 v4, %s", sTAG)
    a("buffer_store_dword v4, v3, %s, 0 offen %s", srd(RW), o.eppol)
    if o.holdf:
        a("s_branch L_a_end2")
    a("L_a_end:")
    stamps_out()
    a("L_end:")
    a("s_endpgm")
    if o.holdf:
        a("L_a_end2:")
        a("s_cmp_lg_u32 s2, %d\ns_cbranch_scc1 L_end", o.holdwg)
        a("s_memrealtime s[70:71]\ns_waitcnt lgkmcnt(0)\ns_sub_u32 %s, s70, s86\ns_mul_i32 %s, %s, %d\ns_add_u32 %s, %s, %d", sT1, sT1, sT1, o.holdmul, sT1, sT1, o.holdf)
        a("L_holdf:\ns_memrealtime s[70:71]\ns_waitcnt lgkmcnt(0)\ns_sub_u32 %s, s70, s86\ns_cmp_lt_u32 %s, %s\ns_cbranch_scc1 L_holdf", sT0, sT0, sT1)
        a("s_endpgm")
    flush_ool()
    a("L_code_end:")
    if o.cpf: a(".fill 256, 4, 0xbf800000")

    hdr = open(os.path.join(os.path.dirname(os.path.abspath(__file__)), "header.txt")).read()
    hdr += "; @launch grid=(256,1,1) block=(576,1,1) lds=%d\n" % LDS_TOTAL
    hdr += '.amdgcn_target "amdgcn-amd-amdhsa--gfx950"\n.text\n.globl %s\n.p2align 8\n.type %s,@function\n' % (NAME, NAME)
    ftr = """.section .rodata,"a"
.p2align 6
.amdhsa_kernel %s
  .amdhsa_next_free_vgpr 88
  .amdhsa_next_free_sgpr 102
  .amdhsa_accum_offset 88
  .amdhsa_group_segment_fixed_size 0
  .amdhsa_kernarg_size 96
  .amdhsa_user_sgpr_count 2
  .amdhsa_user_sgpr_kernarg_segment_ptr 1
  .amdhsa_system_sgpr_workgroup_id_x 1
  .amdhsa_float_denorm_mode_32 3
.end_amdhsa_kernel
""" % NAME
    body = a.text()
    if o.nostore:
        body = "\n".join(l for l in body.split("\n") if not ("buffer_store_dwordx4" in l and (o.nostore & 2 or "sc1" in l)))
    return hdr + body + ftr

def parser():
    p = argparse.ArgumentParser()
    p.add_argument("-o", default="-")
    p.add_argument("--depth", type=int, default=24)
    p.add_argument("--diag", type=int, default=0)
    p.add_argument("--qpoll", type=int, default=42)
    p.add_argument("--opoll", type=int, default=0)
    p.add_argument("--hpoll", type=int, default=114)
    p.add_argument("--cpf", type=int, default=1)
    p.add_argument("--sdiag", type=int, default=0)
    p.add_argument("--mix", type=int, default=2)
    p.add_argument("--local", type=int, default=1)
    p.add_argument("--redbase", type=int, default=0)
    p.add_argument("--fpoll", type=int, default=0)
    p.add_argument("--ltsplit", type=int, default=0)
    p.add_argument("--depthl2", type=int, default=44)
    p.add_argument("--eppol", default="")
    p.add_argument("--wb", type=int, default=0)
    p.add_argument("--wbcb", type=int, default=8)
    p.add_argument("--outpre", type=int, default=0)
    p.add_argument("--tlb", type=int, default=0)
    p.add_argument("--burst", type=int, default=0)
    p.add_argument("--hold", type=int, default=0)
    p.add_argument("--holdf", type=int, default=0)
    p.add_argument("--holdmul", type=int, default=0)
    p.add_argument("--holdwg", type=int, default=0)
    p.add_argument("--wqx", type=int, default=4)
    p.add_argument("--spec", type=int, default=0)
    p.add_argument("--outpol", default="")
    p.add_argument("--nover", type=int, default=0)
    p.add_argument("--depthv", type=int, default=0)
    p.add_argument("--depthl", type=int, default=0)
    p.add_argument("--ltwait", type=int, default=0)
    p.add_argument("--hpolll", type=int, default=0)
    p.add_argument("--touch", type=int, default=0)
    p.add_argument("--vpoll", type=int, default=34)
    p.add_argument("--depth2", type=int, default=24)
    p.add_argument("--sleep", type=int, default=0)
    p.add_argument("--nopoll", type=int, default=0)
    p.add_argument("--nostore", type=int, default=0)
    p.add_argument("--rot", type=int, default=1)
    p.add_argument("--ldonly", type=int, default=0)
    p.add_argument("--pol", default="nt")
    return p

if __name__ == "__main__":
    o = parser().parse_args()
    t = gen(o)
    if o.o == "-": sys.stdout.write(t)
    else: open(o.o, "w").write(t)
```

```python
import sys, argparse, math, struct, os

NAME = "parallel_sum__sliding_block_cached__geglu_ffn__decode_kernel"
f2u = lambda f: struct.unpack("<I", struct.pack("<f", f))[0]

class Asm:
    def __init__(self):
        self.lines = []
        self.n = 0
    def __call__(self, s, *args):
        if args: s = s % args
        for ln in s.strip("\n").split("\n"):
            ln = ln.strip()
            if not ln: continue
            if ln.endswith(":"): self.lines.append(ln)
            else: self.lines.append("    " + ln)
    def lab(self, p="L"):
        self.n += 1
        return "%s_%d" % (p, self.n)
    def text(self): return "\n".join(self.lines) + "\n"

F_PROG, F_QRDY, F_A1, F_A2, F_VRDY, F_C1, F_VER, F_PUB, F_HOK, F_RED = 0, 16, 20, 8, 24, 28, 32, 36, 40, 44
XN, XN_P = 256, 1152
QV = 2560
VEC2, VEC2_P = 3072, 704
MX = 5632
LS = 5664
PB = 5888
RP = 6400
RA = 10240
RWQ = RA + 48 * 1024
RK = RA + 80 * 1024
KP = 1088
RV = RK + 32 * KP
VP = 1152
LDS_TOTAL = RV + 32 * VP
assert LDS_TOTAL <= 163840
W_EPOCH = 0
W_V = 1024
W_Q = 4096
W_G = W_Q + 16 * 8192
W_O = W_G + 6 * 36864
W_AEND = W_O + 256 * 1024
BOFF = 0xa0000
assert W_AEND - W_Q <= BOFF
W_F = W_AEND + BOFF
W_END = W_F + 36 * 4096
W_DIAG = 2 << 20
assert W_END <= W_DIAG
P_G = 26

def gen(o):
    a = Asm()
    D = o.depth
    diag = o.diag
    sX, sIDX, sG, sI, sWV = "s28", "s29", "s30", "s31", "s32"
    sTEAM, sCB, sNS2, sB2, sR0 = "s33", "s34", "s35", "s36", "s37"
    sD3, sM3 = "s38", "s39"
    sT0, sT1, sT2, sT3 = "s40", "s41", "s42", "s43"
    sSEEN, sTMO, sTAG, sVER = "s44", "s45", "s46", "s47"
    sEX = "s[68:69]"
    R0, R1, R2, R3, R4 = 48, 52, 56, 60, 64
    RW = 64
    RB = 60
    ST = 72
    def srd(r): return "s[%d:%d]" % (r, r + 3)
    def mk_srd(r, lo, size):
        a("s_mov_b32 s%d, s%d\ns_mov_b32 s%d, s%d\ns_mov_b32 s%d, 0x%x\ns_mov_b32 s%d, 0x00020000", r, lo, r + 1, lo + 1, r + 2, size, r + 3)
    def stamp(k):
        if diag: a("s_memrealtime s[%d:%d]", ST + 2 * k, ST + 2 * k + 1)
    def stamps_out():
        if not diag: return
        a("s_waitcnt lgkmcnt(0)")
        a("s_mov_b64 exec, -1")
        a("s_lshl_b32 %s, s2, 4\ns_add_u32 %s, %s, %s\ns_lshl_b32 %s, %s, 6\ns_add_u32 %s, %s, 0x%x", sT0, sT0, sT0, sWV, sT0, sT0, sT0, sT0, W_DIAG)
        a("v_mov_b32 v1, %s", sT0)
        for k in range(4):
            for j in range(4): a("v_mov_b32 v%d, s%d", 4 + j, ST + 4 * k + j)
            a("global_store_dwordx4 v1, v[4:7], s[26:27] offset:%d", 16 * k)
            a("s_nop 1")
    ool = []
    def lds_wait_ge(off, thr, cache=None, vt="v2", vz="v3", hot=False):
        if hot:
            Ls, Lr = a.lab("LS"), a.lab("LB")
            a("s_cmp_lt_i32 %s, %s\ns_cbranch_scc1 %s", cache, thr, Ls)
            a("%s:" % Lr)
            ool.append((Ls, lambda: lds_wait_ge(off, thr, cache, vt, vz), Lr))
            return
        L, E = a.lab("LW"), a.lab("LE")
        c = cache or sT3
        if cache:
            a("s_cmp_ge_i32 %s, %s\ns_cbranch_scc1 %s", c, thr, E)
        a("s_mov_b32 %s, 0", sTMO)
        a("%s:" % L)
        if o.sleep: a("s_sleep %d", o.sleep)
        a("ds_read_b32 %s, %s offset:%d", vt, vz, off)
        a("s_add_u32 %s, %s, 1", sTMO, sTMO)
        a("s_cmp_gt_u32 %s, 0x80000\ns_cbranch_scc1 %s", sTMO, E)
        a("s_waitcnt lgkmcnt(0)")
        a("v_readfirstlane_b32 %s, %s", c, vt)
        a("s_cmp_lt_i32 %s, %s\ns_cbranch_scc1 %s", c, thr, L)
        a("%s:" % E)
    def get_tag():
        a("s_waitcnt lgkmcnt(0)")
        a("s_mul_i32 %s, %s, 1664525\ns_add_u32 %s, %s, 1013904223", sTAG, sTAG, sTAG, sTAG)
        a("s_and_b32 s94, %s, 0xff\ns_bfe_u32 s95, %s, 0x80008\ns_bfe_u32 s96, %s, 0x80010\ns_lshr_b32 s97, %s, 24", sTAG, sTAG, sTAG, sTAG)
    def tag_merge(r, rnd=True):
        for k in range(4):
            if rnd: a("v_add_u32 v%d, 0x80, v%d", r + k, r + k)
        for k in range(4):
            a("v_and_or_b32 v%d, v%d, v14, s%d", r + k, r + k, 94 + k)
    def tag_bad(dst, r, first):
        for k in range(4): a("v_xor_b32 v%d, s%d, v%d", r + k, 94 + k, r + k)
        if first: a("v_or3_b32 %s, v%d, v%d, v%d\nv_or_b32 %s, %s, v%d", dst, r, r + 1, r + 2, dst, dst, r + 3)
        else: a("v_or3_b32 %s, %s, v%d, v%d\nv_or3_b32 %s, %s, v%d, v%d", dst, dst, r, r + 1, dst, dst, r + 2, r + 3)
    def flag_add(off, vt="v6"):
        a("s_mov_b64 exec, 1\nv_mov_b32 %s, 1\nds_add_u32 v3, %s offset:%d\ns_mov_b64 exec, -1", vt, vt, off)
    def get_ver():
        lds_wait_ge(F_VER, "1", cache=sVER)
    def two_way(fast, slow):
        Ls, Lr = a.lab("LS"), a.lab("LB")
        a("s_cmp_lg_u32 %s, 1\ns_cbranch_scc1 %s", sVER, Ls)
        fast()
        a("%s:" % Lr)
        ool.append((Ls, slow, Lr))
    def flush_ool():
        for Ls, slow, Lr in ool:
            a("%s:" % Ls)
            slow()
            a("s_branch %s", Lr)
        del ool[:]
    def pub(items):
        def fast():
            for regs, so, off in items:
                a("buffer_store_dwordx4 %s, v1, %s, %s offen offset:%d", regs, srd(RW), so, off)
        def slow():
            for regs, so, off in items:
                a("buffer_store_dwordx4 %s, v1, %s, %s offen offset:%d sc1", regs, srd(RB), so, off)
        two_way(fast, slow)
    def fetch(items, fl="nt"):
        def go(r, f):
            for d, vo, so, off in items:
                a("buffer_load_dwordx4 v[%d:%d], %s, %s, %s offen offset:%d %s", d, d + 3, vo, srd(r), so, off, f)
        two_way(lambda: go(RW, fl), lambda: go(RB, "sc1"))
    def s2pos(n): return (98 if n <= 4 * o.s2early else 130) + n
    def mfma(d, A, B):
        a("v_mfma_f32_16x16x32_bf16 v[%d:%d], v[%d:%d], v[%d:%d], v[%d:%d]", d, d + 3, A, A + 3, B, B + 3, d, d + 3)

    a("%s:" % NAME)
    stamp(0)
    if o.hold or o.holdf: a("s_memrealtime s[86:87]")
    if diag:
        for k in range(1, 8): a("s_mov_b64 s[%d:%d], 0", ST + 2 * k, ST + 2 * k + 1)
    KARG = "s_load_dwordx16 s[4:19], s[0:1], 0\ns_load_dwordx8 s[20:27], s[0:1], 64"
    if o.fast0: a("s_load_dwordx2 s[%d:%d], s[0:1], 24", R0, R0 + 1)
    else: a(KARG)
    a("""
    s_cmp_ge_u32 s2, 256
    s_cbranch_scc1 L_end
    v_lshrrev_b32 v1, 6, v0
    v_and_b32 v0, 63, v0
    v_mov_b32 v3, 0
    """)
    a("v_readfirstlane_b32 %s, v1", sWV)
    a("s_and_b32 %s, s2, 7\ns_lshr_b32 %s, s2, 3", sX, sIDX)
    a("s_lshr_b32 %s, s2, 7\ns_lshl1_add_u32 %s, %s, %s\ns_and_b32 %s, %s, 15", sT0, sG, sX, sT0, sI, sIDX)
    def code_pf():
        if o.cpf:
            Lc = a.lab("LCP")
            a("s_cmp_lg_u32 %s, 8\ns_cbranch_scc1 %s", sWV, Lc)
            a("s_lshl_b32 %s, %s, 10\ns_cmp_ge_u32 %s, L_code_end-%s\ns_cbranch_scc1 %s", sT0, sI, sT0, NAME, Lc)
            a("s_getpc_b64 s[88:89]")
            a("L_pc:")
            a("s_sub_u32 s88, s88, L_pc-%s\ns_subb_u32 s89, s89, 0", NAME)
            a("v_lshlrev_b32 v4, 4, v0\nv_add_u32 v4, %s, v4", sT0)
            a("global_load_dwordx4 v[76:79], v4, s[88:89] %s", o.cpol)
            a("%s:" % Lc)
    def cons_entry():
        if o.fast0: a(KARG)
        if o.cpe: code_pf()
        a("v_mul_u32_u24 v13, 36, v0")
        a("s_cmp_ge_u32 %s, 5", sWV)
        a("s_waitcnt lgkmcnt(0)")
        a("s_load_dword %s, s[26:27], 0", sTAG)
        a("s_cbranch_scc1 L_cons2")
        a("global_load_dwordx4 v[16:19], v13, s[4:5] %s", o.xpol)
        a("global_load_dwordx4 v[20:23], v13, s[4:5] offset:16 %s", o.xpol)
        a("global_load_dword v24, v13, s[4:5] offset:32 %s", o.xpol)
        a("L_cons2:")
        if not o.cpe: code_pf()
        a("s_branch L_cons3")
    if o.fast0 == 2:
        a("s_cmp_lg_u32 %s, 0\ns_cbranch_scc1 L_cons", sWV)
    else:
        a("s_cmp_eq_u32 %s, 0\ns_cbranch_scc1 L_loader", sWV)
        cons_entry()
    a("L_loader:")

    sOFF, sCNT, sISS, sKV, sRQ = "s90", "s91", "s92", "s93", "s98"
    sO2, sMG = "s99", "s100"
    def prog(depth):
        a("s_add_u32 %s, %s, 4\nv_max_i32 v4, %s, v4", sISS, sISS, sISS)
        a("s_waitcnt vmcnt(%d)", depth - 4)
        a("ds_write_b32 v3, v4 offset:%d", F_PROG)
    def loop_end(L):
        a("s_sub_u32 %s, %s, 1\ns_cmp_lg_u32 %s, 0\ns_cbranch_scc1 %s", sCNT, sCNT, sCNT, L)
    def kv_group(r, voff, base, pitch, wait=True, depth=None):
        a("s_mul_i32 %s, %s, %d\ns_add_u32 m0, %s, %d", sT0, sRQ, 4 * pitch, sT0, base)
        a("s_lshl_b32 %s, %s, 12\ns_add_u32 %s, %s, %s", sT1, sRQ, sT1, sT1, sKV)
        for k in range(4):
            a("buffer_load_dwordx4 %s, %s, %s offen %s lds", voff, srd(r), sT1, o.pol)
            if k < 3: a("s_add_u32 m0, m0, %d\ns_add_u32 %s, %s, s101", pitch, sT1, sT1)
        a("s_add_u32 %s, %s, 1\ns_and_b32 %s, %s, 7", sRQ, sRQ, sRQ, sRQ)
        if wait: prog(depth or D)
    def kv_loop(r, voff, base, pitch, depth=None):
        L = a.lab("LD")
        a("%s:" % L)
        kv_group(r, voff, base, pitch, True, depth)
        loop_end(L)
    def pair_group(ra, rb, voff, step, depth):
        for k in range(4):
            so = sOFF if k % 2 == 0 else sO2
            a("buffer_load_dwordx4 %s, %s, %s offen %s lds", voff, srd(ra if k % 2 == 0 else rb), so, o.pol)
            a("s_add_u32 m0, m0, s101\ns_add_u32 %s, %s, %d", so, so, step)
        prog(depth)
    def roles():
        a("s_mul_i32 %s, %s, 43\ns_lshr_b32 %s, %s, 7\ns_mul_i32 %s, %s, 3\ns_sub_u32 %s, %s, %s", sD3, sIDX, sD3, sD3, sT0, sD3, sM3, sIDX, sT0)
        a("s_mul_i32 %s, %s, 57\ns_lshr_b32 %s, %s, 9", sT0, sIDX, sT0, sT0)
        a("s_mul_i32 %s, %s, 9\ns_sub_u32 %s, %s, %s", sT1, sT0, sCB, sIDX, sT1)
        a("s_lshl1_add_u32 %s, %s, %s\ns_lshl_b32 %s, %s, 8", sTEAM, sX, sT0, sR0, sTEAM)
        a("s_mov_b32 %s, 32\ns_mov_b32 %s, %d", sNS2, sB2, 130)
        Ld = a.lab("LR")
        a("s_cmp_lt_u32 %s, 2\ns_cbranch_scc1 %s", sT0, Ld)
        a("s_mul_i32 %s, %s, 576\ns_lshl3_add_u32 %s, %s, %s", sR0, sX, sTEAM, sT0, sX)
        a("s_cmp_eq_u32 %s, 2\ns_cbranch_scc1 %s", sT0, Ld)
        a("s_add_u32 %s, %s, 256\ns_lshl_b32 %s, %s, 1\ns_mov_b32 %s, 80\ns_mov_b32 %s, 82", sR0, sR0, sCB, sCB, sNS2, sB2)
        a("%s:" % Ld)
    def gu_img(h, smt, sfb):
        a("s_lshl_b32 %s, %s, 1\ns_add_u32 %s, %s, %d", sfb, sD3, sfb, sfb, h)
        a("s_cmp_ge_u32 %s, 9\ns_cselect_b32 %s, 1, 0\ns_cselect_b32 %s, 9, 0\ns_sub_u32 %s, %s, %s", sfb, smt, sT3, sfb, sfb, sT3)
        a("s_mul_i32 %s, %s, 9\ns_add_u32 %s, %s, %s", sT3, sX, sfb, sfb, sT3)

    a("""
    v_lshrrev_b32 v8, 3, v0
    v_lshrrev_b32 v15, 4, v0
    v_lshlrev_b32 v9, 1, v15
    v_and_b32 v10, 7, v0
    v_xor_b32 v10, v10, v9
    v_lshlrev_b32 v10, 4, v10
    v_lshl_add_u32 v16, v8, 13, v10
    """)
    a("s_and_b32 %s, %s, 3\ns_mul_i32 %s, %s, %d", sT0, sIDX, sOFF, sT0, 144 * 8192)
    a("s_lshr_b32 %s, %s, 2\ns_xor_b32 %s, %s, %d\ns_lshl3_add_u32 %s, %s, %s\ns_lshl_b32 %s, %s, 7\ns_add_u32 %s, %s, %s", sT0, sIDX, sT0, sT0, o.wqx, sT0, sX, sT0, sT0, sT0, sOFF, sOFF, sT0)
    a("s_mov_b32 s%d, 0x480000\ns_mov_b32 s%d, 0x00020000", R0 + 2, R0 + 3)
    a("s_movk_i32 s101, 0x400\ns_mov_b32 %s, 0x10000", sT2)
    a("s_mov_b32 m0, %d", RWQ)
    a("s_setprio 3")
    a("s_waitcnt lgkmcnt(0)")
    if o.sdiag: stamp(5)
    if not o.fast0: a("s_mov_b32 s%d, s10\ns_mov_b32 s%d, s11", R0, R0 + 1)
    fill = ["v_mov_b32 v4, 0", "v_mov_b32 v5, 0", "v_lshlrev_b32 v2, 3, v0", "ds_write_b64 v2, v[4:5]",
            "v_xor_b32 v13, v0, v15", "v_lshlrev_b32 v13, 4, v13",
            "s_mov_b32 s%d, 0x2000000" % (R1 + 2), "s_mov_b32 s%d, 0x00020000" % (R1 + 3),
            "s_lshr_b32 %s, %s, 3" % (sT0, sI), "s_lshl4_add_u32 %s, %s, %s" % (sT0, sT0, sG), "s_lshl_b32 %s, %s, 20" % (sT0, sT0),
            "s_and_b32 %s, %s, 7" % (sT1, sI), "s_lshl_b32 %s, %s, 15" % (sT1, sT1), "s_add_u32 %s, %s, %s" % (sT0, sT0, sT1),
            "s_add_u32 %s, %s, 0xc0000" % (sKV, sT0), "s_and_b32 %s, %s, 3" % (sRQ, sIDX), "s_lshl_b32 %s, %s, 1" % (sRQ, sRQ)]
    for k in range(18):
        a("buffer_load_dwordx4 v16, %s, %s offen %s lds", srd(R0), sOFF, o.pol)
        if k == 0 and o.fast0: a(KARG)
        if k < 17:
            a("s_add_u32 m0, m0, s101\ns_add_u32 %s, %s, %s", sOFF, sOFF, sT2)
            a(fill[k])
    if o.sdiag: stamp(6)
    if o.fast0: a("s_waitcnt lgkmcnt(0)")
    a("s_mov_b32 s%d, s6\ns_mov_b32 s%d, s7", R1, R1 + 1)
    kv_group(R1, "v13", RK, KP, False)
    if D >= 26: kv_group(R1, "v13", RK, KP, False)
    if o.sdiag: stamp(7)
    a("s_waitcnt lgkmcnt(0)")
    a("s_barrier")
    a("""
    v_mul_u32_u24 v12, 1152, v8
    v_add_u32 v12, v12, v10
    v_mul_u32_u24 v11, 9216, v8
    v_add_u32 v11, v11, v10
    v_xor_b32 v14, v0, v9
    v_lshlrev_b32 v14, 4, v14
    """)
    mk_srd(R2, 8, 0x2000000)
    a("s_mov_b32 %s, %d", sISS, (26 if D >= 26 else 22) - (D - 4))
    roles()
    DV, D2, DL = o.depthv or D, o.depth2, o.depthl or D
    sS2 = "s89"
    def drain_step(k):
        a("s_add_u32 %s, %s, 4\nv_max_i32 v4, %s, v4\ns_waitcnt vmcnt(%d)\nds_write_b32 v3, v4 offset:%d", sISS, sISS, sISS, k, F_PROG)
    def redepth(old, new):
        if new > old: a("s_sub_u32 %s, %s, %d", sISS, sISS, new - old)
        for k in range(old - 8, new - 8, -4): drain_step(k)
    a("s_cmp_lt_u32 %s, 16", sTEAM)
    a("s_cselect_b32 s%d, s12, s20\ns_cselect_b32 s%d, s13, s21\ns_mov_b32 s%d, 0x510000\ns_cselect_b32 s%d, 0x480000, s%d\ns_mov_b32 s%d, 0x00020000",
      R3, R3 + 1, R3 + 2, R3 + 2, R3 + 2, R3 + 3)
    a("s_mul_i32 %s, %s, 1152\ns_lshl_b32 %s, %s, 7\ns_add_u32 %s, %s, %s", sS2, sR0, sT1, sCB, sS2, sS2, sT1)
    for h, r, so in ((0, R0, sOFF), (1, R4, sO2)):
        gu_img(h, sT0, sT1)
        a("s_cmp_eq_u32 %s, 1\ns_cselect_b32 s%d, s18, s16\ns_cselect_b32 s%d, s19, s17\ns_mov_b32 s%d, 0x510000\ns_mov_b32 s%d, 0x00020000", sT0, r, r + 1, r + 2, r + 3)
        a("s_mul_i32 %s, %s, %d\ns_lshl_b32 %s, %s, 7\ns_add_u32 %s, %s, %s", so, sM3, 192 * 9216, sT1, sT1, so, so, sT1)
    if o.tlb:
        a("s_mov_b64 exec, 3")
        a("v_mul_u32_u24 v20, %d, v0\nv_mul_u32_u24 v21, %d, v0", 191 * 9216, 255 * 1152)
        a("buffer_load_dword v22, v3, %s, %s offen nt", srd(R2), sKV)
        a("buffer_load_dword v22, v20, %s, %s offen nt", srd(R0), sOFF)
        a("buffer_load_dword v22, v20, %s, %s offen nt", srd(R4), sO2)
        a("buffer_load_dword v22, v21, %s, %s offen nt", srd(R3), sS2)
        a("s_mov_b64 exec, -1")
    if D < 26:
        a("s_waitcnt vmcnt(%d)", D - 4 + (4 if o.tlb else 0))
        kv_group(R1, "v13", RK, KP)
    a("s_mov_b32 %s, 6", sCNT)
    a("s_cmp_ge_u32 %s, 27\ns_cbranch_scc1 L_ld_kv", sIDX)
    M = o.mix
    a("s_mov_b32 %s, %d\ns_mov_b32 %s, %d", sMG, RA, sCNT, 6 // M)
    a("L_ld_gu:")
    a("s_mov_b32 m0, %s\ns_add_u32 %s, %s, %d", sMG, sMG, sMG, 8192 * M)
    a("s_mov_b32 %s, %d", sT2, 2 * M)
    a("L_ld_gi:")
    pair_group(R0, R4, "v11", 8 * 9216, D)
    a("s_sub_u32 %s, %s, 1\ns_cmp_lg_u32 %s, 0\ns_cbranch_scc1 L_ld_gi", sT2, sT2, sT2)
    kv_group(R1, "v13", RK, KP)
    loop_end("L_ld_gu")
    if M == 1: a("s_branch L_ld_v")
    else: a("s_mov_b32 %s, %d", sCNT, 6 - 6 // M)
    a("L_ld_kv:")
    kv_loop(R1, "v13", RK, KP)
    a("L_ld_v:")
    stamp(1)
    SA = o.s2early
    if SA:
        Lsk = a.lab("LSA")
        a("s_cmp_eq_u32 %s, 80\ns_cbranch_scc1 %s", sNS2, Lsk)
        if not o.ldonly: lds_wait_ge(F_C1, "4")
        a("s_mov_b32 %s, %s\ns_mov_b32 m0, %d\ns_add_u32 %s, %s, %d\ns_mov_b32 %s, %d", sOFF, sS2, RWQ, sO2, sS2, 8 * 1152, sCNT, SA)
        a("L_ld_s2a:")
        pair_group(R3, R3, "v12", 16 * 1152, D)
        loop_end("L_ld_s2a")
        a("s_mov_b32 %s, %s", sS2, sOFF)
        a("%s:" % Lsk)
    redepth(D, DV)
    a("s_mov_b32 %s, 7", sCNT)
    kv_loop(R2, "v14", RV, VP, DV)
    a("ds_read_b32 v5, v3 offset:%d", F_C1)
    kv_group(R2, "v14", RV, VP, True, DV)
    stamp(2)
    if not o.ldonly:
        a("s_waitcnt lgkmcnt(0)\nv_readfirstlane_b32 %s, v5", sSEEN)
        lds_wait_ge(F_C1, "4", cache=sSEEN)
    a("s_mov_b32 %s, %s", sOFF, sS2)
    a("s_cmp_eq_u32 %s, 80\ns_cbranch_scc1 L_ld_lt", sNS2)
    a("s_mov_b32 m0, %d\ns_add_u32 %s, %s, %d", RWQ + 4096 * SA, sO2, sOFF, 8 * 1152)
    NA = o.burst
    if NA and not o.ldonly:
        def burst(n):
            for k in range(n):
                so = sOFF if k % 2 == 0 else sO2
                a("buffer_load_dwordx4 v12, %s, %s offen %s lds", srd(R3), so, o.pol)
                a("s_add_u32 m0, m0, s101\ns_add_u32 %s, %s, %d", so, so, 16 * 1152)
        burst(NA)
        for k in range(DV - 8 + NA, NA - 4, -4): drain_step(k)
        a("s_cmp_lt_u32 %s, 16\ns_cselect_b32 %s, 8, 4", sTEAM, sT2)
        lds_wait_ge(F_PUB, sT2)
        burst(32 - NA)
        stamp(3)
        for k in range(28, D2 - 8, -4): drain_step(k)
    else:
        redepth(DV, D2)
        if SA < 8:
            a("s_mov_b32 %s, %d", sCNT, 8 - SA)
            a("L_ld_s2h:")
            pair_group(R3, R3, "v12", 16 * 1152, D2)
            loop_end("L_ld_s2h")
        stamp(3)
    a("s_branch L_ld_drain2")
    a("L_ld_lt:")
    if o.ltwait and not o.ldonly:
        redepth(DV, 4)
        lds_wait_ge({1: F_QRDY, 2: F_A1, 3: F_A2}[o.ltwait], "1")
        redepth(4, DL)
    else:
        redepth(DV, DL)
    a("s_add_u32 %s, %s, 128\ns_cmp_eq_u32 %s, 8\ns_cselect_b32 %s, 0x70000000, %s", sO2, sOFF, sCB, sO2, sO2)
    NL = o.ltsplit if not o.ldonly else 0
    a("s_mov_b32 m0, %d\ns_mov_b32 %s, %d", RA, sCNT, NL or 20)
    a("L_ld_s2l:")
    pair_group(R3, R3, "v12", 8 * 1152, DL)
    loop_end("L_ld_s2l")
    if NL:
        redepth(DL, 4)
        lds_wait_ge(F_HOK, "4")
        DL = o.depthl2
        redepth(4, DL)
        a("s_mov_b32 %s, %d", sCNT, 20 - NL)
        a("L_ld_s2m:")
        pair_group(R3, R3, "v12", 8 * 1152, DL)
        loop_end("L_ld_s2m")
    stamp(3)
    assert DL >= D2
    for k in range(DL - 8, -1, -4):
        if k == D2 - 8: a("L_ld_drain2:")
        drain_step(k)
    stamp(4)
    stamps_out()
    if o.hold:
        a("s_cmp_lg_u32 s2, %d\ns_cbranch_scc1 L_end", o.holdwg)
        a("s_memrealtime s[70:71]\ns_waitcnt lgkmcnt(0)\ns_sub_u32 %s, s70, s86\ns_mul_i32 %s, %s, %d\ns_add_u32 %s, %s, %d", sT1, sT1, sT1, o.holdmul, sT1, sT1, o.hold)
        a("L_hold:\ns_memrealtime s[70:71]\ns_waitcnt lgkmcnt(0)\ns_sub_u32 %s, s70, s86\ns_cmp_lt_u32 %s, %s\ns_cbranch_scc1 L_hold", sT0, sT0, sT1)
    a("s_endpgm")

    if o.fast0 == 2:
        a("L_cons:")
        cons_entry()
    a("L_cons3:")
    a("s_barrier")
    if o.ldonly: a("s_endpgm")
    mk_srd(RW, 26, W_END + 4096)
    a("s_add_u32 s%d, s26, 0x%x\ns_addc_u32 s%d, s27, 0\ns_mov_b32 s%d, 0x%x\ns_mov_b32 s%d, 0x00020000", RB, BOFF, RB + 1, RB + 2, W_AEND, RB + 3)
    a("s_mov_b32 %s, 0", sVER)
    a("s_mov_b32 %s, -1000", sSEEN)
    a("v_lshrrev_b32 v8, 4, v0\nv_and_b32 v9, 15, v0\nv_mov_b32 v14, 0xffffff00")
    roles()
    a("s_cmp_ge_u32 %s, 5\ns_cbranch_scc1 L_att", sWV)

    sW, sIT, sTH = "s90", "s91", "s92"
    a("s_sub_u32 %s, %s, 1", sW, sWV)
    a("v_lshrrev_b32 v11, 3, v0\nv_and_b32 v11, 3, v11\nv_xor_b32 v11, %s, v11", sW)
    a("v_lshlrev_b32 v11, 5, v11\nv_and_b32 v12, 3, v0\nv_lshl_add_u32 v11, v12, 3, v11")
    a("v_lshrrev_b32 v10, 2, v0\nv_lshl_add_u32 v10, v10, 7, v11")
    a("v_lshrrev_b32 v15, 5, v0\nv_lshl_add_u32 v15, v15, 10, v10")
    a("v_add_u32 v15, %d, v15", RA)
    a("v_and_b32 v12, 1, v0")
    a("s_mov_b32 %s, 0xffff0000", sT0)
    a("s_waitcnt vmcnt(0)")
    stamp(1)
    X = 28
    for k in range(9):
        a("v_lshlrev_b32 v%d, 16, v%d\nv_and_b32 v%d, %s, v%d", X + 2 * k, 16 + k, X + 2 * k + 1, sT0, 16 + k)
    def half_allreduce_add(v, t):
        for dp in ("quad_perm:[1,0,3,2]", "quad_perm:[2,3,0,1]", "row_ror:4", "row_ror:8"):
            a("s_nop 1\nv_add_f32_dpp %s, %s, %s %s row_mask:0xf bank_mask:0xf", v, v, v, dp)
        a("v_mov_b32 %s, %s\ns_nop 1\nv_permlane16_swap_b32 %s, %s\nv_add_f32 %s, %s, %s", t, v, v, t, v, v, t)
    a("v_add_f32 v4, v%d, v%d\nv_add_f32 v5, v%d, v%d", X, X + 1, X + 2, X + 3)
    for k in range(4, 18, 2):
        a("v_add_f32 v4, v4, v%d\nv_add_f32 v5, v5, v%d", X + k, X + k + 1)
    a("v_add_f32 v4, v4, v5")
    half_allreduce_add("v4", "v5")
    a("v_mul_f32 v4, 0x3ae38e39, v4\nv_mov_b32 v5, 0\nv_mov_b32 v25, 0")
    for k in range(0, 18, 2):
        a("v_sub_f32 v26, v%d, v4\nv_sub_f32 v27, v%d, v4\nv_fmac_f32 v5, v26, v26\nv_fmac_f32 v25, v27, v27", X + k, X + k + 1)
    a("v_add_f32 v5, v5, v25")
    half_allreduce_add("v5", "v25")
    a("v_mul_f32 v5, 0x3ae38e39, v5")
    a("v_cvt_pk_bf16_f32 v4, v4, v5")
    a("v_and_b32 v5, %s, v4\nv_lshlrev_b32 v4, 16, v4", sT0)
    a("v_add_f32 v5, 0x3727c5ac, v5")
    a("v_cvt_pk_bf16_f32 v5, v5, v5\nv_lshlrev_b32 v5, 16, v5")
    a("v_sqrt_f32 v5, v5\ns_nop 0")
    a("v_cvt_pk_bf16_f32 v5, v5, v5\nv_lshlrev_b32 v5, 16, v5")
    a("v_rcp_f32 v5, v5")
    for k in range(9):
        a("v_sub_f32 v26, v%d, v4\nv_sub_f32 v27, v%d, v4", X + 2 * k, X + 2 * k + 1)
        a("v_cvt_pk_bf16_f32 v26, v26, v27")
        a("v_and_b32 v27, %s, v26\nv_lshlrev_b32 v26, 16, v26", sT0)
        a("v_mul_f32 v26, v26, v5\nv_mul_f32 v27, v27, v5")
        a("v_cvt_pk_bf16_f32 v%d, v26, v27", 16 + k)
    for k in range(0, 8, 2):
        a("ds_write2_b32 v13, v%d, v%d offset0:%d offset1:%d", 16 + k, 17 + k, XN // 4 + k, XN // 4 + k + 1)
    a("ds_write_b32 v13, v24 offset:%d", XN + 32)
    a("v_mul_u32_u24 v11, %d, v12\nv_lshl_add_u32 v11, v8, 3, v11\nv_add_u32 v11, %d, v11", XN_P, XN)
    a("s_and_b32 %s, %s, 3\ns_mul_i32 %s, %s, 288\nv_add_u32 v13, %s, v11", sT0, sIDX, sT0, sT0, sT0)
    for s in range(4):
        a("ds_read2_b64 v[%d:%d], v13 offset0:%d offset1:%d", 40 + 4 * s, 43 + 4 * s, 8 * s, 8 * s + 4)
    a("ds_read_b64 v[56:57], v13 offset:256")
    for r in range(8): a("v_mov_b32 v%d, 0", 60 + r)
    a("v_add_u32 v13, %d, v10", RWQ)
    stamp(2)
    get_tag()
    a("v_lshlrev_b32 v1, 6, v9\nv_lshl_add_u32 v1, v8, 4, v1")
    a("s_lshr_b32 %s, %s, 2\ns_xor_b32 %s, %s, %d", sT0, sIDX, sT0, sT0, o.wqx)
    a("s_lshr_b32 %s, %s, 2\ns_lshl1_add_u32 %s, %s, %s\ns_and_b32 %s, %s, 3\ns_lshl2_add_u32 %s, %s, %s", sT1, sT0, sT1, sX, sT1, sT2, sIDX, sT1, sT1, sT2)
    a("s_and_b32 %s, %s, 3\ns_lshl2_add_u32 %s, %s, %s\ns_lshl2_add_u32 %s, %s, %s", sT0, sT0, sT1, sT1, sT0, sT1, sT1, sW)
    a("s_lshl_b32 %s, %s, 7\ns_add_u32 s93, %s, %d", sT1, sT1, sT1, W_Q)
    a("v_cmp_gt_u32 vcc, 2, v9\ns_mov_b64 %s, vcc", sEX)
    lds_wait_ge(F_PROG, "18", cache=sSEEN)
    for q in range(9):
        a("ds_read_b64_tr_b16 v[%d:%d], v13 offset:%d", 16 + 2 * q, 17 + 2 * q, q * 2048)
    for s in range(4):
        a("s_waitcnt lgkmcnt(%d)", 7 - 2 * s)
        mfma(60, 16 + 4 * s, 40 + 4 * s)
    a("s_waitcnt lgkmcnt(0)")
    a("v_mfma_f32_16x16x16_bf16 v[64:67], v[32:33], v[56:57], v[64:67]")
    flag_add(F_C1)
    a("s_nop 4")
    for r in range(4): a("v_add_f32 v%d, v%d, v%d", 72 + r, 60 + r, 64 + r)
    tag_merge(72)
    a("s_mov_b64 exec, %s", sEX)
    a("buffer_store_dwordx4 v[72:75], v1, %s, s93 offen", srd(RW))
    a("s_mov_b64 exec, -1")
    a("s_mov_b32 s99, s93")
    stamp(3)
    def q_republish():
        get_ver()
        two_way(lambda: None, lambda: a("s_mov_b64 exec, %s\nbuffer_store_dwordx4 v[72:75], v1, %s, s99 offen sc1\ns_mov_b64 exec, -1", sEX, srd(RB)))
    Lh = a.lab("LH")
    a("s_cmp_lt_u32 %s, 27\ns_cbranch_scc1 %s", sIDX, Lh)
    q_republish()
    a("s_branch L_w_s2")
    a("%s:" % Lh)
    a("s_mul_i32 %s, %s, 384\nv_add_u32 v13, %s, v11", sT0, sM3, sT0)
    for s in range(6):
        a("ds_read2_b64 v[%d:%d], v13 offset0:%d offset1:%d", 40 + 4 * s, 43 + 4 * s, 8 * s, 8 * s + 4)
    for r in range(8): a("v_mov_b32 v%d, 0", 64 + r)
    for h, sd in ((0, "s93"), (1, "s98")):
        gu_img(h, sT0, sT1)
        a("s_mul_i32 %s, %s, 3\ns_add_u32 %s, %s, %s\ns_mul_i32 %s, %s, 36864", sT0, sT0, sT0, sT0, sM3, sT0, sT0)
        a("s_lshl2_add_u32 %s, %s, %s\ns_lshl_b32 %s, %s, 7\ns_add_u32 %s, %s, %s\ns_add_u32 %s, %s, %d", sT1, sT1, sW, sT1, sT1, sT0, sT0, sT1, sd, sT0, W_G)
    for s in range(6):
        if s == 5: q_republish()
        lds_wait_ge(F_PROG, str(P_G + 8 * s + 8 + 4 * (s // o.mix)), cache=sSEEN)
        for h in range(2):
            for q in range(2):
                a("ds_read_b64_tr_b16 v[%d:%d], v15 offset:%d", 16 + 4 * h + 2 * q, 17 + 4 * h + 2 * q, s * 8192 + q * 4096 + h * 1024)
        a("s_waitcnt lgkmcnt(2)")
        mfma(64, 16, 40 + 4 * s)
        a("s_waitcnt lgkmcnt(0)")
        mfma(68, 20, 40 + 4 * s)
    stamp(4)
    a("s_nop 5")
    tag_merge(64)
    tag_merge(68)
    a("s_mov_b64 exec, %s", sEX)
    pub([("v[64:67]", "s93", 0), ("v[68:71]", "s98", 0)])
    a("s_mov_b64 exec, -1")
    a("L_w_s2:")
    WF, VF, AC = 16, 48, 80
    a("v_mul_u32_u24 v11, %d, v12\nv_lshl_add_u32 v11, v8, 4, v11", VEC2_P)
    for r in range(8): a("v_mov_b32 v%d, 0", AC + r)
    a("v_add_u32 v10, %d, v10", RWQ)
    if o.red4:
        a("s_and_b32 %s, %s, 3\ns_lshr_b32 %s, %s, 2\ns_lshl3_add_u32 %s, %s, %s", sT2, sTEAM, sT1, sTEAM, sT2, sT2, sT1)
    a("s_lshl2_add_u32 %s, %s, %s\ns_lshl_b32 %s, %s, 12\ns_lshl_b32 %s, %s, 7\ns_add_u32 %s, %s, %s\ns_add_u32 s93, %s, %d", sT0, sCB, sW, sT0, sT0, sT1, sT2 if o.red4 else sTEAM, sT0, sT0, sT1, sT0, W_F)
    a("s_cmp_ge_u32 %s, 16\ns_cbranch_scc1 L_w_dn", sTEAM)
    def wo_w(s_):
        for q in range(2):
            a("ds_read_b64_tr_b16 v[%d:%d], v10 offset:%d", WF + 4 * s_ + 2 * q, WF + 4 * s_ + 2 * q + 1, s_ * 4096 + q * 2048)
    def wo_v():
        for s_ in range(8):
            a("ds_read_b128 v[%d:%d], v11 offset:%d", VF + 4 * s_, VF + 4 * s_ + 3, VEC2 + 64 * s_)
    for s_ in range(0, 6 if o.race else 8, 2):
        lds_wait_ge(F_PROG, str(s2pos(4 * s_ + 8)), cache=sSEEN)
        wo_w(s_); wo_w(s_ + 1)
    if o.race:
        a("s_mov_b32 %s, 0", sTMO)
        a("L_wo_spin:")
        a("ds_read2_b32 v[4:5], v3 offset0:%d offset1:%d", F_PROG // 4, F_VRDY // 4)
        a("s_add_u32 %s, %s, 1\ns_cmp_gt_u32 %s, 0x80000\ns_cbranch_scc1 L_wo_wf", sTMO, sTMO, sTMO)
        a("s_waitcnt lgkmcnt(0)")
        a("v_readfirstlane_b32 %s, v4\nv_readfirstlane_b32 %s, v5", sSEEN, sIT)
        a("s_cmp_ge_i32 %s, %d\ns_cbranch_scc1 L_wo_wf", sSEEN, s2pos(32))
        a("s_cmp_lt_i32 %s, 4\ns_cbranch_scc1 L_wo_spin", sIT)
        wo_v()
        for s_ in range(6):
            a("s_waitcnt lgkmcnt(%d)", 7 - s_)
            mfma(AC, WF + 4 * s_, VF + 4 * s_)
        for s_ in (6, 7):
            lds_wait_ge(F_PROG, str(s2pos(4 * s_ + 4)), cache=sSEEN)
            wo_w(s_)
            a("s_waitcnt lgkmcnt(0)")
            mfma(AC, WF + 4 * s_, VF + 4 * s_)
        a("s_branch L_s2_pub")
        a("L_wo_wf:")
        wo_w(6); wo_w(7)
        stamp(5)
        lds_wait_ge(F_VRDY, "4", cache=sIT)
    else:
        stamp(5)
        lds_wait_ge(F_VRDY, "4")
    wo_v()
    for s_ in range(8):
        a("s_waitcnt lgkmcnt(%d)", 7 - s_)
        mfma(AC, WF + 4 * s_, VF + 4 * s_)
    stamp(6)
    a("L_s2_pub:")
    a("s_mov_b64 exec, %s", sEX)
    a("s_nop 6")
    tag_merge(AC, rnd=False)
    a("buffer_store_dwordx4 v[%d:%d], v1, %s, s93 offen sc1", AC, AC + 3, srd(RW))
    if o.wb & 3 == 2:
        a("s_cmp_lg_u32 %s, %d\ns_cbranch_scc1 L_w_end", sCB, o.wbcb)
        a("s_cmp_lg_u32 %s, 0\ns_cbranch_scc1 L_w_end", sW)
        a("s_cmp_ge_u32 %s, 16\ns_cbranch_scc1 L_w_end", sTEAM)
        a("s_waitcnt vmcnt(0)")
        a("buffer_wbl2 sc1")
    a("L_w_end:")
    stamp(7)
    stamps_out()
    a("s_endpgm")
    flush_ool()

    a("L_w_dn:")
    HA, HA2, HW, HW2, HC = "v60", "v61", "v62", "v63", "v64"
    a("v_lshrrev_b32 v4, 5, v0\nv_mul_u32_u24 %s, 110592, v4\nv_and_b32 v4, 31, v0\nv_lshl_add_u32 %s, v4, 4, %s", HA, HA, HA)
    a("s_lshl_b32 %s, %s, 3\ns_lshl_b32 %s, %s, 9\ns_add_u32 %s, %s, %s\ns_add_u32 s48, %s, %d", sT0, sR0, sT1, sW, sT0, sT0, sT1, sT0, W_G)
    a("s_add_u32 s49, s48, 36864\ns_add_u32 s50, s48, 73728")
    a("v_bfe_u32 v4, v0, 2, 1\nv_mul_u32_u24 %s, %d, v4\nv_bfe_u32 v4, v0, 4, 1\nv_lshl_add_u32 %s, v4, 6, %s\nv_and_b32 v4, 3, v0\nv_lshl_add_u32 %s, v4, 4, %s\nv_bfe_u32 v4, v0, 3, 1\nv_lshl_add_u32 %s, v4, 3, %s", HW, VEC2_P, HW, HW, HW, HW, HW, HW)
    a("s_lshl_b32 %s, %s, 7\nv_add_u32 %s, %s, %s", sT2, sW, HW, sT2, HW)
    c1 = -2.0 * math.sqrt(2.0 / math.pi) * math.log2(math.e)
    a("s_mov_b32 s51, 0x%08x\nv_mov_b32 %s, 0x%08x\ns_mov_b32 s52, 0xffff0000", f2u(c1 * 0.044715), HC, f2u(c1))
    a("s_cmp_eq_u32 %s, 0\ns_cselect_b32 %s, %s, 32", sW, sIT, sNS2)
    a("v_add_u32 %s, 2048, %s\nv_add_u32 %s, 512, %s", HA2, HA, HW2, HW)
    a("s_mov_b32 %s, %d\ns_cmp_eq_u32 %s, 80\ns_cselect_b32 %s, %d, %s", sTH, o.hpoll, sNS2, sTH, o.hpolll or o.hpoll, sTH)
    lds_wait_ge(F_PROG, sTH, cache=sSEEN)
    a("s_mov_b32 %s, 0", sTMO)
    if o.nopoll & 2: a("s_branch L_h_ok")
    a("L_h_poll:")
    for r in range(2):
        if r == 1: a("s_cmp_eq_u32 %s, 32\ns_cbranch_scc1 L_h_w", sIT)
        fetch([(16 + 12 * r + 4 * sl, HA if r < 1 else HA2, "s%d" % (48 + sl), 0) for sl in range(3)], o.hld)
    a("L_h_w:")
    a("s_add_u32 %s, %s, 1\ns_cmp_gt_u32 %s, 0x8000\ns_cbranch_scc1 L_h_ok", sTMO, sTMO, sTMO)
    a("s_waitcnt vmcnt(0)")
    for k in range(6):
        if k == 3: a("s_cmp_eq_u32 %s, 32\ns_cbranch_scc1 L_h_c", sIT)
        tag_bad("v4", 16 + 4 * k, k == 0)
    a("L_h_c:")
    a("v_and_b32 v4, 0xff, v4\nv_cmp_ne_u32 vcc, 0, v4\ns_and_b64 exec, exec, vcc\ns_cbranch_vccnz L_h_poll")
    a("L_h_ok:")
    if o.ltsplit: flag_add(F_HOK)
    a("s_mov_b64 exec, -1")
    a("s_waitcnt vmcnt(0)")
    for r in range(2):
        if r == 1: a("s_cmp_eq_u32 %s, 32\ns_cbranch_scc1 L_h_done", sIT)
        B = 16 + 12 * r
        for k in range(4): a("v_add_f32 v%d, v%d, v%d", B + k, B + k, B + 4 + k)
        for k in range(4): a("v_add_f32 v%d, v%d, v%d", B + k, B + k, B + 8 + k)
        a("v_cvt_pk_bf16_f32 v%d, v%d, v%d\nv_cvt_pk_bf16_f32 v%d, v%d, v%d", B, B, B + 1, B + 1, B + 2, B + 3)
        a("v_mov_b32 v%d, v%d\nv_mov_b32 v%d, v%d\ns_nop 1", B + 2, B, B + 3, B + 1)
        a("v_permlane32_swap_b32 v%d, v%d\nv_permlane32_swap_b32 v%d, v%d", B, B + 2, B + 1, B + 3)
        G, U, T = B + 4, B + 8, 4
        a("v_lshlrev_b32 v%d, 16, v%d\nv_and_b32 v%d, s52, v%d\nv_lshlrev_b32 v%d, 16, v%d\nv_and_b32 v%d, s52, v%d", G, B, G + 1, B, G + 2, B + 1, G + 3, B + 1)
        a("v_lshlrev_b32 v%d, 16, v%d\nv_and_b32 v%d, s52, v%d\nv_lshlrev_b32 v%d, 16, v%d\nv_and_b32 v%d, s52, v%d", U, B + 2, U + 1, B + 2, U + 2, B + 3, U + 3, B + 3)
        for k in range(4): a("v_mul_f32 v%d, v%d, v%d", T + k, G + k, G + k)
        for k in range(4): a("v_fma_f32 v%d, v%d, s51, %s", T + k, T + k, HC)
        for k in range(4): a("v_mul_f32 v%d, v%d, v%d", T + k, T + k, G + k)
        for k in range(4): a("v_exp_f32 v%d, v%d", T + k, T + k)
        a("s_nop 0")
        for k in range(4): a("v_add_f32 v%d, 1.0, v%d", T + k, T + k)
        for k in range(4): a("v_rcp_f32 v%d, v%d", T + k, T + k)
        a("s_nop 0")
        for k in range(4): a("v_mul_f32 v%d, v%d, v%d", T + k, T + k, G + k)
        a("v_cvt_pk_bf16_f32 v%d, v%d, v%d\nv_cvt_pk_bf16_f32 v%d, v%d, v%d", B, T, T + 1, B + 1, T + 2, T + 3)
        a("v_lshlrev_b32 v%d, 16, v%d\nv_and_b32 v%d, s52, v%d\nv_lshlrev_b32 v%d, 16, v%d\nv_and_b32 v%d, s52, v%d", T, B, T + 1, B, T + 2, B + 1, T + 3, B + 1)
        for k in range(4): a("v_mul_f32 v%d, v%d, v%d", T + k, T + k, U + k)
        a("v_cvt_pk_bf16_f32 v%d, v%d, v%d\nv_cvt_pk_bf16_f32 v%d, v%d, v%d", B, T, T + 1, B + 1, T + 2, T + 3)
        a("ds_write_b64 %s, v[%d:%d] offset:%d", HW if r < 1 else HW2, B, B + 1, VEC2)
    a("L_h_done:")
    if o.wb & 4:
        Lb2 = a.lab("LWB")
        a("s_cmp_lg_u32 %s, 31\ns_cbranch_scc1 %s", sIDX, Lb2)
        a("s_cmp_lg_u32 %s, 1\ns_cbranch_scc1 %s", sW, Lb2)
        a("buffer_wbl2 sc1")
        a("%s:" % Lb2)
    flag_add(F_VRDY)
    stamp(5)
    lds_wait_ge(F_VRDY, "4")
    stamp(6)
    a("s_add_u32 %s, %s, 8", sTH, sB2)
    a("s_cmp_eq_u32 %s, 80\ns_cbranch_scc1 L_lt", sNS2)
    def dn_reads(R, it):
        lds_wait_ge(F_PROG, str(s2pos(8 * it + 8)), cache=sSEEN, hot=(0 < it < 3))
        a("ds_read_b64_tr_b16 v[%d:%d], v10 offset:%d", R, R + 1, it * 8192)
        a("ds_read_b64_tr_b16 v[%d:%d], v10 offset:%d", R + 2, R + 3, it * 8192 + 2048)
        a("ds_read_b128 v[%d:%d], v11 offset:%d", R + 8, R + 11, VEC2 + 128 * it)
        a("ds_read_b64_tr_b16 v[%d:%d], v10 offset:%d", R + 4, R + 5, it * 8192 + 4096)
        a("ds_read_b64_tr_b16 v[%d:%d], v10 offset:%d", R + 6, R + 7, it * 8192 + 6144)
        a("ds_read_b128 v[%d:%d], v11 offset:%d", R + 12, R + 15, VEC2 + 128 * it + 64)
    dn_reads(16, 0)
    for it in range(4):
        R = 16 + 16 * (it & 1)
        if it < 3: dn_reads(16 + 16 * ((it + 1) & 1), it + 1)
        n = 6 if it < 3 else 0
        a("s_waitcnt lgkmcnt(%d)", n + 3)
        mfma(AC, R, R + 8)
        a("s_waitcnt lgkmcnt(%d)", n)
        mfma(AC, R + 4, R + 12)
    a("s_branch L_s2_pub")
    def lt_reads(st):
        R = 16 + 12 * (st % 4)
        va, off = ("v15", st) if st < 8 else ("v13", st - 8)
        lds_wait_ge(F_PROG, str(82 + 8 * st + 8), cache=sSEEN, hot=(0 < st < 9))
        a("ds_read_b128 v[%d:%d], v11 offset:%d", R + 8, R + 11, VEC2 + 64 * st)
        a("ds_read_b64_tr_b16 v[%d:%d], %s offset:%d", R, R + 1, va, off * 8192)
        a("ds_read_b64_tr_b16 v[%d:%d], %s offset:%d", R + 2, R + 3, va, off * 8192 + 4096)
        a("ds_read_b64_tr_b16 v[%d:%d], %s offset:%d", R + 4, R + 5, va, off * 8192 + 1024)
        a("ds_read_b64_tr_b16 v[%d:%d], %s offset:%d", R + 6, R + 7, va, off * 8192 + 5120)
    def lt_mm(st, n):
        R = 16 + 12 * (st % 4)
        a("s_waitcnt lgkmcnt(%d)", n + 2)
        mfma(AC, R, R + 8)
        a("s_waitcnt lgkmcnt(%d)", n)
        mfma(AC + 4, R + 4, R + 8)
    a("L_lt:")
    a("v_add_u32 v13, 0x10000, v15")
    AH = 2
    for st in range(10 + AH):
        if st < 10: lt_reads(st)
        if st >= AH: lt_mm(st - AH, 5 * (min(st, 9) - (st - AH)))
    a("s_cmp_eq_u32 %s, 8\ns_cbranch_scc1 L_s2_pub", sCB)
    a("s_mov_b64 exec, %s\ns_add_u32 %s, s93, 16384\ns_nop 4", sEX, sT0)
    tag_merge(AC + 4, rnd=False)
    a("buffer_store_dwordx4 v[%d:%d], v1, %s, %s offen sc1", AC + 4, AC + 7, srd(RW), sT0)
    a("s_branch L_s2_pub")
    flush_ool()

    sA = "s90"
    a("L_att:")
    a("s_sub_u32 %s, %s, 5", sA, sWV)
    a("v_lshrrev_b32 v10, 2, v9\nv_mul_u32_u24 v10, %d, v10", KP)
    a("v_and_b32 v11, 3, v0\nv_lshl_add_u32 v10, v11, 8, v10\nv_xor_b32 v11, v11, v8\nv_lshl_add_u32 v10, v11, 4, v10")
    a("s_mul_i32 %s, %s, %d\ns_add_u32 %s, %s, %d\nv_add_u32 v10, %s, v10", sT0, sA, 8 * KP, sT0, sT0, RK, sT0)
    VA = 72
    a("v_mul_u32_u24 v12, %d, v8", VP)
    a("v_lshrrev_b32 v11, 2, v9\nv_lshl_add_u32 v12, v11, 8, v12\nv_lshlrev_b32 v11, 5, v11")
    a("s_lshl_b32 %s, %s, 6\nv_xor_b32 v11, %s, v11\nv_add_u32 v12, v12, v11", sT0, sA, sT0)
    a("v_and_b32 v11, 3, v0\nv_lshl_add_u32 v12, v11, 3, v12")
    a("v_add_u32 v%d, %d, v12", VA, RV)
    a("v_xor_b32 v%d, 32, v%d", VA + 1, VA)
    KF, QF, SC, PF, VF, OA = 16, 48, 64, 16, 32, 40
    a("v_lshlrev_b32 v1, 6, v9\nv_lshl_add_u32 v1, v8, 4, v1")
    a("v_cmp_gt_u32 vcc, 2, v9\ns_mov_b64 %s, vcc", sEX)
    if o.touch:
        a("s_cmp_lg_u32 %s, 2\ns_cbranch_scc1 L_a_not", sA)
        a("v_lshlrev_b32 v11, 7, v0")
        a("s_lshl4_add_u32 %s, %s, %s\ns_lshl_b32 %s, %s, 9\ns_add_u32 %s, %s, %d\ns_lshl_b32 %s, %s, 10\ns_add_u32 %s, %s, %d", sT0, sG, sI, sT1, sT0, sT1, sT1, W_Q, sT0, sT0, sT0, sT0, W_O)
        a("s_mov_b64 exec, 0xf")
        if o.touch & 1: a("buffer_load_dword v76, v11, %s, %s offen nt", srd(RW), sT1)
        a("s_mov_b64 exec, 0xff")
        if o.touch & 4: a("buffer_load_dword v77, v11, %s, %s offen nt", srd(RW), sT0)
        a("s_mov_b64 exec, 0xf")
        if o.touch & 2:
            a("s_cmp_ge_u32 %s, 27\ns_cbranch_scc1 L_a_not", sIDX)
            for h in range(2):
                gu_img(h, sT0, sT1)
                a("s_mul_i32 %s, %s, 3\ns_add_u32 %s, %s, %s\ns_mul_i32 %s, %s, 36864", sT0, sT0, sT0, sT0, sM3, sT0, sT0)
                a("s_lshl_b32 %s, %s, 9\ns_add_u32 %s, %s, %s\ns_add_u32 %s, %s, %d", sT1, sT1, sT0, sT0, sT1, sT0, sT0, W_G)
                a("buffer_load_dword v%d, v11, %s, %s offen nt", 78 + h, srd(RW), sT0)
        a("L_a_not:")
        a("s_mov_b64 exec, -1")
    get_tag()
    a("s_cmp_lg_u32 %s, 1\ns_cbranch_scc1 L_a_nov", sA)
    if o.nover == 1: a("v_mov_b32 v4, 1\nds_write_b32 v3, v4 offset:%d\ns_branch L_a_nov", F_VER)
    a("s_getreg_b32 %s, hwreg(HW_REG_XCC_ID, 0, 4)", sT2)
    a("s_lshl_b32 %s, %s, 8\ns_add_u32 %s, %s, %d\ns_lshl3_add_u32 %s, %s, %s", sT0, sX, sT0, sT0, W_END, sT1, sIDX, sT0)
    a("v_mov_b32 v4, %s\nv_mov_b32 v5, %s\nv_lshlrev_b32 v11, 3, v0", sTAG, sT2)
    def v2_store():
        a("s_mov_b64 exec, 1\nbuffer_store_dwordx2 v[4:5], v3, %s, %s offen offset:2048 sc1\ns_mov_b32 exec_lo, -1", srd(RW), sT1)
    a("s_mov_b64 exec, 1\nbuffer_store_dwordx2 v[4:5], v3, %s, %s offen\ns_mov_b64 exec, -1", srd(RW), sT1)
    lds_wait_ge(F_PROG, str(o.vpoll), cache=sSEEN)
    a("s_mov_b32 exec_hi, 0\ns_mov_b32 %s, 0", sTMO)
    a("L_a_vpoll:")
    a("buffer_load_dwordx2 v[6:7], v11, %s, %s offen nt", srd(RW), sT0)
    a("s_add_u32 %s, %s, 1\ns_cmp_lt_u32 %s, %d\ns_cbranch_scc1 L_a_v1", sTMO, sTMO, sTMO, o.vesc)
    a("s_cmp_lg_u32 %s, %d\ns_cbranch_scc1 L_a_v2", sTMO, o.vesc)
    v2_store()
    a("L_a_v2:")
    a("buffer_load_dwordx2 v[16:17], v11, %s, %s offen offset:2048 sc1", srd(RW), sT0)
    a("s_waitcnt vmcnt(0)")
    a("v_cmp_eq_u32 vcc, %s, v16\ns_nop 1\nv_cndmask_b32 v6, v6, v16, vcc\nv_cndmask_b32 v7, v7, v17, vcc", sTAG)
    a("s_cmp_gt_u32 %s, 0x8000\ns_cbranch_scc1 L_a_vok", sTMO)
    a("L_a_v1:")
    a("s_waitcnt vmcnt(0)")
    a("v_cmp_ne_u32 vcc, %s, v6\ns_cbranch_vccnz L_a_vpoll", sTAG)
    a("L_a_vok:")
    a("v_cmp_ne_u32 vcc, %s, v7", sT2)
    a("s_cmp_eq_u64 vcc, 0\ns_cselect_b32 %s, %d, 2\nv_mov_b32 v6, %s", sT0, 1 if o.local else 2, sT0)
    a("ds_write_b32 v3, v6 offset:%d", F_VER)
    a("s_cmp_eq_u32 %s, 1\ns_cbranch_scc1 L_a_vend", sT0)
    v2_store()
    a("L_a_vend:")
    a("s_mov_b64 exec, -1")
    a("L_a_nov:")
    a("s_cmp_lg_u32 %s, 0\ns_cbranch_scc1 L_a_k", sA)
    lds_wait_ge(F_PROG, str(o.qpoll), cache=sSEEN)
    a("v_lshrrev_b32 v11, 2, v0\nv_lshlrev_b32 v11, 7, v11\nv_and_b32 v12, 3, v0\nv_lshl_add_u32 v11, v12, 4, v11")
    a("s_lshl_b32 %s, %s, 13\ns_lshr_b32 %s, %s, 3\ns_lshl_b32 %s, %s, 6\ns_add_u32 %s, %s, %s\ns_add_u32 %s, %s, %d\ns_add_u32 %s, %s, 4096",
      sT0, sG, sT1, sI, sT1, sT1, sT0, sT0, sT1, sT0, sT0, W_Q, sT1, sT0)
    a("s_mov_b32 %s, 0", sTMO)
    if o.nopoll & 1: a("s_branch L_a_qok")
    a("s_mov_b32 %s, 1\ns_mov_b32 s53, 0", sVER)
    a("L_a_qpoll:")
    fetch([(16 + 4 * r, "v11", sT0 if r < 2 else sT1, (r & 1) * 2048) for r in range(4)], o.qld)
    a("s_add_u32 s53, s53, 1\ns_cmp_gt_u32 s53, 0x8000\ns_cbranch_scc1 L_a_qok")
    a("s_waitcnt vmcnt(0)")
    for r in range(4): tag_bad("v4", 16 + 4 * r, r == 0)
    a("v_and_b32 v4, 0xff, v4\nv_cmp_ne_u32 vcc, 0, v4\ns_cbranch_vccz L_a_qok")
    a("s_mov_b32 %s, 0", sVER)
    get_ver()
    a("s_branch L_a_qpoll")
    a("L_a_qok:")
    a("s_mov_b32 %s, 0", sVER)
    a("s_waitcnt vmcnt(0)")
    for k in range(4):
        a("v_add_f32 v%d, v%d, v%d\nv_add_f32 v%d, v%d, v%d\nv_add_f32 v%d, v%d, v%d", 16 + k, 16 + k, 20 + k, 24 + k, 24 + k, 28 + k, 16 + k, 16 + k, 24 + k)
    a("v_cvt_pk_bf16_f32 v4, v16, v17\nv_cvt_pk_bf16_f32 v5, v18, v19")
    a("v_lshlrev_b32 v11, 3, v0\nv_mov_b32 v6, 1")
    a("ds_write_b64 v11, v[4:5] offset:%d", QV)
    a("ds_write_b32 v3, v6 offset:%d", F_QRDY)
    a("L_a_k:")
    lds_wait_ge(F_QRDY, "1")
    stamp(1)
    a("v_and_b32 v12, 1, v0\nv_lshlrev_b32 v11, 8, v12\nv_lshl_add_u32 v11, v8, 4, v11")
    for c in range(4):
        a("ds_read_b128 v[%d:%d], v11 offset:%d", QF + 4 * c, QF + 4 * c + 3, QV + c * 64)
    for r in range(8): a("v_mov_b32 v%d, 0", SC + r)
    a("s_sub_u32 %s, %s, 32", sTH, sB2)
    lds_wait_ge(F_PROG, sTH, cache=sSEEN)
    stamp(2)
    for c in range(4):
        for t in range(2):
            a("ds_read_b128 v[%d:%d], v10 offset:%d", KF + 16 * t + 4 * c, KF + 16 * t + 4 * c + 3, t * 4 * KP + c * 64)
    for c in range(4):
        for t in range(2):
            a("s_waitcnt lgkmcnt(%d)", 7 - 2 * c - t)
            mfma(SC + 4 * t, KF + 16 * t + 4 * c, QF + 4 * c)
    a("s_mov_b32 %s, 0xffff0000\ns_mov_b32 %s, 0x3db504f3\ns_mov_b32 %s, 0x3fb8aa3b", sT0, sT1, sT2)
    a("v_lshlrev_b32 v12, 2, v12\ns_lshl_b32 %s, %s, 3\nv_add_u32 v13, %s, v12", sT3, sA, sT3)
    a("s_nop 4")
    for k in range(0, 8, 2):
        a("v_cvt_pk_bf16_f32 v4, v%d, v%d", SC + k, SC + k + 1)
        a("v_and_b32 v5, %s, v4\nv_lshlrev_b32 v4, 16, v4", sT0)
        a("v_mul_f32 v4, %s, v4\nv_mul_f32 v5, %s, v5", sT1, sT1)
        a("v_cvt_pk_bf16_f32 v4, v4, v5")
        a("v_and_b32 v%d, %s, v4\nv_lshlrev_b32 v%d, 16, v4", SC + k + 1, sT0, SC + k)
    a("v_max3_f32 v4, v%d, v%d, v%d\nv_max3_f32 v5, v%d, v%d, v%d\nv_max3_f32 v4, v4, v%d, v%d\nv_max_f32 v4, v4, v5", *[SC + k for k in range(8)])
    def rows_allreduce(op, v, t):
        a("v_mov_b32 %s, %s\ns_nop 1\nv_permlane16_swap_b32 %s, %s\n%s %s, %s, %s", t, v, v, t, op, v, v, t)
        a("v_mov_b32 %s, %s\ns_nop 1\nv_permlane32_swap_b32 %s, %s\n%s %s, %s, %s", t, v, v, t, op, v, v, t)
    rows_allreduce("v_max_f32", "v4", "v5")
    a("ds_write_b32 v13, v4 offset:%d", MX)
    flag_add(F_A1)
    lds_wait_ge(F_A1, "4")
    a("ds_read2_b32 v[4:5], v12 offset0:%d offset1:%d\nds_read2_b32 v[6:7], v12 offset0:%d offset1:%d" % (0, 2, 4, 6) if False else
      "v_add_u32 v11, %d, v12\nds_read2_b32 v[4:5], v11 offset0:0 offset1:2\nds_read2_b32 v[6:7], v11 offset0:4 offset1:6" % MX)
    a("s_waitcnt lgkmcnt(0)")
    a("v_max3_f32 v4, v4, v5, v6\nv_max_f32 v4, v4, v7")
    a("v_mul_f32 v15, %s, v4", sT2)
    for k in range(8): a("v_fma_f32 v%d, v%d, %s, -v15", SC + k, SC + k, sT2)
    for k in range(8): a("v_exp_f32 v%d, v%d", SC + k, SC + k)
    a("s_nop 0")
    a("v_add_f32 v5, v%d, v%d\nv_add_f32 v6, v%d, v%d", SC, SC + 1, SC + 2, SC + 3)
    a("v_add_f32 v5, v5, v%d\nv_add_f32 v6, v6, v%d\nv_add_f32 v5, v5, v%d\nv_add_f32 v6, v6, v%d\nv_add_f32 v5, v5, v6", SC + 4, SC + 5, SC + 6, SC + 7)
    rows_allreduce("v_add_f32", "v5", "v6")
    for k in range(4): a("v_cvt_pk_bf16_f32 v%d, v%d, v%d", 48 + k, SC + 2 * k, SC + 2 * k + 1)
    a("v_lshlrev_b32 v10, 4, v12\nv_lshl_add_u32 v10, v8, 4, v10")
    a("s_lshl_b32 %s, %s, 7\nv_add_u32 v7, %s, v10", sT3, sA, sT3)
    a("ds_write_b32 v13, v5 offset:%d", LS)
    a("ds_write_b128 v7, v[48:51] offset:%d", PB)
    flag_add(F_A2)
    for r in range(8): a("v_mov_b32 v%d, 0", OA + r)
    lds_wait_ge(F_A2, "4")
    a("ds_read2_b32 v[4:5], v11 offset0:8 offset1:10\nds_read2_b32 v[6:7], v11 offset0:12 offset1:14")
    for j in range(4):
        a("s_add_u32 s%d, %s, %d\ns_and_b32 s%d, s%d, 3\ns_lshl_b32 %s, s%d, 7\nv_add_u32 v13, %s, v10", 48 + j, sIDX, j, 48 + j, 48 + j, sT3, 48 + j, sT3)
        a("ds_read_b128 v[%d:%d], v13 offset:%d", PF + 4 * j, PF + 4 * j + 3, PB)
        a("s_mul_i32 s%d, s%d, %d", 48 + j, 48 + j, 8 * VP)
    a("s_waitcnt lgkmcnt(4)")
    a("v_add_f32 v4, v4, v5\nv_add_f32 v6, v6, v7\nv_add_f32 v4, v4, v6")
    a("v_log_f32 v5, v4\nv_rcp_f32 v13, v4")
    a("s_lshl4_add_u32 %s, %s, %s\ns_lshl2_add_u32 %s, %s, %s\ns_lshl_b32 %s, %s, 8\ns_add_u32 s93, %s, %d", sT0, sG, sI, sT0, sT0, sA, sT0, sT0, sT0, W_O)
    a("v_add_f32 v51, v15, v5\nv_add_f32 v55, v15, v5\nv_mov_b32 v50, %s\nv_mov_b32 v54, %s", sTAG, sTAG)
    get_ver()
    a("v_lshrrev_b32 v12, 5, v0\nv_and_b32 v11, 31, v0\nv_lshlrev_b32 v11, 4, v11\nv_lshl_add_u32 v11, v12, 12, v11")
    a("s_lshl_b32 %s, %s, 14\ns_lshr_b32 %s, %s, 1\ns_lshl_b32 %s, %s, 13\ns_add_u32 %s, %s, %s", sT0, sTEAM, sT1, sA, sT1, sT1, sT0, sT0, sT1)
    a("s_and_b32 %s, %s, 1\ns_lshl_b32 %s, %s, 9\ns_add_u32 %s, %s, %s\ns_add_u32 %s, %s, %d", sT1, sA, sT1, sT1, sT0, sT0, sT1, sT0, sT0, W_O)
    a("v_bfe_u32 v10, v0, 2, 1\nv_lshlrev_b32 v10, 8, v10\nv_lshl_add_u32 v10, v12, 2, v10\nv_bfe_u32 v12, v0, 4, 1\nv_lshl_add_u32 v10, v12, 6, v10\nv_and_b32 v12, 3, v0\nv_lshl_add_u32 v10, v12, 4, v10\nv_bfe_u32 v12, v0, 3, 1\nv_lshl_add_u32 v10, v12, 3, v10")
    a("s_lshr_b32 %s, %s, 1\ns_mul_i32 %s, %s, %d\ns_lshr_b32 %s, %s, 2\ns_add_u32 %s, %s, %s\nv_add_u32 v10, %s, v10", sT2, sA, sT2, sT2, VEC2_P, sT1, sT1, sT2, sT2, sT1, sT2)
    a("s_mov_b32 %s, 0xffff0000", sT1)
    stamp(3)
    a("s_mov_b32 %s, %d\ns_cmp_eq_u32 %s, 80\ns_cselect_b32 %s, 50, %s", sTH, 98 + 4 * o.s2early, sNS2, sTH, sTH)
    for j in range(4):
        a("s_add_u32 %s, %s, 8\nv_add_u32 v4, s%d, v%d\nv_add_u32 v5, s%d, v%d", sTH, sTH, 48 + j, VA, 48 + j, VA + 1)
        lds_wait_ge(F_PROG, sTH, cache=sSEEN)
        for d in range(2):
            for t in range(2):
                a("ds_read_b64_tr_b16 v[%d:%d], v%d offset:%d", VF + 4 * d + 2 * t, VF + 4 * d + 2 * t + 1, 4 + d, t * 4 * VP)
        a("s_waitcnt lgkmcnt(2)")
        mfma(OA, VF, PF + 4 * j)
        a("s_waitcnt lgkmcnt(0)")
        mfma(OA + 4, VF + 4, PF + 4 * j)
    a("s_mov_b64 exec, %s", sEX)
    a("s_nop 4")
    for r in range(8): a("v_mul_f32 v%d, v%d, v13", OA + r, OA + r)
    a("v_cvt_pk_bf16_f32 v48, v%d, v%d\nv_cvt_pk_bf16_f32 v49, v%d, v%d", OA, OA + 1, OA + 2, OA + 3)
    a("v_cvt_pk_bf16_f32 v52, v%d, v%d\nv_cvt_pk_bf16_f32 v53, v%d, v%d", OA + 4, OA + 5, OA + 6, OA + 7)
    pub([("v[48:51]", "s93", 0), ("v[52:55]", "s93", 128)])
    a("s_mov_b64 exec, -1")
    stamp(4)
    if o.burst:
        flag_add(F_PUB)
    a("s_cmp_ge_u32 %s, 16\ns_cbranch_scc1 %s", sTEAM, "L_a_red" if o.redbase else "L_a_end")
    if o.burst: lds_wait_ge(F_PUB, "4")
    if o.opoll: lds_wait_ge(F_PROG, str(o.opoll), cache=sSEEN)
    a("s_mov_b32 %s, 0", sTMO)
    if o.nopoll & 4: a("s_branch L_a_ook")
    if o.burst:
        fetch([(16 + 4 * k, "v11", sT0, k * 1024) for k in range(4)], o.old)
        flag_add(F_PUB)
        a("s_branch L_a_ochk")
    a("L_a_opoll:")
    fetch([(16 + 4 * k, "v11", sT0, k * 1024) for k in range(4)], o.old)
    a("L_a_ochk:")
    a("s_add_u32 %s, %s, 1\ns_cmp_gt_u32 %s, 0x8000\ns_cbranch_scc1 L_a_ook", sTMO, sTMO, sTMO)
    a("s_waitcnt vmcnt(0)")
    a("v_xor_b32 v4, %s, v18\nv_xor_b32 v5, %s, v22\nv_xor_b32 v6, %s, v26\nv_xor_b32 v7, %s, v30", sTAG, sTAG, sTAG, sTAG)
    a("v_or3_b32 v4, v4, v5, v6\nv_or_b32 v4, v4, v7")
    a("v_cmp_ne_u32 vcc, 0, v4\ns_and_b64 exec, exec, vcc\ns_cbranch_vccnz L_a_opoll")
    a("L_a_ook:")
    a("s_mov_b64 exec, -1")
    a("s_waitcnt vmcnt(0)")
    stamp(5)
    a("v_max3_f32 v4, v19, v23, v27\nv_max_f32 v4, v4, v31")
    a("v_mov_b32 v5, v4")
    a("v_lshlrev_b32 v32, 16, v16\nv_and_b32 v33, %s, v16", sT1)
    a("v_permlane32_swap_b32 v4, v5\nv_max_f32 v4, v4, v5")
    for k in range(4): a("v_sub_f32 v%d, v%d, v4", 19 + 4 * k, 19 + 4 * k)
    for k in range(4): a("v_exp_f32 v%d, v%d", 19 + 4 * k, 19 + 4 * k)
    a("v_lshlrev_b32 v34, 16, v17\nv_and_b32 v35, %s, v17", sT1)
    for r in range(4): a("v_mul_f32 v%d, v%d, v19", 32 + r, 32 + r)
    a("v_add_f32 v5, v19, v23\nv_add_f32 v6, v27, v31\nv_add_f32 v5, v5, v6\nv_mov_b32 v4, v5")
    for k in range(1, 4):
        w = 19 + 4 * k
        a("v_lshlrev_b32 v6, 16, v%d\nv_and_b32 v7, %s, v%d\nv_fmac_f32 v32, v%d, v6\nv_fmac_f32 v33, v%d, v7", 16 + 4 * k, sT1, 16 + 4 * k, w, w)
        if k == 1: a("v_permlane32_swap_b32 v4, v5\nv_add_f32 v4, v4, v5\nv_rcp_f32 v4, v4")
        a("v_lshlrev_b32 v6, 16, v%d\nv_and_b32 v7, %s, v%d\nv_fmac_f32 v34, v%d, v6\nv_fmac_f32 v35, v%d, v7", 17 + 4 * k, sT1, 17 + 4 * k, w, w)
    a("s_nop 1")
    a("v_permlane32_swap_b32 v32, v34\nv_permlane32_swap_b32 v33, v35")
    a("v_add_f32 v32, v32, v34\nv_add_f32 v33, v33, v35\nv_mul_f32 v32, v32, v4\nv_mul_f32 v33, v33, v4")
    a("v_cvt_pk_bf16_f32 v32, v32, v33")
    a("ds_write_b32 v10, v32 offset:%d", VEC2)
    flag_add(F_VRDY)
    stamp(6)
    if o.wb & 3 == 1:
        Lb = a.lab("LWB")
        a("s_cmp_lg_u32 %s, %d\ns_cbranch_scc1 %s", sCB, o.wbcb, Lb)
        a("s_cmp_lg_u32 %s, 0\ns_cbranch_scc1 %s", sA, Lb)
        lds_wait_ge(F_VRDY, "4")
        a("buffer_wbl2 sc1")
        a("%s:" % Lb)
    sRU = "s56"
    a("L_a_red:")
    if not o.red4: a("s_cmp_lg_u32 %s, 3\ns_cbranch_scc1 L_a_end", sA)
    a("s_sub_u32 %s, s2, %d\ns_cmp_ge_u32 %s, 36\ns_cbranch_scc1 L_a_end", sRU, o.redbase, sRU)
    if o.fpoll: lds_wait_ge(F_PROG, str(o.fpoll), cache=sSEEN)
    mk_srd(R1, 22, 2304)
    a("v_bfe_u32 v12, v0, 2, 1\nv_mul_u32_u24 v12, 1152, v12\nv_and_b32 v11, 3, v0\nv_lshl_add_u32 v12, v11, 3, v12")
    a("v_and_b32 v11, 1, v8\nv_lshl_add_u32 v12, v11, 2, v12")
    a("s_lshl_b32 %s, %s, 5\nv_add_u32 v12, %s, v12", sT1, sRU, sT1)
    a("global_load_dword v40, v12, s[4:5]")
    if o.outpre: a("buffer_load_dword v42, v12, %s, 0 offen", srd(R1))
    a("s_lshl_b32 %s, %s, 12\ns_add_u32 %s, %s, %d", sT0, sRU, sT0, sT0, W_F)
    a("v_lshlrev_b32 v11, 4, v0")
    a("s_mov_b32 %s, 0xffff0000\ns_mov_b32 %s, 0", sT1, sTMO)
    a("s_waitcnt vmcnt(0)")
    a("v_and_b32 v41, %s, v40\nv_lshlrev_b32 v40, 16, v40", sT1)
    if not o.red4:
        if o.nopoll & 8: a("s_branch L_a_fok")
        a("L_a_fpoll:")
        for k in range(4):
            a("buffer_load_dwordx4 v[%d:%d], v11, %s, %s offen offset:%d sc1", 16 + 4 * k, 19 + 4 * k, srd(RW), sT0, k * 1024)
        a("s_add_u32 %s, %s, 1\ns_cmp_gt_u32 %s, 0x8000\ns_cbranch_scc1 L_a_fok", sTMO, sTMO, sTMO)
        for k in range(4):
            a("s_waitcnt vmcnt(%d)", 3 - k)
            tag_bad("v4", 16 + 4 * k, k == 0)
        a("v_and_b32 v4, 0xff, v4\nv_cmp_ne_u32 vcc, 0, v4\ns_and_b64 exec, exec, vcc\ns_cbranch_vccnz L_a_fpoll")
        a("L_a_fok:")
        a("s_mov_b64 exec, -1")
        stamp(7)
        for r in range(4): a("v_add_f32 v%d, v%d, v%d", 16 + r, 16 + r, 20 + r)
        for r in range(4): a("v_add_f32 v%d, v%d, v%d", 24 + r, 24 + r, 28 + r)
        for r in range(4): a("v_permlane32_swap_b32 v%d, v%d", 16 + r, 24 + r)
        for r in (0, 2, 1, 3): a("v_add_f32 v%d, v%d, v%d", 16 + r, 16 + r, 24 + r)
        a("v_permlane16_swap_b32 v16, v18\ns_nop 0\nv_permlane16_swap_b32 v17, v19")
        a("v_add_f32 v16, v16, v18\nv_add_f32 v17, v17, v19\ns_nop 0")
        a("v_add_f32_dpp v16, v16, v16 row_ror:8 row_mask:0xf bank_mask:0xf\nv_add_f32_dpp v17, v17, v17 row_ror:8 row_mask:0xf bank_mask:0xf")
    else:
        a("s_lshl_b32 %s, %s, 10\ns_add_u32 %s, %s, %s", sT2, sA, sT0, sT0, sT2)
        a("v_lshlrev_b32 v10, 3, v0\ns_lshl_b32 %s, %s, 9\nv_add_u32 v13, %s, v10\nv_mov_b32 v6, 1", sT2, sA, sT2)
        a("L_a_fpoll:")
        a("buffer_load_dwordx4 v[16:19], v11, %s, %s offen sc1", srd(RW), sT0)
        a("s_add_u32 %s, %s, 1\ns_cmp_gt_u32 %s, 0x8000\ns_cbranch_scc1 L_a_fok", sTMO, sTMO, sTMO)
        a("s_waitcnt vmcnt(0)")
        tag_bad("v4", 16, True)
        a("v_and_b32 v4, 0xff, v4\nv_cmp_ne_u32 vcc, 0, v4\ns_and_b64 exec, exec, vcc\ns_cbranch_vccnz L_a_fpoll")
        a("L_a_fok:")
        a("s_mov_b64 exec, -1")
        stamp(7)
        a("v_permlane16_swap_b32 v16, v18\nv_permlane16_swap_b32 v17, v19")
        a("v_add_f32 v16, v16, v18\nv_add_f32 v17, v17, v19\ns_nop 0")
        a("v_add_f32_dpp v16, v16, v16 row_ror:8 row_mask:0xf bank_mask:0xf\nv_add_f32_dpp v17, v17, v17 row_ror:8 row_mask:0xf bank_mask:0xf")
        a("ds_write_b64 v13, v[16:17] offset:%d", RP)
        a("s_mov_b64 exec, 1\nds_add_rtn_u32 v6, v3, v6 offset:%d\ns_mov_b64 exec, -1", F_RED)
        for k in range(4): a("ds_read_b64 v[%d:%d], v10 offset:%d", 20 + 2 * k, 21 + 2 * k, RP + 512 * k)
        a("s_waitcnt lgkmcnt(4)")
        a("v_readfirstlane_b32 %s, v6", sT3)
        a("s_cmp_lg_u32 %s, 3\ns_cbranch_scc1 L_a_end", sT3)
        a("s_waitcnt lgkmcnt(0)")
        a("v_add_f32 v16, v20, v22\nv_add_f32 v17, v21, v23\nv_add_f32 v18, v24, v26\nv_add_f32 v19, v25, v27")
        a("v_add_f32 v16, v16, v18\nv_add_f32 v17, v17, v19")
    a("v_cvt_pk_bf16_f32 v16, v16, v17\nv_mov_b32 v18, v16\ns_nop 1")
    a("v_permlane32_swap_b32 v16, v18")
    a("v_lshlrev_b32 v6, 16, v16\nv_and_b32 v7, %s, v16", sT1)
    a("v_add_f32 v4, v40, v6\nv_add_f32 v5, v41, v7\nv_cvt_pk_bf16_f32 v4, v4, v5")
    a("v_lshlrev_b32 v6, 16, v18\nv_and_b32 v7, %s, v18", sT1)
    a("v_and_b32 v5, %s, v4\nv_lshlrev_b32 v4, 16, v4", sT1)
    a("s_mov_b64 exec, 0xff00ff")
    a("v_add_f32 v4, v4, v6\nv_add_f32 v5, v5, v7\nv_cvt_pk_bf16_f32 v20, v4, v5")
    a("buffer_store_dword v20, v12, %s, 0 offen %s", srd(R1), o.outpol)
    a("s_cmp_lg_u32 %s, 0\ns_cbranch_scc1 %s", sRU, "L_a_end2" if o.holdf else "L_a_end")
    a("s_mov_b64 exec, 1\nv_mov_b32 v4, %s", sTAG)
    a("buffer_store_dword v4, v3, %s, 0 offen %s", srd(RW), o.eppol)
    if o.holdf:
        a("s_branch L_a_end2")
    a("L_a_end:")
    stamps_out()
    a("L_end:")
    a("s_endpgm")
    if o.holdf:
        a("L_a_end2:")
        a("s_cmp_lg_u32 s2, %d\ns_cbranch_scc1 L_end", o.holdwg)
        a("s_memrealtime s[70:71]\ns_waitcnt lgkmcnt(0)\ns_sub_u32 %s, s70, s86\ns_mul_i32 %s, %s, %d\ns_add_u32 %s, %s, %d", sT1, sT1, sT1, o.holdmul, sT1, sT1, o.holdf)
        a("L_holdf:\ns_memrealtime s[70:71]\ns_waitcnt lgkmcnt(0)\ns_sub_u32 %s, s70, s86\ns_cmp_lt_u32 %s, %s\ns_cbranch_scc1 L_holdf", sT0, sT0, sT1)
        a("s_endpgm")
    flush_ool()
    a("L_code_end:")
    if o.cpf: a(".fill 256, 4, 0xbf800000")

    hdr = open(os.path.join(os.path.dirname(os.path.abspath(__file__)), "header.txt")).read()
    hdr += "; @launch grid=(256,1,1) block=(576,1,1) lds=%d\n" % LDS_TOTAL
    hdr += '.amdgcn_target "amdgcn-amd-amdhsa--gfx950"\n.text\n.globl %s\n.p2align 8\n.type %s,@function\n' % (NAME, NAME)
    ftr = """.section .rodata,"a"
.p2align 6
.amdhsa_kernel %s
  .amdhsa_next_free_vgpr 88
  .amdhsa_next_free_sgpr 102
  .amdhsa_accum_offset 88
  .amdhsa_group_segment_fixed_size 0
  .amdhsa_kernarg_size 96
  .amdhsa_user_sgpr_count 2
  .amdhsa_user_sgpr_kernarg_segment_ptr 1
  .amdhsa_system_sgpr_workgroup_id_x 1
  .amdhsa_float_denorm_mode_32 3
.end_amdhsa_kernel
""" % NAME
    body = a.text()
    if o.nostore:
        body = "\n".join(l for l in body.split("\n") if not ("buffer_store_dwordx4" in l and (o.nostore & 2 or "sc1" in l)))
    return hdr + body + ftr

def parser():
    p = argparse.ArgumentParser()
    p.add_argument("-o", default="-")
    p.add_argument("--depth", type=int, default=24)
    p.add_argument("--diag", type=int, default=0)
    p.add_argument("--qpoll", type=int, default=42)
    p.add_argument("--opoll", type=int, default=0)
    p.add_argument("--hpoll", type=int, default=114)
    p.add_argument("--cpf", type=int, default=1)
    p.add_argument("--sdiag", type=int, default=0)
    p.add_argument("--mix", type=int, default=2)
    p.add_argument("--local", type=int, default=1)
    p.add_argument("--qld", default="nt")
    p.add_argument("--hld", default="nt")
    p.add_argument("--old", default="nt")
    p.add_argument("--cpe", type=int, default=1)
    p.add_argument("--xpol", default="")
    p.add_argument("--cpol", default="")
    p.add_argument("--vesc", type=int, default=3)
    p.add_argument("--vstride", type=int, default=3)
    p.add_argument("--vfull", type=int, default=1)
    p.add_argument("--fast0", type=int, default=1)
    p.add_argument("--red4", type=int, default=1)
    p.add_argument("--race", type=int, default=0)
    p.add_argument("--s2early", type=int, default=0)
    p.add_argument("--redbase", type=int, default=216)
    p.add_argument("--fpoll", type=int, default=162)
    p.add_argument("--ltsplit", type=int, default=0)
    p.add_argument("--depthl2", type=int, default=44)
    p.add_argument("--eppol", default="")
    p.add_argument("--wb", type=int, default=0)
    p.add_argument("--wbcb", type=int, default=8)
    p.add_argument("--outpre", type=int, default=0)
    p.add_argument("--tlb", type=int, default=0)
    p.add_argument("--burst", type=int, default=0)
    p.add_argument("--hold", type=int, default=0)
    p.add_argument("--holdf", type=int, default=0)
    p.add_argument("--holdmul", type=int, default=0)
    p.add_argument("--holdwg", type=int, default=0)
    p.add_argument("--wqx", type=int, default=4)
    p.add_argument("--spec", type=int, default=0)
    p.add_argument("--outpol", default="")
    p.add_argument("--nover", type=int, default=0)
    p.add_argument("--depthv", type=int, default=0)
    p.add_argument("--depthl", type=int, default=0)
    p.add_argument("--ltwait", type=int, default=0)
    p.add_argument("--hpolll", type=int, default=0)
    p.add_argument("--touch", type=int, default=0)
    p.add_argument("--vpoll", type=int, default=34)
    p.add_argument("--depth2", type=int, default=24)
    p.add_argument("--sleep", type=int, default=0)
    p.add_argument("--nopoll", type=int, default=0)
    p.add_argument("--nostore", type=int, default=0)
    p.add_argument("--rot", type=int, default=1)
    p.add_argument("--ldonly", type=int, default=0)
    p.add_argument("--pol", default="nt")
    return p

if __name__ == "__main__":
    o = parser().parse_args()
    t = gen(o)
    if o.o == "-": sys.stdout.write(t)
    else: open(o.o, "w").write(t)
```

```python
import sys, argparse, math, struct, os

NAME = "parallel_sum__sliding_block_cached__geglu_ffn__decode_kernel"
f2u = lambda f: struct.unpack("<I", struct.pack("<f", f))[0]

class Asm:
    def __init__(self):
        self.lines = []
        self.n = 0
    def __call__(self, s, *args):
        if args: s = s % args
        for ln in s.strip("\n").split("\n"):
            ln = ln.strip()
            if not ln: continue
            if ln.endswith(":"): self.lines.append(ln)
            else: self.lines.append("    " + ln)
    def lab(self, p="L"):
        self.n += 1
        return "%s_%d" % (p, self.n)
    def text(self): return "\n".join(self.lines) + "\n"

F_PROG, F_QRDY, F_A1, F_A2, F_VRDY, F_C1, F_VER, F_PUB, F_HOK, F_RED = 0, 16, 20, 8, 24, 28, 32, 36, 40, 44
XN, XN_P = 256, 1152
QV = 2560
VEC2, VEC2_P = 3072, 704
MX = 5632
LS = 5664
PB = 5888
RP = 6400
RA = 10240
RWQ = RA + 48 * 1024
RK = RA + 80 * 1024
KP = 1088
RV = RK + 32 * KP
VP = 1152
LDS_TOTAL = RV + 32 * VP
assert LDS_TOTAL <= 163840
W_EPOCH = 0
W_V = 1024
W_Q = 4096
W_G = W_Q + 16 * 8192
W_O = W_G + 6 * 36864
W_AEND = W_O + 256 * 1024
BOFF = 0xa0000
assert W_AEND - W_Q <= BOFF
W_F = W_AEND + BOFF
W_END = W_F + 36 * 4096
W_DIAG = 2 << 20
assert W_END <= W_DIAG
P_G = 26

DOC = """;
"""

def gen(o):
    a = Asm()
    D = o.depth
    diag = o.diag
    sX, sIDX, sG, sI, sWV = "s28", "s29", "s30", "s31", "s32"
    sTEAM, sCB, sNS2, sB2, sR0 = "s33", "s34", "s35", "s36", "s37"
    sD3, sM3 = "s38", "s39"
    sT0, sT1, sT2, sT3 = "s40", "s41", "s42", "s43"
    sSEEN, sTMO, sTAG, sVER = "s44", "s45", "s46", "s47"
    sEX = "s[68:69]"
    R0, R1, R2, R3, R4 = 48, 52, 56, 60, 64
    RW = 64
    RB = 60
    ST = 72
    def srd(r): return "s[%d:%d]" % (r, r + 3)
    def mk_srd(r, lo, size):
        a("s_mov_b32 s%d, s%d\ns_mov_b32 s%d, s%d\ns_mov_b32 s%d, 0x%x\ns_mov_b32 s%d, 0x00020000", r, lo, r + 1, lo + 1, r + 2, size, r + 3)
    def stamp(k):
        if diag: a("s_memrealtime s[%d:%d]", ST + 2 * k, ST + 2 * k + 1)
    def stamps_out():
        if not diag: return
        a("s_waitcnt lgkmcnt(0)")
        a("s_mov_b64 exec, -1")
        a("s_lshl_b32 %s, s2, 4\ns_add_u32 %s, %s, %s\ns_lshl_b32 %s, %s, 6\ns_add_u32 %s, %s, 0x%x", sT0, sT0, sT0, sWV, sT0, sT0, sT0, sT0, W_DIAG)
        a("v_mov_b32 v1, %s", sT0)
        for k in range(4):
            for j in range(4): a("v_mov_b32 v%d, s%d", 4 + j, ST + 4 * k + j)
            a("global_store_dwordx4 v1, v[4:7], s[26:27] offset:%d", 16 * k)
            a("s_nop 1")
    ool = []
    def lds_wait_ge(off, thr, cache=None, vt="v2", vz="v3", hot=False):
        if hot:
            Ls, Lr = a.lab("LS"), a.lab("LB")
            a("s_cmp_lt_i32 %s, %s\ns_cbranch_scc1 %s", cache, thr, Ls)
            a("%s:" % Lr)
            ool.append((Ls, lambda: lds_wait_ge(off, thr, cache, vt, vz), Lr))
            return
        L, E = a.lab("LW"), a.lab("LE")
        c = cache or sT3
        if cache:
            a("s_cmp_ge_i32 %s, %s\ns_cbranch_scc1 %s", c, thr, E)
        a("s_mov_b32 %s, 0", sTMO)
        a("%s:" % L)
        if o.sleep: a("s_sleep %d", o.sleep)
        a("ds_read_b32 %s, %s offset:%d", vt, vz, off)
        a("s_add_u32 %s, %s, 1", sTMO, sTMO)
        a("s_cmp_gt_u32 %s, 0x80000\ns_cbranch_scc1 %s", sTMO, E)
        a("s_waitcnt lgkmcnt(0)")
        a("v_readfirstlane_b32 %s, %s", c, vt)
        a("s_cmp_lt_i32 %s, %s\ns_cbranch_scc1 %s", c, thr, L)
        a("%s:" % E)
    def get_tag():
        a("s_waitcnt lgkmcnt(0)")
        a("s_mul_i32 %s, %s, 1664525\ns_add_u32 %s, %s, 1013904223", sTAG, sTAG, sTAG, sTAG)
        a("s_and_b32 s94, %s, 0xff\ns_bfe_u32 s95, %s, 0x80008\ns_bfe_u32 s96, %s, 0x80010\ns_lshr_b32 s97, %s, 24", sTAG, sTAG, sTAG, sTAG)
    def tag_merge(r, rnd=True):
        for k in range(4):
            if rnd: a("v_add_u32 v%d, 0x80, v%d", r + k, r + k)
        for k in range(4):
            a("v_and_or_b32 v%d, v%d, v14, s%d", r + k, r + k, 94 + k)
    def tag_bad(dst, r, first):
        for k in range(4): a("v_xor_b32 v%d, s%d, v%d", r + k, 94 + k, r + k)
        if first: a("v_or3_b32 %s, v%d, v%d, v%d\nv_or_b32 %s, %s, v%d", dst, r, r + 1, r + 2, dst, dst, r + 3)
        else: a("v_or3_b32 %s, %s, v%d, v%d\nv_or3_b32 %s, %s, v%d, v%d", dst, dst, r, r + 1, dst, dst, r + 2, r + 3)
    def flag_add(off, vt="v6"):
        a("s_mov_b64 exec, 1\nv_mov_b32 %s, 1\nds_add_u32 v3, %s offset:%d\ns_mov_b64 exec, -1", vt, vt, off)
    def get_ver():
        lds_wait_ge(F_VER, "1", cache=sVER)
    def two_way(fast, slow):
        Ls, Lr = a.lab("LS"), a.lab("LB")
        a("s_cmp_lg_u32 %s, 1\ns_cbranch_scc1 %s", sVER, Ls)
        fast()
        a("%s:" % Lr)
        ool.append((Ls, slow, Lr))
    def flush_ool():
        for Ls, slow, Lr in ool:
            a("%s:" % Ls)
            slow()
            a("s_branch %s", Lr)
        del ool[:]
    def pub(items):
        def fast():
            for regs, so, off in items:
                a("buffer_store_dwordx4 %s, v1, %s, %s offen offset:%d", regs, srd(RW), so, off)
        def slow():
            for regs, so, off in items:
                a("buffer_store_dwordx4 %s, v1, %s, %s offen offset:%d sc1", regs, srd(RB), so, off)
        two_way(fast, slow)
    def fetch(items, fl="nt"):
        def go(r, f):
            for d, vo, so, off in items:
                a("buffer_load_dwordx4 v[%d:%d], %s, %s, %s offen offset:%d %s", d, d + 3, vo, srd(r), so, off, f)
        two_way(lambda: go(RW, fl), lambda: go(RB, "sc1"))
    def s2pos(n): return (98 if n <= 4 * o.s2early else 130) + n
    def mfma(d, A, B):
        a("v_mfma_f32_16x16x32_bf16 v[%d:%d], v[%d:%d], v[%d:%d], v[%d:%d]", d, d + 3, A, A + 3, B, B + 3, d, d + 3)

    a("%s:" % NAME)
    stamp(0)
    if o.hold or o.holdf: a("s_memrealtime s[86:87]")
    if diag:
        for k in range(1, 8): a("s_mov_b64 s[%d:%d], 0", ST + 2 * k, ST + 2 * k + 1)
    KARG = "s_load_dwordx16 s[4:19], s[0:1], 0\ns_load_dwordx8 s[20:27], s[0:1], 64"
    if o.fast0: a("s_load_dwordx2 s[%d:%d], s[0:1], 24", R0, R0 + 1)
    else: a(KARG)
    a("""
    s_cmp_ge_u32 s2, 256
    s_cbranch_scc1 L_end
    v_lshrrev_b32 v1, 6, v0
    v_and_b32 v0, 63, v0
    v_mov_b32 v3, 0
    """)
    a("v_readfirstlane_b32 %s, v1", sWV)
    a("s_and_b32 %s, s2, 7\ns_lshr_b32 %s, s2, 3", sX, sIDX)
    if o.xg:
        a("s_cmp_lt_u32 %s, 25\ns_cselect_b32 %s, -9, 0\ns_cmp_lt_u32 %s, 9\ns_cselect_b32 %s, 16, %s\ns_add_u32 %s, %s, %s", sIDX, sT0, sIDX, sT0, sT0, sT1, sIDX, sT0)
        a("s_lshr_b32 %s, %s, 4\ns_lshl1_add_u32 %s, %s, %s\ns_and_b32 %s, %s, 15", sT0, sT1, sG, sX, sT0, sI, sT1)
    else:
        a("s_lshr_b32 %s, s2, 7\ns_lshl1_add_u32 %s, %s, %s\ns_and_b32 %s, %s, 15", sT0, sG, sX, sT0, sI, sIDX)
    def code_pf():
        if o.cpf:
            Lc = a.lab("LCP")
            a("s_cmp_lg_u32 %s, 8\ns_cbranch_scc1 %s", sWV, Lc)
            a("s_lshl_b32 %s, %s, 10\ns_cmp_ge_u32 %s, L_code_end-%s\ns_cbranch_scc1 %s", sT0, sI, sT0, NAME, Lc)
            a("s_getpc_b64 s[88:89]")
            a("L_pc:")
            a("s_sub_u32 s88, s88, L_pc-%s\ns_subb_u32 s89, s89, 0", NAME)
            a("v_lshlrev_b32 v4, 4, v0\nv_add_u32 v4, %s, v4", sT0)
            a("global_load_dwordx4 v[76:79], v4, s[88:89] %s", o.cpol)
            a("%s:" % Lc)
    def cons_entry():
        if o.fast0: a(KARG)
        if o.cpe: code_pf()
        a("v_mul_u32_u24 v13, 36, v0")
        a("s_cmp_ge_u32 %s, 5", sWV)
        a("s_waitcnt lgkmcnt(0)")
        a("s_load_dword %s, s[26:27], 0", sTAG)
        a("s_cbranch_scc1 L_cons2")
        a("global_load_dwordx4 v[16:19], v13, s[4:5] %s", o.xpol)
        a("global_load_dwordx4 v[20:23], v13, s[4:5] offset:16 %s", o.xpol)
        a("global_load_dword v24, v13, s[4:5] offset:32 %s", o.xpol)
        a("L_cons2:")
        if not o.cpe: code_pf()
        a("s_branch L_cons3")
    if o.fast0 == 2:
        a("s_cmp_lg_u32 %s, 0\ns_cbranch_scc1 L_cons", sWV)
    else:
        a("s_cmp_eq_u32 %s, 0\ns_cbranch_scc1 L_loader", sWV)
        cons_entry()
    a("L_loader:")

    sOFF, sCNT, sISS, sKV, sRQ = "s90", "s91", "s92", "s93", "s98"
    sO2, sMG = "s99", "s100"
    def prog(depth):
        a("s_add_u32 %s, %s, 4\nv_max_i32 v4, %s, v4", sISS, sISS, sISS)
        a("s_waitcnt vmcnt(%d)", depth - 4)
        a("ds_write_b32 v3, v4 offset:%d", F_PROG)
    def loop_end(L):
        a("s_sub_u32 %s, %s, 1\ns_cmp_lg_u32 %s, 0\ns_cbranch_scc1 %s", sCNT, sCNT, sCNT, L)
    sMK = "s88"
    def kv_group(r, voff, base, pitch, wait=True, depth=None):
        a("s_mov_b32 m0, %s\ns_add_u32 %s, %s, %d", sMK, sMK, sMK, 4 * pitch)
        a("s_lshl_b32 %s, %s, 12\ns_add_u32 %s, %s, %s", sT1, sRQ, sT1, sT1, sKV)
        for k in range(4):
            a("buffer_load_dwordx4 %s, %s, %s offen %s lds", voff, srd(r), sT1, o.pol)
            if k < 3: a("s_add_u32 m0, m0, %d\ns_add_u32 %s, %s, s101", pitch, sT1, sT1)
        a("s_add_u32 %s, %s, 1\ns_and_b32 %s, %s, 7", sRQ, sRQ, sRQ, sRQ)
        if wait: prog(depth or D)
    def kv_loop(r, voff, base, pitch, depth=None):
        L = a.lab("LD")
        a("%s:" % L)
        kv_group(r, voff, base, pitch, True, depth)
        loop_end(L)
    def pair_group(ra, rb, voff, step, depth):
        for k in range(4):
            so = sOFF if k % 2 == 0 else sO2
            a("buffer_load_dwordx4 %s, %s, %s offen %s lds", voff, srd(ra if k % 2 == 0 else rb), so, o.pol)
            a("s_add_u32 m0, m0, s101\ns_add_u32 %s, %s, %d", so, so, step)
        prog(depth)
    def roles():
        a("s_mul_i32 %s, %s, 43\ns_lshr_b32 %s, %s, 7\ns_mul_i32 %s, %s, 3\ns_sub_u32 %s, %s, %s", sD3, sIDX, sD3, sD3, sT0, sD3, sM3, sIDX, sT0)
        a("s_mul_i32 %s, %s, 57\ns_lshr_b32 %s, %s, 9", sT0, sIDX, sT0, sT0)
        a("s_mul_i32 %s, %s, 9\ns_sub_u32 %s, %s, %s", sT1, sT0, sCB, sIDX, sT1)
        a("s_lshl1_add_u32 %s, %s, %s\ns_lshl_b32 %s, %s, 8", sTEAM, sX, sT0, sR0, sTEAM)
        a("s_mov_b32 %s, 32\ns_mov_b32 %s, %d", sNS2, sB2, 130)
        Ld = a.lab("LR")
        a("s_cmp_lt_u32 %s, 2\ns_cbranch_scc1 %s", sT0, Ld)
        a("s_mul_i32 %s, %s, 576\ns_lshl3_add_u32 %s, %s, %s", sR0, sX, sTEAM, sT0, sX)
        a("s_cmp_eq_u32 %s, 2\ns_cbranch_scc1 %s", sT0, Ld)
        a("s_add_u32 %s, %s, 256\ns_lshl_b32 %s, %s, 1\ns_mov_b32 %s, 80\ns_mov_b32 %s, 82", sR0, sR0, sCB, sCB, sNS2, sB2)
        a("%s:" % Ld)
    def gu_img(h, smt, sfb):
        a("s_lshl_b32 %s, %s, 1\ns_add_u32 %s, %s, %d", sfb, sD3, sfb, sfb, h)
        a("s_cmp_eq_u32 %s, %d\ns_cselect_b32 %s, %d, %s", sfb, 10 - h, sfb, 9 + h, sfb)
        a("s_cmp_ge_u32 %s, 9\ns_cselect_b32 %s, 1, 0\ns_cselect_b32 %s, 9, 0\ns_sub_u32 %s, %s, %s", sfb, smt, sT3, sfb, sfb, sT3)
        a("s_mul_i32 %s, %s, 9\ns_add_u32 %s, %s, %s", sT3, sX, sfb, sfb, sT3)

    a("""
    v_lshrrev_b32 v8, 3, v0
    v_lshrrev_b32 v15, 4, v0
    v_lshlrev_b32 v9, 1, v15
    v_and_b32 v10, 7, v0
    v_xor_b32 v10, v10, v9
    v_lshlrev_b32 v10, 4, v10
    v_lshl_add_u32 v16, v8, 13, v10
    """)
    a("s_and_b32 %s, %s, 3\ns_mul_i32 %s, %s, %d", sT0, sIDX, sOFF, sT0, 144 * 8192)
    a("s_lshr_b32 %s, %s, 2\ns_xor_b32 %s, %s, %d\ns_lshl3_add_u32 %s, %s, %s\ns_lshl_b32 %s, %s, 7\ns_add_u32 %s, %s, %s", sT0, sIDX, sT0, sT0, o.wqx, sT0, sX, sT0, sT0, sT0, sOFF, sOFF, sT0)
    a("s_mov_b32 s%d, 0x480000\ns_mov_b32 s%d, 0x00020000", R0 + 2, R0 + 3)
    a("s_movk_i32 s101, 0x400\ns_mov_b32 %s, 0x10000", sT2)
    a("s_mov_b32 m0, %d", RWQ)
    a("s_setprio 3")
    a("s_waitcnt lgkmcnt(0)")
    if o.sdiag: stamp(5)
    if not o.fast0: a("s_mov_b32 s%d, s10\ns_mov_b32 s%d, s11", R0, R0 + 1)
    fill = ["v_mov_b32 v4, 0", "v_mov_b32 v5, 0", "v_lshlrev_b32 v2, 3, v0", "ds_write_b64 v2, v[4:5]",
            "v_xor_b32 v13, v0, v15", "v_lshlrev_b32 v13, 4, v13",
            "s_mov_b32 s%d, 0x2000000" % (R1 + 2), "s_mov_b32 s%d, 0x00020000" % (R1 + 3),
            "s_lshr_b32 %s, %s, 3" % (sT0, sI), "s_lshl4_add_u32 %s, %s, %s" % (sT0, sT0, sG), "s_lshl_b32 %s, %s, 20" % (sT0, sT0),
            "s_and_b32 %s, %s, 7" % (sT1, sI), "s_lshl_b32 %s, %s, 15" % (sT1, sT1), "s_add_u32 %s, %s, %s" % (sT0, sT0, sT1),
            "s_add_u32 %s, %s, 0xc0000" % (sKV, sT0), "s_and_b32 %s, %s, 3" % (sRQ, sIDX), "s_lshl_b32 %s, %s, 1" % (sRQ, sRQ)]
    for k in range(18):
        a("buffer_load_dwordx4 v16, %s, %s offen %s lds", srd(R0), sOFF, o.pol)
        if k == 0 and o.fast0: a(KARG)
        if k < 17:
            a("s_add_u32 m0, m0, s101\ns_add_u32 %s, %s, %s", sOFF, sOFF, sT2)
            a(fill[k])
    if o.sdiag: stamp(6)
    if o.fast0: a("s_waitcnt lgkmcnt(0)")
    a("s_mov_b32 s%d, s6\ns_mov_b32 s%d, s7\ns_mov_b32 %s, %d", R1, R1 + 1, sMK, RK)
    kv_group(R1, "v13", RK, KP, False)
    if D >= 26: kv_group(R1, "v13", RK, KP, False)
    if o.sdiag: stamp(7)
    a("s_waitcnt lgkmcnt(0)")
    a("s_barrier")
    a("""
    v_mul_u32_u24 v12, 1152, v8
    v_add_u32 v12, v12, v10
    v_mul_u32_u24 v11, 9216, v8
    v_add_u32 v11, v11, v10
    v_xor_b32 v14, v0, v9
    v_lshlrev_b32 v14, 4, v14
    """)
    mk_srd(R2, 8, 0x2000000)
    a("s_mov_b32 %s, %d", sISS, (26 if D >= 26 else 22) - (D - 4))
    roles()
    DV, D2, DL = o.depthv or D, o.depth2, o.depthl or D
    sS2 = "s89"
    def drain_step(k):
        a("s_add_u32 %s, %s, 4\nv_max_i32 v4, %s, v4\ns_waitcnt vmcnt(%d)\nds_write_b32 v3, v4 offset:%d", sISS, sISS, sISS, k, F_PROG)
    def redepth(old, new):
        if new > old: a("s_sub_u32 %s, %s, %d", sISS, sISS, new - old)
        for k in range(old - 8, new - 8, -4): drain_step(k)
    a("s_cmp_lt_u32 %s, 16", sTEAM)
    a("s_cselect_b32 s%d, s12, s20\ns_cselect_b32 s%d, s13, s21\ns_mov_b32 s%d, 0x510000\ns_cselect_b32 s%d, 0x480000, s%d\ns_mov_b32 s%d, 0x00020000",
      R3, R3 + 1, R3 + 2, R3 + 2, R3 + 2, R3 + 3)
    a("s_mul_i32 %s, %s, 1152\ns_lshl_b32 %s, %s, 7\ns_add_u32 %s, %s, %s", sS2, sR0, sT1, sCB, sS2, sS2, sT1)
    for h, r, so in ((0, R0, sOFF), (1, R4, sO2)):
        gu_img(h, sT0, sT1)
        a("s_cmp_eq_u32 %s, 1\ns_cselect_b32 s%d, s18, s16\ns_cselect_b32 s%d, s19, s17\ns_mov_b32 s%d, 0x510000\ns_mov_b32 s%d, 0x00020000", sT0, r, r + 1, r + 2, r + 3)
        a("s_mul_i32 %s, %s, %d\ns_lshl_b32 %s, %s, 7\ns_add_u32 %s, %s, %s", so, sM3, 192 * 9216, sT1, sT1, so, so, sT1)
    if o.tlb:
        a("s_mov_b64 exec, 3")
        a("v_mul_u32_u24 v20, %d, v0\nv_mul_u32_u24 v21, %d, v0", 191 * 9216, 255 * 1152)
        a("buffer_load_dword v22, v3, %s, %s offen nt", srd(R2), sKV)
        a("buffer_load_dword v22, v20, %s, %s offen nt", srd(R0), sOFF)
        a("buffer_load_dword v22, v20, %s, %s offen nt", srd(R4), sO2)
        a("buffer_load_dword v22, v21, %s, %s offen nt", srd(R3), sS2)
        a("s_mov_b64 exec, -1")
    if D < 26:
        a("s_waitcnt vmcnt(%d)", D - 4 + (4 if o.tlb else 0))
        kv_group(R1, "v13", RK, KP)
    a("s_mov_b32 %s, 6", sCNT)
    a("s_cmp_ge_u32 %s, 27\ns_cbranch_scc1 L_ld_kv", sIDX)
    M = o.mix
    a("s_mov_b32 %s, %d\ns_mov_b32 %s, %d", sMG, RA, sCNT, 6 // M)
    a("L_ld_gu:")
    a("s_mov_b32 m0, %s\ns_add_u32 %s, %s, %d", sMG, sMG, sMG, 8192 * M)
    a("s_mov_b32 %s, %d", sT2, 2 * M)
    a("L_ld_gi:")
    pair_group(R0, R4, "v11", 8 * 9216, D)
    a("s_sub_u32 %s, %s, 1\ns_cmp_lg_u32 %s, 0\ns_cbranch_scc1 L_ld_gi", sT2, sT2, sT2)
    kv_group(R1, "v13", RK, KP)
    loop_end("L_ld_gu")
    if M == 1: a("s_branch L_ld_v")
    else: a("s_mov_b32 %s, %d", sCNT, 6 - 6 // M)
    a("L_ld_kv:")
    kv_loop(R1, "v13", RK, KP)
    a("L_ld_v:")
    stamp(1)
    SA = o.s2early
    if SA:
        Lsk = a.lab("LSA")
        a("s_cmp_eq_u32 %s, 80\ns_cbranch_scc1 %s", sNS2, Lsk)
        if not o.ldonly: lds_wait_ge(F_C1, "4")
        a("s_mov_b32 %s, %s\ns_mov_b32 m0, %d\ns_add_u32 %s, %s, %d\ns_mov_b32 %s, %d", sOFF, sS2, RWQ, sO2, sS2, 8 * 1152, sCNT, SA)
        a("L_ld_s2a:")
        pair_group(R3, R3, "v12", 16 * 1152, D)
        loop_end("L_ld_s2a")
        a("s_mov_b32 %s, %s", sS2, sOFF)
        a("%s:" % Lsk)
    redepth(D, DV)
    a("s_mov_b32 %s, 7", sCNT)
    kv_loop(R2, "v14", RV, VP, DV)
    a("ds_read_b32 v5, v3 offset:%d", F_C1)
    kv_group(R2, "v14", RV, VP, True, DV)
    stamp(2)
    if not o.ldonly:
        a("s_waitcnt lgkmcnt(0)\nv_readfirstlane_b32 %s, v5", sSEEN)
        lds_wait_ge(F_C1, "4", cache=sSEEN)
    a("s_mov_b32 %s, %s", sOFF, sS2)
    a("s_cmp_eq_u32 %s, 80\ns_cbranch_scc1 L_ld_lt", sNS2)
    a("s_mov_b32 m0, %d\ns_add_u32 %s, %s, %d", RWQ + 4096 * SA, sO2, sOFF, 8 * 1152)
    NA = o.burst
    if NA and not o.ldonly:
        def burst(n):
            for k in range(n):
                so = sOFF if k % 2 == 0 else sO2
                a("buffer_load_dwordx4 v12, %s, %s offen %s lds", srd(R3), so, o.pol)
                a("s_add_u32 m0, m0, s101\ns_add_u32 %s, %s, %d", so, so, 16 * 1152)
        burst(NA)
        for k in range(DV - 8 + NA, NA - 4, -4): drain_step(k)
        a("s_cmp_lt_u32 %s, 16\ns_cselect_b32 %s, 8, 4", sTEAM, sT2)
        lds_wait_ge(F_PUB, sT2)
        burst(32 - NA)
        stamp(3)
        for k in range(28, D2 - 8, -4): drain_step(k)
    else:
        if o.depth2w:
            D2W = o.depth2w
            assert D2W >= D2
            a("s_cmp_ge_u32 %s, 16\ns_cbranch_scc1 L_ld_s2d", sTEAM)
            redepth(DV, D2W)
            a("s_mov_b32 %s, %d", sCNT, 8 - SA)
            a("L_ld_s2w:")
            pair_group(R3, R3, "v12", 16 * 1152, D2W)
            loop_end("L_ld_s2w")
            stamp(3)
            redepth(D2W, D2)
            a("s_branch L_ld_drain2")
            a("L_ld_s2d:")
        redepth(DV, D2)
        if SA < 8:
            a("s_mov_b32 %s, %d", sCNT, 8 - SA)
            a("L_ld_s2h:")
            pair_group(R3, R3, "v12", 16 * 1152, D2)
            loop_end("L_ld_s2h")
        stamp(3)
    a("s_branch L_ld_drain2")
    a("L_ld_lt:")
    if o.ltwait and not o.ldonly:
        redepth(DV, 4)
        lds_wait_ge({1: F_QRDY, 2: F_A1, 3: F_A2}[o.ltwait], "1")
        redepth(4, DL)
    else:
        redepth(DV, DL)
    a("s_add_u32 %s, %s, 128\ns_cmp_eq_u32 %s, 8\ns_cselect_b32 %s, 0x70000000, %s", sO2, sOFF, sCB, sO2, sO2)
    NL = o.ltsplit if not o.ldonly else 0
    a("s_mov_b32 m0, %d\ns_mov_b32 %s, %d", RA, sCNT, NL or 20)
    a("L_ld_s2l:")
    pair_group(R3, R3, "v12", 8 * 1152, DL)
    loop_end("L_ld_s2l")
    if NL:
        redepth(DL, 4)
        lds_wait_ge(F_HOK, "5")
        DL = o.depthl2
        redepth(4, DL)
        a("s_mov_b32 %s, %d", sCNT, 20 - NL)
        a("L_ld_s2m:")
        pair_group(R3, R3, "v12", 8 * 1152, DL)
        loop_end("L_ld_s2m")
    stamp(3)
    assert DL >= D2
    for k in range(DL - 8, -1, -4):
        if k == D2 - 8: a("L_ld_drain2:")
        drain_step(k)
    stamp(4)
    stamps_out()
    if o.hold:
        a("s_cmp_lg_u32 s2, %d\ns_cbranch_scc1 L_end", o.holdwg)
        a("s_memrealtime s[70:71]\ns_waitcnt lgkmcnt(0)\ns_sub_u32 %s, s70, s86\ns_mul_i32 %s, %s, %d\ns_add_u32 %s, %s, %d", sT1, sT1, sT1, o.holdmul, sT1, sT1, o.hold)
        a("L_hold:\ns_memrealtime s[70:71]\ns_waitcnt lgkmcnt(0)\ns_sub_u32 %s, s70, s86\ns_cmp_lt_u32 %s, %s\ns_cbranch_scc1 L_hold", sT0, sT0, sT1)
    a("s_endpgm")

    if o.fast0 == 2:
        a("L_cons:")
        cons_entry()
    a("L_cons3:")
    a("s_barrier")
    if o.ldonly: a("s_endpgm")
    mk_srd(RW, 26, W_END + 4096)
    a("s_add_u32 s%d, s26, 0x%x\ns_addc_u32 s%d, s27, 0\ns_mov_b32 s%d, 0x%x\ns_mov_b32 s%d, 0x00020000", RB, BOFF, RB + 1, RB + 2, W_AEND, RB + 3)
    a("s_mov_b32 %s, 0", sVER)
    a("s_mov_b32 %s, -1000", sSEEN)
    a("v_lshrrev_b32 v8, 4, v0\nv_and_b32 v9, 15, v0\nv_mov_b32 v14, 0xffffff00")
    roles()
    a("s_cmp_ge_u32 %s, 5\ns_cbranch_scc1 L_att", sWV)

    sW, sIT, sTH = "s90", "s91", "s92"
    a("s_sub_u32 %s, %s, 1", sW, sWV)
    a("v_lshrrev_b32 v11, 3, v0\nv_and_b32 v11, 3, v11\nv_xor_b32 v11, %s, v11", sW)
    a("v_lshlrev_b32 v11, 5, v11\nv_and_b32 v12, 3, v0\nv_lshl_add_u32 v11, v12, 3, v11")
    a("v_lshrrev_b32 v10, 2, v0\nv_lshl_add_u32 v10, v10, 7, v11")
    a("v_lshrrev_b32 v15, 5, v0\nv_lshl_add_u32 v15, v15, 10, v10")
    a("v_add_u32 v15, %d, v15", RA)
    a("v_and_b32 v12, 1, v0")
    a("s_mov_b32 %s, 0xffff0000", sT0)
    a("s_waitcnt vmcnt(0)")
    stamp(1)
    X = 28
    for k in range(9):
        a("v_lshlrev_b32 v%d, 16, v%d\nv_and_b32 v%d, %s, v%d", X + 2 * k, 16 + k, X + 2 * k + 1, sT0, 16 + k)
    def half_allreduce_add(v, t):
        for dp in ("quad_perm:[1,0,3,2]", "quad_perm:[2,3,0,1]", "row_ror:4", "row_ror:8"):
            a("s_nop 1\nv_add_f32_dpp %s, %s, %s %s row_mask:0xf bank_mask:0xf", v, v, v, dp)
        a("v_mov_b32 %s, %s\ns_nop 1\nv_permlane16_swap_b32 %s, %s\nv_add_f32 %s, %s, %s", t, v, v, t, v, v, t)
    a("v_add_f32 v4, v%d, v%d\nv_add_f32 v5, v%d, v%d", X, X + 1, X + 2, X + 3)
    for k in range(4, 18, 2):
        a("v_add_f32 v4, v4, v%d\nv_add_f32 v5, v5, v%d", X + k, X + k + 1)
    a("v_add_f32 v4, v4, v5")
    half_allreduce_add("v4", "v5")
    a("v_mul_f32 v4, 0x3ae38e39, v4\nv_mov_b32 v5, 0\nv_mov_b32 v25, 0")
    for k in range(0, 18, 2):
        a("v_sub_f32 v26, v%d, v4\nv_sub_f32 v27, v%d, v4\nv_fmac_f32 v5, v26, v26\nv_fmac_f32 v25, v27, v27", X + k, X + k + 1)
    a("v_add_f32 v5, v5, v25")
    half_allreduce_add("v5", "v25")
    a("v_mul_f32 v5, 0x3ae38e39, v5")
    a("v_cvt_pk_bf16_f32 v4, v4, v5")
    a("v_and_b32 v5, %s, v4\nv_lshlrev_b32 v4, 16, v4", sT0)
    a("v_add_f32 v5, 0x3727c5ac, v5")
    a("v_cvt_pk_bf16_f32 v5, v5, v5\nv_lshlrev_b32 v5, 16, v5")
    a("v_sqrt_f32 v5, v5\ns_nop 0")
    a("v_cvt_pk_bf16_f32 v5, v5, v5\nv_lshlrev_b32 v5, 16, v5")
    a("v_rcp_f32 v5, v5")
    for k in range(9):
        a("v_sub_f32 v26, v%d, v4\nv_sub_f32 v27, v%d, v4", X + 2 * k, X + 2 * k + 1)
        a("v_cvt_pk_bf16_f32 v26, v26, v27")
        a("v_and_b32 v27, %s, v26\nv_lshlrev_b32 v26, 16, v26", sT0)
        a("v_mul_f32 v26, v26, v5\nv_mul_f32 v27, v27, v5")
        a("v_cvt_pk_bf16_f32 v%d, v26, v27", 16 + k)
    for k in range(0, 8, 2):
        a("ds_write2_b32 v13, v%d, v%d offset0:%d offset1:%d", 16 + k, 17 + k, XN // 4 + k, XN // 4 + k + 1)
    a("ds_write_b32 v13, v24 offset:%d", XN + 32)
    a("v_mul_u32_u24 v11, %d, v12\nv_lshl_add_u32 v11, v8, 3, v11\nv_add_u32 v11, %d, v11", XN_P, XN)
    a("s_and_b32 %s, %s, 3\ns_mul_i32 %s, %s, 288\nv_add_u32 v13, %s, v11", sT0, sIDX, sT0, sT0, sT0)
    for s in range(4):
        a("ds_read2_b64 v[%d:%d], v13 offset0:%d offset1:%d", 40 + 4 * s, 43 + 4 * s, 8 * s, 8 * s + 4)
    a("ds_read_b64 v[56:57], v13 offset:256")
    for r in range(8): a("v_mov_b32 v%d, 0", 60 + r)
    a("v_add_u32 v13, %d, v10", RWQ)
    stamp(2)
    get_tag()
    a("v_lshlrev_b32 v1, 6, v9\nv_lshl_add_u32 v1, v8, 4, v1")
    a("s_lshr_b32 %s, %s, 2\ns_xor_b32 %s, %s, %d", sT0, sIDX, sT0, sT0, o.wqx)
    a("s_lshr_b32 %s, %s, 2\ns_lshl1_add_u32 %s, %s, %s\ns_and_b32 %s, %s, 3\ns_lshl2_add_u32 %s, %s, %s", sT1, sT0, sT1, sX, sT1, sT2, sIDX, sT1, sT1, sT2)
    a("s_and_b32 %s, %s, 3\ns_lshl2_add_u32 %s, %s, %s\ns_lshl2_add_u32 %s, %s, %s", sT0, sT0, sT1, sT1, sT0, sT1, sT1, sW)
    a("s_lshl_b32 %s, %s, 7\ns_add_u32 s93, %s, %d", sT1, sT1, sT1, W_Q)
    a("v_cmp_gt_u32 vcc, 2, v9\ns_mov_b64 %s, vcc", sEX)
    lds_wait_ge(F_PROG, "18", cache=sSEEN)
    for q in range(9):
        a("ds_read_b64_tr_b16 v[%d:%d], v13 offset:%d", 16 + 2 * q, 17 + 2 * q, q * 2048)
    for s in range(4):
        a("s_waitcnt lgkmcnt(%d)", 7 - 2 * s)
        mfma(60, 16 + 4 * s, 40 + 4 * s)
    a("s_waitcnt lgkmcnt(0)")
    a("v_mfma_f32_16x16x16_bf16 v[64:67], v[32:33], v[56:57], v[64:67]")
    flag_add(F_C1)
    a("s_nop 4")
    for r in range(4): a("v_add_f32 v%d, v%d, v%d", 72 + r, 60 + r, 64 + r)
    tag_merge(72)
    a("s_mov_b64 exec, %s", sEX)
    a("buffer_store_dwordx4 v[72:75], v1, %s, s93 offen", srd(RW))
    a("s_mov_b64 exec, -1")
    a("s_mov_b32 s99, s93")
    stamp(3)
    def q_republish():
        get_ver()
        two_way(lambda: None, lambda: a("s_mov_b64 exec, %s\nbuffer_store_dwordx4 v[72:75], v1, %s, s99 offen sc1\ns_mov_b64 exec, -1", sEX, srd(RB)))
    Lh = a.lab("LH")
    a("s_cmp_lt_u32 %s, 27\ns_cbranch_scc1 %s", sIDX, Lh)
    q_republish()
    a("s_branch L_w_s2")
    a("%s:" % Lh)
    a("s_mul_i32 %s, %s, 384\nv_add_u32 v13, %s, v11", sT0, sM3, sT0)
    for s in range(6):
        a("ds_read2_b64 v[%d:%d], v13 offset0:%d offset1:%d", 40 + 4 * s, 43 + 4 * s, 8 * s, 8 * s + 4)
    for r in range(8): a("v_mov_b32 v%d, 0", 64 + r)
    for h, sd in ((0, "s93"), (1, "s98")):
        gu_img(h, sT0, sT1)
        a("s_mul_i32 %s, %s, 3\ns_add_u32 %s, %s, %s\ns_mul_i32 %s, %s, 36864", sT0, sT0, sT0, sT0, sM3, sT0, sT0)
        a("s_lshl2_add_u32 %s, %s, %s\ns_lshl_b32 %s, %s, 7\ns_add_u32 %s, %s, %s\ns_add_u32 %s, %s, %d", sT1, sT1, sW, sT1, sT1, sT0, sT0, sT1, sd, sT0, W_G)
    for s in range(6):
        if s == 5: q_republish()
        lds_wait_ge(F_PROG, str(P_G + 8 * s + 8 + 4 * (s // o.mix)), cache=sSEEN)
        for h in range(2):
            for q in range(2):
                a("ds_read_b64_tr_b16 v[%d:%d], v15 offset:%d", 16 + 4 * h + 2 * q, 17 + 4 * h + 2 * q, s * 8192 + q * 4096 + h * 1024)
        a("s_waitcnt lgkmcnt(2)")
        mfma(64, 16, 40 + 4 * s)
        a("s_waitcnt lgkmcnt(0)")
        mfma(68, 20, 40 + 4 * s)
    stamp(4)
    a("s_nop 5")
    tag_merge(64)
    tag_merge(68)
    a("s_mov_b64 exec, %s", sEX)
    pub([("v[64:67]", "s93", 0), ("v[68:71]", "s98", 0)])
    a("s_mov_b64 exec, -1")
    a("L_w_s2:")
    WF, VF, AC = 16, 48, 80
    a("v_mul_u32_u24 v11, %d, v12\nv_lshl_add_u32 v11, v8, 4, v11", VEC2_P)
    for r in range(8): a("v_mov_b32 v%d, 0", AC + r)
    a("v_add_u32 v10, %d, v10", RWQ)
    if o.red4:
        a("s_and_b32 %s, %s, 3\ns_lshr_b32 %s, %s, 2\ns_lshl3_add_u32 %s, %s, %s", sT2, sTEAM, sT1, sTEAM, sT2, sT2, sT1)
    a("s_lshl2_add_u32 %s, %s, %s\ns_lshl_b32 %s, %s, 12\ns_lshl_b32 %s, %s, 7\ns_add_u32 %s, %s, %s\ns_add_u32 s93, %s, %d", sT0, sCB, sW, sT0, sT0, sT1, sT2 if o.red4 else sTEAM, sT0, sT0, sT1, sT0, W_F)
    if o.floc:
        assert o.redbase % 8 == 0 and not o.redmap
        a("s_lshl2_add_u32 %s, %s, %s\ns_xor_b32 %s, %s, %s\ns_and_b32 %s, %s, 7", sT0, sCB, sW, sT0, sT0, sX, sT0, sT0)
        a("s_cmp_eq_u32 %s, 1\ns_cselect_b32 s59, %s, 1", sVER, sT0)
    a("s_cmp_ge_u32 %s, 16\ns_cbranch_scc1 L_w_dn", sTEAM)
    def wo_w(s_):
        for q in range(2):
            a("ds_read_b64_tr_b16 v[%d:%d], v10 offset:%d", WF + 4 * s_ + 2 * q, WF + 4 * s_ + 2 * q + 1, s_ * 4096 + q * 2048)
    def wo_v():
        for s_ in range(8):
            a("ds_read_b128 v[%d:%d], v11 offset:%d", VF + 4 * s_, VF + 4 * s_ + 3, VEC2 + 64 * s_)
    for s_ in range(0, 6 if o.race else 8, 2):
        lds_wait_ge(F_PROG, str(s2pos(4 * s_ + 8)), cache=sSEEN)
        wo_w(s_); wo_w(s_ + 1)
    if o.race:
        a("s_mov_b32 %s, 0", sTMO)
        a("L_wo_spin:")
        a("ds_read2_b32 v[4:5], v3 offset0:%d offset1:%d", F_PROG // 4, F_VRDY // 4)
        a("s_add_u32 %s, %s, 1\ns_cmp_gt_u32 %s, 0x80000\ns_cbranch_scc1 L_wo_wf", sTMO, sTMO, sTMO)
        a("s_waitcnt lgkmcnt(0)")
        a("v_readfirstlane_b32 %s, v4\nv_readfirstlane_b32 %s, v5", sSEEN, sIT)
        a("s_cmp_ge_i32 %s, %d\ns_cbranch_scc1 L_wo_wf", sSEEN, s2pos(32))
        a("s_cmp_lt_i32 %s, 4\ns_cbranch_scc1 L_wo_spin", sIT)
        wo_v()
        for s_ in range(6):
            a("s_waitcnt lgkmcnt(%d)", 7 - s_)
            mfma(AC, WF + 4 * s_, VF + 4 * s_)
        for s_ in (6, 7):
            lds_wait_ge(F_PROG, str(s2pos(4 * s_ + 4)), cache=sSEEN)
            wo_w(s_)
            a("s_waitcnt lgkmcnt(0)")
            mfma(AC, WF + 4 * s_, VF + 4 * s_)
        a("s_branch L_s2_pub")
        a("L_wo_wf:")
        wo_w(6); wo_w(7)
        stamp(5)
        lds_wait_ge(F_VRDY, "4", cache=sIT)
    else:
        stamp(5)
        lds_wait_ge(F_VRDY, "4")
    wo_v()
    for s_ in range(8):
        a("s_waitcnt lgkmcnt(%d)", 7 - s_)
        mfma(AC, WF + 4 * s_, VF + 4 * s_)
    stamp(6)
    a("L_s2_pub:")
    a("s_mov_b64 exec, %s", sEX)
    if o.floc: a("s_cmp_eq_u32 s59, 0\ns_nop 5")
    else: a("s_nop 6")
    tag_merge(AC, rnd=False)
    if o.floc:
        a("L_s2_st:")
        a("s_cbranch_scc1 L_f1")
        ool.append(("L_f1", lambda: a("buffer_store_dwordx4 v[%d:%d], v1, %s, s93 offen", AC, AC + 3, srd(RW)), "L_w_end"))
    a("buffer_store_dwordx4 v[%d:%d], v1, %s, s93 offen sc1", AC, AC + 3, srd(RW))
    if o.wb & 3 == 2:
        a("s_cmp_lg_u32 %s, %d\ns_cbranch_scc1 L_w_end", sCB, o.wbcb)
        a("s_cmp_lg_u32 %s, 0\ns_cbranch_scc1 L_w_end", sW)
        a("s_cmp_ge_u32 %s, 16\ns_cbranch_scc1 L_w_end", sTEAM)
        a("s_waitcnt vmcnt(0)")
        a("buffer_wbl2 sc1")
    a("L_w_end:")
    stamp(7)
    stamps_out()
    a("s_endpgm")
    flush_ool()

    sU = "s58"
    a("L_w_dn:")
    a("s_cmp_eq_u32 %s, 80\ns_cbranch_scc1 L_lt_pre", sNS2)
    a("s_mov_b32 %s, %s", sU, sW)
    a("L_hprep:")
    HA, HW, HC = "v60", "v62", "v64"
    a("v_lshrrev_b32 v4, 5, v0\nv_mul_u32_u24 %s, 110592, v4\nv_and_b32 v4, 31, v0\nv_lshl_add_u32 %s, v4, 4, %s", HA, HA, HA)
    a("s_lshl_b32 %s, %s, 3\ns_lshl_b32 %s, %s, 9\ns_add_u32 %s, %s, %s\ns_add_u32 s48, %s, %d", sT0, sR0, sT1, sU, sT0, sT0, sT1, sT0, W_G)
    a("s_add_u32 s49, s48, 36864\ns_add_u32 s50, s48, 73728")
    a("v_bfe_u32 v4, v0, 2, 1\nv_mul_u32_u24 %s, %d, v4\nv_bfe_u32 v4, v0, 4, 1\nv_lshl_add_u32 %s, v4, 6, %s\nv_and_b32 v4, 3, v0\nv_lshl_add_u32 %s, v4, 4, %s\nv_bfe_u32 v4, v0, 3, 1\nv_lshl_add_u32 %s, v4, 3, %s", HW, VEC2_P, HW, HW, HW, HW, HW, HW)
    a("s_lshl_b32 %s, %s, 7\nv_add_u32 %s, %s, %s", sT2, sU, HW, sT2, HW)
    c1 = -2.0 * math.sqrt(2.0 / math.pi) * math.log2(math.e)
    a("s_mov_b32 s51, 0x%08x\nv_mov_b32 %s, 0x%08x\ns_mov_b32 s52, 0xffff0000", f2u(c1 * 0.044715), HC, f2u(c1))
    a("s_mov_b32 %s, %d\ns_cmp_eq_u32 %s, 80\ns_cselect_b32 %s, %d, %s", sTH, o.hpoll, sNS2, sTH, o.hpolll or o.hpoll, sTH)
    lds_wait_ge(F_PROG, sTH, cache=sSEEN)
    a("s_mov_b32 %s, 0", sTMO)
    if o.nopoll & 2: a("s_branch L_h_ok")
    a("L_h_poll:")
    fetch([(16 + 4 * sl, HA, "s%d" % (48 + sl), 0) for sl in range(3)], o.hld)
    a("s_add_u32 %s, %s, 1\ns_cmp_gt_u32 %s, 0x8000\ns_cbranch_scc1 L_h_ok", sTMO, sTMO, sTMO)
    a("s_waitcnt vmcnt(0)")
    for k in range(3): tag_bad("v4", 16 + 4 * k, k == 0)
    a("v_and_b32 v4, 0xff, v4\nv_cmp_ne_u32 vcc, 0, v4\ns_and_b64 exec, exec, vcc\ns_cbranch_vccnz L_h_poll")
    a("L_h_ok:")
    if o.ltsplit: flag_add(F_HOK)
    a("s_mov_b64 exec, -1")
    a("s_waitcnt vmcnt(0)")
    for r in range(1):
        B = 16 + 12 * r
        for k in range(4): a("v_add_f32 v%d, v%d, v%d", B + k, B + k, B + 4 + k)
        for k in range(4): a("v_add_f32 v%d, v%d, v%d", B + k, B + k, B + 8 + k)
        a("v_cvt_pk_bf16_f32 v%d, v%d, v%d\nv_cvt_pk_bf16_f32 v%d, v%d, v%d", B, B, B + 1, B + 1, B + 2, B + 3)
        a("v_mov_b32 v%d, v%d\nv_mov_b32 v%d, v%d\ns_nop 1", B + 2, B, B + 3, B + 1)
        a("v_permlane32_swap_b32 v%d, v%d\nv_permlane32_swap_b32 v%d, v%d", B, B + 2, B + 1, B + 3)
        G, U, T = B + 4, B + 8, 4
        a("v_lshlrev_b32 v%d, 16, v%d\nv_and_b32 v%d, s52, v%d\nv_lshlrev_b32 v%d, 16, v%d\nv_and_b32 v%d, s52, v%d", G, B, G + 1, B, G + 2, B + 1, G + 3, B + 1)
        a("v_lshlrev_b32 v%d, 16, v%d\nv_and_b32 v%d, s52, v%d\nv_lshlrev_b32 v%d, 16, v%d\nv_and_b32 v%d, s52, v%d", U, B + 2, U + 1, B + 2, U + 2, B + 3, U + 3, B + 3)
        for k in range(4): a("v_mul_f32 v%d, v%d, v%d", T + k, G + k, G + k)
        for k in range(4): a("v_fma_f32 v%d, v%d, s51, %s", T + k, T + k, HC)
        for k in range(4): a("v_mul_f32 v%d, v%d, v%d", T + k, T + k, G + k)
        for k in range(4): a("v_exp_f32 v%d, v%d", T + k, T + k)
        a("s_nop 0")
        for k in range(4): a("v_add_f32 v%d, 1.0, v%d", T + k, T + k)
        for k in range(4): a("v_rcp_f32 v%d, v%d", T + k, T + k)
        a("s_nop 0")
        for k in range(4): a("v_mul_f32 v%d, v%d, v%d", T + k, T + k, G + k)
        a("v_cvt_pk_bf16_f32 v%d, v%d, v%d\nv_cvt_pk_bf16_f32 v%d, v%d, v%d", B, T, T + 1, B + 1, T + 2, T + 3)
        a("v_lshlrev_b32 v%d, 16, v%d\nv_and_b32 v%d, s52, v%d\nv_lshlrev_b32 v%d, 16, v%d\nv_and_b32 v%d, s52, v%d", T, B, T + 1, B, T + 2, B + 1, T + 3, B + 1)
        for k in range(4): a("v_mul_f32 v%d, v%d, v%d", T + k, T + k, U + k)
        a("v_cvt_pk_bf16_f32 v%d, v%d, v%d\nv_cvt_pk_bf16_f32 v%d, v%d, v%d", B, T, T + 1, B + 1, T + 2, T + 3)
        a("ds_write_b64 %s, v[%d:%d] offset:%d", HW, B, B + 1, VEC2)
    a("L_h_done:")
    if o.wb & 4:
        Lb2 = a.lab("LWB")
        a("s_cmp_lg_u32 %s, 31\ns_cbranch_scc1 %s", sIDX, Lb2)
        a("s_cmp_lg_u32 %s, 1\ns_cbranch_scc1 %s", sW, Lb2)
        a("buffer_wbl2 sc1")
        a("%s:" % Lb2)
    flag_add(F_VRDY)
    stamp(5)
    a("s_cmp_ge_u32 %s, 5\ns_cbranch_scc1 L_a_red", sWV)
    a("s_cmp_eq_u32 %s, 80\ns_cbranch_scc1 L_lt_mid", sNS2)
    lds_wait_ge(F_VRDY, "4")
    stamp(6)
    def dn_reads(R, it):
        lds_wait_ge(F_PROG, str(s2pos(8 * it + 8)), cache=sSEEN, hot=(0 < it < 3))
        a("ds_read_b64_tr_b16 v[%d:%d], v10 offset:%d", R, R + 1, it * 8192)
        a("ds_read_b64_tr_b16 v[%d:%d], v10 offset:%d", R + 2, R + 3, it * 8192 + 2048)
        a("ds_read_b128 v[%d:%d], v11 offset:%d", R + 8, R + 11, VEC2 + 128 * it)
        a("ds_read_b64_tr_b16 v[%d:%d], v10 offset:%d", R + 4, R + 5, it * 8192 + 4096)
        a("ds_read_b64_tr_b16 v[%d:%d], v10 offset:%d", R + 6, R + 7, it * 8192 + 6144)
        a("ds_read_b128 v[%d:%d], v11 offset:%d", R + 12, R + 15, VEC2 + 128 * it + 64)
    dn_reads(16, 0)
    for it in range(4):
        R = 16 + 16 * (it & 1)
        if it < 3: dn_reads(16 + 16 * ((it + 1) & 1), it + 1)
        n = 6 if it < 3 else 0
        a("s_waitcnt lgkmcnt(%d)", n + 3)
        mfma(AC, R, R + 8)
        a("s_waitcnt lgkmcnt(%d)", n)
        mfma(AC, R + 4, R + 12)
    a("s_branch L_s2_pub")
    ltw = lambda st: 88 + 8 * st if st < 7 else 56 + 8 * (st - 7)
    def lt_reads(st, hot=False):
        R = ltw(st)
        va, off = ("v15", st) if st < 8 else ("v13", st - 8)
        lds_wait_ge(F_PROG, str(82 + 8 * st + 8), cache=sSEEN, hot=hot)
        a("ds_read_b64_tr_b16 v[%d:%d], %s offset:%d", R, R + 1, va, off * 8192)
        a("ds_read_b64_tr_b16 v[%d:%d], %s offset:%d", R + 2, R + 3, va, off * 8192 + 4096)
        a("ds_read_b64_tr_b16 v[%d:%d], %s offset:%d", R + 4, R + 5, va, off * 8192 + 1024)
        a("ds_read_b64_tr_b16 v[%d:%d], %s offset:%d", R + 6, R + 7, va, off * 8192 + 5120)
    def lt_mm(st):
        mfma(AC, ltw(st), 16 + 4 * st)
        mfma(AC + 4, ltw(st) + 4, 16 + 4 * st)
    a("L_lt_pre:")
    a("v_add_u32 v13, 0x10000, v15")
    NP0 = ((o.hpolll or o.hpoll) - 82) // 8
    for st in range(NP0): lt_reads(st)
    a("s_mov_b32 %s, 4\ns_cmp_eq_u32 %s, 0\ns_cbranch_scc1 L_hprep", sU, sW)
    a("L_lt_mid:")
    for st in range(NP0, 7): lt_reads(st)
    lds_wait_ge(F_VRDY, "5")
    stamp(6)
    for st in range(10):
        a("ds_read_b128 v[%d:%d], v11 offset:%d", 16 + 4 * st, 19 + 4 * st, VEC2 + 64 * st)
    for st in range(7):
        a("s_waitcnt lgkmcnt(%d)", 9 - st)
        lt_mm(st)
    lt_reads(7)
    lt_reads(8, True)
    a("s_waitcnt lgkmcnt(4)")
    lt_mm(7)
    lt_reads(9)
    a("s_waitcnt lgkmcnt(4)")
    lt_mm(8)
    a("s_waitcnt lgkmcnt(0)")
    lt_mm(9)
    assert o.floc
    a("s_cmp_eq_u32 %s, 8\ns_cbranch_scc1 L_s2_pub", sCB)
    a("s_mov_b64 exec, %s\ns_add_u32 %s, s93, 16384\ns_cmp_eq_u32 s59, 4\ns_nop 1", sEX, sT0)
    tag_merge(AC, rnd=False)
    tag_merge(AC + 4, rnd=False)
    a("s_cbranch_scc1 L_f2")
    a("buffer_store_dwordx4 v[%d:%d], v1, %s, %s offen sc1", AC + 4, AC + 7, srd(RW), sT0)
    a("L_f3:")
    a("s_cmp_eq_u32 s59, 0\ns_branch L_s2_st")
    ool.append(("L_f2", lambda: a("buffer_store_dwordx4 v[%d:%d], v1, %s, %s offen", AC + 4, AC + 7, srd(RW), sT0), "L_f3"))
    flush_ool()

    sA = "s90"
    a("L_att:")
    a("s_sub_u32 %s, %s, 5", sA, sWV)
    a("v_lshrrev_b32 v10, 2, v9\nv_mul_u32_u24 v10, %d, v10", KP)
    a("v_and_b32 v11, 3, v0\nv_lshl_add_u32 v10, v11, 8, v10\nv_xor_b32 v11, v11, v8\nv_lshl_add_u32 v10, v11, 4, v10")
    a("s_mul_i32 %s, %s, %d\ns_add_u32 %s, %s, %d\nv_add_u32 v10, %s, v10", sT0, sA, 8 * KP, sT0, sT0, RK, sT0)
    VA = 72
    a("v_mul_u32_u24 v12, %d, v8", VP)
    a("v_lshrrev_b32 v11, 2, v9\nv_lshl_add_u32 v12, v11, 8, v12\nv_lshlrev_b32 v11, 5, v11")
    a("s_lshl_b32 %s, %s, 6\nv_xor_b32 v11, %s, v11\nv_add_u32 v12, v12, v11", sT0, sA, sT0)
    a("v_and_b32 v11, 3, v0\nv_lshl_add_u32 v12, v11, 3, v12")
    a("v_add_u32 v%d, %d, v12", VA, RV)
    a("v_xor_b32 v%d, 32, v%d", VA + 1, VA)
    KF, QF, SC, PF, VF, OA = 16, 48, 64, 16, 32, 56
    a("v_lshlrev_b32 v1, 6, v9\nv_lshl_add_u32 v1, v8, 4, v1")
    a("v_cmp_gt_u32 vcc, 2, v9\ns_mov_b64 %s, vcc", sEX)
    if o.touch:
        a("s_cmp_lg_u32 %s, 2\ns_cbranch_scc1 L_a_not", sA)
        if o.tpoll: lds_wait_ge(F_PROG, str(o.tpoll), cache=sSEEN)
        a("v_lshlrev_b32 v11, 7, v0")
        a("s_lshl4_add_u32 %s, %s, %s\ns_lshl_b32 %s, %s, 9\ns_add_u32 %s, %s, %d\ns_lshl_b32 %s, %s, 10\ns_add_u32 %s, %s, %d", sT0, sG, sI, sT1, sT0, sT1, sT1, W_Q, sT0, sT0, sT0, sT0, W_O)
        a("s_mov_b64 exec, 0xf")
        if o.touch & 1: a("buffer_load_dword v76, v11, %s, %s offen %s", srd(RW), sT1, o.tpol)
        a("s_mov_b64 exec, 0xff")
        if o.touch & 4: a("buffer_load_dword v77, v11, %s, %s offen %s", srd(RW), sT0, o.tpol)
        a("s_mov_b64 exec, 0xf")
        if o.touch & 2:
            a("s_cmp_ge_u32 %s, 27\ns_cbranch_scc1 L_a_not", sIDX)
            for h in range(2):
                gu_img(h, sT0, sT1)
                a("s_mul_i32 %s, %s, 3\ns_add_u32 %s, %s, %s\ns_mul_i32 %s, %s, 36864", sT0, sT0, sT0, sT0, sM3, sT0, sT0)
                a("s_lshl_b32 %s, %s, 9\ns_add_u32 %s, %s, %s\ns_add_u32 %s, %s, %d", sT1, sT1, sT0, sT0, sT1, sT0, sT0, W_G)
                a("buffer_load_dword v%d, v11, %s, %s offen %s", 78 + h, srd(RW), sT0, o.tpol)
        a("L_a_not:")
        a("s_mov_b64 exec, -1")
    get_tag()
    a("s_cmp_lg_u32 %s, 1\ns_cbranch_scc1 L_a_nov", sA)
    if o.nover == 1: a("v_mov_b32 v4, 1\nds_write_b32 v3, v4 offset:%d\ns_branch L_a_nov", F_VER)
    a("s_getreg_b32 %s, hwreg(HW_REG_XCC_ID, 0, 4)", sT2)
    a("s_lshl_b32 %s, %s, 8\ns_add_u32 %s, %s, %d\ns_lshl3_add_u32 %s, %s, %s", sT0, sX, sT0, sT0, W_END, sT1, sIDX, sT0)
    a("v_mov_b32 v4, %s\nv_mov_b32 v5, %s\nv_lshlrev_b32 v11, 3, v0", sTAG, sT2)
    def v2_store():
        a("s_mov_b64 exec, 1\nbuffer_store_dwordx2 v[4:5], v3, %s, %s offen offset:2048 sc1\ns_mov_b32 exec_lo, -1", srd(RW), sT1)
    a("s_mov_b64 exec, 1\nbuffer_store_dwordx2 v[4:5], v3, %s, %s offen\ns_mov_b64 exec, -1", srd(RW), sT1)
    lds_wait_ge(F_PROG, str(o.vpoll), cache=sSEEN)
    a("s_mov_b32 exec_hi, 0\ns_mov_b32 %s, 0", sTMO)
    a("L_a_vpoll:")
    a("buffer_load_dwordx2 v[6:7], v11, %s, %s offen nt", srd(RW), sT0)
    a("s_add_u32 %s, %s, 1\ns_cmp_lt_u32 %s, %d\ns_cbranch_scc1 L_a_v1", sTMO, sTMO, sTMO, o.vesc)
    a("s_cmp_lg_u32 %s, %d\ns_cbranch_scc1 L_a_v2", sTMO, o.vesc)
    v2_store()
    a("L_a_v2:")
    a("buffer_load_dwordx2 v[16:17], v11, %s, %s offen offset:2048 sc1", srd(RW), sT0)
    a("s_waitcnt vmcnt(0)")
    a("v_cmp_eq_u32 vcc, %s, v16\ns_nop 1\nv_cndmask_b32 v6, v6, v16, vcc\nv_cndmask_b32 v7, v7, v17, vcc", sTAG)
    a("s_cmp_gt_u32 %s, 0x8000\ns_cbranch_scc1 L_a_vok", sTMO)
    a("L_a_v1:")
    a("s_waitcnt vmcnt(0)")
    a("v_cmp_ne_u32 vcc, %s, v6\ns_cbranch_vccnz L_a_vpoll", sTAG)
    a("L_a_vok:")
    a("v_cmp_ne_u32 vcc, %s, v7", sT2)
    a("s_cmp_eq_u64 vcc, 0\ns_cselect_b32 %s, %d, 2\nv_mov_b32 v6, %s", sT0, 1 if o.local else 2, sT0)
    a("ds_write_b32 v3, v6 offset:%d", F_VER)
    a("s_cmp_eq_u32 %s, 1\ns_cbranch_scc1 L_a_vend", sT0)
    v2_store()
    a("L_a_vend:")
    a("s_mov_b64 exec, -1")
    a("L_a_nov:")
    a("s_cmp_lg_u32 %s, 0\ns_cbranch_scc1 L_a_k", sA)
    lds_wait_ge(F_PROG, str(o.qpoll), cache=sSEEN)
    a("v_lshrrev_b32 v11, 2, v0\nv_lshlrev_b32 v11, 7, v11\nv_and_b32 v12, 3, v0\nv_lshl_add_u32 v11, v12, 4, v11")
    a("s_lshl_b32 %s, %s, 13\ns_lshr_b32 %s, %s, 3\ns_lshl_b32 %s, %s, 6\ns_add_u32 %s, %s, %s\ns_add_u32 %s, %s, %d\ns_add_u32 %s, %s, 4096",
      sT0, sG, sT1, sI, sT1, sT1, sT0, sT0, sT1, sT0, sT0, W_Q, sT1, sT0)
    a("s_mov_b32 %s, 0", sTMO)
    if o.nopoll & 1: a("s_branch L_a_qok")
    a("s_mov_b32 %s, 1\ns_mov_b32 s53, 0", sVER)
    a("L_a_qpoll:")
    fetch([(16 + 4 * r, "v11", sT0 if r < 2 else sT1, (r & 1) * 2048) for r in range(4)], o.qld)
    a("s_add_u32 s53, s53, 1\ns_cmp_gt_u32 s53, 0x8000\ns_cbranch_scc1 L_a_qok")
    a("s_waitcnt vmcnt(0)")
    for r in range(4): tag_bad("v4", 16 + 4 * r, r == 0)
    a("v_and_b32 v4, 0xff, v4\nv_cmp_ne_u32 vcc, 0, v4\ns_cbranch_vccz L_a_qok")
    a("s_mov_b32 %s, 0", sVER)
    get_ver()
    a("s_branch L_a_qpoll")
    a("L_a_qok:")
    a("s_mov_b32 %s, 0", sVER)
    a("s_waitcnt vmcnt(0)")
    for k in range(4):
        a("v_add_f32 v%d, v%d, v%d\nv_add_f32 v%d, v%d, v%d\nv_add_f32 v%d, v%d, v%d", 16 + k, 16 + k, 20 + k, 24 + k, 24 + k, 28 + k, 16 + k, 16 + k, 24 + k)
    a("v_cvt_pk_bf16_f32 v4, v16, v17\nv_cvt_pk_bf16_f32 v5, v18, v19")
    a("v_lshlrev_b32 v11, 3, v0\nv_mov_b32 v6, 1")
    a("ds_write_b64 v11, v[4:5] offset:%d", QV)
    a("ds_write_b32 v3, v6 offset:%d", F_QRDY)
    a("L_a_k:")
    vP, vPW, vM, vMW, vOL, vOW, sOL = "v74", "v75", "v80", "v81", "v82", "v83", "s57"
    a("v_and_b32 v12, 1, v0\nv_lshlrev_b32 %s, 6, v12\nv_lshl_add_u32 %s, v8, 4, %s", vP, vP, vP)
    a("s_lshl_b32 %s, %s, 7\nv_add_u32 %s, %s, %s", sT3, sA, vPW, sT3, vP)
    a("v_lshlrev_b32 %s, 2, v12\nv_add_u32 %s, %d, %s\ns_lshl_b32 %s, %s, 3\nv_add_u32 %s, %s, %s", vM, vM, MX, vM, sT3, sA, vMW, sT3, vM)
    a("v_lshlrev_b32 v11, 8, v12\nv_lshl_add_u32 v11, v8, 4, v11")
    a("s_lshl4_add_u32 %s, %s, %s\ns_lshl2_add_u32 %s, %s, %s\ns_lshl_b32 %s, %s, 8\ns_add_u32 s93, %s, %d", sT0, sG, sI, sT0, sT0, sA, sT0, sT0, sT0, W_O)
    a("v_lshrrev_b32 v12, 5, v0\nv_and_b32 %s, 31, v0\nv_lshlrev_b32 %s, 4, %s\nv_lshl_add_u32 %s, v12, 12, %s", vOL, vOL, vOL, vOL, vOL)
    a("s_lshl_b32 %s, %s, 14\ns_lshr_b32 %s, %s, 1\ns_lshl_b32 %s, %s, 13\ns_add_u32 %s, %s, %s", sT0, sTEAM, sT1, sA, sT1, sT1, sT0, sT0, sT1)
    a("s_and_b32 %s, %s, 1\ns_lshl_b32 %s, %s, 9\ns_add_u32 %s, %s, %s\ns_add_u32 %s, %s, %d", sT1, sA, sT1, sT1, sT0, sT0, sT1, sOL, sT0, W_O)
    a("v_bfe_u32 %s, v0, 2, 1\nv_lshlrev_b32 %s, 8, %s\nv_lshl_add_u32 %s, v12, 2, %s", vOW, vOW, vOW, vOW, vOW)
    a("v_bfe_u32 v12, v0, 4, 1\nv_lshl_add_u32 %s, v12, 6, %s\nv_and_b32 v12, 3, v0\nv_lshl_add_u32 %s, v12, 4, %s\nv_bfe_u32 v12, v0, 3, 1\nv_lshl_add_u32 %s, v12, 3, %s", vOW, vOW, vOW, vOW, vOW, vOW)
    a("s_lshr_b32 %s, %s, 1\ns_mul_i32 %s, %s, %d\ns_lshr_b32 %s, %s, 2\ns_add_u32 %s, %s, %s\nv_add_u32 %s, %s, %s", sT2, sA, sT2, sT2, VEC2_P, sT1, sT1, sT2, sT2, sT1, vOW, sT2, vOW)
    kpos = [22, 26]
    p_ = 26
    for it in range(6 // o.mix):
        p_ += 8 * o.mix + 4; kpos.append(p_)
    while len(kpos) < 8:
        p_ += 4; kpos.append(p_)
    assert kpos[7] == 98
    pk = lambda l: l[0] | l[1] << 8 | l[2] << 16 | l[3] << 24
    a("s_mov_b32 %s, 0x%x\ns_cmp_eq_u32 %s, 80\ns_cselect_b32 %s, 0x%x, %s", sTH, pk(kpos[1::2]), sNS2, sTH, pk([26, 34, 42, 50]), sTH)
    a("s_lshl_b32 %s, %s, 3\ns_lshr_b32 %s, %s, %s\ns_and_b32 %s, %s, 0xff", sT3, sA, sTH, sTH, sT3, sTH, sTH)
    for r in range(8): a("v_mov_b32 v%d, 0", SC + r)
    a("s_mov_b32 %s, 0xffff0000\ns_mov_b32 %s, 0x3db504f3\ns_mov_b32 %s, 0x3fb8aa3b", sT0, sT1, sT2)
    lds_wait_ge(F_QRDY, "1")
    stamp(1)
    for c in range(4):
        a("ds_read_b128 v[%d:%d], v11 offset:%d", QF + 4 * c, QF + 4 * c + 3, QV + c * 64)
    get_ver()
    lds_wait_ge(F_PROG, sTH, cache=sSEEN)
    stamp(2)
    for c in range(4):
        for t in range(2):
            a("ds_read_b128 v[%d:%d], v10 offset:%d", KF + 16 * t + 4 * c, KF + 16 * t + 4 * c + 3, t * 4 * KP + c * 64)
    for c in range(4):
        for t in range(2):
            a("s_waitcnt lgkmcnt(%d)", 7 - 2 * c - t)
            mfma(SC + 4 * t, KF + 16 * t + 4 * c, QF + 4 * c)
    a("s_nop 5")
    for k in range(0, 8, 2):
        a("v_cvt_pk_bf16_f32 v4, v%d, v%d", SC + k, SC + k + 1)
        a("v_and_b32 v5, %s, v4\nv_lshlrev_b32 v4, 16, v4", sT0)
        a("v_mul_f32 v4, %s, v4\nv_mul_f32 v5, %s, v5", sT1, sT1)
        a("v_cvt_pk_bf16_f32 v4, v4, v5")
        a("v_and_b32 v%d, %s, v4\nv_lshlrev_b32 v%d, 16, v4", SC + k + 1, sT0, SC + k)
    a("v_max3_f32 v4, v%d, v%d, v%d\nv_max3_f32 v5, v%d, v%d, v%d\nv_max3_f32 v4, v4, v%d, v%d\nv_max_f32 v4, v4, v5", *[SC + k for k in range(8)])
    def rows_allreduce(op, v, t):
        a("v_mov_b32 %s, %s\ns_nop 1\nv_permlane16_swap_b32 %s, %s\n%s %s, %s, %s", t, v, v, t, op, v, v, t)
        a("v_mov_b32 %s, %s\ns_nop 1\nv_permlane32_swap_b32 %s, %s\n%s %s, %s, %s", t, v, v, t, op, v, v, t)
    rows_allreduce("v_max_f32", "v4", "v5")
    a("ds_write_b32 %s, v4", vMW)
    flag_add(F_A1)
    lds_wait_ge(F_A1, "4")
    a("ds_read2_b32 v[4:5], %s offset0:0 offset1:2\nds_read2_b32 v[6:7], %s offset0:4 offset1:6", vM, vM)
    a("s_waitcnt lgkmcnt(0)")
    a("v_max3_f32 v4, v4, v5, v6\nv_max_f32 v4, v4, v7")
    a("v_mul_f32 v15, %s, v4", sT2)
    for k in range(8): a("v_fma_f32 v%d, v%d, %s, -v15", SC + k, SC + k, sT2)
    for k in range(8): a("v_exp_f32 v%d, v%d", SC + k, SC + k)
    for k in range(4): a("v_cvt_pk_bf16_f32 v%d, v%d, v%d", 48 + k, SC + 2 * k, SC + 2 * k + 1)
    a("ds_write_b128 %s, v[48:51] offset:%d", vPW, PB)
    a("v_add_f32 v5, v%d, v%d\nv_add_f32 v6, v%d, v%d", SC, SC + 1, SC + 2, SC + 3)
    a("v_add_f32 v5, v5, v%d\nv_add_f32 v6, v6, v%d\nv_add_f32 v5, v5, v%d\nv_add_f32 v6, v6, v%d\nv_add_f32 v5, v5, v6", SC + 4, SC + 5, SC + 6, SC + 7)
    rows_allreduce("v_add_f32", "v5", "v6")
    a("ds_write_b32 %s, v5 offset:%d", vMW, LS - MX)
    flag_add(F_A2)
    for r in range(8): a("v_mov_b32 v%d, 0", OA + r)
    a("s_mov_b32 %s, %d\ns_cmp_eq_u32 %s, 80\ns_cselect_b32 %s, 58, %s", sTH, 106 + 4 * o.s2early, sNS2, sTH, sTH)
    lds_wait_ge(F_A2, "4")
    a("ds_read2_b32 v[4:5], %s offset0:8 offset1:10\nds_read2_b32 v[6:7], %s offset0:12 offset1:14", vM, vM)
    for j in range(4):
        a("ds_read_b128 v[%d:%d], %s offset:%d", PF + 4 * j, PF + 4 * j + 3, vP, PB + 128 * j)
    a("s_waitcnt lgkmcnt(4)")
    a("v_add_f32 v4, v4, v5\nv_add_f32 v6, v6, v7\nv_add_f32 v4, v4, v6")
    a("v_log_f32 v5, v4\nv_rcp_f32 v13, v4")
    a("v_mov_b32 v50, %s\nv_mov_b32 v54, %s\nv_add_f32 v51, v15, v5\nv_add_f32 v55, v15, v5", sTAG, sTAG)
    stamp(3)
    def pv_reads(j):
        lds_wait_ge(F_PROG, sTH, cache=sSEEN, hot=(0 < j < 3))
        for d in range(2):
            for t in range(2):
                R = VF + 8 * (j & 1) + 4 * d + 2 * t
                a("ds_read_b64_tr_b16 v[%d:%d], v%d offset:%d", R, R + 1, VA + d, (j * 8 + t * 4) * VP)
        if j < 3: a("s_add_u32 %s, %s, 8", sTH, sTH)
    def pv_mm(j, n):
        a("s_waitcnt lgkmcnt(%d)", n + 2)
        mfma(OA, VF + 8 * (j & 1), PF + 4 * j)
        a("s_waitcnt lgkmcnt(%d)", n)
        mfma(OA + 4, VF + 8 * (j & 1) + 4, PF + 4 * j)
    pv_reads(0)
    for j in range(3):
        pv_reads(j + 1)
        pv_mm(j, 4)
    pv_mm(3, 0)
    a("s_mov_b64 exec, %s", sEX)
    a("s_nop 4")
    for r in range(8): a("v_mul_f32 v%d, v%d, v13", OA + r, OA + r)
    a("v_cvt_pk_bf16_f32 v48, v%d, v%d\nv_cvt_pk_bf16_f32 v49, v%d, v%d", OA, OA + 1, OA + 2, OA + 3)
    a("v_cvt_pk_bf16_f32 v52, v%d, v%d\nv_cvt_pk_bf16_f32 v53, v%d, v%d", OA + 4, OA + 5, OA + 6, OA + 7)
    pub([("v[48:51]", "s93", 0), ("v[52:55]", "s93", 128)])
    a("s_mov_b64 exec, -1")
    stamp(4)
    if o.burst:
        flag_add(F_PUB)
    a("s_mov_b32 %s, %s\ns_cmp_eq_u32 %s, 80\ns_cbranch_scc1 L_hprep", sU, sA, sNS2)
    a("s_cmp_ge_u32 %s, 16\ns_cbranch_scc1 %s", sTEAM, "L_a_red" if o.redbase else "L_a_end")
    if o.burst and not o.xg: lds_wait_ge(F_PUB, "4")
    if o.opoll: lds_wait_ge(F_PROG, str(o.opoll), cache=sSEEN)
    a("s_mov_b32 %s, 0", sTMO)
    if o.nopoll & 4: a("s_branch L_a_ook")
    if o.burst:
        fetch([(16 + 4 * k, vOL, sOL, k * 1024) for k in range(4)], o.old)
        flag_add(F_PUB)
        a("s_branch L_a_ochk")
    a("L_a_opoll:")
    fetch([(16 + 4 * k, vOL, sOL, k * 1024) for k in range(4)], o.old)
    a("L_a_ochk:")
    a("s_add_u32 %s, %s, 1\ns_cmp_gt_u32 %s, 0x8000\ns_cbranch_scc1 L_a_ook", sTMO, sTMO, sTMO)
    a("s_waitcnt vmcnt(0)")
    a("v_xor_b32 v4, %s, v18\nv_xor_b32 v5, %s, v22\nv_xor_b32 v6, %s, v26\nv_xor_b32 v7, %s, v30", sTAG, sTAG, sTAG, sTAG)
    a("v_or3_b32 v4, v4, v5, v6\nv_or_b32 v4, v4, v7")
    a("v_cmp_ne_u32 vcc, 0, v4\ns_and_b64 exec, exec, vcc\ns_cbranch_vccnz L_a_opoll")
    a("L_a_ook:")
    a("s_mov_b64 exec, -1")
    a("s_waitcnt vmcnt(0)")
    stamp(5)
    a("v_max3_f32 v4, v19, v23, v27\nv_max_f32 v4, v4, v31")
    a("v_mov_b32 v5, v4")
    a("v_lshlrev_b32 v32, 16, v16\nv_and_b32 v33, %s, v16", sT0)
    a("v_permlane32_swap_b32 v4, v5\nv_max_f32 v4, v4, v5")
    for k in range(4): a("v_sub_f32 v%d, v%d, v4", 19 + 4 * k, 19 + 4 * k)
    for k in range(4): a("v_exp_f32 v%d, v%d", 19 + 4 * k, 19 + 4 * k)
    a("v_lshlrev_b32 v34, 16, v17\nv_and_b32 v35, %s, v17", sT0)
    for r in range(4): a("v_mul_f32 v%d, v%d, v19", 32 + r, 32 + r)
    a("v_add_f32 v5, v19, v23\nv_add_f32 v6, v27, v31\nv_add_f32 v5, v5, v6\nv_mov_b32 v4, v5")
    for k in range(1, 4):
        w = 19 + 4 * k
        a("v_lshlrev_b32 v6, 16, v%d\nv_and_b32 v7, %s, v%d\nv_fmac_f32 v32, v%d, v6\nv_fmac_f32 v33, v%d, v7", 16 + 4 * k, sT0, 16 + 4 * k, w, w)
        if k == 1: a("v_permlane32_swap_b32 v4, v5\nv_add_f32 v4, v4, v5\nv_rcp_f32 v4, v4")
        a("v_lshlrev_b32 v6, 16, v%d\nv_and_b32 v7, %s, v%d\nv_fmac_f32 v34, v%d, v6\nv_fmac_f32 v35, v%d, v7", 17 + 4 * k, sT0, 17 + 4 * k, w, w)
    a("s_nop 1")
    a("v_permlane32_swap_b32 v32, v34\nv_permlane32_swap_b32 v33, v35")
    a("v_add_f32 v32, v32, v34\nv_add_f32 v33, v33, v35\nv_mul_f32 v32, v32, v4\nv_mul_f32 v33, v33, v4")
    a("v_cvt_pk_bf16_f32 v32, v32, v33")
    a("ds_write_b32 %s, v32 offset:%d", vOW, VEC2)
    flag_add(F_VRDY)
    stamp(6)
    if o.wb & 3 == 1:
        Lb = a.lab("LWB")
        a("s_cmp_lg_u32 %s, %d\ns_cbranch_scc1 %s", sCB, o.wbcb, Lb)
        a("s_cmp_lg_u32 %s, 0\ns_cbranch_scc1 %s", sA, Lb)
        lds_wait_ge(F_VRDY, "4")
        a("buffer_wbl2 sc1")
        a("%s:" % Lb)
    sRU = "s56"
    a("L_a_red:")
    if not o.red4: a("s_cmp_lg_u32 %s, 3\ns_cbranch_scc1 L_a_end", sA)
    if o.redmap:
        a("s_sub_u32 %s, %s, 27\ns_lshl2_add_u32 %s, %s, %s", sT0, sIDX, sRU, sX, sT0)
        a("s_cmp_lt_u32 %s, 4\ns_cbranch_scc1 L_a_red2", sT0)
        a("s_sub_u32 %s, %s, 23\ns_add_u32 %s, %s, 32", sT0, sIDX, sRU, sT0)
        a("s_cmp_ge_u32 %s, 4\ns_cbranch_scc1 L_a_end", sT0)
        a("s_cmp_lg_u32 %s, 0\ns_cbranch_scc1 L_a_end", sX)
        a("L_a_red2:")
    else:
        a("s_sub_u32 %s, s2, %d\ns_cmp_ge_u32 %s, 36\ns_cbranch_scc1 L_a_end", sRU, o.redbase, sRU)
    if o.fpoll: lds_wait_ge(F_PROG, str(o.fpoll), cache=sSEEN)
    mk_srd(R1, 22, 2304)
    a("v_bfe_u32 v12, v0, 2, 1\nv_mul_u32_u24 v12, 1152, v12\nv_and_b32 v11, 3, v0\nv_lshl_add_u32 v12, v11, 3, v12")
    a("v_and_b32 v11, 1, v8\nv_lshl_add_u32 v12, v11, 2, v12")
    a("s_lshl_b32 %s, %s, 5\nv_add_u32 v12, %s, v12", sT1, sRU, sT1)
    a("global_load_dword v40, v12, s[4:5]")
    if o.outpre: a("buffer_load_dword v42, v12, %s, 0 offen", srd(R1))
    a("s_lshl_b32 %s, %s, 12\ns_add_u32 %s, %s, %d", sT0, sRU, sT0, sT0, W_F)
    a("v_lshlrev_b32 v11, 4, v0")
    a("s_mov_b32 %s, 0xffff0000\ns_mov_b32 %s, 0", sT1, sTMO)
    a("s_waitcnt vmcnt(0)")
    a("v_and_b32 v41, %s, v40\nv_lshlrev_b32 v40, 16, v40", sT1)
    if not o.red4:
        if o.nopoll & 8: a("s_branch L_a_fok")
        a("L_a_fpoll:")
        for k in range(4):
            a("buffer_load_dwordx4 v[%d:%d], v11, %s, %s offen offset:%d sc1", 16 + 4 * k, 19 + 4 * k, srd(RW), sT0, k * 1024)
        a("s_add_u32 %s, %s, 1\ns_cmp_gt_u32 %s, 0x8000\ns_cbranch_scc1 L_a_fok", sTMO, sTMO, sTMO)
        for k in range(4):
            a("s_waitcnt vmcnt(%d)", 3 - k)
            tag_bad("v4", 16 + 4 * k, k == 0)
        a("v_and_b32 v4, 0xff, v4\nv_cmp_ne_u32 vcc, 0, v4\ns_and_b64 exec, exec, vcc\ns_cbranch_vccnz L_a_fpoll")
        a("L_a_fok:")
        a("s_mov_b64 exec, -1")
        stamp(7)
        for r in range(4): a("v_add_f32 v%d, v%d, v%d", 16 + r, 16 + r, 20 + r)
        for r in range(4): a("v_add_f32 v%d, v%d, v%d", 24 + r, 24 + r, 28 + r)
        for r in range(4): a("v_permlane32_swap_b32 v%d, v%d", 16 + r, 24 + r)
        for r in (0, 2, 1, 3): a("v_add_f32 v%d, v%d, v%d", 16 + r, 16 + r, 24 + r)
        a("v_permlane16_swap_b32 v16, v18\ns_nop 0\nv_permlane16_swap_b32 v17, v19")
        a("v_add_f32 v16, v16, v18\nv_add_f32 v17, v17, v19\ns_nop 0")
        a("v_add_f32_dpp v16, v16, v16 row_ror:8 row_mask:0xf bank_mask:0xf\nv_add_f32_dpp v17, v17, v17 row_ror:8 row_mask:0xf bank_mask:0xf")
    else:
        a("s_lshl_b32 %s, %s, 10\ns_add_u32 %s, %s, %s", sT2, sA, sT0, sT0, sT2)
        a("v_lshlrev_b32 v10, 3, v0\ns_lshl_b32 %s, %s, 9\nv_add_u32 v13, %s, v10\nv_mov_b32 v6, 1", sT2, sA, sT2)
        a("L_a_fpoll:")
        a("buffer_load_dwordx4 v[16:19], v11, %s, %s offen sc1", srd(RW), sT0)
        a("s_add_u32 %s, %s, 1\ns_cmp_gt_u32 %s, 0x8000\ns_cbranch_scc1 L_a_fok", sTMO, sTMO, sTMO)
        a("s_waitcnt vmcnt(0)")
        tag_bad("v4", 16, True)
        a("v_and_b32 v4, 0xff, v4\nv_cmp_ne_u32 vcc, 0, v4\ns_and_b64 exec, exec, vcc\ns_cbranch_vccnz L_a_fpoll")
        a("L_a_fok:")
        a("s_mov_b64 exec, -1")
        stamp(7)
        a("v_permlane16_swap_b32 v16, v18\nv_permlane16_swap_b32 v17, v19")
        a("v_add_f32 v16, v16, v18\nv_add_f32 v17, v17, v19\ns_nop 0")
        a("v_add_f32_dpp v16, v16, v16 row_ror:8 row_mask:0xf bank_mask:0xf\nv_add_f32_dpp v17, v17, v17 row_ror:8 row_mask:0xf bank_mask:0xf")
        a("ds_write_b64 v13, v[16:17] offset:%d", RP)
        a("s_mov_b64 exec, 1\nds_add_rtn_u32 v6, v3, v6 offset:%d\ns_mov_b64 exec, -1", F_RED)
        for k in range(4): a("ds_read_b64 v[%d:%d], v10 offset:%d", 20 + 2 * k, 21 + 2 * k, RP + 512 * k)
        a("s_waitcnt lgkmcnt(4)")
        a("v_readfirstlane_b32 %s, v6", sT3)
        a("s_cmp_lg_u32 %s, 3\ns_cbranch_scc1 L_a_end", sT3)
        a("s_waitcnt lgkmcnt(0)")
        a("v_add_f32 v16, v20, v22\nv_add_f32 v17, v21, v23\nv_add_f32 v18, v24, v26\nv_add_f32 v19, v25, v27")
        a("v_add_f32 v16, v16, v18\nv_add_f32 v17, v17, v19")
    a("v_cvt_pk_bf16_f32 v16, v16, v17\nv_mov_b32 v18, v16\ns_nop 1")
    a("v_permlane32_swap_b32 v16, v18")
    a("v_lshlrev_b32 v6, 16, v16\nv_and_b32 v7, %s, v16", sT1)
    a("v_add_f32 v4, v40, v6\nv_add_f32 v5, v41, v7\nv_cvt_pk_bf16_f32 v4, v4, v5")
    a("v_lshlrev_b32 v6, 16, v18\nv_and_b32 v7, %s, v18", sT1)
    a("v_and_b32 v5, %s, v4\nv_lshlrev_b32 v4, 16, v4", sT1)
    a("s_mov_b64 exec, 0xff00ff")
    a("v_add_f32 v4, v4, v6\nv_add_f32 v5, v5, v7\nv_cvt_pk_bf16_f32 v20, v4, v5")
    a("buffer_store_dword v20, v12, %s, 0 offen %s", srd(R1), o.outpol)
    a("s_cmp_lg_u32 %s, 0\ns_cbranch_scc1 %s", sRU, "L_a_end2" if o.holdf else "L_a_end")
    a("s_mov_b64 exec, 1\nv_mov_b32 v4, %s", sTAG)
    a("buffer_store_dword v4, v3, %s, 0 offen %s", srd(RW), o.eppol)
    if o.holdf:
        a("s_branch L_a_end2")
    a("L_a_end:")
    stamps_out()
    a("L_end:")
    a("s_endpgm")
    if o.holdf:
        a("L_a_end2:")
        a("s_cmp_lg_u32 s2, %d\ns_cbranch_scc1 L_end", o.holdwg)
        a("s_memrealtime s[70:71]\ns_waitcnt lgkmcnt(0)\ns_sub_u32 %s, s70, s86\ns_mul_i32 %s, %s, %d\ns_add_u32 %s, %s, %d", sT1, sT1, sT1, o.holdmul, sT1, sT1, o.holdf)
        a("L_holdf:\ns_memrealtime s[70:71]\ns_waitcnt lgkmcnt(0)\ns_sub_u32 %s, s70, s86\ns_cmp_lt_u32 %s, %s\ns_cbranch_scc1 L_holdf", sT0, sT0, sT1)
        a("s_endpgm")
    flush_ool()
    a("L_code_end:")
    if o.cpf: a(".fill 256, 4, 0xbf800000")

    hdr = open(os.path.join(os.path.dirname(os.path.abspath(__file__)), "header.txt")).read()
    hdr += "; @launch grid=(256,1,1) block=(576,1,1) lds=%d\n" % LDS_TOTAL
    hdr += DOC
    hdr += '.amdgcn_target "amdgcn-amd-amdhsa--gfx950"\n.text\n.globl %s\n.p2align 8\n.type %s,@function\n' % (NAME, NAME)
    ftr = """.section .rodata,"a"
.p2align 6
.amdhsa_kernel %s
  .amdhsa_next_free_vgpr 144
  .amdhsa_next_free_sgpr 102
  .amdhsa_accum_offset 144
  .amdhsa_group_segment_fixed_size 0
  .amdhsa_kernarg_size 96
  .amdhsa_user_sgpr_count 2
  .amdhsa_user_sgpr_kernarg_segment_ptr 1
  .amdhsa_system_sgpr_workgroup_id_x 1
  .amdhsa_float_denorm_mode_32 3
.end_amdhsa_kernel
""" % NAME
    body = a.text()
    if o.nostore:
        body = "\n".join(l for l in body.split("\n") if not ("buffer_store_dwordx4" in l and (o.nostore & 2 or "sc1" in l)))
    return hdr + body + ftr

def parser():
    p = argparse.ArgumentParser()
    p.add_argument("-o", default="-")
    p.add_argument("--depth", type=int, default=24)
    p.add_argument("--diag", type=int, default=0)
    p.add_argument("--qpoll", type=int, default=42)
    p.add_argument("--opoll", type=int, default=0)
    p.add_argument("--hpoll", type=int, default=114)
    p.add_argument("--cpf", type=int, default=1)
    p.add_argument("--sdiag", type=int, default=0)
    p.add_argument("--mix", type=int, default=2)
    p.add_argument("--local", type=int, default=1)
    p.add_argument("--floc", type=int, default=1)
    p.add_argument("--depth2w", type=int, default=40)
    p.add_argument("--xg", type=int, default=0)
    p.add_argument("--tpoll", type=int, default=0)
    p.add_argument("--tpol", default="nt")
    p.add_argument("--aprio", type=int, default=0)
    p.add_argument("--redmap", type=int, default=0)
    p.add_argument("--qld", default="nt")
    p.add_argument("--hld", default="nt")
    p.add_argument("--old", default="nt")
    p.add_argument("--cpe", type=int, default=1)
    p.add_argument("--xpol", default="")
    p.add_argument("--cpol", default="")
    p.add_argument("--vesc", type=int, default=3)
    p.add_argument("--vstride", type=int, default=3)
    p.add_argument("--vfull", type=int, default=1)
    p.add_argument("--fast0", type=int, default=1)
    p.add_argument("--red4", type=int, default=1)
    p.add_argument("--race", type=int, default=0)
    p.add_argument("--s2early", type=int, default=0)
    p.add_argument("--redbase", type=int, default=216)
    p.add_argument("--fpoll", type=int, default=150)
    p.add_argument("--ltsplit", type=int, default=0)
    p.add_argument("--depthl2", type=int, default=44)
    p.add_argument("--eppol", default="")
    p.add_argument("--wb", type=int, default=0)
    p.add_argument("--wbcb", type=int, default=8)
    p.add_argument("--outpre", type=int, default=0)
    p.add_argument("--tlb", type=int, default=0)
    p.add_argument("--burst", type=int, default=0)
    p.add_argument("--hold", type=int, default=0)
    p.add_argument("--holdf", type=int, default=0)
    p.add_argument("--holdmul", type=int, default=0)
    p.add_argument("--holdwg", type=int, default=0)
    p.add_argument("--wqx", type=int, default=4)
    p.add_argument("--spec", type=int, default=0)
    p.add_argument("--outpol", default="")
    p.add_argument("--nover", type=int, default=0)
    p.add_argument("--depthv", type=int, default=0)
    p.add_argument("--depthl", type=int, default=0)
    p.add_argument("--ltwait", type=int, default=0)
    p.add_argument("--hpolll", type=int, default=0)
    p.add_argument("--touch", type=int, default=6)
    p.add_argument("--vpoll", type=int, default=34)
    p.add_argument("--depth2", type=int, default=20)
    p.add_argument("--sleep", type=int, default=0)
    p.add_argument("--nopoll", type=int, default=0)
    p.add_argument("--nostore", type=int, default=0)
    p.add_argument("--rot", type=int, default=1)
    p.add_argument("--ldonly", type=int, default=0)
    p.add_argument("--pol", default="nt")
    return p

if __name__ == "__main__":
    o = parser().parse_args()
    t = gen(o)
    if o.o == "-": sys.stdout.write(t)
    else: open(o.o, "w").write(t)
```

```python
import sys, argparse, math, struct, os

NAME = "parallel_sum__sliding_block_cached__geglu_ffn__decode_kernel"
f2u = lambda f: struct.unpack("<I", struct.pack("<f", f))[0]

class Asm:
    def __init__(self):
        self.lines = []
        self.n = 0
    def __call__(self, s, *args):
        if args: s = s % args
        for ln in s.strip("\n").split("\n"):
            ln = ln.strip()
            if not ln: continue
            if ln.endswith(":"): self.lines.append(ln)
            else: self.lines.append("    " + ln)
    def lab(self, p="L"):
        self.n += 1
        return "%s_%d" % (p, self.n)
    def text(self): return "\n".join(self.lines) + "\n"

F_PROG, F_QRDY, F_A1, F_A2, F_VRDY, F_C1, F_VER, F_PUB, F_HOK, F_RED = 0, 16, 20, 8, 24, 28, 32, 36, 40, 44
XN, XN_P = 256, 1152
QV = 2560
VEC2, VEC2_P = 3072, 704
MX = 4480
LS = 4512
PB = 4608
RP = 5120
RA = 6144
RWQ = RA + 48 * 1024
RK = RA + 84 * 1024
KP = 1088
RV = RK + 32 * KP
VP = 1152
LDS_TOTAL = RV + 32 * VP
assert LDS_TOTAL <= 163840
W_EPOCH = 0
W_V = 1024
W_Q = 4096
W_G = W_Q + 16 * 8192
W_O = W_G + 6 * 36864
W_AEND = W_O + 256 * 1024
BOFF = 0xa0000
assert W_AEND - W_Q <= BOFF
W_F = W_AEND + BOFF
W_END = W_F + 36 * 4096
W_DIAG = 2 << 20
assert W_END <= W_DIAG
P_G = 26

DOC = """;
"""

def gen(o):
    a = Asm()
    D = o.depth
    diag = o.diag
    sX, sIDX, sG, sI, sWV = "s28", "s29", "s30", "s31", "s32"
    sTEAM, sEND, sNG, sB2, sR0 = "s33", "s34", "s35", "s36", "s37"
    sD3, sM3 = "s38", "s39"
    sT0, sT1, sT2, sT3 = "s40", "s41", "s42", "s43"
    sSEEN, sTMO, sTAG, sVER = "s44", "s45", "s46", "s47"
    sEX = "s[68:69]"
    R0, R1, R2, R3, R4 = 48, 52, 56, 60, 64
    RW = 64
    RB = 60
    ST = 72
    def srd(r): return "s[%d:%d]" % (r, r + 3)
    def mk_srd(r, lo, size):
        a("s_mov_b32 s%d, s%d\ns_mov_b32 s%d, s%d\ns_mov_b32 s%d, 0x%x\ns_mov_b32 s%d, 0x00020000", r, lo, r + 1, lo + 1, r + 2, size, r + 3)
    def stamp(k):
        if diag: a("s_memrealtime s[%d:%d]", ST + 2 * k, ST + 2 * k + 1)
    def stamps_out():
        if not diag: return
        a("s_waitcnt lgkmcnt(0)")
        a("s_mov_b64 exec, -1")
        a("s_lshl_b32 %s, s2, 4\ns_add_u32 %s, %s, %s\ns_lshl_b32 %s, %s, 6\ns_add_u32 %s, %s, 0x%x", sT0, sT0, sT0, sWV, sT0, sT0, sT0, sT0, W_DIAG)
        a("v_mov_b32 v1, %s", sT0)
        for k in range(4):
            for j in range(4): a("v_mov_b32 v%d, s%d", 4 + j, ST + 4 * k + j)
            a("global_store_dwordx4 v1, v[4:7], s[26:27] offset:%d", 16 * k)
            a("s_nop 1")
    ool = []
    def lds_wait_ge(off, thr, cache=None, vt="v2", vz="v3", hot=False):
        if hot:
            Ls, Lr = a.lab("LS"), a.lab("LB")
            a("s_cmp_lt_i32 %s, %s\ns_cbranch_scc1 %s", cache, thr, Ls)
            a("%s:" % Lr)
            ool.append((Ls, lambda: lds_wait_ge(off, thr, cache, vt, vz), Lr))
            return
        L, E = a.lab("LW"), a.lab("LE")
        c = cache or sT3
        if cache:
            a("s_cmp_ge_i32 %s, %s\ns_cbranch_scc1 %s", c, thr, E)
        a("s_mov_b32 %s, 0", sTMO)
        a("%s:" % L)
        if o.sleep: a("s_sleep %d", o.sleep)
        a("ds_read_b32 %s, %s offset:%d", vt, vz, off)
        a("s_add_u32 %s, %s, 1", sTMO, sTMO)
        a("s_cmp_gt_u32 %s, 0x80000\ns_cbranch_scc1 %s", sTMO, E)
        a("s_waitcnt lgkmcnt(0)")
        a("v_readfirstlane_b32 %s, %s", c, vt)
        a("s_cmp_lt_i32 %s, %s\ns_cbranch_scc1 %s", c, thr, L)
        a("%s:" % E)
    def get_tag():
        a("s_waitcnt lgkmcnt(0)")
        a("s_mul_i32 %s, %s, 1664525\ns_add_u32 %s, %s, 1013904223", sTAG, sTAG, sTAG, sTAG)
        a("s_and_b32 s94, %s, 0xff\ns_bfe_u32 s95, %s, 0x80008\ns_bfe_u32 s96, %s, 0x80010\ns_lshr_b32 s97, %s, 24", sTAG, sTAG, sTAG, sTAG)
    def tag_merge(r, rnd=True):
        for k in range(4):
            if rnd: a("v_add_u32 v%d, 0x80, v%d", r + k, r + k)
        for k in range(4):
            a("v_and_or_b32 v%d, v%d, v14, s%d", r + k, r + k, 94 + k)
    def tag_bad(dst, r, first):
        for k in range(4): a("v_xor_b32 v%d, s%d, v%d", r + k, 94 + k, r + k)
        if first: a("v_or3_b32 %s, v%d, v%d, v%d\nv_or_b32 %s, %s, v%d", dst, r, r + 1, r + 2, dst, dst, r + 3)
        else: a("v_or3_b32 %s, %s, v%d, v%d\nv_or3_b32 %s, %s, v%d, v%d", dst, dst, r, r + 1, dst, dst, r + 2, r + 3)
    def flag_add(off, vt="v6"):
        a("s_mov_b64 exec, 1\nv_mov_b32 %s, 1\nds_add_u32 v3, %s offset:%d\ns_mov_b64 exec, -1", vt, vt, off)
    def get_ver():
        lds_wait_ge(F_VER, "1", cache=sVER)
    def two_way(fast, slow):
        Ls, Lr = a.lab("LS"), a.lab("LB")
        a("s_cmp_lg_u32 %s, 1\ns_cbranch_scc1 %s", sVER, Ls)
        fast()
        a("%s:" % Lr)
        ool.append((Ls, slow, Lr))
    def flush_ool():
        for Ls, slow, Lr in ool:
            a("%s:" % Ls)
            slow()
            a("s_branch %s", Lr)
        del ool[:]
    def pub(items):
        def fast():
            for regs, so, off in items:
                a("buffer_store_dwordx4 %s, v1, %s, %s offen offset:%d", regs, srd(RW), so, off)
        def slow():
            for regs, so, off in items:
                a("buffer_store_dwordx4 %s, v1, %s, %s offen offset:%d sc1", regs, srd(RB), so, off)
        two_way(fast, slow)
    def fetch(items, fl="nt"):
        def go(r, f):
            for d, vo, so, off in items:
                a("buffer_load_dwordx4 v[%d:%d], %s, %s, %s offen offset:%d %s", d, d + 3, vo, srd(r), so, off, f)
        two_way(lambda: go(RW, fl), lambda: go(RB, "sc1"))
    def s2pos(n): return (98 if n <= 4 * o.s2early else 130) + n
    def mfma(d, A, B):
        a("v_mfma_f32_16x16x32_bf16 v[%d:%d], v[%d:%d], v[%d:%d], v[%d:%d]", d, d + 3, A, A + 3, B, B + 3, d, d + 3)

    a("%s:" % NAME)
    stamp(0)
    if o.hold or o.holdf: a("s_memrealtime s[86:87]")
    if diag:
        for k in range(1, 8): a("s_mov_b64 s[%d:%d], 0", ST + 2 * k, ST + 2 * k + 1)
    KARG = "s_load_dwordx16 s[4:19], s[0:1], 0\ns_load_dwordx8 s[20:27], s[0:1], 64"
    if o.fast0: a("s_load_dwordx2 s[%d:%d], s[0:1], 24", R0, R0 + 1)
    else: a(KARG)
    a("""
    s_cmp_ge_u32 s2, 256
    s_cbranch_scc1 L_end
    v_lshrrev_b32 v1, 6, v0
    v_and_b32 v0, 63, v0
    v_mov_b32 v3, 0
    """)
    a("v_readfirstlane_b32 %s, v1", sWV)
    a("s_and_b32 %s, s2, 7\ns_lshr_b32 %s, s2, 3", sX, sIDX)
    if o.xg:
        a("s_cmp_lt_u32 %s, 25\ns_cselect_b32 %s, -9, 0\ns_cmp_lt_u32 %s, 9\ns_cselect_b32 %s, 16, %s\ns_add_u32 %s, %s, %s", sIDX, sT0, sIDX, sT0, sT0, sT1, sIDX, sT0)
        a("s_lshr_b32 %s, %s, 4\ns_lshl1_add_u32 %s, %s, %s\ns_and_b32 %s, %s, 15", sT0, sT1, sG, sX, sT0, sI, sT1)
    else:
        a("s_lshr_b32 %s, s2, 7\ns_lshl1_add_u32 %s, %s, %s\ns_and_b32 %s, %s, 15", sT0, sG, sX, sT0, sI, sIDX)
    def code_pf():
        if o.cpf:
            Lc = a.lab("LCP")
            a("s_cmp_lg_u32 %s, 8\ns_cbranch_scc1 %s", sWV, Lc)
            a("s_lshl_b32 %s, %s, 10\ns_cmp_ge_u32 %s, L_code_end-%s\ns_cbranch_scc1 %s", sT0, sI, sT0, NAME, Lc)
            a("s_getpc_b64 s[88:89]")
            a("L_pc:")
            a("s_sub_u32 s88, s88, L_pc-%s\ns_subb_u32 s89, s89, 0", NAME)
            a("v_lshlrev_b32 v4, 4, v0\nv_add_u32 v4, %s, v4", sT0)
            a("global_load_dwordx4 v[76:79], v4, s[88:89] %s", o.cpol)
            a("%s:" % Lc)
    def cons_entry():
        if o.fast0: a(KARG)
        if o.cpe: code_pf()
        a("v_mul_u32_u24 v13, 36, v0")
        a("s_cmp_ge_u32 %s, 5", sWV)
        a("s_waitcnt lgkmcnt(0)")
        a("s_load_dword %s, s[26:27], 0", sTAG)
        a("s_cbranch_scc1 L_cons2")
        a("global_load_dwordx4 v[16:19], v13, s[4:5] %s", o.xpol)
        a("global_load_dwordx4 v[20:23], v13, s[4:5] offset:16 %s", o.xpol)
        a("global_load_dword v24, v13, s[4:5] offset:32 %s", o.xpol)
        a("L_cons2:")
        if not o.cpe: code_pf()
        a("s_branch L_cons3")
    if o.fast0 == 2:
        a("s_cmp_lg_u32 %s, 0\ns_cbranch_scc1 L_cons", sWV)
    else:
        a("s_cmp_eq_u32 %s, 0\ns_cbranch_scc1 L_loader", sWV)
        cons_entry()
    a("L_loader:")

    sOFF, sCNT, sISS, sKV, sRQ = "s90", "s91", "s92", "s93", "s98"
    sO2, sMG = "s99", "s100"
    def prog(depth):
        a("s_add_u32 %s, %s, 4\nv_max_i32 v4, %s, v4", sISS, sISS, sISS)
        a("s_waitcnt vmcnt(%d)", depth - 4)
        a("ds_write_b32 v3, v4 offset:%d", F_PROG)
    def loop_end(L):
        a("s_sub_u32 %s, %s, 1\ns_cmp_lg_u32 %s, 0\ns_cbranch_scc1 %s", sCNT, sCNT, sCNT, L)
    sMK = "s88"
    def kv_group(r, voff, base, pitch, wait=True, depth=None):
        a("s_mov_b32 m0, %s\ns_add_u32 %s, %s, %d", sMK, sMK, sMK, 4 * pitch)
        a("s_lshl_b32 %s, %s, 12\ns_add_u32 %s, %s, %s", sT1, sRQ, sT1, sT1, sKV)
        for k in range(4):
            a("buffer_load_dwordx4 %s, %s, %s offen %s lds", voff, srd(r), sT1, o.pol)
            if k < 3: a("s_add_u32 m0, m0, %d\ns_add_u32 %s, %s, s101", pitch, sT1, sT1)
        a("s_add_u32 %s, %s, 1\ns_and_b32 %s, %s, 7", sRQ, sRQ, sRQ, sRQ)
        if wait: prog(depth or D)
    def kv_loop(r, voff, base, pitch, depth=None):
        L = a.lab("LD")
        a("%s:" % L)
        kv_group(r, voff, base, pitch, True, depth)
        loop_end(L)
    def pair_group(ra, rb, voff, step, depth):
        for k in range(4):
            so = sOFF if k % 2 == 0 else sO2
            a("buffer_load_dwordx4 %s, %s, %s offen %s lds", voff, srd(ra if k % 2 == 0 else rb), so, o.pol)
            a("s_add_u32 m0, m0, s101\ns_add_u32 %s, %s, %s", so, so, step)
        prog(depth)
    def roles():
        a("s_mov_b32 %s, %s\ns_lshl_b32 %s, %s, 8\ns_sub_u32 %s, %s, 16\ns_mul_i32 %s, %s, 288", sTEAM, sIDX, sR0, sIDX, sT0, sIDX, sT0, sT0)
        a("s_cmp_lt_u32 %s, 16\ns_cselect_b32 %s, %s, %s\ns_cselect_b32 %s, 8, 9", sIDX, sR0, sR0, sT0, sNG)
        a("s_cmp_eq_u32 %s, 7\ns_cselect_b32 %s, 1, 0\ns_lshl_b32 %s, %s, %s", sX, sT0, sNG, sNG, sT0)
        a("s_mul_i32 %s, %s, 31\ns_add_u32 %s, %s, %s\ns_cmp_eq_u32 %s, 31\ns_cselect_b32 %s, 255, %s", sT0, sX, sT0, sT0, sIDX, sIDX, sT0, sT0)
        a("s_mul_i32 %s, %s, 171\ns_lshr_b32 %s, %s, 9\ns_mul_i32 %s, %s, 3\ns_sub_u32 %s, %s, %s", sD3, sT0, sD3, sD3, sT1, sD3, sM3, sT0, sT1)
        a("s_mov_b32 %s, 130\ns_cmp_lt_u32 %s, 216\ns_cselect_b32 %s, %s, 82\ns_lshl2_add_u32 %s, %s, %s", sB2, sT0, sB2, sB2, sEND, sNG, sB2)
    def gu_pair(smt, sblk):
        a("s_cmp_ge_u32 %s, 36\ns_cselect_b32 %s, 1, 0\ns_cselect_b32 %s, 36, 0\ns_sub_u32 %s, %s, %s", sD3, smt, sblk, sblk, sD3, sblk)

    a("""
    v_lshrrev_b32 v8, 3, v0
    v_lshrrev_b32 v15, 4, v0
    v_lshlrev_b32 v9, 1, v15
    v_and_b32 v10, 7, v0
    v_xor_b32 v10, v10, v9
    v_lshlrev_b32 v10, 4, v10
    v_lshl_add_u32 v16, v8, 13, v10
    """)
    a("s_and_b32 %s, %s, 3\ns_mul_i32 %s, %s, %d", sT0, sIDX, sOFF, sT0, 144 * 8192)
    a("s_lshr_b32 %s, %s, 2\ns_xor_b32 %s, %s, %d\ns_lshl3_add_u32 %s, %s, %s\ns_lshl_b32 %s, %s, 7\ns_add_u32 %s, %s, %s", sT0, sIDX, sT0, sT0, o.wqx, sT0, sX, sT0, sT0, sT0, sOFF, sOFF, sT0)
    a("s_mov_b32 s%d, 0x480000\ns_mov_b32 s%d, 0x00020000", R0 + 2, R0 + 3)
    a("s_movk_i32 s101, 0x400\ns_mov_b32 %s, 0x10000", sT2)
    a("s_mov_b32 m0, %d", RWQ)
    a("s_setprio 3")
    a("s_waitcnt lgkmcnt(0)")
    if o.sdiag: stamp(5)
    if not o.fast0: a("s_mov_b32 s%d, s10\ns_mov_b32 s%d, s11", R0, R0 + 1)
    fill = ["v_mov_b32 v4, 0", "v_mov_b32 v5, 0", "v_lshlrev_b32 v2, 3, v0", "ds_write_b64 v2, v[4:5]",
            "v_xor_b32 v13, v0, v15", "v_lshlrev_b32 v13, 4, v13",
            "s_mov_b32 s%d, 0x2000000" % (R1 + 2), "s_mov_b32 s%d, 0x00020000" % (R1 + 3),
            "s_lshr_b32 %s, %s, 3" % (sT0, sI), "s_lshl4_add_u32 %s, %s, %s" % (sT0, sT0, sG), "s_lshl_b32 %s, %s, 20" % (sT0, sT0),
            "s_and_b32 %s, %s, 7" % (sT1, sI), "s_lshl_b32 %s, %s, 15" % (sT1, sT1), "s_add_u32 %s, %s, %s" % (sT0, sT0, sT1),
            "s_add_u32 %s, %s, 0xc0000" % (sKV, sT0), "s_and_b32 %s, %s, 3" % (sRQ, sIDX), "s_lshl_b32 %s, %s, 1" % (sRQ, sRQ)]
    for k in range(18):
        a("buffer_load_dwordx4 v16, %s, %s offen %s lds", srd(R0), sOFF, o.pol)
        if k == 0 and o.fast0: a(KARG)
        if k < 17:
            a("s_add_u32 m0, m0, s101\ns_add_u32 %s, %s, %s", sOFF, sOFF, sT2)
            a(fill[k])
    if o.sdiag: stamp(6)
    if o.fast0: a("s_waitcnt lgkmcnt(0)")
    a("s_mov_b32 s%d, s6\ns_mov_b32 s%d, s7\ns_mov_b32 %s, %d", R1, R1 + 1, sMK, RK)
    kv_group(R1, "v13", RK, KP, False)
    if D >= 26: kv_group(R1, "v13", RK, KP, False)
    if o.sdiag: stamp(7)
    a("s_waitcnt lgkmcnt(0)")
    a("s_barrier")
    a("""
    v_mul_u32_u24 v12, 1152, v8
    v_add_u32 v12, v12, v10
    v_mul_u32_u24 v11, 9216, v8
    v_add_u32 v11, v11, v10
    v_xor_b32 v14, v0, v9
    v_lshlrev_b32 v14, 4, v14
    """)
    mk_srd(R2, 8, 0x2000000)
    a("s_mov_b32 %s, %d", sISS, (26 if D >= 26 else 22) - (D - 4))
    roles()
    DV, D2, DL = o.depthv or D, o.depth2, o.depthl or D
    sS2 = "s89"
    def drain_step(k):
        a("s_add_u32 %s, %s, 4\nv_max_i32 v4, %s, v4\ns_waitcnt vmcnt(%d)\nds_write_b32 v3, v4 offset:%d", sISS, sISS, sISS, k, F_PROG)
    def redepth(old, new):
        if new > old: a("s_sub_u32 %s, %s, %d", sISS, sISS, new - old)
        for k in range(old - 8, new - 8, -4): drain_step(k)
    a("s_cmp_lt_u32 %s, 16", sTEAM)
    a("s_cselect_b32 s%d, s12, s20\ns_cselect_b32 s%d, s13, s21\ns_mov_b32 s%d, 0x510000\ns_cselect_b32 s%d, 0x480000, s%d\ns_mov_b32 s%d, 0x00020000",
      R3, R3 + 1, R3 + 2, R3 + 2, R3 + 2, R3 + 3)
    a("s_mul_i32 %s, %s, 1152\ns_lshl_b32 %s, %s, 7\ns_add_u32 %s, %s, %s", sS2, sR0, sT1, sX, sS2, sS2, sT1)
    gu_pair(sT0, sT1)
    a("s_cmp_eq_u32 %s, 1\ns_cselect_b32 s%d, s18, s16\ns_cselect_b32 s%d, s19, s17\ns_mov_b32 s%d, 0x510000", sT0, R0, R0 + 1, R0 + 2)
    a("s_mul_i32 %s, %s, %d\ns_lshl_b32 %s, %s, 8\ns_add_u32 %s, %s, %s\ns_add_u32 %s, %s, 128", sOFF, sM3, 192 * 9216, sT1, sT1, sOFF, sOFF, sT1, sO2, sOFF)
    if D < 26:
        a("s_waitcnt vmcnt(%d)", D - 4 + 0)
        kv_group(R1, "v13", RK, KP)
    a("s_mov_b32 %s, 6", sCNT)
    a("s_cmp_eq_u32 %s, 82\ns_cbranch_scc1 L_ld_kv", sB2)
    M = o.mix
    a("s_mov_b32 %s, %d\ns_mov_b32 %s, %d", sMG, RA, sCNT, 6 // M)
    a("L_ld_gu:")
    a("s_mov_b32 m0, %s\ns_add_u32 %s, %s, %d", sMG, sMG, sMG, 8192 * M)
    a("s_mov_b32 %s, %d", sT2, 2 * M)
    a("L_ld_gi:")
    pair_group(R0, R0, "v11", 8 * 9216, D)
    a("s_sub_u32 %s, %s, 1\ns_cmp_lg_u32 %s, 0\ns_cbranch_scc1 L_ld_gi", sT2, sT2, sT2)
    kv_group(R1, "v13", RK, KP)
    loop_end("L_ld_gu")
    if M == 1: a("s_branch L_ld_v")
    else: a("s_mov_b32 %s, %d", sCNT, 6 - 6 // M)
    a("L_ld_kv:")
    kv_loop(R1, "v13", RK, KP)
    a("L_ld_v:")
    stamp(1)
    kinds = {"n": (o.depthv7 or D, o.depth7 or D), "w": (o.depthvw or D, o.depth2w), "d": (o.depthvd or D, o.depth2)}
    DD = min(k[1] for k in kinds.values())
    def tail(t):
        DVt, D2t = kinds[t]
        redepth(D, DVt)
        a("s_mov_b32 %s, 7", sCNT)
        kv_loop(R2, "v14", RV, VP, DVt)
        a("ds_read_b32 v5, v3 offset:%d", F_C1)
        kv_group(R2, "v14", RV, VP, True, DVt)
        stamp(2)
        if not o.ldonly:
            a("s_waitcnt lgkmcnt(0)\nv_readfirstlane_b32 %s, v5", sSEEN)
            lds_wait_ge(F_C1, "4", cache=sSEEN)
        a("s_mov_b32 %s, %s\ns_mov_b32 %s, %s", sOFF, sS2, sCNT, sNG)
        if t == "n":
            a("s_mov_b32 %s, %d\ns_mov_b32 %s, %d\ns_mov_b32 %s, %d", sT0, RWQ, sT1, 8 * 1152, sMG, 16 * 1152)
            a("s_cmp_eq_u32 %s, 7\ns_cselect_b32 m0, %d, %s\ns_cselect_b32 %s, %s, %s\ns_cselect_b32 %s, 128, %s\ns_add_u32 %s, %s, %s", sX, RA, sT0, sMG, sT1, sMG, sT1, sT1, sO2, sOFF, sT1)
        else:
            a("s_mov_b32 m0, %d\ns_mov_b32 %s, %d\ns_add_u32 %s, %s, %d", RWQ, sMG, 16 * 1152, sO2, sOFF, 8 * 1152)
        redepth(DVt, D2t)
        a("L_ld_s2%s:" % t)
        pair_group(R3, R3, "v12", sMG, D2t)
        loop_end("L_ld_s2%s" % t)
        stamp(3)
        redepth(D2t, DD)
    a("s_cmp_eq_u32 %s, 82\ns_cbranch_scc1 L_ld_tn", sB2)
    if kinds["w"] != kinds["d"]:
        a("s_cmp_ge_u32 %s, 16\ns_cbranch_scc1 L_ld_td", sTEAM)
        tail("w")
        a("s_branch L_ld_drain2")
        a("L_ld_td:")
    tail("d")
    a("s_branch L_ld_drain2")
    a("L_ld_tn:")
    tail("n")
    a("L_ld_drain2:")
    for k in range(DD - 8, -1, -4): drain_step(k)
    stamp(4)
    if o.opf and not o.ldonly:
        a("s_cmp_ge_u32 %s, 16\ns_cbranch_scc1 L_ld_end", sTEAM)
        a("s_lshr_b32 %s, %s, 1\ns_cmp_eq_u32 %s, %s\ns_cbranch_scc1 L_ld_end", sT0, sTEAM, sT0, sX)
        a("s_add_u32 s%d, s26, 0x%x\ns_addc_u32 s%d, s27, 0\ns_mov_b32 s%d, 0x%x\ns_mov_b32 s%d, 0x00020000", R4, BOFF, R4 + 1, R4 + 2, W_AEND, R4 + 3)
        a("s_lshl_b32 %s, %s, 14\ns_add_u32 %s, %s, %d\ns_add_u32 %s, %s, 8192\nv_lshlrev_b32 v11, 7, v0\ns_mov_b32 %s, 0", sT0, sTEAM, sT0, sT0, W_O, sT1, sT0, sTMO)
        a("L_ld_opf:")
        a("buffer_load_dword v20, v11, %s, %s offen sc1", srd(R4), sT0)
        a("buffer_load_dword v21, v11, %s, %s offen sc1", srd(R4), sT1)
        a("ds_read_b32 v2, v3 offset:%d", F_VRDY)
        a("s_add_u32 %s, %s, 1\ns_cmp_gt_u32 %s, 0x40000\ns_cbranch_scc1 L_ld_end", sTMO, sTMO, sTMO)
        a("s_waitcnt vmcnt(%d) lgkmcnt(0)", o.opf)
        a("v_readfirstlane_b32 %s, v2", sT3)
        a("s_cmp_lt_i32 %s, 4\ns_cbranch_scc1 L_ld_opf", sT3)
        a("L_ld_end:")
    stamps_out()
    if o.hold:
        a("s_cmp_lg_u32 s2, %d\ns_cbranch_scc1 L_end", o.holdwg)
        a("s_memrealtime s[70:71]\ns_waitcnt lgkmcnt(0)\ns_sub_u32 %s, s70, s86\ns_mul_i32 %s, %s, %d\ns_add_u32 %s, %s, %d", sT1, sT1, sT1, o.holdmul, sT1, sT1, o.hold)
        a("L_hold:\ns_memrealtime s[70:71]\ns_waitcnt lgkmcnt(0)\ns_sub_u32 %s, s70, s86\ns_cmp_lt_u32 %s, %s\ns_cbranch_scc1 L_hold", sT0, sT0, sT1)
    a("s_endpgm")

    if o.fast0 == 2:
        a("L_cons:")
        cons_entry()
    a("L_cons3:")
    a("s_barrier")
    if o.ldonly: a("s_endpgm")
    mk_srd(RW, 26, W_END + 4096)
    a("s_add_u32 s%d, s26, 0x%x\ns_addc_u32 s%d, s27, 0\ns_mov_b32 s%d, 0x%x\ns_mov_b32 s%d, 0x00020000", RB, BOFF, RB + 1, RB + 2, W_AEND, RB + 3)
    a("s_mov_b32 %s, 0", sVER)
    a("s_mov_b32 %s, -1000", sSEEN)
    a("v_lshrrev_b32 v8, 4, v0\nv_and_b32 v9, 15, v0\nv_mov_b32 v14, 0xffffff00")
    roles()
    a("s_cmp_ge_u32 %s, 5\ns_cbranch_scc1 L_att", sWV)

    sW, sIT, sTH = "s90", "s91", "s92"
    a("s_sub_u32 %s, %s, 1", sW, sWV)
    a("v_lshrrev_b32 v11, 3, v0\nv_and_b32 v11, 3, v11\nv_xor_b32 v11, %s, v11", sW)
    a("v_lshlrev_b32 v11, 5, v11\nv_and_b32 v12, 3, v0\nv_lshl_add_u32 v11, v12, 3, v11")
    a("v_lshrrev_b32 v10, 2, v0\nv_lshl_add_u32 v10, v10, 7, v11")
    a("v_lshrrev_b32 v15, 5, v0\nv_lshl_add_u32 v15, v15, 10, v10")
    a("v_add_u32 v15, %d, v15", RA)
    a("v_and_b32 v12, 1, v0")
    a("s_mov_b32 %s, 0xffff0000", sT0)
    a("s_waitcnt vmcnt(0)")
    stamp(1)
    X = 28
    for k in range(9):
        a("v_lshlrev_b32 v%d, 16, v%d\nv_and_b32 v%d, %s, v%d", X + 2 * k, 16 + k, X + 2 * k + 1, sT0, 16 + k)
    def half_allreduce_add(v, t):
        for dp in ("quad_perm:[1,0,3,2]", "quad_perm:[2,3,0,1]", "row_ror:4", "row_ror:8"):
            a("s_nop 1\nv_add_f32_dpp %s, %s, %s %s row_mask:0xf bank_mask:0xf", v, v, v, dp)
        a("v_mov_b32 %s, %s\ns_nop 1\nv_permlane16_swap_b32 %s, %s\nv_add_f32 %s, %s, %s", t, v, v, t, v, v, t)
    a("v_add_f32 v4, v%d, v%d\nv_add_f32 v5, v%d, v%d", X, X + 1, X + 2, X + 3)
    for k in range(4, 18, 2):
        a("v_add_f32 v4, v4, v%d\nv_add_f32 v5, v5, v%d", X + k, X + k + 1)
    a("v_add_f32 v4, v4, v5")
    half_allreduce_add("v4", "v5")
    a("v_mul_f32 v4, 0x3ae38e39, v4\nv_mov_b32 v5, 0\nv_mov_b32 v25, 0")
    for k in range(0, 18, 2):
        a("v_sub_f32 v26, v%d, v4\nv_sub_f32 v27, v%d, v4\nv_fmac_f32 v5, v26, v26\nv_fmac_f32 v25, v27, v27", X + k, X + k + 1)
    a("v_add_f32 v5, v5, v25")
    half_allreduce_add("v5", "v25")
    a("v_mul_f32 v5, 0x3ae38e39, v5")
    a("v_cvt_pk_bf16_f32 v4, v4, v5")
    a("v_and_b32 v5, %s, v4\nv_lshlrev_b32 v4, 16, v4", sT0)
    a("v_add_f32 v5, 0x3727c5ac, v5")
    a("v_cvt_pk_bf16_f32 v5, v5, v5\nv_lshlrev_b32 v5, 16, v5")
    a("v_sqrt_f32 v5, v5\ns_nop 0")
    a("v_cvt_pk_bf16_f32 v5, v5, v5\nv_lshlrev_b32 v5, 16, v5")
    a("v_rcp_f32 v5, v5")
    for k in range(9):
        a("v_sub_f32 v26, v%d, v4\nv_sub_f32 v27, v%d, v4", X + 2 * k, X + 2 * k + 1)
        a("v_cvt_pk_bf16_f32 v26, v26, v27")
        a("v_and_b32 v27, %s, v26\nv_lshlrev_b32 v26, 16, v26", sT0)
        a("v_mul_f32 v26, v26, v5\nv_mul_f32 v27, v27, v5")
        a("v_cvt_pk_bf16_f32 v%d, v26, v27", 16 + k)
    for k in range(0, 8, 2):
        a("ds_write2_b32 v13, v%d, v%d offset0:%d offset1:%d", 16 + k, 17 + k, XN // 4 + k, XN // 4 + k + 1)
    a("ds_write_b32 v13, v24 offset:%d", XN + 32)
    a("v_mul_u32_u24 v11, %d, v12\nv_lshl_add_u32 v11, v8, 3, v11\nv_add_u32 v11, %d, v11", XN_P, XN)
    a("s_and_b32 %s, %s, 3\ns_mul_i32 %s, %s, 288\nv_add_u32 v13, %s, v11", sT0, sIDX, sT0, sT0, sT0)
    for s in range(4):
        a("ds_read2_b64 v[%d:%d], v13 offset0:%d offset1:%d", 40 + 4 * s, 43 + 4 * s, 8 * s, 8 * s + 4)
    a("ds_read_b64 v[56:57], v13 offset:256")
    for r in range(8): a("v_mov_b32 v%d, 0", 60 + r)
    a("v_add_u32 v13, %d, v10", RWQ)
    stamp(2)
    get_tag()
    a("v_lshlrev_b32 v1, 6, v9\nv_lshl_add_u32 v1, v8, 4, v1")
    a("s_lshr_b32 %s, %s, 2\ns_xor_b32 %s, %s, %d", sT0, sIDX, sT0, sT0, o.wqx)
    a("s_lshr_b32 %s, %s, 2\ns_lshl1_add_u32 %s, %s, %s\ns_and_b32 %s, %s, 3\ns_lshl2_add_u32 %s, %s, %s", sT1, sT0, sT1, sX, sT1, sT2, sIDX, sT1, sT1, sT2)
    a("s_and_b32 %s, %s, 3\ns_lshl2_add_u32 %s, %s, %s\ns_lshl2_add_u32 %s, %s, %s", sT0, sT0, sT1, sT1, sT0, sT1, sT1, sW)
    a("s_lshl_b32 %s, %s, 7\ns_add_u32 s93, %s, %d", sT1, sT1, sT1, W_Q)
    a("v_cmp_gt_u32 vcc, 2, v9\ns_mov_b64 %s, vcc", sEX)
    lds_wait_ge(F_PROG, "18", cache=sSEEN)
    for q in range(9):
        a("ds_read_b64_tr_b16 v[%d:%d], v13 offset:%d", 16 + 2 * q, 17 + 2 * q, q * 2048)
    for s in range(4):
        a("s_waitcnt lgkmcnt(%d)", 7 - 2 * s)
        mfma(60, 16 + 4 * s, 40 + 4 * s)
    a("s_waitcnt lgkmcnt(0)")
    a("v_mfma_f32_16x16x16_bf16 v[64:67], v[32:33], v[56:57], v[64:67]")
    flag_add(F_C1)
    a("s_nop 4")
    for r in range(4): a("v_add_f32 v%d, v%d, v%d", 72 + r, 60 + r, 64 + r)
    tag_merge(72)
    a("s_mov_b64 exec, %s", sEX)
    a("buffer_store_dwordx4 v[72:75], v1, %s, s93 offen", srd(RW))
    a("s_mov_b64 exec, -1")
    a("s_mov_b32 s99, s93")
    stamp(3)
    def q_republish():
        get_ver()
        two_way(lambda: None, lambda: a("s_mov_b64 exec, %s\nbuffer_store_dwordx4 v[72:75], v1, %s, s99 offen sc1\ns_mov_b64 exec, -1", sEX, srd(RB)))
    Lh = a.lab("LH")
    a("s_cmp_lg_u32 %s, 82\ns_cbranch_scc1 %s", sB2, Lh)
    q_republish()
    a("s_branch L_w_s2")
    a("%s:" % Lh)
    a("s_mul_i32 %s, %s, 384\nv_add_u32 v13, %s, v11", sT0, sM3, sT0)
    for s in range(6):
        a("ds_read2_b64 v[%d:%d], v13 offset0:%d offset1:%d", 40 + 4 * s, 43 + 4 * s, 8 * s, 8 * s + 4)
    for r in range(8): a("v_mov_b32 v%d, 0", 64 + r)
    gu_pair(sT0, sT1)
    a("s_mul_i32 %s, %s, 3\ns_add_u32 %s, %s, %s\ns_mul_i32 %s, %s, 36864", sT0, sT0, sT0, sT0, sM3, sT0, sT0)
    a("s_lshl3_add_u32 %s, %s, %s\ns_lshl_b32 %s, %s, 7\ns_add_u32 %s, %s, %s\ns_add_u32 s93, %s, %d", sT1, sT1, sW, sT1, sT1, sT0, sT0, sT1, sT0, W_G)
    for s in range(6):
        if s == 5: q_republish()
        lds_wait_ge(F_PROG, str(P_G + 8 * s + 8 + 4 * (s // o.mix)), cache=sSEEN)
        for h in range(2):
            for q in range(2):
                a("ds_read_b64_tr_b16 v[%d:%d], v15 offset:%d", 16 + 4 * h + 2 * q, 17 + 4 * h + 2 * q, s * 8192 + q * 4096 + h * 1024)
        a("s_waitcnt lgkmcnt(2)")
        mfma(64, 16, 40 + 4 * s)
        a("s_waitcnt lgkmcnt(0)")
        mfma(68, 20, 40 + 4 * s)
    stamp(4)
    a("s_nop 5")
    tag_merge(64)
    tag_merge(68)
    a("s_mov_b64 exec, %s", sEX)
    a("buffer_store_dwordx4 v[64:67], v1, %s, s93 offen sc1", srd(RB))
    a("buffer_store_dwordx4 v[68:71], v1, %s, s93 offen offset:512 sc1", srd(RB))
    a("s_mov_b64 exec, -1")
    a("L_w_s2:")
    AC = 80
    a("v_mul_u32_u24 v11, %d, v12\nv_lshl_add_u32 v11, v8, 4, v11", VEC2_P)
    for r in range(8): a("v_mov_b32 v%d, 0", AC + r)
    a("v_add_u32 v10, %d, v10\nv_add_u32 v13, 0x10000, v15", RWQ)
    a("s_and_b32 %s, %s, 3\ns_lshr_b32 %s, %s, 2\ns_lshl3_add_u32 %s, %s, %s", sT2, sTEAM, sT1, sTEAM, sT2, sT2, sT1)
    a("s_lshl2_add_u32 %s, %s, %s\ns_lshl_b32 %s, %s, 12\ns_lshl_b32 %s, %s, 7\ns_add_u32 %s, %s, %s\ns_add_u32 s93, %s, %d\ns_add_u32 s98, s93, 16384", sT0, sX, sW, sT0, sT0, sT1, sT2, sT0, sT0, sT1, sT0, W_F)
    a("s_cmp_ge_u32 %s, 16\ns_cbranch_scc1 L_w_dn", sTEAM)
    a("s_cmp_eq_u32 %s, 7\ns_cbranch_scc1 L_wo2", sX)
    def w1(R, st):
        for q in range(2):
            a("ds_read_b64_tr_b16 v[%d:%d], v10 offset:%d", R + 2 * q, R + 2 * q + 1, st * 4096 + q * 2048)
    def w2(R, st):
        va, off = ("v15", st) if st < 8 else ("v13", st - 8)
        for q, d in enumerate((0, 4096, 1024, 5120)):
            a("ds_read_b64_tr_b16 v[%d:%d], %s offset:%d", R + 2 * q, R + 2 * q + 1, va, off * 8192 + d)
    def vecs(n):
        for st in range(n):
            a("ds_read_b128 v[%d:%d], v11 offset:%d", 16 + 4 * st, 19 + 4 * st, VEC2 + 64 * st)
    def fstore(items, Lend):
        def go(fl):
            for regs, so in items: a("buffer_store_dwordx4 %s, v1, %s, %s offen %s", regs, srd(RW), so, fl)
        two_way(lambda: go(""), lambda: go("sc1"))
    for st in range(0, 8, 2):
        lds_wait_ge(F_PROG, str(130 + 4 * st + 8), cache=sSEEN)
        w1(88 + 4 * st, st); w1(92 + 4 * st, st + 1)
    stamp(5)
    lds_wait_ge(F_VRDY, "4")
    vecs(8)
    for st in range(8):
        a("s_waitcnt lgkmcnt(%d)", 7 - st)
        mfma(AC, 88 + 4 * st, 16 + 4 * st)
    stamp(6)
    a("L_s2_pub:")
    a("s_mov_b64 exec, %s", sEX)
    a("s_nop 6")
    tag_merge(AC, rnd=False)
    fstore([("v[80:83]", "s93")], None)
    a("L_w_end:")
    stamp(7)
    stamps_out()
    a("s_endpgm")
    flush_ool()
    a("L_wo2:")
    for st in range(8):
        lds_wait_ge(F_PROG, str(82 + 8 * st + 8), cache=sSEEN)
        w2(88 + 8 * st, st)
    stamp(5)
    lds_wait_ge(F_VRDY, "4")
    vecs(8)
    for st in range(8):
        a("s_waitcnt lgkmcnt(%d)", 7 - st)
        mfma(AC, 88 + 8 * st, 16 + 4 * st)
        mfma(AC + 4, 92 + 8 * st, 16 + 4 * st)
    stamp(6)
    a("L_s2_pub2:")
    a("s_mov_b64 exec, %s", sEX)
    a("s_nop 5")
    tag_merge(AC, rnd=False)
    tag_merge(AC + 4, rnd=False)
    fstore([("v[80:83]", "s93"), ("v[84:87]", "s98")], None)
    a("s_branch L_w_end")

    a("L_w_dn:")
    NP0 = (o.hpolll - 82) // 8
    a("s_cmp_lg_u32 %s, 7\ns_cbranch_scc1 L_hprep", sX)
    for st in range(NP0):
        lds_wait_ge(F_PROG, str(82 + 8 * st + 8), cache=sSEEN)
        w2(88 + 8 * st, st)
    a("L_hprep:")
    HA, HW, HC = "v60", "v62", "v64"
    a("s_mul_i32 %s, %s, 36\nv_add_u32 v5, %s, v0\nv_lshlrev_b32 %s, 4, v5", sT0, sW, sT0, HA)
    a("s_lshl_b32 %s, %s, 3\ns_add_u32 s48, %s, %d", sT0, sR0, sT0, W_G)
    for k in range(1, 6): a("s_add_u32 s%d, s48, %d", 48 + k, 36864 * k)
    a("v_bfe_u32 v4, v5, 2, 1\nv_mul_u32_u24 %s, %d, v4\nv_lshrrev_b32 v4, 4, v5\nv_lshl_add_u32 %s, v4, 6, %s\nv_and_b32 v4, 3, v5\nv_lshl_add_u32 %s, v4, 4, %s\nv_bfe_u32 v4, v5, 3, 1\nv_lshl_add_u32 %s, v4, 3, %s", HW, VEC2_P, HW, HW, HW, HW, HW, HW)
    c1 = -2.0 * math.sqrt(2.0 / math.pi) * math.log2(math.e)
    a("s_mov_b32 s54, 0x%08x\nv_mov_b32 %s, 0x%08x\ns_mov_b32 s55, 0xffff0000", f2u(c1 * 0.044715), HC, f2u(c1))
    a("s_mov_b32 %s, %d\ns_cmp_eq_u32 %s, 82\ns_cselect_b32 %s, %d, %s", sTH, o.hpoll, sB2, sTH, o.hpolll, sTH)
    lds_wait_ge(F_PROG, sTH, cache=sSEEN)
    a("s_mov_b32 exec_hi, 15\ns_mov_b32 %s, 0", sTMO)
    if o.nopoll & 2: a("s_branch L_h_ok")
    a("L_h_poll:")
    for k in range(6):
        a("buffer_load_dwordx4 v[%d:%d], %s, %s, s%d offen sc1", 16 + 4 * k, 19 + 4 * k, HA, srd(RB), 48 + k)
    a("s_add_u32 %s, %s, 1\ns_cmp_gt_u32 %s, 0x8000\ns_cbranch_scc1 L_h_ok", sTMO, sTMO, sTMO)
    a("s_waitcnt vmcnt(0)")
    for k in range(6): tag_bad("v4", 16 + 4 * k, k == 0)
    a("v_and_b32 v4, 0xff, v4\nv_cmp_ne_u32 vcc, 0, v4\ns_and_b64 exec, exec, vcc\ns_cbranch_vccnz L_h_poll")
    a("L_h_ok:")
    a("s_mov_b32 exec_lo, -1\ns_mov_b32 exec_hi, 15")
    a("s_waitcnt vmcnt(0)")
    for B in (16, 28):
        for k in range(4): a("v_add_f32 v%d, v%d, v%d", B + k, B + k, B + 4 + k)
        for k in range(4): a("v_add_f32 v%d, v%d, v%d", B + k, B + k, B + 8 + k)
        a("v_cvt_pk_bf16_f32 v%d, v%d, v%d\nv_cvt_pk_bf16_f32 v%d, v%d, v%d", B + 4, B, B + 1, B + 5, B + 2, B + 3)
        a("v_lshlrev_b32 v%d, 16, v%d\nv_and_b32 v%d, s55, v%d\nv_lshlrev_b32 v%d, 16, v%d\nv_and_b32 v%d, s55, v%d", B, B + 4, B + 1, B + 4, B + 2, B + 5, B + 3, B + 5)
    G, U, T, B = 16, 28, 4, 20
    for k in range(4): a("v_mul_f32 v%d, v%d, v%d", T + k, G + k, G + k)
    for k in range(4): a("v_fma_f32 v%d, v%d, s54, %s", T + k, T + k, HC)
    for k in range(4): a("v_mul_f32 v%d, v%d, v%d", T + k, T + k, G + k)
    for k in range(4): a("v_exp_f32 v%d, v%d", T + k, T + k)
    a("s_nop 0")
    for k in range(4): a("v_add_f32 v%d, 1.0, v%d", T + k, T + k)
    for k in range(4): a("v_rcp_f32 v%d, v%d", T + k, T + k)
    a("s_nop 0")
    for k in range(4): a("v_mul_f32 v%d, v%d, v%d", T + k, T + k, G + k)
    a("v_cvt_pk_bf16_f32 v%d, v%d, v%d\nv_cvt_pk_bf16_f32 v%d, v%d, v%d", B, T, T + 1, B + 1, T + 2, T + 3)
    a("v_lshlrev_b32 v%d, 16, v%d\nv_and_b32 v%d, s55, v%d\nv_lshlrev_b32 v%d, 16, v%d\nv_and_b32 v%d, s55, v%d", T, B, T + 1, B, T + 2, B + 1, T + 3, B + 1)
    for k in range(4): a("v_mul_f32 v%d, v%d, v%d", T + k, T + k, U + k)
    a("v_cvt_pk_bf16_f32 v%d, v%d, v%d\nv_cvt_pk_bf16_f32 v%d, v%d, v%d", B, T, T + 1, B + 1, T + 2, T + 3)
    a("ds_write_b64 %s, v[%d:%d] offset:%d", HW, B, B + 1, VEC2)
    flag_add(F_VRDY)
    stamp(5)
    a("s_cmp_eq_u32 %s, 7\ns_cbranch_scc1 L_dn2", sX)
    lds_wait_ge(F_VRDY, "4")
    stamp(6)
    vecs(9)
    a("s_add_u32 %s, %s, 4", sTH, sB2)
    def d1(st):
        lds_wait_ge(F_PROG, sTH, cache=sSEEN, hot=(0 < st < 8))
        w1(88 + 4 * st, st)
        if st < 8: a("s_add_u32 %s, %s, 4", sTH, sTH)
    d1(0); d1(1)
    for st in range(9):
        if st + 2 < 9: d1(st + 2)
        a("s_waitcnt lgkmcnt(%d)", 2 * (min(st + 2, 8) - st))
        mfma(AC, 88 + 4 * st, 16 + 4 * st)
    a("s_branch L_s2_pub")
    a("L_dn2:")
    d2r = lambda st: 88 + 8 * st if st < 8 else 56
    for st in range(NP0, 7):
        lds_wait_ge(F_PROG, str(82 + 8 * st + 8), cache=sSEEN)
        w2(d2r(st), st)
    lds_wait_ge(F_VRDY, "4")
    stamp(6)
    vecs(9)
    def mm2(st):
        mfma(AC, d2r(st), 16 + 4 * st)
        mfma(AC + 4, d2r(st) + 4, 16 + 4 * st)
    for st in range(7):
        a("s_waitcnt lgkmcnt(%d)", 8 - st)
        mm2(st)
    for st in (7, 8):
        lds_wait_ge(F_PROG, str(82 + 8 * st + 8), cache=sSEEN)
        w2(d2r(st), st)
    a("s_waitcnt lgkmcnt(4)")
    mm2(7)
    a("s_waitcnt lgkmcnt(0)")
    mm2(8)
    a("s_branch L_s2_pub2")
    flush_ool()

    sA = "s90"
    a("L_att:")
    a("s_sub_u32 %s, %s, 5", sA, sWV)
    a("v_lshrrev_b32 v10, 2, v9\nv_mul_u32_u24 v10, %d, v10", KP)
    a("v_and_b32 v11, 3, v0\nv_lshl_add_u32 v10, v11, 8, v10\nv_xor_b32 v11, v11, v8\nv_lshl_add_u32 v10, v11, 4, v10")
    a("s_mul_i32 %s, %s, %d\ns_add_u32 %s, %s, %d\nv_add_u32 v10, %s, v10", sT0, sA, 8 * KP, sT0, sT0, RK, sT0)
    VA = 72
    a("v_mul_u32_u24 v12, %d, v8", VP)
    a("v_lshrrev_b32 v11, 2, v9\nv_lshl_add_u32 v12, v11, 8, v12\nv_lshlrev_b32 v11, 5, v11")
    a("s_lshl_b32 %s, %s, 6\nv_xor_b32 v11, %s, v11\nv_add_u32 v12, v12, v11", sT0, sA, sT0)
    a("v_and_b32 v11, 3, v0\nv_lshl_add_u32 v12, v11, 3, v12")
    a("v_add_u32 v%d, %d, v12", VA, RV)
    a("v_xor_b32 v%d, 32, v%d", VA + 1, VA)
    KF, QF, SC, PF, VF, OA = 16, 48, 64, 16, 32, 56
    a("v_lshlrev_b32 v1, 6, v9\nv_lshl_add_u32 v1, v8, 4, v1")
    a("v_cmp_gt_u32 vcc, 2, v9\ns_mov_b64 %s, vcc", sEX)
    get_tag()
    a("s_cmp_lg_u32 %s, 1\ns_cbranch_scc1 L_a_nov", sA)
    if o.nover == 1: a("v_mov_b32 v4, 1\nds_write_b32 v3, v4 offset:%d\ns_branch L_a_nov", F_VER)
    a("s_getreg_b32 %s, hwreg(HW_REG_XCC_ID, 0, 4)", sT2)
    a("s_lshl_b32 %s, %s, 8\ns_add_u32 %s, %s, %d\ns_lshl3_add_u32 %s, %s, %s", sT0, sX, sT0, sT0, W_END, sT1, sIDX, sT0)
    a("v_mov_b32 v4, %s\nv_mov_b32 v5, %s\nv_lshlrev_b32 v11, 3, v0", sTAG, sT2)
    def v2_store():
        a("s_mov_b64 exec, 1\nbuffer_store_dwordx2 v[4:5], v3, %s, %s offen offset:2048 sc1\ns_mov_b32 exec_lo, -1", srd(RW), sT1)
    a("s_mov_b64 exec, 1\nbuffer_store_dwordx2 v[4:5], v3, %s, %s offen\ns_mov_b64 exec, -1", srd(RW), sT1)
    lds_wait_ge(F_PROG, str(o.vpoll), cache=sSEEN)
    a("s_mov_b32 exec_hi, 0\ns_mov_b32 %s, 0", sTMO)
    a("L_a_vpoll:")
    a("buffer_load_dwordx2 v[6:7], v11, %s, %s offen nt", srd(RW), sT0)
    a("s_add_u32 %s, %s, 1\ns_cmp_lt_u32 %s, %d\ns_cbranch_scc1 L_a_v1", sTMO, sTMO, sTMO, o.vesc)
    a("s_cmp_lg_u32 %s, %d\ns_cbranch_scc1 L_a_v2", sTMO, o.vesc)
    v2_store()
    a("L_a_v2:")
    a("buffer_load_dwordx2 v[16:17], v11, %s, %s offen offset:2048 sc1", srd(RW), sT0)
    a("s_waitcnt vmcnt(0)")
    a("v_cmp_eq_u32 vcc, %s, v16\ns_nop 1\nv_cndmask_b32 v6, v6, v16, vcc\nv_cndmask_b32 v7, v7, v17, vcc", sTAG)
    a("s_cmp_gt_u32 %s, 0x8000\ns_cbranch_scc1 L_a_vok", sTMO)
    a("L_a_v1:")
    a("s_waitcnt vmcnt(0)")
    a("v_cmp_ne_u32 vcc, %s, v6\ns_cbranch_vccnz L_a_vpoll", sTAG)
    a("L_a_vok:")
    a("v_cmp_ne_u32 vcc, %s, v7", sT2)
    a("s_cmp_eq_u64 vcc, 0\ns_cselect_b32 %s, %d, 2\nv_mov_b32 v6, %s", sT0, 1 if o.local else 2, sT0)
    a("ds_write_b32 v3, v6 offset:%d", F_VER)
    a("s_cmp_eq_u32 %s, 1\ns_cbranch_scc1 L_a_vend", sT0)
    v2_store()
    a("L_a_vend:")
    a("s_mov_b64 exec, -1")
    a("L_a_nov:")
    a("s_cmp_lg_u32 %s, 0\ns_cbranch_scc1 L_a_k", sA)
    lds_wait_ge(F_PROG, str(o.qpoll), cache=sSEEN)
    a("v_lshrrev_b32 v11, 2, v0\nv_lshlrev_b32 v11, 7, v11\nv_and_b32 v12, 3, v0\nv_lshl_add_u32 v11, v12, 4, v11")
    a("s_lshl_b32 %s, %s, 13\ns_lshr_b32 %s, %s, 3\ns_lshl_b32 %s, %s, 6\ns_add_u32 %s, %s, %s\ns_add_u32 %s, %s, %d\ns_add_u32 %s, %s, 4096",
      sT0, sG, sT1, sI, sT1, sT1, sT0, sT0, sT1, sT0, sT0, W_Q, sT1, sT0)
    a("s_mov_b32 %s, 0", sTMO)
    if o.nopoll & 1: a("s_branch L_a_qok")
    a("s_mov_b32 %s, 1\ns_mov_b32 s53, 0", sVER)
    a("L_a_qpoll:")
    fetch([(16 + 4 * r, "v11", sT0 if r < 2 else sT1, (r & 1) * 2048) for r in range(4)], o.qld)
    a("s_add_u32 s53, s53, 1\ns_cmp_gt_u32 s53, 0x8000\ns_cbranch_scc1 L_a_qok")
    a("s_waitcnt vmcnt(0)")
    for r in range(4): tag_bad("v4", 16 + 4 * r, r == 0)
    a("v_and_b32 v4, 0xff, v4\nv_cmp_ne_u32 vcc, 0, v4\ns_cbranch_vccz L_a_qok")
    a("s_mov_b32 %s, 0", sVER)
    get_ver()
    a("s_branch L_a_qpoll")
    a("L_a_qok:")
    a("s_mov_b32 %s, 0", sVER)
    a("s_waitcnt vmcnt(0)")
    for k in range(4):
        a("v_add_f32 v%d, v%d, v%d\nv_add_f32 v%d, v%d, v%d\nv_add_f32 v%d, v%d, v%d", 16 + k, 16 + k, 20 + k, 24 + k, 24 + k, 28 + k, 16 + k, 16 + k, 24 + k)
    a("v_cvt_pk_bf16_f32 v4, v16, v17\nv_cvt_pk_bf16_f32 v5, v18, v19")
    a("v_lshlrev_b32 v11, 3, v0\nv_mov_b32 v6, 1")
    a("ds_write_b64 v11, v[4:5] offset:%d", QV)
    a("ds_write_b32 v3, v6 offset:%d", F_QRDY)
    a("L_a_k:")
    vP, vPW, vM, vMW, vOL, vOW, sOL = "v74", "v75", "v80", "v81", "v82", "v83", "s57"
    a("v_and_b32 v12, 1, v0\nv_lshlrev_b32 %s, 6, v12\nv_lshl_add_u32 %s, v8, 4, %s", vP, vP, vP)
    a("s_lshl_b32 %s, %s, 7\nv_add_u32 %s, %s, %s", sT3, sA, vPW, sT3, vP)
    a("v_lshlrev_b32 %s, 2, v12\nv_add_u32 %s, %d, %s\ns_lshl_b32 %s, %s, 3\nv_add_u32 %s, %s, %s", vM, vM, MX, vM, sT3, sA, vMW, sT3, vM)
    a("v_lshlrev_b32 v11, 8, v12\nv_lshl_add_u32 v11, v8, 4, v11")
    a("s_lshl4_add_u32 %s, %s, %s\ns_lshl2_add_u32 %s, %s, %s\ns_lshl_b32 %s, %s, 8\ns_add_u32 s93, %s, %d", sT0, sG, sI, sT0, sT0, sA, sT0, sT0, sT0, W_O)
    a("v_lshrrev_b32 v12, 5, v0\nv_and_b32 %s, 31, v0\nv_lshlrev_b32 %s, 4, %s\nv_lshl_add_u32 %s, v12, 12, %s", vOL, vOL, vOL, vOL, vOL)
    a("s_lshl_b32 %s, %s, 14\ns_lshr_b32 %s, %s, 1\ns_lshl_b32 %s, %s, 13\ns_add_u32 %s, %s, %s", sT0, sTEAM, sT1, sA, sT1, sT1, sT0, sT0, sT1)
    a("s_and_b32 %s, %s, 1\ns_lshl_b32 %s, %s, 9\ns_add_u32 %s, %s, %s\ns_add_u32 %s, %s, %d", sT1, sA, sT1, sT1, sT0, sT0, sT1, sOL, sT0, W_O)
    a("v_bfe_u32 %s, v0, 2, 1\nv_lshlrev_b32 %s, 8, %s\nv_lshl_add_u32 %s, v12, 2, %s", vOW, vOW, vOW, vOW, vOW)
    a("v_bfe_u32 v12, v0, 4, 1\nv_lshl_add_u32 %s, v12, 6, %s\nv_and_b32 v12, 3, v0\nv_lshl_add_u32 %s, v12, 4, %s\nv_bfe_u32 v12, v0, 3, 1\nv_lshl_add_u32 %s, v12, 3, %s", vOW, vOW, vOW, vOW, vOW, vOW)
    a("s_lshr_b32 %s, %s, 1\ns_mul_i32 %s, %s, %d\ns_lshr_b32 %s, %s, 2\ns_add_u32 %s, %s, %s\nv_add_u32 %s, %s, %s", sT2, sA, sT2, sT2, VEC2_P, sT1, sT1, sT2, sT2, sT1, vOW, sT2, vOW)
    kpos = [22, 26]
    p_ = 26
    for it in range(6 // o.mix):
        p_ += 8 * o.mix + 4; kpos.append(p_)
    while len(kpos) < 8:
        p_ += 4; kpos.append(p_)
    assert kpos[7] == 98
    pk = lambda l: l[0] | l[1] << 8 | l[2] << 16 | l[3] << 24
    a("s_mov_b32 %s, 0x%x\ns_cmp_eq_u32 %s, 82\ns_cselect_b32 %s, 0x%x, %s", sTH, pk(kpos[1::2]), sB2, sTH, pk([26, 34, 42, 50]), sTH)
    a("s_lshl_b32 %s, %s, 3\ns_lshr_b32 %s, %s, %s\ns_and_b32 %s, %s, 0xff", sT3, sA, sTH, sTH, sT3, sTH, sTH)
    for r in range(8): a("v_mov_b32 v%d, 0", SC + r)
    a("s_mov_b32 %s, 0xffff0000\ns_mov_b32 %s, 0x3db504f3\ns_mov_b32 %s, 0x3fb8aa3b", sT0, sT1, sT2)
    lds_wait_ge(F_QRDY, "1")
    stamp(1)
    for c in range(4):
        a("ds_read_b128 v[%d:%d], v11 offset:%d", QF + 4 * c, QF + 4 * c + 3, QV + c * 64)
    get_ver()
    lds_wait_ge(F_PROG, sTH, cache=sSEEN)
    stamp(2)
    for c in range(4):
        for t in range(2):
            a("ds_read_b128 v[%d:%d], v10 offset:%d", KF + 16 * t + 4 * c, KF + 16 * t + 4 * c + 3, t * 4 * KP + c * 64)
    for c in range(4):
        for t in range(2):
            a("s_waitcnt lgkmcnt(%d)", 7 - 2 * c - t)
            mfma(SC + 4 * t, KF + 16 * t + 4 * c, QF + 4 * c)
    a("s_nop 5")
    for k in range(0, 8, 2):
        a("v_cvt_pk_bf16_f32 v4, v%d, v%d", SC + k, SC + k + 1)
        a("v_and_b32 v5, %s, v4\nv_lshlrev_b32 v4, 16, v4", sT0)
        a("v_mul_f32 v4, %s, v4\nv_mul_f32 v5, %s, v5", sT1, sT1)
        a("v_cvt_pk_bf16_f32 v4, v4, v5")
        a("v_and_b32 v%d, %s, v4\nv_lshlrev_b32 v%d, 16, v4", SC + k + 1, sT0, SC + k)
    a("v_max3_f32 v4, v%d, v%d, v%d\nv_max3_f32 v5, v%d, v%d, v%d\nv_max3_f32 v4, v4, v%d, v%d\nv_max_f32 v4, v4, v5", *[SC + k for k in range(8)])
    def rows_allreduce(op, v, t):
        a("v_mov_b32 %s, %s\ns_nop 1\nv_permlane16_swap_b32 %s, %s\n%s %s, %s, %s", t, v, v, t, op, v, v, t)
        a("v_mov_b32 %s, %s\ns_nop 1\nv_permlane32_swap_b32 %s, %s\n%s %s, %s, %s", t, v, v, t, op, v, v, t)
    rows_allreduce("v_max_f32", "v4", "v5")
    a("ds_write_b32 %s, v4", vMW)
    flag_add(F_A1)
    lds_wait_ge(F_A1, "4")
    a("ds_read2_b32 v[4:5], %s offset0:0 offset1:2\nds_read2_b32 v[6:7], %s offset0:4 offset1:6", vM, vM)
    a("s_waitcnt lgkmcnt(0)")
    a("v_max3_f32 v4, v4, v5, v6\nv_max_f32 v4, v4, v7")
    a("v_mul_f32 v15, %s, v4", sT2)
    for k in range(8): a("v_fma_f32 v%d, v%d, %s, -v15", SC + k, SC + k, sT2)
    for k in range(8): a("v_exp_f32 v%d, v%d", SC + k, SC + k)
    for k in range(4): a("v_cvt_pk_bf16_f32 v%d, v%d, v%d", 48 + k, SC + 2 * k, SC + 2 * k + 1)
    a("ds_write_b128 %s, v[48:51] offset:%d", vPW, PB)
    a("v_add_f32 v5, v%d, v%d\nv_add_f32 v6, v%d, v%d", SC, SC + 1, SC + 2, SC + 3)
    a("v_add_f32 v5, v5, v%d\nv_add_f32 v6, v6, v%d\nv_add_f32 v5, v5, v%d\nv_add_f32 v6, v6, v%d\nv_add_f32 v5, v5, v6", SC + 4, SC + 5, SC + 6, SC + 7)
    rows_allreduce("v_add_f32", "v5", "v6")
    a("ds_write_b32 %s, v5 offset:%d", vMW, LS - MX)
    flag_add(F_A2)
    for r in range(8): a("v_mov_b32 v%d, 0", OA + r)
    a("s_sub_u32 %s, %s, 24", sTH, sB2)
    lds_wait_ge(F_A2, "4")
    a("ds_read2_b32 v[4:5], %s offset0:8 offset1:10\nds_read2_b32 v[6:7], %s offset0:12 offset1:14", vM, vM)
    for j in range(4):
        a("ds_read_b128 v[%d:%d], %s offset:%d", PF + 4 * j, PF + 4 * j + 3, vP, PB + 128 * j)
    a("s_waitcnt lgkmcnt(4)")
    a("v_add_f32 v4, v4, v5\nv_add_f32 v6, v6, v7\nv_add_f32 v4, v4, v6")
    a("v_log_f32 v5, v4\nv_rcp_f32 v13, v4")
    a("v_mov_b32 v50, %s\nv_mov_b32 v54, %s\nv_add_f32 v51, v15, v5\nv_add_f32 v55, v15, v5", sTAG, sTAG)
    stamp(3)
    def pv_reads(j):
        lds_wait_ge(F_PROG, sTH, cache=sSEEN, hot=(0 < j < 3))
        for d in range(2):
            for t in range(2):
                R = VF + 8 * (j & 1) + 4 * d + 2 * t
                a("ds_read_b64_tr_b16 v[%d:%d], v%d offset:%d", R, R + 1, VA + d, (j * 8 + t * 4) * VP)
        if j < 3: a("s_add_u32 %s, %s, 8", sTH, sTH)
    def pv_mm(j, n):
        a("s_waitcnt lgkmcnt(%d)", n + 2)
        mfma(OA, VF + 8 * (j & 1), PF + 4 * j)
        a("s_waitcnt lgkmcnt(%d)", n)
        mfma(OA + 4, VF + 8 * (j & 1) + 4, PF + 4 * j)
    pv_reads(0)
    for j in range(3):
        pv_reads(j + 1)
        pv_mm(j, 4)
    pv_mm(3, 0)
    a("s_mov_b64 exec, %s", sEX)
    a("s_nop 4")
    for r in range(8): a("v_mul_f32 v%d, v%d, v13", OA + r, OA + r)
    a("v_cvt_pk_bf16_f32 v48, v%d, v%d\nv_cvt_pk_bf16_f32 v49, v%d, v%d", OA, OA + 1, OA + 2, OA + 3)
    a("v_cvt_pk_bf16_f32 v52, v%d, v%d\nv_cvt_pk_bf16_f32 v53, v%d, v%d", OA + 4, OA + 5, OA + 6, OA + 7)
    for regs, off in (("v[48:51]", 0), ("v[52:55]", 128)):
        a("buffer_store_dwordx4 %s, v1, %s, s93 offen offset:%d sc1", regs, srd(RB), off)
    if o.dual:
        two_way(lambda: [a("buffer_store_dwordx4 %s, v1, %s, s93 offen offset:%d", regs, srd(RW), off) for regs, off in (("v[48:51]", 0), ("v[52:55]", 128))], lambda: None)
    a("s_mov_b64 exec, -1")
    stamp(4)
    a("s_cmp_ge_u32 %s, 16\ns_cbranch_scc1 L_a_red", sTEAM)
    if o.dual: a("s_lshr_b32 %s, %s, 1\ns_cmp_eq_u32 %s, %s\ns_cselect_b32 %s, %s, 2", sT3, sTEAM, sT3, sX, sVER, sVER)
    else: a("s_mov_b32 %s, 2", sVER)
    a("s_min_u32 %s, %s, %d", sTH, sEND, o.opoll)
    lds_wait_ge(F_PROG, sTH, cache=sSEEN)
    a("s_mov_b32 %s, 0", sTMO)
    if o.nopoll & 4: a("s_branch L_a_ook")
    a("L_a_opoll:")
    a("s_cmp_eq_u32 %s, 1\ns_cbranch_scc1 L_a_oloc", sVER)
    for k in range(4): a("buffer_load_dwordx4 v[%d:%d], %s, %s, %s offen offset:%d sc1", 16 + 4 * k, 19 + 4 * k, vOL, srd(RB), sOL, k * 1024)
    ool.append(("L_a_oloc", lambda: [a("buffer_load_dwordx4 v[%d:%d], %s, %s, %s offen offset:%d nt", 16 + 4 * k, 19 + 4 * k, vOL, srd(RW), sOL, k * 1024) for k in range(4)], "L_a_ochk"))
    a("L_a_ochk:")
    a("s_add_u32 %s, %s, 1\ns_cmp_gt_u32 %s, 0x8000\ns_cbranch_scc1 L_a_ook", sTMO, sTMO, sTMO)
    a("s_waitcnt vmcnt(0)")
    a("v_xor_b32 v4, %s, v18\nv_xor_b32 v5, %s, v22\nv_xor_b32 v6, %s, v26\nv_xor_b32 v7, %s, v30", sTAG, sTAG, sTAG, sTAG)
    a("v_or3_b32 v4, v4, v5, v6\nv_or_b32 v4, v4, v7")
    a("v_cmp_ne_u32 vcc, 0, v4\ns_and_b64 exec, exec, vcc\ns_cbranch_vccnz L_a_opoll")
    a("L_a_ook:")
    a("s_mov_b64 exec, -1")
    a("s_waitcnt vmcnt(0)")
    stamp(5)
    a("v_max3_f32 v4, v19, v23, v27\nv_max_f32 v4, v4, v31")
    a("v_mov_b32 v5, v4")
    a("v_lshlrev_b32 v32, 16, v16\nv_and_b32 v33, %s, v16", sT0)
    a("v_permlane32_swap_b32 v4, v5\nv_max_f32 v4, v4, v5")
    for k in range(4): a("v_sub_f32 v%d, v%d, v4", 19 + 4 * k, 19 + 4 * k)
    for k in range(4): a("v_exp_f32 v%d, v%d", 19 + 4 * k, 19 + 4 * k)
    a("v_lshlrev_b32 v34, 16, v17\nv_and_b32 v35, %s, v17", sT0)
    for r in range(4): a("v_mul_f32 v%d, v%d, v19", 32 + r, 32 + r)
    a("v_add_f32 v5, v19, v23\nv_add_f32 v6, v27, v31\nv_add_f32 v5, v5, v6\nv_mov_b32 v4, v5")
    for k in range(1, 4):
        w = 19 + 4 * k
        a("v_lshlrev_b32 v6, 16, v%d\nv_and_b32 v7, %s, v%d\nv_fmac_f32 v32, v%d, v6\nv_fmac_f32 v33, v%d, v7", 16 + 4 * k, sT0, 16 + 4 * k, w, w)
        if k == 1: a("v_permlane32_swap_b32 v4, v5\nv_add_f32 v4, v4, v5\nv_rcp_f32 v4, v4")
        a("v_lshlrev_b32 v6, 16, v%d\nv_and_b32 v7, %s, v%d\nv_fmac_f32 v34, v%d, v6\nv_fmac_f32 v35, v%d, v7", 17 + 4 * k, sT0, 17 + 4 * k, w, w)
    a("s_nop 1")
    a("v_permlane32_swap_b32 v32, v34\nv_permlane32_swap_b32 v33, v35")
    a("v_add_f32 v32, v32, v34\nv_add_f32 v33, v33, v35\nv_mul_f32 v32, v32, v4\nv_mul_f32 v33, v33, v4")
    a("v_cvt_pk_bf16_f32 v32, v32, v33")
    a("ds_write_b32 %s, v32 offset:%d", vOW, VEC2)
    flag_add(F_VRDY)
    stamp(6)
    a("s_branch L_a_end")
    sRU = "s56"
    a("L_a_red:")
    a("s_sub_u32 %s, %s, 28\ns_lshl2_add_u32 %s, %s, %s", sT0, sIDX, sRU, sX, sT0)
    a("s_cmp_lt_u32 %s, 4\ns_cbranch_scc1 L_a_red2", sT0)
    a("s_sub_u32 %s, %s, 24\ns_add_u32 %s, %s, 32", sT0, sIDX, sRU, sT0)
    a("s_cmp_ge_u32 %s, 4\ns_cbranch_scc1 L_a_end", sT0)
    a("s_cmp_lg_u32 %s, 7\ns_cbranch_scc1 L_a_end", sX)
    a("L_a_red2:")
    a("s_sub_u32 %s, %s, %d", sTH, sEND, o.fback)
    lds_wait_ge(F_PROG, sTH, cache=sSEEN)
    mk_srd(R1, 22, 2304)
    a("v_bfe_u32 v12, v0, 2, 1\nv_mul_u32_u24 v12, 1152, v12\nv_and_b32 v11, 3, v0\nv_lshl_add_u32 v12, v11, 3, v12")
    a("v_and_b32 v11, 1, v8\nv_lshl_add_u32 v12, v11, 2, v12")
    a("s_lshl_b32 %s, %s, 5\nv_add_u32 v12, %s, v12", sT1, sRU, sT1)
    a("global_load_dword v40, v12, s[4:5]")
    if o.outpre: a("buffer_load_dword v42, v12, %s, 0 offen", srd(R1))
    a("s_lshl_b32 %s, %s, 12\ns_add_u32 %s, %s, %d", sT0, sRU, sT0, sT0, W_F)
    a("v_lshlrev_b32 v11, 4, v0")
    a("s_mov_b32 %s, 0xffff0000\ns_mov_b32 %s, 0", sT1, sTMO)
    a("s_waitcnt vmcnt(0)")
    a("v_and_b32 v41, %s, v40\nv_lshlrev_b32 v40, 16, v40", sT1)
    if True:
        a("s_lshl_b32 %s, %s, 10\ns_add_u32 %s, %s, %s", sT2, sA, sT0, sT0, sT2)
        a("v_and_b32 v10, 7, v0\nv_lshl_add_u32 v10, v8, 3, v10\nv_lshlrev_b32 v10, 3, v10\ns_lshl_b32 %s, %s, 8\nv_add_u32 v13, %s, v10\nv_mov_b32 v6, 1", sT2, sA, sT2)
        if o.nopoll & 8: a("s_branch L_a_fok")
        a("L_a_fpoll:")
        two_way(lambda: a("buffer_load_dwordx4 v[16:19], v11, %s, %s offen %s", srd(RW), sT0, o.fld), lambda: a("buffer_load_dwordx4 v[16:19], v11, %s, %s offen sc1", srd(RW), sT0))
        a("s_add_u32 %s, %s, 1\ns_cmp_gt_u32 %s, 0x8000\ns_cbranch_scc1 L_a_fok", sTMO, sTMO, sTMO)
        a("s_waitcnt vmcnt(0)")
        tag_bad("v4", 16, True)
        a("v_and_b32 v4, 0xff, v4\nv_cmp_ne_u32 vcc, 0, v4\ns_and_b64 exec, exec, vcc\ns_cbranch_vccnz L_a_fpoll")
        a("L_a_fok:")
        a("s_mov_b64 exec, -1")
        stamp(7)
        a("v_permlane16_swap_b32 v16, v18\nv_permlane16_swap_b32 v17, v19")
        a("v_add_f32 v16, v16, v18\nv_add_f32 v17, v17, v19\ns_nop 0")
        a("v_add_f32_dpp v16, v16, v16 row_ror:8 row_mask:0xf bank_mask:0xf\nv_add_f32_dpp v17, v17, v17 row_ror:8 row_mask:0xf bank_mask:0xf")
        a("ds_write_b64 v13, v[16:17] offset:%d", RP)
        a("s_mov_b64 exec, 1\nds_add_rtn_u32 v6, v3, v6 offset:%d\ns_mov_b64 exec, -1", F_RED)
        for k in range(4): a("ds_read_b64 v[%d:%d], v10 offset:%d", 20 + 2 * k, 21 + 2 * k, RP + 256 * k)
        a("s_waitcnt lgkmcnt(4)")
        a("v_readfirstlane_b32 %s, v6", sT3)
        a("s_cmp_lg_u32 %s, 3\ns_cbranch_scc1 L_a_end", sT3)
        a("s_waitcnt lgkmcnt(0)")
        a("v_add_f32 v16, v20, v22\nv_add_f32 v17, v21, v23\nv_add_f32 v18, v24, v26\nv_add_f32 v19, v25, v27")
        a("v_add_f32 v16, v16, v18\nv_add_f32 v17, v17, v19")
    a("v_cvt_pk_bf16_f32 v16, v16, v17\nv_mov_b32 v18, v16\ns_nop 1")
    a("v_permlane32_swap_b32 v16, v18")
    a("v_lshlrev_b32 v6, 16, v16\nv_and_b32 v7, %s, v16", sT1)
    a("v_add_f32 v4, v40, v6\nv_add_f32 v5, v41, v7\nv_cvt_pk_bf16_f32 v4, v4, v5")
    a("v_lshlrev_b32 v6, 16, v18\nv_and_b32 v7, %s, v18", sT1)
    a("v_and_b32 v5, %s, v4\nv_lshlrev_b32 v4, 16, v4", sT1)
    a("s_mov_b64 exec, 0xff00ff")
    a("v_add_f32 v4, v4, v6\nv_add_f32 v5, v5, v7\nv_cvt_pk_bf16_f32 v20, v4, v5")
    a("buffer_store_dword v20, v12, %s, 0 offen %s", srd(R1), o.outpol)
    a("s_cmp_lg_u32 %s, 0\ns_cbranch_scc1 %s", sRU, "L_a_end2" if o.holdf else "L_a_end")
    a("s_mov_b64 exec, 1\nv_mov_b32 v4, %s", sTAG)
    a("buffer_store_dword v4, v3, %s, 0 offen %s", srd(RW), o.eppol)
    if o.holdf:
        a("s_branch L_a_end2")
    a("L_a_end:")
    stamps_out()
    a("L_end:")
    a("s_endpgm")
    if o.holdf:
        a("L_a_end2:")
        if o.holdwg >= 0: a("s_cmp_lg_u32 s2, %d\ns_cbranch_scc1 L_end", o.holdwg)
        a("s_memrealtime s[70:71]\ns_waitcnt lgkmcnt(0)\ns_sub_u32 %s, s70, s86\ns_mul_i32 %s, %s, %d\ns_add_u32 %s, %s, %d", sT1, sT1, sT1, o.holdmul, sT1, sT1, o.holdf)
        a("L_holdf:\ns_memrealtime s[70:71]\ns_waitcnt lgkmcnt(0)\ns_sub_u32 %s, s70, s86\ns_cmp_lt_u32 %s, %s\ns_cbranch_scc1 L_holdf", sT0, sT0, sT1)
        a("s_endpgm")
    flush_ool()
    a("L_code_end:")
    if o.cpf: a(".fill 256, 4, 0xbf800000")

    hdr = open(os.path.join(os.path.dirname(os.path.abspath(__file__)), "header.txt")).read()
    hdr += "; @launch grid=(256,1,1) block=(576,1,1) lds=%d\n" % LDS_TOTAL
    hdr += DOC
    hdr += '.amdgcn_target "amdgcn-amd-amdhsa--gfx950"\n.text\n.globl %s\n.p2align 8\n.type %s,@function\n' % (NAME, NAME)
    ftr = """.section .rodata,"a"
.p2align 6
.amdhsa_kernel %s
  .amdhsa_next_free_vgpr 152
  .amdhsa_next_free_sgpr 102
  .amdhsa_accum_offset 152
  .amdhsa_group_segment_fixed_size 0
  .amdhsa_kernarg_size 96
  .amdhsa_user_sgpr_count 2
  .amdhsa_user_sgpr_kernarg_segment_ptr 1
  .amdhsa_system_sgpr_workgroup_id_x 1
  .amdhsa_float_denorm_mode_32 3
.end_amdhsa_kernel
""" % NAME
    body = a.text()
    if o.nostore:
        body = "\n".join(l for l in body.split("\n") if not ("buffer_store_dwordx4" in l and (o.nostore & 2 or "sc1" in l)))
    return hdr + body + ftr

def parser():
    p = argparse.ArgumentParser()
    p.add_argument("-o", default="-")
    p.add_argument("--depth", type=int, default=24)
    p.add_argument("--diag", type=int, default=0)
    p.add_argument("--qpoll", type=int, default=42)
    p.add_argument("--opoll", type=int, default=150)
    p.add_argument("--hpoll", type=int, default=114)
    p.add_argument("--cpf", type=int, default=1)
    p.add_argument("--sdiag", type=int, default=0)
    p.add_argument("--mix", type=int, default=2)
    p.add_argument("--local", type=int, default=1)
    p.add_argument("--opf", type=int, default=0)
    p.add_argument("--depthv7", type=int, default=0)
    p.add_argument("--depthvw", type=int, default=0)
    p.add_argument("--depthvd", type=int, default=32)
    p.add_argument("--depth7", type=int, default=20)
    p.add_argument("--dual", type=int, default=1)
    p.add_argument("--fback", type=int, default=12)
    p.add_argument("--fld", default="nt")
    p.add_argument("--floc", type=int, default=1)
    p.add_argument("--depth2w", type=int, default=24)
    p.add_argument("--xg", type=int, default=0)
    p.add_argument("--tpoll", type=int, default=0)
    p.add_argument("--tpol", default="nt")
    p.add_argument("--aprio", type=int, default=0)
    p.add_argument("--redmap", type=int, default=0)
    p.add_argument("--qld", default="nt")
    p.add_argument("--hld", default="nt")
    p.add_argument("--old", default="nt")
    p.add_argument("--cpe", type=int, default=1)
    p.add_argument("--xpol", default="")
    p.add_argument("--cpol", default="")
    p.add_argument("--vesc", type=int, default=3)
    p.add_argument("--vstride", type=int, default=3)
    p.add_argument("--vfull", type=int, default=1)
    p.add_argument("--fast0", type=int, default=1)
    p.add_argument("--red4", type=int, default=1)
    p.add_argument("--race", type=int, default=0)
    p.add_argument("--s2early", type=int, default=0)
    p.add_argument("--redbase", type=int, default=216)
    p.add_argument("--fpoll", type=int, default=150)
    p.add_argument("--ltsplit", type=int, default=0)
    p.add_argument("--depthl2", type=int, default=44)
    p.add_argument("--eppol", default="")
    p.add_argument("--wb", type=int, default=0)
    p.add_argument("--wbcb", type=int, default=8)
    p.add_argument("--outpre", type=int, default=0)
    p.add_argument("--tlb", type=int, default=0)
    p.add_argument("--burst", type=int, default=0)
    p.add_argument("--hold", type=int, default=0)
    p.add_argument("--holdf", type=int, default=0)
    p.add_argument("--holdmul", type=int, default=0)
    p.add_argument("--holdwg", type=int, default=0)
    p.add_argument("--wqx", type=int, default=4)
    p.add_argument("--spec", type=int, default=0)
    p.add_argument("--outpol", default="")
    p.add_argument("--nover", type=int, default=0)
    p.add_argument("--depthv", type=int, default=0)
    p.add_argument("--depthl", type=int, default=0)
    p.add_argument("--ltwait", type=int, default=0)
    p.add_argument("--hpolll", type=int, default=114)
    p.add_argument("--touch", type=int, default=6)
    p.add_argument("--vpoll", type=int, default=34)
    p.add_argument("--depth2", type=int, default=24)
    p.add_argument("--sleep", type=int, default=0)
    p.add_argument("--nopoll", type=int, default=0)
    p.add_argument("--nostore", type=int, default=0)
    p.add_argument("--rot", type=int, default=1)
    p.add_argument("--ldonly", type=int, default=0)
    p.add_argument("--pol", default="nt")
    return p

if __name__ == "__main__":
    o = parser().parse_args()
    t = gen(o)
    if o.o == "-": sys.stdout.write(t)
    else: open(o.o, "w").write(t)
```

```python
import sys, argparse, math, struct, os

NAME = "parallel_sum__sliding_block_cached__geglu_ffn__decode_kernel"
f2u = lambda f: struct.unpack("<I", struct.pack("<f", f))[0]

class Asm:
    def __init__(self):
        self.lines = []
        self.n = 0
    def __call__(self, s, *args):
        if args: s = s % args
        for ln in s.strip("\n").split("\n"):
            ln = ln.strip()
            if not ln: continue
            if ln.endswith(":"): self.lines.append(ln)
            else: self.lines.append("    " + ln)
    def lab(self, p="L"):
        self.n += 1
        return "%s_%d" % (p, self.n)
    def text(self): return "\n".join(self.lines) + "\n"

F_PROG, F_QRDY, F_A1, F_A2, F_VRDY, F_C1, F_VER, F_PUB, F_HOK, F_RED = 0, 16, 20, 8, 24, 28, 32, 36, 40, 44
XN, XN_P = 256, 1152
QV = 2560
VEC2, VEC2_P = 3072, 704
MX = 4480
LS = 4512
PB = 4608
RP = 5120
RA = 6144
RWQ = RA + 48 * 1024
RK = RA + 84 * 1024
KP = 1088
RV = RK + 32 * KP
VP = 1152
LDS_TOTAL = RV + 32 * VP
assert LDS_TOTAL <= 163840
W_EPOCH = 0
W_V = 1024
W_Q = 4096
W_G = W_Q + 16 * 8192
W_O = W_G + 6 * 36864
W_AEND = W_O + 256 * 1024
BOFF = 0xa0000
assert W_AEND - W_Q <= BOFF
W_F = W_AEND + BOFF
W_END = W_F + 36 * 4096
W_DIAG = 2 << 20
assert W_END <= W_DIAG
P_G = 26

DOC = """;
"""

def gen(o):
    a = Asm()
    D = o.depth
    diag = o.diag
    sX, sIDX, sG, sI, sWV = "s28", "s29", "s30", "s31", "s32"
    sTEAM, sEND, sNG, sB2, sR0 = "s33", "s34", "s35", "s36", "s37"
    sD3, sM3 = "s38", "s39"
    sT0, sT1, sT2, sT3 = "s40", "s41", "s42", "s43"
    sSEEN, sTMO, sTAG, sVER = "s44", "s45", "s46", "s47"
    sEX = "s[68:69]"
    R0, R1, R2, R3, R4 = 48, 52, 56, 60, 64
    RW = 64
    RB = 60
    ST = 72
    def srd(r): return "s[%d:%d]" % (r, r + 3)
    def mk_srd(r, lo, size):
        a("s_mov_b32 s%d, s%d\ns_mov_b32 s%d, s%d\ns_mov_b32 s%d, 0x%x\ns_mov_b32 s%d, 0x00020000", r, lo, r + 1, lo + 1, r + 2, size, r + 3)
    def stamp(k):
        if diag: a("s_memrealtime s[%d:%d]", ST + 2 * k, ST + 2 * k + 1)
    def stamps_out():
        if not diag: return
        a("s_waitcnt lgkmcnt(0)")
        a("s_mov_b64 exec, -1")
        a("s_lshl_b32 %s, s2, 4\ns_add_u32 %s, %s, %s\ns_lshl_b32 %s, %s, 6\ns_add_u32 %s, %s, 0x%x", sT0, sT0, sT0, sWV, sT0, sT0, sT0, sT0, W_DIAG)
        a("v_mov_b32 v1, %s", sT0)
        for k in range(4):
            for j in range(4): a("v_mov_b32 v%d, s%d", 4 + j, ST + 4 * k + j)
            a("global_store_dwordx4 v1, v[4:7], s[26:27] offset:%d", 16 * k)
            a("s_nop 1")
    ool = []
    def lds_wait_ge(off, thr, cache=None, vt="v2", vz="v3", hot=False):
        if hot:
            Ls, Lr = a.lab("LS"), a.lab("LB")
            a("s_cmp_lt_i32 %s, %s\ns_cbranch_scc1 %s", cache, thr, Ls)
            a("%s:" % Lr)
            ool.append((Ls, lambda: lds_wait_ge(off, thr, cache, vt, vz), Lr))
            return
        L, E = a.lab("LW"), a.lab("LE")
        c = cache or sT3
        if cache:
            a("s_cmp_ge_i32 %s, %s\ns_cbranch_scc1 %s", c, thr, E)
        a("s_mov_b32 %s, 0", sTMO)
        a("%s:" % L)
        if o.sleep: a("s_sleep %d", o.sleep)
        a("ds_read_b32 %s, %s offset:%d", vt, vz, off)
        a("s_add_u32 %s, %s, 1", sTMO, sTMO)
        a("s_cmp_gt_u32 %s, 0x80000\ns_cbranch_scc1 %s", sTMO, E)
        a("s_waitcnt lgkmcnt(0)")
        a("v_readfirstlane_b32 %s, %s", c, vt)
        a("s_cmp_lt_i32 %s, %s\ns_cbranch_scc1 %s", c, thr, L)
        a("%s:" % E)
    def get_tag():
        a("s_waitcnt lgkmcnt(0)")
        a("s_mul_i32 %s, %s, 1664525\ns_add_u32 %s, %s, 1013904223", sTAG, sTAG, sTAG, sTAG)
        a("s_and_b32 s94, %s, 0xff\ns_bfe_u32 s95, %s, 0x80008\ns_bfe_u32 s96, %s, 0x80010\ns_lshr_b32 s97, %s, 24", sTAG, sTAG, sTAG, sTAG)
    def tag_merge(r, rnd=True):
        for k in range(4):
            if rnd: a("v_add_u32 v%d, 0x80, v%d", r + k, r + k)
        for k in range(4):
            a("v_and_or_b32 v%d, v%d, v14, s%d", r + k, r + k, 94 + k)
    def tag_bad(dst, r, first):
        for k in range(4): a("v_xor_b32 v%d, s%d, v%d", r + k, 94 + k, r + k)
        if first: a("v_or3_b32 %s, v%d, v%d, v%d\nv_or_b32 %s, %s, v%d", dst, r, r + 1, r + 2, dst, dst, r + 3)
        else: a("v_or3_b32 %s, %s, v%d, v%d\nv_or3_b32 %s, %s, v%d, v%d", dst, dst, r, r + 1, dst, dst, r + 2, r + 3)
    def flag_add(off, vt="v6"):
        a("s_mov_b64 exec, 1\nv_mov_b32 %s, 1\nds_add_u32 v3, %s offset:%d\ns_mov_b64 exec, -1", vt, vt, off)
    def get_ver():
        lds_wait_ge(F_VER, "1", cache=sVER)
    def two_way(fast, slow):
        Ls, Lr = a.lab("LS"), a.lab("LB")
        a("s_cmp_lg_u32 %s, 1\ns_cbranch_scc1 %s", sVER, Ls)
        fast()
        a("%s:" % Lr)
        ool.append((Ls, slow, Lr))
    def flush_ool():
        for Ls, slow, Lr in ool:
            a("%s:" % Ls)
            slow()
            a("s_branch %s", Lr)
        del ool[:]
    def pub(items):
        def fast():
            for regs, so, off in items:
                a("buffer_store_dwordx4 %s, v1, %s, %s offen offset:%d", regs, srd(RW), so, off)
        def slow():
            for regs, so, off in items:
                a("buffer_store_dwordx4 %s, v1, %s, %s offen offset:%d sc1", regs, srd(RB), so, off)
        two_way(fast, slow)
    def fetch(items, fl="nt"):
        def go(r, f):
            for d, vo, so, off in items:
                a("buffer_load_dwordx4 v[%d:%d], %s, %s, %s offen offset:%d %s", d, d + 3, vo, srd(r), so, off, f)
        two_way(lambda: go(RW, fl), lambda: go(RB, "sc1"))
    def s2pos(n): return (98 if n <= 4 * o.s2early else 130) + n
    def mfma(d, A, B):
        a("v_mfma_f32_16x16x32_bf16 v[%d:%d], v[%d:%d], v[%d:%d], v[%d:%d]", d, d + 3, A, A + 3, B, B + 3, d, d + 3)

    a("%s:" % NAME)
    stamp(0)
    if o.hold or o.holdf: a("s_memrealtime s[86:87]")
    if diag:
        for k in range(1, 8): a("s_mov_b64 s[%d:%d], 0", ST + 2 * k, ST + 2 * k + 1)
    KARG = "s_load_dwordx16 s[4:19], s[0:1], 0\ns_load_dwordx8 s[20:27], s[0:1], 64"
    if o.fast0: a("s_load_dwordx2 s[%d:%d], s[0:1], 24", R0, R0 + 1)
    else: a(KARG)
    a("""
    s_cmp_ge_u32 s2, 256
    s_cbranch_scc1 L_end
    v_lshrrev_b32 v1, 6, v0
    v_and_b32 v0, 63, v0
    v_mov_b32 v3, 0
    """)
    a("v_readfirstlane_b32 %s, v1", sWV)
    a("s_and_b32 %s, s2, 7\ns_lshr_b32 %s, s2, 3", sX, sIDX)
    if o.xg:
        a("s_cmp_lt_u32 %s, 25\ns_cselect_b32 %s, -9, 0\ns_cmp_lt_u32 %s, 9\ns_cselect_b32 %s, 16, %s\ns_add_u32 %s, %s, %s", sIDX, sT0, sIDX, sT0, sT0, sT1, sIDX, sT0)
        a("s_lshr_b32 %s, %s, 4\ns_lshl1_add_u32 %s, %s, %s\ns_and_b32 %s, %s, 15", sT0, sT1, sG, sX, sT0, sI, sT1)
    else:
        a("s_lshr_b32 %s, s2, 7\ns_lshl1_add_u32 %s, %s, %s\ns_and_b32 %s, %s, 15", sT0, sG, sX, sT0, sI, sIDX)
    def code_pf():
        if o.cpf:
            Lc = a.lab("LCP")
            a("s_cmp_lg_u32 %s, 8\ns_cbranch_scc1 %s", sWV, Lc)
            a("s_lshl_b32 %s, %s, 10\ns_cmp_ge_u32 %s, L_code_end-%s\ns_cbranch_scc1 %s", sT0, sI, sT0, NAME, Lc)
            a("s_getpc_b64 s[88:89]")
            a("L_pc:")
            a("s_sub_u32 s88, s88, L_pc-%s\ns_subb_u32 s89, s89, 0", NAME)
            a("v_lshlrev_b32 v4, 4, v0\nv_add_u32 v4, %s, v4", sT0)
            a("global_load_dwordx4 v[76:79], v4, s[88:89] %s", o.cpol)
            a("%s:" % Lc)
    def cons_entry():
        if o.fast0: a(KARG)
        if o.cpe: code_pf()
        a("v_mul_u32_u24 v13, 36, v0")
        a("s_cmp_ge_u32 %s, 5", sWV)
        a("s_waitcnt lgkmcnt(0)")
        a("s_load_dword %s, s[26:27], 0", sTAG)
        a("s_cbranch_scc1 L_cons2")
        a("global_load_dwordx4 v[16:19], v13, s[4:5] %s", o.xpol)
        a("global_load_dwordx4 v[20:23], v13, s[4:5] offset:16 %s", o.xpol)
        a("global_load_dword v24, v13, s[4:5] offset:32 %s", o.xpol)
        a("L_cons2:")
        if not o.cpe: code_pf()
        a("s_branch L_cons3")
    if o.fast0 == 2:
        a("s_cmp_lg_u32 %s, 0\ns_cbranch_scc1 L_cons", sWV)
    else:
        a("s_cmp_eq_u32 %s, 0\ns_cbranch_scc1 L_loader", sWV)
        cons_entry()
    a("L_loader:")

    sOFF, sCNT, sISS, sKV, sRQ = "s90", "s91", "s92", "s93", "s98"
    sO2, sMG = "s99", "s100"
    def prog(depth):
        a("s_add_u32 %s, %s, 4\nv_max_i32 v4, %s, v4", sISS, sISS, sISS)
        a("s_waitcnt vmcnt(%d)", depth - 4)
        a("ds_write_b32 v3, v4 offset:%d", F_PROG)
    def loop_end(L):
        a("s_sub_u32 %s, %s, 1\ns_cmp_lg_u32 %s, 0\ns_cbranch_scc1 %s", sCNT, sCNT, sCNT, L)
    sMK = "s88"
    def kv_group(r, voff, base, pitch, wait=True, depth=None):
        a("s_mov_b32 m0, %s\ns_add_u32 %s, %s, %d", sMK, sMK, sMK, 4 * pitch)
        a("s_lshl_b32 %s, %s, 12\ns_add_u32 %s, %s, %s", sT1, sRQ, sT1, sT1, sKV)
        for k in range(4):
            a("buffer_load_dwordx4 %s, %s, %s offen %s lds", voff, srd(r), sT1, o.pol)
            if k < 3: a("s_add_u32 m0, m0, %d\ns_add_u32 %s, %s, s101", pitch, sT1, sT1)
        a("s_add_u32 %s, %s, 1\ns_and_b32 %s, %s, 7", sRQ, sRQ, sRQ, sRQ)
        if wait: prog(depth or D)
    def kv_loop(r, voff, base, pitch, depth=None):
        L = a.lab("LD")
        a("%s:" % L)
        kv_group(r, voff, base, pitch, True, depth)
        loop_end(L)
    def pair_group(ra, rb, voff, step, depth):
        for k in range(4):
            so = sOFF if k % 2 == 0 else sO2
            a("buffer_load_dwordx4 %s, %s, %s offen %s lds", voff, srd(ra if k % 2 == 0 else rb), so, o.pol)
            a("s_add_u32 m0, m0, s101\ns_add_u32 %s, %s, %s", so, so, step)
        prog(depth)
    def roles():
        a("s_mov_b32 %s, %s\ns_lshl_b32 %s, %s, 8\ns_sub_u32 %s, %s, 16\ns_mul_i32 %s, %s, 288", sTEAM, sIDX, sR0, sIDX, sT0, sIDX, sT0, sT0)
        a("s_cmp_lt_u32 %s, 16\ns_cselect_b32 %s, %s, %s\ns_cselect_b32 %s, 8, 9", sIDX, sR0, sR0, sT0, sNG)
        a("s_cmp_eq_u32 %s, 7\ns_cselect_b32 %s, 1, 0\ns_lshl_b32 %s, %s, %s", sX, sT0, sNG, sNG, sT0)
        a("s_mul_i32 %s, %s, 31\ns_add_u32 %s, %s, %s\ns_cmp_eq_u32 %s, 31\ns_cselect_b32 %s, 255, %s", sT0, sX, sT0, sT0, sIDX, sIDX, sT0, sT0)
        a("s_mul_i32 %s, %s, 171\ns_lshr_b32 %s, %s, 9\ns_mul_i32 %s, %s, 3\ns_sub_u32 %s, %s, %s", sD3, sT0, sD3, sD3, sT1, sD3, sM3, sT0, sT1)
        a("s_mov_b32 %s, 130\ns_cmp_lt_u32 %s, 216\ns_cselect_b32 %s, %s, 82\ns_lshl2_add_u32 %s, %s, %s", sB2, sT0, sB2, sB2, sEND, sNG, sB2)
    def gu_pair(smt, sblk):
        a("s_cmp_ge_u32 %s, 36\ns_cselect_b32 %s, 1, 0\ns_cselect_b32 %s, 36, 0\ns_sub_u32 %s, %s, %s", sD3, smt, sblk, sblk, sD3, sblk)

    a("""
    v_lshrrev_b32 v8, 3, v0
    v_lshrrev_b32 v15, 4, v0
    v_lshlrev_b32 v9, 1, v15
    v_and_b32 v10, 7, v0
    v_xor_b32 v10, v10, v9
    v_lshlrev_b32 v10, 4, v10
    v_lshl_add_u32 v16, v8, 13, v10
    """)
    a("s_and_b32 %s, %s, 3\ns_mul_i32 %s, %s, %d", sT0, sIDX, sOFF, sT0, 144 * 8192)
    a("s_lshr_b32 %s, %s, 2\ns_xor_b32 %s, %s, %d\ns_lshl3_add_u32 %s, %s, %s\ns_lshl_b32 %s, %s, 7\ns_add_u32 %s, %s, %s", sT0, sIDX, sT0, sT0, o.wqx, sT0, sX, sT0, sT0, sT0, sOFF, sOFF, sT0)
    a("s_mov_b32 s%d, 0x480000\ns_mov_b32 s%d, 0x00020000", R0 + 2, R0 + 3)
    a("s_movk_i32 s101, 0x400\ns_mov_b32 %s, 0x10000", sT2)
    a("s_mov_b32 m0, %d", RWQ)
    a("s_setprio 3")
    a("s_waitcnt lgkmcnt(0)")
    if o.sdiag: stamp(5)
    if not o.fast0: a("s_mov_b32 s%d, s10\ns_mov_b32 s%d, s11", R0, R0 + 1)
    fill = ["v_mov_b32 v4, 0", "v_mov_b32 v5, 0", "v_lshlrev_b32 v2, 3, v0", "ds_write_b64 v2, v[4:5]",
            "v_xor_b32 v13, v0, v15", "v_lshlrev_b32 v13, 4, v13",
            "s_mov_b32 s%d, 0x2000000" % (R1 + 2), "s_mov_b32 s%d, 0x00020000" % (R1 + 3),
            "s_lshr_b32 %s, %s, 3" % (sT0, sI), "s_lshl4_add_u32 %s, %s, %s" % (sT0, sT0, sG), "s_lshl_b32 %s, %s, 20" % (sT0, sT0),
            "s_and_b32 %s, %s, 7" % (sT1, sI), "s_lshl_b32 %s, %s, 15" % (sT1, sT1), "s_add_u32 %s, %s, %s" % (sT0, sT0, sT1),
            "s_add_u32 %s, %s, 0xc0000" % (sKV, sT0), "s_and_b32 %s, %s, 3" % (sRQ, sIDX), "s_lshl_b32 %s, %s, 1" % (sRQ, sRQ)]
    for k in range(18):
        a("buffer_load_dwordx4 v16, %s, %s offen %s lds", srd(R0), sOFF, o.pol)
        if k == 0 and o.fast0: a(KARG)
        if k < 17:
            a("s_add_u32 m0, m0, s101\ns_add_u32 %s, %s, %s", sOFF, sOFF, sT2)
            a(fill[k])
    if o.sdiag: stamp(6)
    if o.fast0: a("s_waitcnt lgkmcnt(0)")
    a("s_mov_b32 s%d, s6\ns_mov_b32 s%d, s7\ns_mov_b32 %s, %d", R1, R1 + 1, sMK, RK)
    kv_group(R1, "v13", RK, KP, False)
    if D >= 26: kv_group(R1, "v13", RK, KP, False)
    if o.sdiag: stamp(7)
    a("s_waitcnt lgkmcnt(0)")
    a("s_barrier")
    a("""
    v_mul_u32_u24 v12, 1152, v8
    v_add_u32 v12, v12, v10
    v_mul_u32_u24 v11, 9216, v8
    v_add_u32 v11, v11, v10
    v_xor_b32 v14, v0, v9
    v_lshlrev_b32 v14, 4, v14
    """)
    mk_srd(R2, 8, 0x2000000)
    a("s_mov_b32 %s, %d", sISS, (26 if D >= 26 else 22) - (D - 4))
    roles()
    DV, D2, DL = o.depthv or D, o.depth2, o.depthl or D
    sS2 = "s89"
    def drain_step(k):
        a("s_add_u32 %s, %s, 4\nv_max_i32 v4, %s, v4\ns_waitcnt vmcnt(%d)\nds_write_b32 v3, v4 offset:%d", sISS, sISS, sISS, k, F_PROG)
    def redepth(old, new):
        if new > old: a("s_sub_u32 %s, %s, %d", sISS, sISS, new - old)
        for k in range(old - 8, new - 8, -4): drain_step(k)
    a("s_cmp_lt_u32 %s, 16", sTEAM)
    a("s_cselect_b32 s%d, s12, s20\ns_cselect_b32 s%d, s13, s21\ns_mov_b32 s%d, 0x510000\ns_cselect_b32 s%d, 0x480000, s%d\ns_mov_b32 s%d, 0x00020000",
      R3, R3 + 1, R3 + 2, R3 + 2, R3 + 2, R3 + 3)
    a("s_mul_i32 %s, %s, 1152\ns_lshl_b32 %s, %s, 7\ns_add_u32 %s, %s, %s", sS2, sR0, sT1, sX, sS2, sS2, sT1)
    gu_pair(sT0, sT1)
    a("s_cmp_eq_u32 %s, 1\ns_cselect_b32 s%d, s18, s16\ns_cselect_b32 s%d, s19, s17\ns_mov_b32 s%d, 0x510000", sT0, R0, R0 + 1, R0 + 2)
    a("s_mul_i32 %s, %s, %d\ns_lshl_b32 %s, %s, 8\ns_add_u32 %s, %s, %s\ns_add_u32 %s, %s, 128", sOFF, sM3, 192 * 9216, sT1, sT1, sOFF, sOFF, sT1, sO2, sOFF)
    if D < 26:
        a("s_waitcnt vmcnt(%d)", D - 4 + 0)
        kv_group(R1, "v13", RK, KP)
    a("s_mov_b32 %s, 6", sCNT)
    a("s_cmp_eq_u32 %s, 82\ns_cbranch_scc1 L_ld_kv", sB2)
    M = o.mix
    a("s_mov_b32 %s, %d\ns_mov_b32 %s, %d", sMG, RA, sCNT, 6 // M)
    a("L_ld_gu:")
    a("s_mov_b32 m0, %s\ns_add_u32 %s, %s, %d", sMG, sMG, sMG, 8192 * M)
    a("s_mov_b32 %s, %d", sT2, 2 * M)
    a("L_ld_gi:")
    pair_group(R0, R0, "v11", 8 * 9216, D)
    a("s_sub_u32 %s, %s, 1\ns_cmp_lg_u32 %s, 0\ns_cbranch_scc1 L_ld_gi", sT2, sT2, sT2)
    kv_group(R1, "v13", RK, KP)
    loop_end("L_ld_gu")
    if M == 1: a("s_branch L_ld_v")
    else: a("s_mov_b32 %s, %d", sCNT, 6 - 6 // M)
    a("L_ld_kv:")
    kv_loop(R1, "v13", RK, KP)
    a("L_ld_v:")
    stamp(1)
    kinds = {"n": (o.depthv7 or D, o.depth7 or D), "w": (o.depthvw or D, o.depth2w), "d": (o.depthvd or D, o.depth2)}
    DD = min(k[1] for k in kinds.values())
    def tail(t):
        DVt, D2t = kinds[t]
        redepth(D, DVt)
        a("s_mov_b32 %s, 7", sCNT)
        kv_loop(R2, "v14", RV, VP, DVt)
        a("ds_read_b32 v5, v3 offset:%d", F_C1)
        kv_group(R2, "v14", RV, VP, True, DVt)
        stamp(2)
        if not o.ldonly:
            a("s_waitcnt lgkmcnt(0)\nv_readfirstlane_b32 %s, v5", sSEEN)
            lds_wait_ge(F_C1, "4", cache=sSEEN)
        a("s_mov_b32 %s, %s\ns_mov_b32 %s, %s", sOFF, sS2, sCNT, sNG)
        if t == "n":
            a("s_mov_b32 %s, %d\ns_mov_b32 %s, %d\ns_mov_b32 %s, %d", sT0, RWQ, sT1, 8 * 1152, sMG, 16 * 1152)
            a("s_cmp_eq_u32 %s, 7\ns_cselect_b32 m0, %d, %s\ns_cselect_b32 %s, %s, %s\ns_cselect_b32 %s, 128, %s\ns_add_u32 %s, %s, %s", sX, RA, sT0, sMG, sT1, sMG, sT1, sT1, sO2, sOFF, sT1)
        else:
            a("s_mov_b32 m0, %d\ns_mov_b32 %s, %d\ns_add_u32 %s, %s, %d", RWQ, sMG, 16 * 1152, sO2, sOFF, 8 * 1152)
        redepth(DVt, D2t)
        a("L_ld_s2%s:" % t)
        pair_group(R3, R3, "v12", sMG, D2t)
        loop_end("L_ld_s2%s" % t)
        stamp(3)
        redepth(D2t, DD)
    a("s_cmp_eq_u32 %s, 82\ns_cbranch_scc1 L_ld_tn", sB2)
    if kinds["w"] != kinds["d"]:
        a("s_cmp_ge_u32 %s, 16\ns_cbranch_scc1 L_ld_td", sTEAM)
        tail("w")
        a("s_branch L_ld_drain2")
        a("L_ld_td:")
    tail("d")
    a("s_branch L_ld_drain2")
    a("L_ld_tn:")
    tail("n")
    a("L_ld_drain2:")
    for k in range(DD - 8, -1, -4): drain_step(k)
    stamp(4)
    if o.opf and not o.ldonly:
        a("s_cmp_ge_u32 %s, 16\ns_cbranch_scc1 L_ld_end", sTEAM)
        a("s_lshr_b32 %s, %s, 1\ns_cmp_eq_u32 %s, %s\ns_cbranch_scc1 L_ld_end", sT0, sTEAM, sT0, sX)
        a("s_add_u32 s%d, s26, 0x%x\ns_addc_u32 s%d, s27, 0\ns_mov_b32 s%d, 0x%x\ns_mov_b32 s%d, 0x00020000", R4, BOFF, R4 + 1, R4 + 2, W_AEND, R4 + 3)
        a("s_lshl_b32 %s, %s, 14\ns_add_u32 %s, %s, %d\ns_add_u32 %s, %s, 8192\nv_lshlrev_b32 v11, 7, v0\ns_mov_b32 %s, 0", sT0, sTEAM, sT0, sT0, W_O, sT1, sT0, sTMO)
        a("L_ld_opf:")
        a("buffer_load_dword v20, v11, %s, %s offen sc1", srd(R4), sT0)
        a("buffer_load_dword v21, v11, %s, %s offen sc1", srd(R4), sT1)
        a("ds_read_b32 v2, v3 offset:%d", F_VRDY)
        a("s_add_u32 %s, %s, 1\ns_cmp_gt_u32 %s, 0x40000\ns_cbranch_scc1 L_ld_end", sTMO, sTMO, sTMO)
        a("s_waitcnt vmcnt(%d) lgkmcnt(0)", o.opf)
        a("v_readfirstlane_b32 %s, v2", sT3)
        a("s_cmp_lt_i32 %s, 4\ns_cbranch_scc1 L_ld_opf", sT3)
        a("L_ld_end:")
    stamps_out()
    if o.hold:
        a("s_cmp_lg_u32 s2, %d\ns_cbranch_scc1 L_end", o.holdwg)
        a("s_memrealtime s[70:71]\ns_waitcnt lgkmcnt(0)\ns_sub_u32 %s, s70, s86\ns_mul_i32 %s, %s, %d\ns_add_u32 %s, %s, %d", sT1, sT1, sT1, o.holdmul, sT1, sT1, o.hold)
        a("L_hold:\ns_memrealtime s[70:71]\ns_waitcnt lgkmcnt(0)\ns_sub_u32 %s, s70, s86\ns_cmp_lt_u32 %s, %s\ns_cbranch_scc1 L_hold", sT0, sT0, sT1)
    a("s_endpgm")

    if o.fast0 == 2:
        a("L_cons:")
        cons_entry()
    a("L_cons3:")
    a("s_barrier")
    if o.ldonly: a("s_endpgm")
    mk_srd(RW, 26, W_END + 4096)
    a("s_add_u32 s%d, s26, 0x%x\ns_addc_u32 s%d, s27, 0\ns_mov_b32 s%d, 0x%x\ns_mov_b32 s%d, 0x00020000", RB, BOFF, RB + 1, RB + 2, W_AEND, RB + 3)
    a("s_mov_b32 %s, 0", sVER)
    a("s_mov_b32 %s, -1000", sSEEN)
    a("v_lshrrev_b32 v8, 4, v0\nv_and_b32 v9, 15, v0\nv_mov_b32 v14, 0xffffff00")
    roles()
    a("s_cmp_ge_u32 %s, 5\ns_cbranch_scc1 L_att", sWV)

    sW, sIT, sTH = "s90", "s91", "s92"
    a("s_sub_u32 %s, %s, 1", sW, sWV)
    a("v_lshrrev_b32 v11, 3, v0\nv_and_b32 v11, 3, v11\nv_xor_b32 v11, %s, v11", sW)
    a("v_lshlrev_b32 v11, 5, v11\nv_and_b32 v12, 3, v0\nv_lshl_add_u32 v11, v12, 3, v11")
    a("v_lshrrev_b32 v10, 2, v0\nv_lshl_add_u32 v10, v10, 7, v11")
    a("v_lshrrev_b32 v15, 5, v0\nv_lshl_add_u32 v15, v15, 10, v10")
    a("v_add_u32 v15, %d, v15", RA)
    a("v_and_b32 v12, 1, v0")
    a("s_mov_b32 %s, 0xffff0000", sT0)
    a("s_waitcnt vmcnt(0)")
    stamp(1)
    X = 28
    for k in range(9):
        a("v_lshlrev_b32 v%d, 16, v%d\nv_and_b32 v%d, %s, v%d", X + 2 * k, 16 + k, X + 2 * k + 1, sT0, 16 + k)
    def half_allreduce_add(v, t):
        for dp in ("quad_perm:[1,0,3,2]", "quad_perm:[2,3,0,1]", "row_ror:4", "row_ror:8"):
            a("s_nop 1\nv_add_f32_dpp %s, %s, %s %s row_mask:0xf bank_mask:0xf", v, v, v, dp)
        a("v_mov_b32 %s, %s\ns_nop 1\nv_permlane16_swap_b32 %s, %s\nv_add_f32 %s, %s, %s", t, v, v, t, v, v, t)
    a("v_add_f32 v4, v%d, v%d\nv_add_f32 v5, v%d, v%d", X, X + 1, X + 2, X + 3)
    for k in range(4, 18, 2):
        a("v_add_f32 v4, v4, v%d\nv_add_f32 v5, v5, v%d", X + k, X + k + 1)
    a("v_add_f32 v4, v4, v5")
    half_allreduce_add("v4", "v5")
    a("v_mul_f32 v4, 0x3ae38e39, v4\nv_mov_b32 v5, 0\nv_mov_b32 v25, 0")
    for k in range(0, 18, 2):
        a("v_sub_f32 v26, v%d, v4\nv_sub_f32 v27, v%d, v4\nv_fmac_f32 v5, v26, v26\nv_fmac_f32 v25, v27, v27", X + k, X + k + 1)
    a("v_add_f32 v5, v5, v25")
    half_allreduce_add("v5", "v25")
    a("v_mul_f32 v5, 0x3ae38e39, v5")
    a("v_cvt_pk_bf16_f32 v4, v4, v5")
    a("v_and_b32 v5, %s, v4\nv_lshlrev_b32 v4, 16, v4", sT0)
    a("v_add_f32 v5, 0x3727c5ac, v5")
    a("v_cvt_pk_bf16_f32 v5, v5, v5\nv_lshlrev_b32 v5, 16, v5")
    a("v_sqrt_f32 v5, v5\ns_nop 0")
    a("v_cvt_pk_bf16_f32 v5, v5, v5\nv_lshlrev_b32 v5, 16, v5")
    a("v_rcp_f32 v5, v5")
    for k in range(9):
        a("v_sub_f32 v26, v%d, v4\nv_sub_f32 v27, v%d, v4", X + 2 * k, X + 2 * k + 1)
        a("v_cvt_pk_bf16_f32 v26, v26, v27")
        a("v_and_b32 v27, %s, v26\nv_lshlrev_b32 v26, 16, v26", sT0)
        a("v_mul_f32 v26, v26, v5\nv_mul_f32 v27, v27, v5")
        a("v_cvt_pk_bf16_f32 v%d, v26, v27", 16 + k)
    for k in range(0, 8, 2):
        a("ds_write2_b32 v13, v%d, v%d offset0:%d offset1:%d", 16 + k, 17 + k, XN // 4 + k, XN // 4 + k + 1)
    a("ds_write_b32 v13, v24 offset:%d", XN + 32)
    a("v_mul_u32_u24 v11, %d, v12\nv_lshl_add_u32 v11, v8, 3, v11\nv_add_u32 v11, %d, v11", XN_P, XN)
    a("s_and_b32 %s, %s, 3\ns_mul_i32 %s, %s, 288\nv_add_u32 v13, %s, v11", sT0, sIDX, sT0, sT0, sT0)
    for s in range(4):
        a("ds_read2_b64 v[%d:%d], v13 offset0:%d offset1:%d", 40 + 4 * s, 43 + 4 * s, 8 * s, 8 * s + 4)
    a("ds_read_b64 v[56:57], v13 offset:256")
    for r in range(8): a("v_mov_b32 v%d, 0", 60 + r)
    a("v_add_u32 v13, %d, v10", RWQ)
    stamp(2)
    get_tag()
    a("v_lshlrev_b32 v1, 6, v9\nv_lshl_add_u32 v1, v8, 4, v1")
    a("s_lshr_b32 %s, %s, 2\ns_xor_b32 %s, %s, %d", sT0, sIDX, sT0, sT0, o.wqx)
    a("s_lshr_b32 %s, %s, 2\ns_lshl1_add_u32 %s, %s, %s\ns_and_b32 %s, %s, 3\ns_lshl2_add_u32 %s, %s, %s", sT1, sT0, sT1, sX, sT1, sT2, sIDX, sT1, sT1, sT2)
    a("s_and_b32 %s, %s, 3\ns_lshl2_add_u32 %s, %s, %s\ns_lshl2_add_u32 %s, %s, %s", sT0, sT0, sT1, sT1, sT0, sT1, sT1, sW)
    a("s_lshl_b32 %s, %s, 7\ns_add_u32 s93, %s, %d", sT1, sT1, sT1, W_Q)
    a("v_cmp_gt_u32 vcc, 2, v9\ns_mov_b64 %s, vcc", sEX)
    lds_wait_ge(F_PROG, "18", cache=sSEEN)
    for q in range(9):
        a("ds_read_b64_tr_b16 v[%d:%d], v13 offset:%d", 16 + 2 * q, 17 + 2 * q, q * 2048)
    for s in range(4):
        a("s_waitcnt lgkmcnt(%d)", 7 - 2 * s)
        mfma(60, 16 + 4 * s, 40 + 4 * s)
    a("s_waitcnt lgkmcnt(0)")
    a("v_mfma_f32_16x16x16_bf16 v[64:67], v[32:33], v[56:57], v[64:67]")
    flag_add(F_C1)
    a("s_nop 4")
    for r in range(4): a("v_add_f32 v%d, v%d, v%d", 72 + r, 60 + r, 64 + r)
    tag_merge(72)
    a("s_mov_b64 exec, %s", sEX)
    a("buffer_store_dwordx4 v[72:75], v1, %s, s93 offen", srd(RW))
    a("s_mov_b64 exec, -1")
    a("s_mov_b32 s99, s93")
    stamp(3)
    def q_republish():
        get_ver()
        two_way(lambda: None, lambda: a("s_mov_b64 exec, %s\nbuffer_store_dwordx4 v[72:75], v1, %s, s99 offen sc1\ns_mov_b64 exec, -1", sEX, srd(RB)))
    Lh = a.lab("LH")
    a("s_cmp_lg_u32 %s, 82\ns_cbranch_scc1 %s", sB2, Lh)
    q_republish()
    a("s_branch L_w_s2")
    a("%s:" % Lh)
    a("s_mul_i32 %s, %s, 384\nv_add_u32 v13, %s, v11", sT0, sM3, sT0)
    for s in range(6):
        a("ds_read2_b64 v[%d:%d], v13 offset0:%d offset1:%d", 40 + 4 * s, 43 + 4 * s, 8 * s, 8 * s + 4)
    for r in range(8): a("v_mov_b32 v%d, 0", 64 + r)
    gu_pair(sT0, sT1)
    a("s_mul_i32 %s, %s, 3\ns_add_u32 %s, %s, %s\ns_mul_i32 %s, %s, 36864", sT0, sT0, sT0, sT0, sM3, sT0, sT0)
    a("s_lshl3_add_u32 %s, %s, %s\ns_lshl_b32 %s, %s, 7\ns_add_u32 %s, %s, %s\ns_add_u32 s93, %s, %d", sT1, sT1, sW, sT1, sT1, sT0, sT0, sT1, sT0, W_G)
    for s in range(6):
        if s == 5: q_republish()
        lds_wait_ge(F_PROG, str(P_G + 8 * s + 8 + 4 * (s // o.mix)), cache=sSEEN)
        for h in range(2):
            for q in range(2):
                a("ds_read_b64_tr_b16 v[%d:%d], v15 offset:%d", 16 + 4 * h + 2 * q, 17 + 4 * h + 2 * q, s * 8192 + q * 4096 + h * 1024)
        a("s_waitcnt lgkmcnt(2)")
        mfma(64, 16, 40 + 4 * s)
        a("s_waitcnt lgkmcnt(0)")
        mfma(68, 20, 40 + 4 * s)
    stamp(4)
    a("s_nop 5")
    tag_merge(64)
    tag_merge(68)
    a("s_mov_b64 exec, %s", sEX)
    a("buffer_store_dwordx4 v[64:67], v1, %s, s93 offen sc1", srd(RB))
    a("buffer_store_dwordx4 v[68:71], v1, %s, s93 offen offset:512 sc1", srd(RB))
    a("s_mov_b64 exec, -1")
    a("L_w_s2:")
    AC = 80
    a("v_mul_u32_u24 v11, %d, v12\nv_lshl_add_u32 v11, v8, 4, v11", VEC2_P)
    for r in range(8): a("v_mov_b32 v%d, 0", AC + r)
    a("v_add_u32 v10, %d, v10\nv_add_u32 v13, 0x10000, v15", RWQ)
    a("s_and_b32 %s, %s, 3\ns_lshr_b32 %s, %s, 2\ns_lshl3_add_u32 %s, %s, %s", sT2, sTEAM, sT1, sTEAM, sT2, sT2, sT1)
    a("s_lshl2_add_u32 %s, %s, %s\ns_lshl_b32 %s, %s, 12\ns_lshl_b32 %s, %s, 7\ns_add_u32 %s, %s, %s\ns_add_u32 s93, %s, %d\ns_add_u32 s98, s93, 16384", sT0, sX, sW, sT0, sT0, sT1, sT2, sT0, sT0, sT1, sT0, W_F)
    a("s_cmp_ge_u32 %s, 16\ns_cbranch_scc1 L_w_dn", sTEAM)
    a("s_cmp_eq_u32 %s, 7\ns_cbranch_scc1 L_wo2", sX)
    def w1(R, st):
        for q in range(2):
            a("ds_read_b64_tr_b16 v[%d:%d], v10 offset:%d", R + 2 * q, R + 2 * q + 1, st * 4096 + q * 2048)
    def w2(R, st):
        va, off = ("v15", st) if st < 8 else ("v13", st - 8)
        for q, d in enumerate((0, 4096, 1024, 5120)):
            a("ds_read_b64_tr_b16 v[%d:%d], %s offset:%d", R + 2 * q, R + 2 * q + 1, va, off * 8192 + d)
    def vecs(n):
        for st in range(n):
            a("ds_read_b128 v[%d:%d], v11 offset:%d", 16 + 4 * st, 19 + 4 * st, VEC2 + 64 * st)
    def fstore(items, Lend):
        def go(fl):
            for regs, so in items: a("buffer_store_dwordx4 %s, v1, %s, %s offen %s", regs, srd(RW), so, fl)
        two_way(lambda: go(""), lambda: go("sc1"))
    for st in range(0, 8, 2):
        lds_wait_ge(F_PROG, str(130 + 4 * st + 8), cache=sSEEN)
        w1(88 + 4 * st, st); w1(92 + 4 * st, st + 1)
    stamp(5)
    lds_wait_ge(F_VRDY, "4")
    vecs(8)
    for st in range(8):
        a("s_waitcnt lgkmcnt(%d)", 7 - st)
        mfma(AC, 88 + 4 * st, 16 + 4 * st)
    stamp(6)
    a("L_s2_pub:")
    a("s_mov_b64 exec, %s", sEX)
    a("s_nop 6")
    tag_merge(AC, rnd=False)
    fstore([("v[80:83]", "s93")], None)
    a("L_w_end:")
    stamp(7)
    stamps_out()
    a("s_endpgm")
    flush_ool()
    a("L_wo2:")
    for st in range(8):
        lds_wait_ge(F_PROG, str(82 + 8 * st + 8), cache=sSEEN)
        w2(88 + 8 * st, st)
    stamp(5)
    lds_wait_ge(F_VRDY, "4")
    vecs(8)
    for st in range(8):
        a("s_waitcnt lgkmcnt(%d)", 7 - st)
        mfma(AC, 88 + 8 * st, 16 + 4 * st)
        mfma(AC + 4, 92 + 8 * st, 16 + 4 * st)
    stamp(6)
    a("L_s2_pub2:")
    a("s_mov_b64 exec, %s", sEX)
    a("s_nop 5")
    tag_merge(AC, rnd=False)
    tag_merge(AC + 4, rnd=False)
    fstore([("v[80:83]", "s93"), ("v[84:87]", "s98")], None)
    a("s_branch L_w_end")

    a("L_w_dn:")
    NP0 = (o.hpolll - 82) // 8
    a("s_cmp_lg_u32 %s, 7\ns_cbranch_scc1 L_hprep", sX)
    for st in range(NP0):
        lds_wait_ge(F_PROG, str(82 + 8 * st + 8), cache=sSEEN)
        w2(88 + 8 * st, st)
    a("L_hprep:")
    HA, HW, HC = "v60", "v62", "v64"
    a("s_mul_i32 %s, %s, 36\nv_add_u32 v5, %s, v0\nv_lshlrev_b32 %s, 4, v5", sT0, sW, sT0, HA)
    a("s_lshl_b32 %s, %s, 3\ns_add_u32 s48, %s, %d", sT0, sR0, sT0, W_G)
    for k in range(1, 6): a("s_add_u32 s%d, s48, %d", 48 + k, 36864 * k)
    a("v_bfe_u32 v4, v5, 2, 1\nv_mul_u32_u24 %s, %d, v4\nv_lshrrev_b32 v4, 4, v5\nv_lshl_add_u32 %s, v4, 6, %s\nv_and_b32 v4, 3, v5\nv_lshl_add_u32 %s, v4, 4, %s\nv_bfe_u32 v4, v5, 3, 1\nv_lshl_add_u32 %s, v4, 3, %s", HW, VEC2_P, HW, HW, HW, HW, HW, HW)
    c1 = -2.0 * math.sqrt(2.0 / math.pi) * math.log2(math.e)
    a("s_mov_b32 s54, 0x%08x\nv_mov_b32 %s, 0x%08x\ns_mov_b32 s55, 0xffff0000", f2u(c1 * 0.044715), HC, f2u(c1))
    a("s_mov_b32 %s, %d\ns_cmp_eq_u32 %s, 82\ns_cselect_b32 %s, %d, %s", sTH, o.hpoll, sB2, sTH, o.hpolll, sTH)
    lds_wait_ge(F_PROG, sTH, cache=sSEEN)
    a("s_mov_b32 exec_hi, 15\ns_mov_b32 %s, 0", sTMO)
    if o.nopoll & 2: a("s_branch L_h_ok")
    a("L_h_poll:")
    for k in range(6):
        a("buffer_load_dwordx4 v[%d:%d], %s, %s, s%d offen sc1", 16 + 4 * k, 19 + 4 * k, HA, srd(RB), 48 + k)
    a("s_add_u32 %s, %s, 1\ns_cmp_gt_u32 %s, 0x8000\ns_cbranch_scc1 L_h_ok", sTMO, sTMO, sTMO)
    a("s_waitcnt vmcnt(0)")
    for k in range(6): tag_bad("v4", 16 + 4 * k, k == 0)
    a("v_and_b32 v4, 0xff, v4\nv_cmp_ne_u32 vcc, 0, v4\ns_and_b64 exec, exec, vcc\ns_cbranch_vccnz L_h_poll")
    a("L_h_ok:")
    a("s_mov_b32 exec_lo, -1\ns_mov_b32 exec_hi, 15")
    a("s_waitcnt vmcnt(0)")
    for B in (16, 28):
        for k in range(4): a("v_add_f32 v%d, v%d, v%d", B + k, B + k, B + 4 + k)
        for k in range(4): a("v_add_f32 v%d, v%d, v%d", B + k, B + k, B + 8 + k)
        a("v_cvt_pk_bf16_f32 v%d, v%d, v%d\nv_cvt_pk_bf16_f32 v%d, v%d, v%d", B + 4, B, B + 1, B + 5, B + 2, B + 3)
        a("v_lshlrev_b32 v%d, 16, v%d\nv_and_b32 v%d, s55, v%d\nv_lshlrev_b32 v%d, 16, v%d\nv_and_b32 v%d, s55, v%d", B, B + 4, B + 1, B + 4, B + 2, B + 5, B + 3, B + 5)
    G, U, T, B = 16, 28, 4, 20
    for k in range(4): a("v_mul_f32 v%d, v%d, v%d", T + k, G + k, G + k)
    for k in range(4): a("v_fma_f32 v%d, v%d, s54, %s", T + k, T + k, HC)
    for k in range(4): a("v_mul_f32 v%d, v%d, v%d", T + k, T + k, G + k)
    for k in range(4): a("v_exp_f32 v%d, v%d", T + k, T + k)
    a("s_nop 0")
    for k in range(4): a("v_add_f32 v%d, 1.0, v%d", T + k, T + k)
    for k in range(4): a("v_rcp_f32 v%d, v%d", T + k, T + k)
    a("s_nop 0")
    for k in range(4): a("v_mul_f32 v%d, v%d, v%d", T + k, T + k, G + k)
    a("v_cvt_pk_bf16_f32 v%d, v%d, v%d\nv_cvt_pk_bf16_f32 v%d, v%d, v%d", B, T, T + 1, B + 1, T + 2, T + 3)
    a("v_lshlrev_b32 v%d, 16, v%d\nv_and_b32 v%d, s55, v%d\nv_lshlrev_b32 v%d, 16, v%d\nv_and_b32 v%d, s55, v%d", T, B, T + 1, B, T + 2, B + 1, T + 3, B + 1)
    for k in range(4): a("v_mul_f32 v%d, v%d, v%d", T + k, T + k, U + k)
    a("v_cvt_pk_bf16_f32 v%d, v%d, v%d\nv_cvt_pk_bf16_f32 v%d, v%d, v%d", B, T, T + 1, B + 1, T + 2, T + 3)
    a("ds_write_b64 %s, v[%d:%d] offset:%d", HW, B, B + 1, VEC2)
    flag_add(F_VRDY)
    stamp(5)
    a("s_cmp_eq_u32 %s, 7\ns_cbranch_scc1 L_dn2", sX)
    lds_wait_ge(F_VRDY, "4")
    stamp(6)
    vecs(9)
    a("s_add_u32 %s, %s, 4", sTH, sB2)
    def d1(st):
        lds_wait_ge(F_PROG, sTH, cache=sSEEN, hot=(0 < st < 8))
        w1(88 + 4 * st, st)
        if st < 8: a("s_add_u32 %s, %s, 4", sTH, sTH)
    d1(0); d1(1)
    for st in range(9):
        if st + 2 < 9: d1(st + 2)
        a("s_waitcnt lgkmcnt(%d)", 2 * (min(st + 2, 8) - st))
        mfma(AC, 88 + 4 * st, 16 + 4 * st)
    a("s_branch L_s2_pub")
    a("L_dn2:")
    d2r = lambda st: 88 + 8 * st if st < 8 else 56
    for st in range(NP0, 7):
        lds_wait_ge(F_PROG, str(82 + 8 * st + 8), cache=sSEEN)
        w2(d2r(st), st)
    lds_wait_ge(F_VRDY, "4")
    stamp(6)
    vecs(9)
    def mm2(st):
        mfma(AC, d2r(st), 16 + 4 * st)
        mfma(AC + 4, d2r(st) + 4, 16 + 4 * st)
    for st in range(7):
        a("s_waitcnt lgkmcnt(%d)", 8 - st)
        mm2(st)
    for st in (7, 8):
        lds_wait_ge(F_PROG, str(82 + 8 * st + 8), cache=sSEEN)
        w2(d2r(st), st)
    a("s_waitcnt lgkmcnt(4)")
    mm2(7)
    a("s_waitcnt lgkmcnt(0)")
    mm2(8)
    a("s_branch L_s2_pub2")
    flush_ool()

    sA = "s90"
    a("L_att:")
    a("s_sub_u32 %s, %s, 5", sA, sWV)
    a("v_lshrrev_b32 v10, 2, v9\nv_mul_u32_u24 v10, %d, v10", KP)
    a("v_and_b32 v11, 3, v0\nv_lshl_add_u32 v10, v11, 8, v10\nv_xor_b32 v11, v11, v8\nv_lshl_add_u32 v10, v11, 4, v10")
    a("s_mul_i32 %s, %s, %d\ns_add_u32 %s, %s, %d\nv_add_u32 v10, %s, v10", sT0, sA, 8 * KP, sT0, sT0, RK, sT0)
    VA = 72
    a("v_mul_u32_u24 v12, %d, v8", VP)
    a("v_lshrrev_b32 v11, 2, v9\nv_lshl_add_u32 v12, v11, 8, v12\nv_lshlrev_b32 v11, 5, v11")
    a("s_lshl_b32 %s, %s, 6\nv_xor_b32 v11, %s, v11\nv_add_u32 v12, v12, v11", sT0, sA, sT0)
    a("v_and_b32 v11, 3, v0\nv_lshl_add_u32 v12, v11, 3, v12")
    a("v_add_u32 v%d, %d, v12", VA, RV)
    a("v_xor_b32 v%d, 32, v%d", VA + 1, VA)
    KF, QF, SC, PF, VF, OA = 16, 48, 64, 16, 32, 56
    a("v_lshlrev_b32 v1, 6, v9\nv_lshl_add_u32 v1, v8, 4, v1")
    a("v_cmp_gt_u32 vcc, 2, v9\ns_mov_b64 %s, vcc", sEX)
    get_tag()
    a("s_cmp_lg_u32 %s, 1\ns_cbranch_scc1 L_a_nov", sA)
    if o.nover == 1: a("v_mov_b32 v4, 1\nds_write_b32 v3, v4 offset:%d\ns_branch L_a_nov", F_VER)
    a("s_getreg_b32 %s, hwreg(HW_REG_XCC_ID, 0, 4)", sT2)
    a("s_lshl_b32 %s, %s, 8\ns_add_u32 %s, %s, %d\ns_lshl3_add_u32 %s, %s, %s", sT0, sX, sT0, sT0, W_END, sT1, sIDX, sT0)
    a("v_mov_b32 v4, %s\nv_mov_b32 v5, %s\nv_lshlrev_b32 v11, 3, v0", sTAG, sT2)
    def v2_store():
        a("s_mov_b64 exec, 1\nbuffer_store_dwordx2 v[4:5], v3, %s, %s offen offset:2048 sc1\ns_mov_b32 exec_lo, -1", srd(RW), sT1)
    a("s_mov_b64 exec, 1\nbuffer_store_dwordx2 v[4:5], v3, %s, %s offen\ns_mov_b64 exec, -1", srd(RW), sT1)
    lds_wait_ge(F_PROG, str(o.vpoll), cache=sSEEN)
    a("s_mov_b32 exec_hi, 0\ns_mov_b32 %s, 0", sTMO)
    a("L_a_vpoll:")
    a("buffer_load_dwordx2 v[6:7], v11, %s, %s offen nt", srd(RW), sT0)
    a("s_add_u32 %s, %s, 1\ns_cmp_lt_u32 %s, %d\ns_cbranch_scc1 L_a_v1", sTMO, sTMO, sTMO, o.vesc)
    a("s_cmp_lg_u32 %s, %d\ns_cbranch_scc1 L_a_v2", sTMO, o.vesc)
    v2_store()
    a("L_a_v2:")
    a("buffer_load_dwordx2 v[16:17], v11, %s, %s offen offset:2048 sc1", srd(RW), sT0)
    a("s_waitcnt vmcnt(0)")
    a("v_cmp_eq_u32 vcc, %s, v16\ns_nop 1\nv_cndmask_b32 v6, v6, v16, vcc\nv_cndmask_b32 v7, v7, v17, vcc", sTAG)
    a("s_cmp_gt_u32 %s, 0x8000\ns_cbranch_scc1 L_a_vok", sTMO)
    a("L_a_v1:")
    a("s_waitcnt vmcnt(0)")
    a("v_cmp_ne_u32 vcc, %s, v6\ns_cbranch_vccnz L_a_vpoll", sTAG)
    a("L_a_vok:")
    a("v_cmp_ne_u32 vcc, %s, v7", sT2)
    a("s_cmp_eq_u64 vcc, 0\ns_cselect_b32 %s, %d, 2\nv_mov_b32 v6, %s", sT0, 1 if o.local else 2, sT0)
    a("ds_write_b32 v3, v6 offset:%d", F_VER)
    a("s_cmp_eq_u32 %s, 1\ns_cbranch_scc1 L_a_vend", sT0)
    v2_store()
    a("L_a_vend:")
    a("s_mov_b64 exec, -1")
    a("L_a_nov:")
    a("s_cmp_lg_u32 %s, 0\ns_cbranch_scc1 L_a_k", sA)
    lds_wait_ge(F_PROG, str(o.qpoll), cache=sSEEN)
    a("v_lshrrev_b32 v11, 2, v0\nv_lshlrev_b32 v11, 7, v11\nv_and_b32 v12, 3, v0\nv_lshl_add_u32 v11, v12, 4, v11")
    a("s_lshl_b32 %s, %s, 13\ns_lshr_b32 %s, %s, 3\ns_lshl_b32 %s, %s, 6\ns_add_u32 %s, %s, %s\ns_add_u32 %s, %s, %d\ns_add_u32 %s, %s, 4096",
      sT0, sG, sT1, sI, sT1, sT1, sT0, sT0, sT1, sT0, sT0, W_Q, sT1, sT0)
    a("s_mov_b32 %s, 0", sTMO)
    if o.nopoll & 1: a("s_branch L_a_qok")
    a("s_mov_b32 %s, 1\ns_mov_b32 s53, 0", sVER)
    a("L_a_qpoll:")
    fetch([(16 + 4 * r, "v11", sT0 if r < 2 else sT1, (r & 1) * 2048) for r in range(4)], o.qld)
    a("s_add_u32 s53, s53, 1\ns_cmp_gt_u32 s53, 0x8000\ns_cbranch_scc1 L_a_qok")
    a("s_waitcnt vmcnt(0)")
    for r in range(4): tag_bad("v4", 16 + 4 * r, r == 0)
    a("v_and_b32 v4, 0xff, v4\nv_cmp_ne_u32 vcc, 0, v4\ns_cbranch_vccz L_a_qok")
    a("s_mov_b32 %s, 0", sVER)
    get_ver()
    a("s_branch L_a_qpoll")
    a("L_a_qok:")
    a("s_mov_b32 %s, 0", sVER)
    a("s_waitcnt vmcnt(0)")
    for k in range(4):
        a("v_add_f32 v%d, v%d, v%d\nv_add_f32 v%d, v%d, v%d\nv_add_f32 v%d, v%d, v%d", 16 + k, 16 + k, 20 + k, 24 + k, 24 + k, 28 + k, 16 + k, 16 + k, 24 + k)
    a("v_cvt_pk_bf16_f32 v4, v16, v17\nv_cvt_pk_bf16_f32 v5, v18, v19")
    a("v_lshlrev_b32 v11, 3, v0\nv_mov_b32 v6, 1")
    a("ds_write_b64 v11, v[4:5] offset:%d", QV)
    a("ds_write_b32 v3, v6 offset:%d", F_QRDY)
    a("L_a_k:")
    vP, vPW, vM, vMW, vOL, vOW, sOL = "v74", "v75", "v80", "v81", "v82", "v83", "s57"
    a("v_and_b32 v12, 1, v0\nv_lshlrev_b32 %s, 6, v12\nv_lshl_add_u32 %s, v8, 4, %s", vP, vP, vP)
    a("s_lshl_b32 %s, %s, 7\nv_add_u32 %s, %s, %s", sT3, sA, vPW, sT3, vP)
    a("v_lshlrev_b32 %s, 2, v12\nv_add_u32 %s, %d, %s\ns_lshl_b32 %s, %s, 3\nv_add_u32 %s, %s, %s", vM, vM, MX, vM, sT3, sA, vMW, sT3, vM)
    a("v_lshlrev_b32 v11, 8, v12\nv_lshl_add_u32 v11, v8, 4, v11")
    a("s_lshl4_add_u32 %s, %s, %s\ns_lshl2_add_u32 %s, %s, %s\ns_lshl_b32 %s, %s, 8\ns_add_u32 s93, %s, %d", sT0, sG, sI, sT0, sT0, sA, sT0, sT0, sT0, W_O)
    a("v_lshrrev_b32 v12, 5, v0\nv_and_b32 %s, 31, v0\nv_lshlrev_b32 %s, 4, %s\nv_lshl_add_u32 %s, v12, 12, %s", vOL, vOL, vOL, vOL, vOL)
    a("s_lshl_b32 %s, %s, 14\ns_lshr_b32 %s, %s, 1\ns_lshl_b32 %s, %s, 13\ns_add_u32 %s, %s, %s", sT0, sTEAM, sT1, sA, sT1, sT1, sT0, sT0, sT1)
    a("s_and_b32 %s, %s, 1\ns_lshl_b32 %s, %s, 9\ns_add_u32 %s, %s, %s\ns_add_u32 %s, %s, %d", sT1, sA, sT1, sT1, sT0, sT0, sT1, sOL, sT0, W_O)
    a("v_bfe_u32 %s, v0, 2, 1\nv_lshlrev_b32 %s, 8, %s\nv_lshl_add_u32 %s, v12, 2, %s", vOW, vOW, vOW, vOW, vOW)
    a("v_bfe_u32 v12, v0, 4, 1\nv_lshl_add_u32 %s, v12, 6, %s\nv_and_b32 v12, 3, v0\nv_lshl_add_u32 %s, v12, 4, %s\nv_bfe_u32 v12, v0, 3, 1\nv_lshl_add_u32 %s, v12, 3, %s", vOW, vOW, vOW, vOW, vOW, vOW)
    a("s_lshr_b32 %s, %s, 1\ns_mul_i32 %s, %s, %d\ns_lshr_b32 %s, %s, 2\ns_add_u32 %s, %s, %s\nv_add_u32 %s, %s, %s", sT2, sA, sT2, sT2, VEC2_P, sT1, sT1, sT2, sT2, sT1, vOW, sT2, vOW)
    kpos = [22, 26]
    p_ = 26
    for it in range(6 // o.mix):
        p_ += 8 * o.mix + 4; kpos.append(p_)
    while len(kpos) < 8:
        p_ += 4; kpos.append(p_)
    assert kpos[7] == 98
    pk = lambda l: l[0] | l[1] << 8 | l[2] << 16 | l[3] << 24
    a("s_mov_b32 %s, 0x%x\ns_cmp_eq_u32 %s, 82\ns_cselect_b32 %s, 0x%x, %s", sTH, pk(kpos[1::2]), sB2, sTH, pk([26, 34, 42, 50]), sTH)
    a("s_lshl_b32 %s, %s, 3\ns_lshr_b32 %s, %s, %s\ns_and_b32 %s, %s, 0xff", sT3, sA, sTH, sTH, sT3, sTH, sTH)
    for r in range(8): a("v_mov_b32 v%d, 0", SC + r)
    a("s_mov_b32 %s, 0xffff0000\ns_mov_b32 %s, 0x3db504f3\ns_mov_b32 %s, 0x3fb8aa3b", sT0, sT1, sT2)
    lds_wait_ge(F_QRDY, "1")
    stamp(1)
    for c in range(4):
        a("ds_read_b128 v[%d:%d], v11 offset:%d", QF + 4 * c, QF + 4 * c + 3, QV + c * 64)
    get_ver()
    lds_wait_ge(F_PROG, sTH, cache=sSEEN)
    stamp(2)
    for c in range(4):
        for t in range(2):
            a("ds_read_b128 v[%d:%d], v10 offset:%d", KF + 16 * t + 4 * c, KF + 16 * t + 4 * c + 3, t * 4 * KP + c * 64)
    for c in range(4):
        for t in range(2):
            a("s_waitcnt lgkmcnt(%d)", 7 - 2 * c - t)
            mfma(SC + 4 * t, KF + 16 * t + 4 * c, QF + 4 * c)
    a("s_nop 5")
    for k in range(0, 8, 2):
        a("v_cvt_pk_bf16_f32 v4, v%d, v%d", SC + k, SC + k + 1)
        a("v_and_b32 v5, %s, v4\nv_lshlrev_b32 v4, 16, v4", sT0)
        a("v_mul_f32 v4, %s, v4\nv_mul_f32 v5, %s, v5", sT1, sT1)
        a("v_cvt_pk_bf16_f32 v4, v4, v5")
        a("v_and_b32 v%d, %s, v4\nv_lshlrev_b32 v%d, 16, v4", SC + k + 1, sT0, SC + k)
    a("v_max3_f32 v4, v%d, v%d, v%d\nv_max3_f32 v5, v%d, v%d, v%d\nv_max3_f32 v4, v4, v%d, v%d\nv_max_f32 v4, v4, v5", *[SC + k for k in range(8)])
    def rows_allreduce(op, v, t):
        a("v_mov_b32 %s, %s\ns_nop 1\nv_permlane16_swap_b32 %s, %s\n%s %s, %s, %s", t, v, v, t, op, v, v, t)
        a("v_mov_b32 %s, %s\ns_nop 1\nv_permlane32_swap_b32 %s, %s\n%s %s, %s, %s", t, v, v, t, op, v, v, t)
    rows_allreduce("v_max_f32", "v4", "v5")
    a("ds_write_b32 %s, v4", vMW)
    flag_add(F_A1)
    lds_wait_ge(F_A1, "4")
    a("ds_read2_b32 v[4:5], %s offset0:0 offset1:2\nds_read2_b32 v[6:7], %s offset0:4 offset1:6", vM, vM)
    a("s_waitcnt lgkmcnt(0)")
    a("v_max3_f32 v4, v4, v5, v6\nv_max_f32 v4, v4, v7")
    a("v_mul_f32 v15, %s, v4", sT2)
    for k in range(8): a("v_fma_f32 v%d, v%d, %s, -v15", SC + k, SC + k, sT2)
    for k in range(8): a("v_exp_f32 v%d, v%d", SC + k, SC + k)
    for k in range(4): a("v_cvt_pk_bf16_f32 v%d, v%d, v%d", 48 + k, SC + 2 * k, SC + 2 * k + 1)
    a("ds_write_b128 %s, v[48:51] offset:%d", vPW, PB)
    a("v_add_f32 v5, v%d, v%d\nv_add_f32 v6, v%d, v%d", SC, SC + 1, SC + 2, SC + 3)
    a("v_add_f32 v5, v5, v%d\nv_add_f32 v6, v6, v%d\nv_add_f32 v5, v5, v%d\nv_add_f32 v6, v6, v%d\nv_add_f32 v5, v5, v6", SC + 4, SC + 5, SC + 6, SC + 7)
    rows_allreduce("v_add_f32", "v5", "v6")
    a("ds_write_b32 %s, v5 offset:%d", vMW, LS - MX)
    flag_add(F_A2)
    for r in range(8): a("v_mov_b32 v%d, 0", OA + r)
    a("s_sub_u32 %s, %s, 24", sTH, sB2)
    lds_wait_ge(F_A2, "4")
    a("ds_read2_b32 v[4:5], %s offset0:8 offset1:10\nds_read2_b32 v[6:7], %s offset0:12 offset1:14", vM, vM)
    for j in range(4):
        a("ds_read_b128 v[%d:%d], %s offset:%d", PF + 4 * j, PF + 4 * j + 3, vP, PB + 128 * j)
    a("s_waitcnt lgkmcnt(4)")
    a("v_add_f32 v4, v4, v5\nv_add_f32 v6, v6, v7\nv_add_f32 v4, v4, v6")
    a("v_log_f32 v5, v4\nv_rcp_f32 v13, v4")
    a("v_mov_b32 v50, %s\nv_mov_b32 v54, %s\nv_add_f32 v51, v15, v5\nv_add_f32 v55, v15, v5", sTAG, sTAG)
    stamp(3)
    def pv_reads(j):
        lds_wait_ge(F_PROG, sTH, cache=sSEEN, hot=(0 < j < 3))
        for d in range(2):
            for t in range(2):
                R = VF + 8 * (j & 1) + 4 * d + 2 * t
                a("ds_read_b64_tr_b16 v[%d:%d], v%d offset:%d", R, R + 1, VA + d, (j * 8 + t * 4) * VP)
        if j < 3: a("s_add_u32 %s, %s, 8", sTH, sTH)
    def pv_mm(j, n):
        a("s_waitcnt lgkmcnt(%d)", n + 2)
        mfma(OA, VF + 8 * (j & 1), PF + 4 * j)
        a("s_waitcnt lgkmcnt(%d)", n)
        mfma(OA + 4, VF + 8 * (j & 1) + 4, PF + 4 * j)
    pv_reads(0)
    for j in range(3):
        pv_reads(j + 1)
        pv_mm(j, 4)
    pv_mm(3, 0)
    a("s_mov_b64 exec, %s", sEX)
    a("s_nop 4")
    for r in range(8): a("v_mul_f32 v%d, v%d, v13", OA + r, OA + r)
    a("v_cvt_pk_bf16_f32 v48, v%d, v%d\nv_cvt_pk_bf16_f32 v49, v%d, v%d", OA, OA + 1, OA + 2, OA + 3)
    a("v_cvt_pk_bf16_f32 v52, v%d, v%d\nv_cvt_pk_bf16_f32 v53, v%d, v%d", OA + 4, OA + 5, OA + 6, OA + 7)
    for regs, off in (("v[48:51]", 0), ("v[52:55]", 128)):
        a("buffer_store_dwordx4 %s, v1, %s, s93 offen offset:%d sc1", regs, srd(RB), off)
    if o.dual:
        two_way(lambda: [a("buffer_store_dwordx4 %s, v1, %s, s93 offen offset:%d", regs, srd(RW), off) for regs, off in (("v[48:51]", 0), ("v[52:55]", 128))], lambda: None)
    a("s_mov_b64 exec, -1")
    stamp(4)
    a("s_cmp_ge_u32 %s, 16\ns_cbranch_scc1 L_a_red", sTEAM)
    if o.dual: a("s_lshr_b32 %s, %s, 1\ns_cmp_eq_u32 %s, %s\ns_cselect_b32 %s, %s, 2", sT3, sTEAM, sT3, sX, sVER, sVER)
    else: a("s_mov_b32 %s, 2", sVER)
    a("s_min_u32 %s, %s, %d", sTH, sEND, o.opoll)
    lds_wait_ge(F_PROG, sTH, cache=sSEEN)
    a("s_mov_b32 %s, 0", sTMO)
    if o.nopoll & 4: a("s_branch L_a_ook")
    a("L_a_opoll:")
    a("s_cmp_eq_u32 %s, 1\ns_cbranch_scc1 L_a_oloc", sVER)
    for k in range(4): a("buffer_load_dwordx4 v[%d:%d], %s, %s, %s offen offset:%d sc1", 16 + 4 * k, 19 + 4 * k, vOL, srd(RB), sOL, k * 1024)
    ool.append(("L_a_oloc", lambda: [a("buffer_load_dwordx4 v[%d:%d], %s, %s, %s offen offset:%d nt", 16 + 4 * k, 19 + 4 * k, vOL, srd(RW), sOL, k * 1024) for k in range(4)], "L_a_ochk"))
    a("L_a_ochk:")
    a("s_add_u32 %s, %s, 1\ns_cmp_gt_u32 %s, 0x8000\ns_cbranch_scc1 L_a_ook", sTMO, sTMO, sTMO)
    a("s_waitcnt vmcnt(0)")
    a("v_xor_b32 v4, %s, v18\nv_xor_b32 v5, %s, v22\nv_xor_b32 v6, %s, v26\nv_xor_b32 v7, %s, v30", sTAG, sTAG, sTAG, sTAG)
    a("v_or3_b32 v4, v4, v5, v6\nv_or_b32 v4, v4, v7")
    a("v_cmp_ne_u32 vcc, 0, v4\ns_and_b64 exec, exec, vcc\ns_cbranch_vccnz L_a_opoll")
    a("L_a_ook:")
    a("s_mov_b64 exec, -1")
    a("s_waitcnt vmcnt(0)")
    stamp(5)
    a("v_max3_f32 v4, v19, v23, v27\nv_max_f32 v4, v4, v31")
    a("v_mov_b32 v5, v4")
    a("v_lshlrev_b32 v32, 16, v16\nv_and_b32 v33, %s, v16", sT0)
    a("v_permlane32_swap_b32 v4, v5\nv_max_f32 v4, v4, v5")
    for k in range(4): a("v_sub_f32 v%d, v%d, v4", 19 + 4 * k, 19 + 4 * k)
    for k in range(4): a("v_exp_f32 v%d, v%d", 19 + 4 * k, 19 + 4 * k)
    a("v_lshlrev_b32 v34, 16, v17\nv_and_b32 v35, %s, v17", sT0)
    for r in range(4): a("v_mul_f32 v%d, v%d, v19", 32 + r, 32 + r)
    a("v_add_f32 v5, v19, v23\nv_add_f32 v6, v27, v31\nv_add_f32 v5, v5, v6\nv_mov_b32 v4, v5")
    for k in range(1, 4):
        w = 19 + 4 * k
        a("v_lshlrev_b32 v6, 16, v%d\nv_and_b32 v7, %s, v%d\nv_fmac_f32 v32, v%d, v6\nv_fmac_f32 v33, v%d, v7", 16 + 4 * k, sT0, 16 + 4 * k, w, w)
        if k == 1: a("v_permlane32_swap_b32 v4, v5\nv_add_f32 v4, v4, v5\nv_rcp_f32 v4, v4")
        a("v_lshlrev_b32 v6, 16, v%d\nv_and_b32 v7, %s, v%d\nv_fmac_f32 v34, v%d, v6\nv_fmac_f32 v35, v%d, v7", 17 + 4 * k, sT0, 17 + 4 * k, w, w)
    a("s_nop 1")
    a("v_permlane32_swap_b32 v32, v34\nv_permlane32_swap_b32 v33, v35")
    a("v_add_f32 v32, v32, v34\nv_add_f32 v33, v33, v35\nv_mul_f32 v32, v32, v4\nv_mul_f32 v33, v33, v4")
    a("v_cvt_pk_bf16_f32 v32, v32, v33")
    a("ds_write_b32 %s, v32 offset:%d", vOW, VEC2)
    flag_add(F_VRDY)
    stamp(6)
    a("s_branch L_a_end")
    sRU = "s56"
    a("L_a_red:")
    a("s_sub_u32 %s, %s, 28\ns_lshl2_add_u32 %s, %s, %s", sT0, sIDX, sRU, sX, sT0)
    a("s_cmp_lt_u32 %s, 4\ns_cbranch_scc1 L_a_red2", sT0)
    a("s_sub_u32 %s, %s, 24\ns_add_u32 %s, %s, 32", sT0, sIDX, sRU, sT0)
    a("s_cmp_ge_u32 %s, 4\ns_cbranch_scc1 L_a_end", sT0)
    a("s_cmp_lg_u32 %s, 7\ns_cbranch_scc1 L_a_end", sX)
    a("L_a_red2:")
    a("s_sub_u32 %s, %s, %d", sTH, sEND, o.fback)
    lds_wait_ge(F_PROG, sTH, cache=sSEEN)
    mk_srd(R1, 22, 2304)
    a("v_bfe_u32 v12, v0, 2, 1\nv_mul_u32_u24 v12, 1152, v12\nv_and_b32 v11, 3, v0\nv_lshl_add_u32 v12, v11, 3, v12")
    a("v_and_b32 v11, 1, v8\nv_lshl_add_u32 v12, v11, 2, v12")
    a("s_lshl_b32 %s, %s, 5\nv_add_u32 v12, %s, v12", sT1, sRU, sT1)
    a("global_load_dword v40, v12, s[4:5]")
    if o.outpre: a("buffer_load_dword v42, v12, %s, 0 offen", srd(R1))
    a("s_lshl_b32 %s, %s, 12\ns_add_u32 %s, %s, %d", sT0, sRU, sT0, sT0, W_F)
    a("v_lshlrev_b32 v11, 4, v0")
    a("s_mov_b32 %s, 0xffff0000\ns_mov_b32 %s, 0", sT1, sTMO)
    a("s_waitcnt vmcnt(0)")
    a("v_and_b32 v41, %s, v40\nv_lshlrev_b32 v40, 16, v40", sT1)
    if True:
        a("s_lshl_b32 %s, %s, 10\ns_add_u32 %s, %s, %s", sT2, sA, sT0, sT0, sT2)
        a("v_and_b32 v10, 7, v0\nv_lshl_add_u32 v10, v8, 3, v10\nv_lshlrev_b32 v10, 3, v10\ns_lshl_b32 %s, %s, 8\nv_add_u32 v13, %s, v10\nv_mov_b32 v6, 1", sT2, sA, sT2)
        if o.nopoll & 8: a("s_branch L_a_fok")
        a("L_a_fpoll:")
        two_way(lambda: a("buffer_load_dwordx4 v[16:19], v11, %s, %s offen %s", srd(RW), sT0, o.fld), lambda: a("buffer_load_dwordx4 v[16:19], v11, %s, %s offen sc1", srd(RW), sT0))
        a("s_add_u32 %s, %s, 1\ns_cmp_gt_u32 %s, 0x8000\ns_cbranch_scc1 L_a_fok", sTMO, sTMO, sTMO)
        a("s_waitcnt vmcnt(0)")
        tag_bad("v4", 16, True)
        a("v_and_b32 v4, 0xff, v4\nv_cmp_ne_u32 vcc, 0, v4\ns_and_b64 exec, exec, vcc\ns_cbranch_vccnz L_a_fpoll")
        a("L_a_fok:")
        a("s_mov_b64 exec, -1")
        stamp(7)
        a("v_permlane16_swap_b32 v16, v18\nv_permlane16_swap_b32 v17, v19")
        a("v_add_f32 v16, v16, v18\nv_add_f32 v17, v17, v19\ns_nop 0")
        a("v_add_f32_dpp v16, v16, v16 row_ror:8 row_mask:0xf bank_mask:0xf\nv_add_f32_dpp v17, v17, v17 row_ror:8 row_mask:0xf bank_mask:0xf")
        a("ds_write_b64 v13, v[16:17] offset:%d", RP)
        a("s_mov_b64 exec, 1\nds_add_rtn_u32 v6, v3, v6 offset:%d\ns_mov_b64 exec, -1", F_RED)
        for k in range(4): a("ds_read_b64 v[%d:%d], v10 offset:%d", 20 + 2 * k, 21 + 2 * k, RP + 256 * k)
        a("s_waitcnt lgkmcnt(4)")
        a("v_readfirstlane_b32 %s, v6", sT3)
        a("s_cmp_lg_u32 %s, 3\ns_cbranch_scc1 L_a_end", sT3)
        a("s_waitcnt lgkmcnt(0)")
        a("v_add_f32 v16, v20, v22\nv_add_f32 v17, v21, v23\nv_add_f32 v18, v24, v26\nv_add_f32 v19, v25, v27")
        a("v_add_f32 v16, v16, v18\nv_add_f32 v17, v17, v19")
    a("v_cvt_pk_bf16_f32 v16, v16, v17\nv_mov_b32 v18, v16\ns_nop 1")
    a("v_permlane32_swap_b32 v16, v18")
    a("v_lshlrev_b32 v6, 16, v16\nv_and_b32 v7, %s, v16", sT1)
    a("v_add_f32 v4, v40, v6\nv_add_f32 v5, v41, v7\nv_cvt_pk_bf16_f32 v4, v4, v5")
    a("v_lshlrev_b32 v6, 16, v18\nv_and_b32 v7, %s, v18", sT1)
    a("v_and_b32 v5, %s, v4\nv_lshlrev_b32 v4, 16, v4", sT1)
    a("s_mov_b64 exec, 0xff00ff")
    a("v_add_f32 v4, v4, v6\nv_add_f32 v5, v5, v7\nv_cvt_pk_bf16_f32 v20, v4, v5")
    a("buffer_store_dword v20, v12, %s, 0 offen %s", srd(R1), o.outpol)
    a("s_cmp_lg_u32 %s, 0\ns_cbranch_scc1 %s", sRU, "L_a_end2" if o.holdf else "L_a_end")
    a("s_mov_b64 exec, 1\nv_mov_b32 v4, %s", sTAG)
    a("buffer_store_dword v4, v3, %s, 0 offen %s", srd(RW), o.eppol)
    if o.holdf:
        a("s_branch L_a_end2")
    a("L_a_end:")
    stamps_out()
    a("L_end:")
    a("s_endpgm")
    if o.holdf:
        a("L_a_end2:")
        if o.holdwg >= 0: a("s_cmp_lg_u32 s2, %d\ns_cbranch_scc1 L_end", o.holdwg)
        a("s_memrealtime s[70:71]\ns_waitcnt lgkmcnt(0)\ns_sub_u32 %s, s70, s86\ns_mul_i32 %s, %s, %d\ns_add_u32 %s, %s, %d", sT1, sT1, sT1, o.holdmul, sT1, sT1, o.holdf)
        a("L_holdf:\ns_memrealtime s[70:71]\ns_waitcnt lgkmcnt(0)\ns_sub_u32 %s, s70, s86\ns_cmp_lt_u32 %s, %s\ns_cbranch_scc1 L_holdf", sT0, sT0, sT1)
        a("s_endpgm")
    flush_ool()
    a("L_code_end:")
    if o.cpf: a(".fill 256, 4, 0xbf800000")

    hdr = open(os.path.join(os.path.dirname(os.path.abspath(__file__)), "header.txt")).read()
    hdr += "; @launch grid=(256,1,1) block=(576,1,1) lds=%d\n" % LDS_TOTAL
    hdr += DOC
    hdr += '.amdgcn_target "amdgcn-amd-amdhsa--gfx950"\n.text\n.globl %s\n.p2align 8\n.type %s,@function\n' % (NAME, NAME)
    ftr = """.section .rodata,"a"
.p2align 6
.amdhsa_kernel %s
  .amdhsa_next_free_vgpr 152
  .amdhsa_next_free_sgpr 102
  .amdhsa_accum_offset 152
  .amdhsa_group_segment_fixed_size 0
  .amdhsa_kernarg_size 96
  .amdhsa_user_sgpr_count 2
  .amdhsa_user_sgpr_kernarg_segment_ptr 1
  .amdhsa_system_sgpr_workgroup_id_x 1
  .amdhsa_float_denorm_mode_32 3
.end_amdhsa_kernel
""" % NAME
    body = a.text()
    if o.nostore:
        body = "\n".join(l for l in body.split("\n") if not ("buffer_store_dwordx4" in l and (o.nostore & 2 or "sc1" in l)))
    return hdr + body + ftr

def parser():
    p = argparse.ArgumentParser()
    p.add_argument("-o", default="-")
    p.add_argument("--depth", type=int, default=24)
    p.add_argument("--diag", type=int, default=0)
    p.add_argument("--qpoll", type=int, default=54)
    p.add_argument("--opoll", type=int, default=150)
    p.add_argument("--hpoll", type=int, default=110)
    p.add_argument("--cpf", type=int, default=1)
    p.add_argument("--sdiag", type=int, default=0)
    p.add_argument("--mix", type=int, default=2)
    p.add_argument("--local", type=int, default=1)
    p.add_argument("--opf", type=int, default=0)
    p.add_argument("--depthv7", type=int, default=0)
    p.add_argument("--depthvw", type=int, default=0)
    p.add_argument("--depthvd", type=int, default=0)
    p.add_argument("--depth7", type=int, default=20)
    p.add_argument("--dual", type=int, default=1)
    p.add_argument("--fback", type=int, default=12)
    p.add_argument("--fld", default="nt")
    p.add_argument("--floc", type=int, default=1)
    p.add_argument("--depth2w", type=int, default=24)
    p.add_argument("--xg", type=int, default=0)
    p.add_argument("--tpoll", type=int, default=0)
    p.add_argument("--tpol", default="nt")
    p.add_argument("--aprio", type=int, default=0)
    p.add_argument("--redmap", type=int, default=0)
    p.add_argument("--qld", default="nt")
    p.add_argument("--hld", default="nt")
    p.add_argument("--old", default="nt")
    p.add_argument("--cpe", type=int, default=1)
    p.add_argument("--xpol", default="")
    p.add_argument("--cpol", default="")
    p.add_argument("--vesc", type=int, default=3)
    p.add_argument("--vstride", type=int, default=3)
    p.add_argument("--vfull", type=int, default=1)
    p.add_argument("--fast0", type=int, default=1)
    p.add_argument("--red4", type=int, default=1)
    p.add_argument("--race", type=int, default=0)
    p.add_argument("--s2early", type=int, default=0)
    p.add_argument("--redbase", type=int, default=216)
    p.add_argument("--fpoll", type=int, default=150)
    p.add_argument("--ltsplit", type=int, default=0)
    p.add_argument("--depthl2", type=int, default=44)
    p.add_argument("--eppol", default="")
    p.add_argument("--wb", type=int, default=0)
    p.add_argument("--wbcb", type=int, default=8)
    p.add_argument("--outpre", type=int, default=0)
    p.add_argument("--tlb", type=int, default=0)
    p.add_argument("--burst", type=int, default=0)
    p.add_argument("--hold", type=int, default=0)
    p.add_argument("--holdf", type=int, default=0)
    p.add_argument("--holdmul", type=int, default=0)
    p.add_argument("--holdwg", type=int, default=0)
    p.add_argument("--wqx", type=int, default=4)
    p.add_argument("--spec", type=int, default=0)
    p.add_argument("--outpol", default="")
    p.add_argument("--nover", type=int, default=0)
    p.add_argument("--depthv", type=int, default=0)
    p.add_argument("--depthl", type=int, default=0)
    p.add_argument("--ltwait", type=int, default=0)
    p.add_argument("--hpolll", type=int, default=114)
    p.add_argument("--touch", type=int, default=6)
    p.add_argument("--vpoll", type=int, default=30)
    p.add_argument("--depth2", type=int, default=24)
    p.add_argument("--sleep", type=int, default=0)
    p.add_argument("--nopoll", type=int, default=0)
    p.add_argument("--nostore", type=int, default=0)
    p.add_argument("--rot", type=int, default=1)
    p.add_argument("--ldonly", type=int, default=0)
    p.add_argument("--pol", default="nt")
    return p

if __name__ == "__main__":
    o = parser().parse_args()
    t = gen(o)
    if o.o == "-": sys.stdout.write(t)
    else: open(o.o, "w").write(t)
```

```python
import sys, argparse, math, struct, os

NAME = "parallel_sum__sliding_block_cached__geglu_ffn__decode_kernel"
f2u = lambda f: struct.unpack("<I", struct.pack("<f", f))[0]

class Asm:
    def __init__(self):
        self.lines = []
        self.n = 0
    def __call__(self, s, *args):
        if args: s = s % args
        for ln in s.strip("\n").split("\n"):
            ln = ln.strip()
            if not ln: continue
            if ln.endswith(":"): self.lines.append(ln)
            else: self.lines.append("    " + ln)
    def lab(self, p="L"):
        self.n += 1
        return "%s_%d" % (p, self.n)
    def text(self): return "\n".join(self.lines) + "\n"

F_PROG, F_QRDY, F_A1, F_A2, F_VRDY, F_C1, F_VER, F_PUB, F_HOK, F_RED = 0, 16, 20, 8, 24, 28, 32, 36, 40, 44
XN, XN_P = 256, 1152
QV = 2560
VEC2, VEC2_P = 3072, 704
MX = 4480
LS = 4512
PB = 4608
RP = 5120
RA = 6144
RWQ = RA + 48 * 1024
RK = RA + 84 * 1024
KP = 1088
RV = RK + 32 * KP
VP = 1152
LDS_TOTAL = RV + 32 * VP
assert LDS_TOTAL <= 163840
W_EPOCH = 0
W_V = 1024
W_Q = 4096
W_G = W_Q + 16 * 8192
W_O = W_G + 6 * 36864
W_AEND = W_O + 256 * 1024
BOFF = 0xa0000
assert W_AEND - W_Q <= BOFF
W_F = W_AEND + BOFF
W_END = W_F + 36 * 4096
W_DIAG = 2 << 20
assert W_END <= W_DIAG
P_G = 26

DOC = """;
"""

def gen(o):
    a = Asm()
    D = o.depth
    diag = o.diag
    sX, sIDX, sG, sI, sWV = "s28", "s29", "s30", "s31", "s32"
    sTEAM, sEND, sNG, sB2, sR0 = "s33", "s34", "s35", "s36", "s37"
    sD3, sM3 = "s38", "s39"
    sT0, sT1, sT2, sT3 = "s40", "s41", "s42", "s43"
    sSEEN, sTMO, sTAG, sVER = "s44", "s45", "s46", "s47"
    sEX = "s[68:69]"
    R0, R1, R2, R3, R4 = 48, 52, 56, 60, 64
    RW = 64
    RB = 60
    ST = 72
    def srd(r): return "s[%d:%d]" % (r, r + 3)
    def mk_srd(r, lo, size):
        a("s_mov_b32 s%d, s%d\ns_mov_b32 s%d, s%d\ns_mov_b32 s%d, 0x%x\ns_mov_b32 s%d, 0x00020000", r, lo, r + 1, lo + 1, r + 2, size, r + 3)
    def stamp(k):
        if diag: a("s_memrealtime s[%d:%d]", ST + 2 * k, ST + 2 * k + 1)
    def stamps_out():
        if not diag: return
        a("s_waitcnt lgkmcnt(0)")
        a("s_mov_b64 exec, -1")
        a("s_lshl_b32 %s, s2, 4\ns_add_u32 %s, %s, %s\ns_lshl_b32 %s, %s, 6\ns_add_u32 %s, %s, 0x%x", sT0, sT0, sT0, sWV, sT0, sT0, sT0, sT0, W_DIAG)
        a("v_mov_b32 v1, %s", sT0)
        for k in range(4):
            for j in range(4): a("v_mov_b32 v%d, s%d", 4 + j, ST + 4 * k + j)
            a("global_store_dwordx4 v1, v[4:7], s[26:27] offset:%d", 16 * k)
            a("s_nop 1")
    ool = []
    def lds_wait_ge(off, thr, cache=None, vt="v2", vz="v3", hot=False):
        if hot:
            Ls, Lr = a.lab("LS"), a.lab("LB")
            a("s_cmp_lt_i32 %s, %s\ns_cbranch_scc1 %s", cache, thr, Ls)
            a("%s:" % Lr)
            ool.append((Ls, lambda: lds_wait_ge(off, thr, cache, vt, vz), Lr))
            return
        L, E = a.lab("LW"), a.lab("LE")
        c = cache or sT3
        if cache:
            a("s_cmp_ge_i32 %s, %s\ns_cbranch_scc1 %s", c, thr, E)
        a("s_mov_b32 %s, 0", sTMO)
        a("%s:" % L)
        if o.sleep: a("s_sleep %d", o.sleep)
        a("ds_read_b32 %s, %s offset:%d", vt, vz, off)
        a("s_add_u32 %s, %s, 1", sTMO, sTMO)
        a("s_cmp_gt_u32 %s, 0x80000\ns_cbranch_scc1 %s", sTMO, E)
        a("s_waitcnt lgkmcnt(0)")
        a("v_readfirstlane_b32 %s, %s", c, vt)
        a("s_cmp_lt_i32 %s, %s\ns_cbranch_scc1 %s", c, thr, L)
        a("%s:" % E)
    def get_tag():
        a("s_waitcnt lgkmcnt(0)")
        a("s_mul_i32 %s, %s, 1664525\ns_add_u32 %s, %s, 1013904223", sTAG, sTAG, sTAG, sTAG)
        a("s_and_b32 s94, %s, 0xff\ns_bfe_u32 s95, %s, 0x80008\ns_bfe_u32 s96, %s, 0x80010\ns_lshr_b32 s97, %s, 24", sTAG, sTAG, sTAG, sTAG)
    def tag_merge(r, rnd=True):
        for k in range(4):
            if rnd: a("v_add_u32 v%d, 0x80, v%d", r + k, r + k)
        for k in range(4):
            a("v_and_or_b32 v%d, v%d, v14, s%d", r + k, r + k, 94 + k)
    def tag_bad(dst, r, first):
        for k in range(4): a("v_xor_b32 v%d, s%d, v%d", r + k, 94 + k, r + k)
        if first: a("v_or3_b32 %s, v%d, v%d, v%d\nv_or_b32 %s, %s, v%d", dst, r, r + 1, r + 2, dst, dst, r + 3)
        else: a("v_or3_b32 %s, %s, v%d, v%d\nv_or3_b32 %s, %s, v%d, v%d", dst, dst, r, r + 1, dst, dst, r + 2, r + 3)
    def flag_add(off, vt="v6"):
        a("s_mov_b64 exec, 1\nv_mov_b32 %s, 1\nds_add_u32 v3, %s offset:%d\ns_mov_b64 exec, -1", vt, vt, off)
    def get_ver():
        lds_wait_ge(F_VER, "1", cache=sVER)
    def two_way(fast, slow):
        Ls, Lr = a.lab("LS"), a.lab("LB")
        a("s_cmp_lg_u32 %s, 1\ns_cbranch_scc1 %s", sVER, Ls)
        fast()
        a("%s:" % Lr)
        ool.append((Ls, slow, Lr))
    def flush_ool():
        for Ls, slow, Lr in ool:
            a("%s:" % Ls)
            slow()
            a("s_branch %s", Lr)
        del ool[:]
    def pub(items):
        def fast():
            for regs, so, off in items:
                a("buffer_store_dwordx4 %s, v1, %s, %s offen offset:%d", regs, srd(RW), so, off)
        def slow():
            for regs, so, off in items:
                a("buffer_store_dwordx4 %s, v1, %s, %s offen offset:%d sc1", regs, srd(RB), so, off)
        two_way(fast, slow)
    def fetch(items, fl="nt"):
        def go(r, f):
            for d, vo, so, off in items:
                a("buffer_load_dwordx4 v[%d:%d], %s, %s, %s offen offset:%d %s", d, d + 3, vo, srd(r), so, off, f)
        two_way(lambda: go(RW, fl), lambda: go(RB, "sc1"))
    def s2pos(n): return (98 if n <= 4 * o.s2early else 130) + n
    def mfma(d, A, B):
        a("v_mfma_f32_16x16x32_bf16 v[%d:%d], v[%d:%d], v[%d:%d], v[%d:%d]", d, d + 3, A, A + 3, B, B + 3, d, d + 3)

    a("%s:" % NAME)
    stamp(0)
    if o.hold or o.holdf: a("s_memrealtime s[86:87]")
    if diag:
        for k in range(1, 8): a("s_mov_b64 s[%d:%d], 0", ST + 2 * k, ST + 2 * k + 1)
    KARG = "s_load_dwordx16 s[4:19], s[0:1], 0\ns_load_dwordx8 s[20:27], s[0:1], 64"
    if o.fast0: a("s_load_dwordx2 s[%d:%d], s[0:1], 24", R0, R0 + 1)
    else: a(KARG)
    a("""
    s_cmp_ge_u32 s2, 256
    s_cbranch_scc1 L_end
    v_lshrrev_b32 v1, 6, v0
    v_and_b32 v0, 63, v0
    v_mov_b32 v3, 0
    """)
    a("v_readfirstlane_b32 %s, v1", sWV)
    a("s_and_b32 %s, s2, 7\ns_lshr_b32 %s, s2, 3", sX, sIDX)
    if o.xg:
        a("s_cmp_lt_u32 %s, 25\ns_cselect_b32 %s, -9, 0\ns_cmp_lt_u32 %s, 9\ns_cselect_b32 %s, 16, %s\ns_add_u32 %s, %s, %s", sIDX, sT0, sIDX, sT0, sT0, sT1, sIDX, sT0)
        a("s_lshr_b32 %s, %s, 4\ns_lshl1_add_u32 %s, %s, %s\ns_and_b32 %s, %s, 15", sT0, sT1, sG, sX, sT0, sI, sT1)
    else:
        a("s_lshr_b32 %s, s2, 7\ns_lshl1_add_u32 %s, %s, %s\ns_and_b32 %s, %s, 15", sT0, sG, sX, sT0, sI, sIDX)
    def code_pf():
        if o.cpf:
            Lc = a.lab("LCP")
            a("s_cmp_lg_u32 %s, 8\ns_cbranch_scc1 %s", sWV, Lc)
            a("s_lshl_b32 %s, %s, 10\ns_cmp_ge_u32 %s, L_code_end-%s\ns_cbranch_scc1 %s", sT0, sI, sT0, NAME, Lc)
            a("s_getpc_b64 s[88:89]")
            a("L_pc:")
            a("s_sub_u32 s88, s88, L_pc-%s\ns_subb_u32 s89, s89, 0", NAME)
            a("v_lshlrev_b32 v4, 4, v0\nv_add_u32 v4, %s, v4", sT0)
            a("global_load_dwordx4 v[76:79], v4, s[88:89] %s", o.cpol)
            a("%s:" % Lc)
    def cons_entry():
        if o.fast0: a(KARG)
        if o.cpe: code_pf()
        a("v_mul_u32_u24 v13, 36, v0")
        a("s_cmp_ge_u32 %s, 5", sWV)
        a("s_waitcnt lgkmcnt(0)")
        a("s_load_dword %s, s[26:27], 0", sTAG)
        a("s_cbranch_scc1 L_cons2")
        a("global_load_dwordx4 v[16:19], v13, s[4:5] %s", o.xpol)
        a("global_load_dwordx4 v[20:23], v13, s[4:5] offset:16 %s", o.xpol)
        a("global_load_dword v24, v13, s[4:5] offset:32 %s", o.xpol)
        a("L_cons2:")
        if not o.cpe: code_pf()
        a("s_branch L_cons3")
    if o.fast0 == 2:
        a("s_cmp_lg_u32 %s, 0\ns_cbranch_scc1 L_cons", sWV)
    else:
        a("s_cmp_eq_u32 %s, 0\ns_cbranch_scc1 L_loader", sWV)
        cons_entry()
    a("L_loader:")

    sOFF, sCNT, sISS, sKV, sRQ = "s90", "s91", "s92", "s93", "s98"
    sO2, sMG = "s99", "s100"
    def prog(depth):
        a("s_add_u32 %s, %s, 4\nv_max_i32 v4, %s, v4", sISS, sISS, sISS)
        a("s_waitcnt vmcnt(%d)", depth - 4)
        a("ds_write_b32 v3, v4 offset:%d", F_PROG)
    def loop_end(L):
        a("s_sub_u32 %s, %s, 1\ns_cmp_lg_u32 %s, 0\ns_cbranch_scc1 %s", sCNT, sCNT, sCNT, L)
    sMK = "s88"
    def kv_group(r, voff, base, pitch, wait=True, depth=None):
        a("s_mov_b32 m0, %s\ns_add_u32 %s, %s, %d", sMK, sMK, sMK, 4 * pitch)
        a("s_lshl_b32 %s, %s, 12\ns_add_u32 %s, %s, %s", sT1, sRQ, sT1, sT1, sKV)
        for k in range(4):
            a("buffer_load_dwordx4 %s, %s, %s offen %s lds", voff, srd(r), sT1, o.pol)
            if k < 3: a("s_add_u32 m0, m0, %d\ns_add_u32 %s, %s, s101", pitch, sT1, sT1)
        a("s_add_u32 %s, %s, 1\ns_and_b32 %s, %s, 7", sRQ, sRQ, sRQ, sRQ)
        if wait: prog(depth or D)
    def kv_loop(r, voff, base, pitch, depth=None):
        L = a.lab("LD")
        a("%s:" % L)
        kv_group(r, voff, base, pitch, True, depth)
        loop_end(L)
    def pair_group(ra, rb, voff, step, depth):
        for k in range(4):
            so = sOFF if k % 2 == 0 else sO2
            a("buffer_load_dwordx4 %s, %s, %s offen %s lds", voff, srd(ra if k % 2 == 0 else rb), so, o.pol)
            a("s_add_u32 m0, m0, s101\ns_add_u32 %s, %s, %s", so, so, step)
        prog(depth)
    def roles():
        a("s_mov_b32 %s, %s\ns_lshl_b32 %s, %s, 8\ns_sub_u32 %s, %s, 16\ns_mul_i32 %s, %s, 288", sTEAM, sIDX, sR0, sIDX, sT0, sIDX, sT0, sT0)
        a("s_cmp_lt_u32 %s, 16\ns_cselect_b32 %s, %s, %s\ns_cselect_b32 %s, 8, 9", sIDX, sR0, sR0, sT0, sNG)
        a("s_cmp_eq_u32 %s, 7\ns_cselect_b32 %s, 1, 0\ns_lshl_b32 %s, %s, %s", sX, sT0, sNG, sNG, sT0)
        a("s_mul_i32 %s, %s, 31\ns_add_u32 %s, %s, %s\ns_cmp_eq_u32 %s, 31\ns_cselect_b32 %s, 255, %s", sT0, sX, sT0, sT0, sIDX, sIDX, sT0, sT0)
        a("s_mul_i32 %s, %s, 171\ns_lshr_b32 %s, %s, 9\ns_mul_i32 %s, %s, 3\ns_sub_u32 %s, %s, %s", sD3, sT0, sD3, sD3, sT1, sD3, sM3, sT0, sT1)
        a("s_mov_b32 %s, 130\ns_cmp_lt_u32 %s, 216\ns_cselect_b32 %s, %s, 82\ns_lshl2_add_u32 %s, %s, %s", sB2, sT0, sB2, sB2, sEND, sNG, sB2)
    def gu_pair(smt, sblk):
        a("s_cmp_ge_u32 %s, 36\ns_cselect_b32 %s, 1, 0\ns_cselect_b32 %s, 36, 0\ns_sub_u32 %s, %s, %s", sD3, smt, sblk, sblk, sD3, sblk)

    a("""
    v_lshrrev_b32 v8, 3, v0
    v_lshrrev_b32 v15, 4, v0
    v_lshlrev_b32 v9, 1, v15
    v_and_b32 v10, 7, v0
    v_xor_b32 v10, v10, v9
    v_lshlrev_b32 v10, 4, v10
    v_lshl_add_u32 v16, v8, 13, v10
    """)
    a("s_and_b32 %s, %s, 3\ns_mul_i32 %s, %s, %d", sT0, sIDX, sOFF, sT0, 144 * 8192)
    a("s_lshr_b32 %s, %s, 2\ns_xor_b32 %s, %s, %d\ns_lshl3_add_u32 %s, %s, %s\ns_lshl_b32 %s, %s, 7\ns_add_u32 %s, %s, %s", sT0, sIDX, sT0, sT0, o.wqx, sT0, sX, sT0, sT0, sT0, sOFF, sOFF, sT0)
    a("s_mov_b32 s%d, 0x480000\ns_mov_b32 s%d, 0x00020000", R0 + 2, R0 + 3)
    a("s_movk_i32 s101, 0x400\ns_mov_b32 %s, 0x10000", sT2)
    a("s_mov_b32 m0, %d", RWQ)
    a("s_setprio 3")
    a("s_waitcnt lgkmcnt(0)")
    if o.sdiag: stamp(5)
    if not o.fast0: a("s_mov_b32 s%d, s10\ns_mov_b32 s%d, s11", R0, R0 + 1)
    fill = ["v_mov_b32 v4, 0", "v_mov_b32 v5, 0", "v_lshlrev_b32 v2, 3, v0", "ds_write_b64 v2, v[4:5]",
            "v_xor_b32 v13, v0, v15", "v_lshlrev_b32 v13, 4, v13",
            "s_mov_b32 s%d, 0x2000000" % (R1 + 2), "s_mov_b32 s%d, 0x00020000" % (R1 + 3),
            "s_lshr_b32 %s, %s, 3" % (sT0, sI), "s_lshl4_add_u32 %s, %s, %s" % (sT0, sT0, sG), "s_lshl_b32 %s, %s, 20" % (sT0, sT0),
            "s_and_b32 %s, %s, 7" % (sT1, sI), "s_lshl_b32 %s, %s, 15" % (sT1, sT1), "s_add_u32 %s, %s, %s" % (sT0, sT0, sT1),
            "s_add_u32 %s, %s, 0xc0000" % (sKV, sT0), *{0: ["s_and_b32 %s, %s, 3" % (sRQ, sIDX), "s_lshl_b32 %s, %s, 1" % (sRQ, sRQ)],
              1: ["s_and_b32 %s, %s, 7" % (sRQ, sIDX), "s_nop 0"],
              2: ["s_add_u32 %s, %s, %s" % (sRQ, sIDX, sX), "s_and_b32 %s, %s, 7" % (sRQ, sRQ)],
              3: ["s_lshl1_add_u32 %s, %s, %s" % (sRQ, sIDX, sG), "s_and_b32 %s, %s, 7" % (sRQ, sRQ)],
              4: ["s_mov_b32 %s, %s" % (sRQ, sX), "s_nop 0"],
              5: ["s_bfe_u32 %s, %s, 0x30002" % (sRQ, sIDX), "s_nop 0"]}[o.rotsel]]
    for k in range(18):
        a("buffer_load_dwordx4 v16, %s, %s offen %s lds", srd(R0), sOFF, o.pol)
        if k == 0 and o.fast0: a(KARG)
        if k < 17:
            a("s_add_u32 m0, m0, s101\ns_add_u32 %s, %s, %s", sOFF, sOFF, sT2)
            a(fill[k])
    if o.sdiag: stamp(6)
    if o.fast0: a("s_waitcnt lgkmcnt(0)")
    a("s_mov_b32 s%d, s6\ns_mov_b32 s%d, s7\ns_mov_b32 %s, %d", R1, R1 + 1, sMK, RK)
    kv_group(R1, "v13", RK, KP, False)
    if D >= 26: kv_group(R1, "v13", RK, KP, False)
    if o.sdiag: stamp(7)
    a("s_waitcnt lgkmcnt(0)")
    a("s_barrier")
    a("""
    v_mul_u32_u24 v12, 1152, v8
    v_add_u32 v12, v12, v10
    v_mul_u32_u24 v11, 9216, v8
    v_add_u32 v11, v11, v10
    v_xor_b32 v14, v0, v9
    v_lshlrev_b32 v14, 4, v14
    """)
    mk_srd(R2, 8, 0x2000000)
    a("s_mov_b32 %s, %d", sISS, (26 if D >= 26 else 22) - (D - 4))
    roles()
    DV, D2, DL = o.depthv or D, o.depth2, o.depthl or D
    sS2 = "s89"
    def drain_step(k):
        a("s_add_u32 %s, %s, 4\nv_max_i32 v4, %s, v4\ns_waitcnt vmcnt(%d)\nds_write_b32 v3, v4 offset:%d", sISS, sISS, sISS, k, F_PROG)
    def redepth(old, new):
        if new > old: a("s_sub_u32 %s, %s, %d", sISS, sISS, new - old)
        for k in range(old - 8, new - 8, -4): drain_step(k)
    a("s_cmp_lt_u32 %s, 16", sTEAM)
    a("s_cselect_b32 s%d, s12, s20\ns_cselect_b32 s%d, s13, s21\ns_mov_b32 s%d, 0x510000\ns_cselect_b32 s%d, 0x480000, s%d\ns_mov_b32 s%d, 0x00020000",
      R3, R3 + 1, R3 + 2, R3 + 2, R3 + 2, R3 + 3)
    a("s_mul_i32 %s, %s, 1152\ns_lshl_b32 %s, %s, 7\ns_add_u32 %s, %s, %s", sS2, sR0, sT1, sX, sS2, sS2, sT1)
    gu_pair(sT0, sT1)
    a("s_cmp_eq_u32 %s, 1\ns_cselect_b32 s%d, s18, s16\ns_cselect_b32 s%d, s19, s17\ns_mov_b32 s%d, 0x510000", sT0, R0, R0 + 1, R0 + 2)
    a("s_mul_i32 %s, %s, %d\ns_lshl_b32 %s, %s, 8\ns_add_u32 %s, %s, %s\ns_add_u32 %s, %s, 128", sOFF, sM3, 192 * 9216, sT1, sT1, sOFF, sOFF, sT1, sO2, sOFF)
    if D < 26:
        a("s_waitcnt vmcnt(%d)", D - 4 + 0)
        kv_group(R1, "v13", RK, KP)
    a("s_mov_b32 %s, 6", sCNT)
    a("s_cmp_eq_u32 %s, 82\ns_cbranch_scc1 L_ld_kv", sB2)
    M = o.mix
    a("s_mov_b32 %s, %d\ns_mov_b32 %s, %d", sMG, RA, sCNT, 6 // M)
    a("L_ld_gu:")
    a("s_mov_b32 m0, %s\ns_add_u32 %s, %s, %d", sMG, sMG, sMG, 8192 * M)
    a("s_mov_b32 %s, %d", sT2, 2 * M)
    a("L_ld_gi:")
    pair_group(R0, R0, "v11", 8 * 9216, D)
    a("s_sub_u32 %s, %s, 1\ns_cmp_lg_u32 %s, 0\ns_cbranch_scc1 L_ld_gi", sT2, sT2, sT2)
    kv_group(R1, "v13", RK, KP)
    loop_end("L_ld_gu")
    if M == 1: a("s_branch L_ld_v")
    else: a("s_mov_b32 %s, %d", sCNT, 6 - 6 // M)
    a("L_ld_kv:")
    kv_loop(R1, "v13", RK, KP)
    a("L_ld_v:")
    stamp(1)
    kinds = {"n": (o.depthv7 or D, o.depth7 or D), "w": (o.depthvw or D, o.depth2w), "d": (o.depthvd or D, o.depth2)}
    DD = min(k[1] for k in kinds.values())
    def tail(t):
        DVt, D2t = kinds[t]
        redepth(D, DVt)
        a("s_mov_b32 %s, 7", sCNT)
        kv_loop(R2, "v14", RV, VP, DVt)
        a("ds_read_b32 v5, v3 offset:%d", F_C1)
        kv_group(R2, "v14", RV, VP, True, DVt)
        stamp(2)
        if not o.ldonly:
            a("s_waitcnt lgkmcnt(0)\nv_readfirstlane_b32 %s, v5", sSEEN)
            lds_wait_ge(F_C1, "4", cache=sSEEN)
        a("s_mov_b32 %s, %s\ns_mov_b32 %s, %s", sOFF, sS2, sCNT, sNG)
        if t == "n":
            a("s_mov_b32 %s, %d\ns_mov_b32 %s, %d\ns_mov_b32 %s, %d", sT0, RWQ, sT1, 8 * 1152, sMG, 16 * 1152)
            a("s_cmp_eq_u32 %s, 7\ns_cselect_b32 m0, %d, %s\ns_cselect_b32 %s, %s, %s\ns_cselect_b32 %s, 128, %s\ns_add_u32 %s, %s, %s", sX, RA, sT0, sMG, sT1, sMG, sT1, sT1, sO2, sOFF, sT1)
        else:
            a("s_mov_b32 m0, %d\ns_mov_b32 %s, %d\ns_add_u32 %s, %s, %d", RWQ, sMG, 16 * 1152, sO2, sOFF, 8 * 1152)
        redepth(DVt, D2t)
        a("L_ld_s2%s:" % t)
        pair_group(R3, R3, "v12", sMG, D2t)
        loop_end("L_ld_s2%s" % t)
        stamp(3)
        redepth(D2t, DD)
    a("s_cmp_eq_u32 %s, 82\ns_cbranch_scc1 L_ld_tn", sB2)
    if kinds["w"] != kinds["d"]:
        a("s_cmp_ge_u32 %s, 16\ns_cbranch_scc1 L_ld_td", sTEAM)
        tail("w")
        a("s_branch L_ld_drain2")
        a("L_ld_td:")
    tail("d")
    a("s_branch L_ld_drain2")
    a("L_ld_tn:")
    tail("n")
    a("L_ld_drain2:")
    for k in range(DD - 8, -1, -4): drain_step(k)
    stamp(4)
    if o.opf and not o.ldonly:
        a("s_cmp_ge_u32 %s, 16\ns_cbranch_scc1 L_ld_end", sTEAM)
        a("s_lshr_b32 %s, %s, 1\ns_cmp_eq_u32 %s, %s\ns_cbranch_scc1 L_ld_end", sT0, sTEAM, sT0, sX)
        a("s_add_u32 s%d, s26, 0x%x\ns_addc_u32 s%d, s27, 0\ns_mov_b32 s%d, 0x%x\ns_mov_b32 s%d, 0x00020000", R4, BOFF, R4 + 1, R4 + 2, W_AEND, R4 + 3)
        a("s_lshl_b32 %s, %s, 14\ns_add_u32 %s, %s, %d\ns_add_u32 %s, %s, 8192\nv_lshlrev_b32 v11, 7, v0\ns_mov_b32 %s, 0", sT0, sTEAM, sT0, sT0, W_O, sT1, sT0, sTMO)
        a("L_ld_opf:")
        a("buffer_load_dword v20, v11, %s, %s offen sc1", srd(R4), sT0)
        a("buffer_load_dword v21, v11, %s, %s offen sc1", srd(R4), sT1)
        a("ds_read_b32 v2, v3 offset:%d", F_VRDY)
        a("s_add_u32 %s, %s, 1\ns_cmp_gt_u32 %s, 0x40000\ns_cbranch_scc1 L_ld_end", sTMO, sTMO, sTMO)
        a("s_waitcnt vmcnt(%d) lgkmcnt(0)", o.opf)
        a("v_readfirstlane_b32 %s, v2", sT3)
        a("s_cmp_lt_i32 %s, 4\ns_cbranch_scc1 L_ld_opf", sT3)
        a("L_ld_end:")
    stamps_out()
    if o.hold:
        a("s_cmp_lg_u32 s2, %d\ns_cbranch_scc1 L_end", o.holdwg)
        a("s_memrealtime s[70:71]\ns_waitcnt lgkmcnt(0)\ns_sub_u32 %s, s70, s86\ns_mul_i32 %s, %s, %d\ns_add_u32 %s, %s, %d", sT1, sT1, sT1, o.holdmul, sT1, sT1, o.hold)
        a("L_hold:\ns_memrealtime s[70:71]\ns_waitcnt lgkmcnt(0)\ns_sub_u32 %s, s70, s86\ns_cmp_lt_u32 %s, %s\ns_cbranch_scc1 L_hold", sT0, sT0, sT1)
    a("s_endpgm")

    if o.fast0 == 2:
        a("L_cons:")
        cons_entry()
    a("L_cons3:")
    a("s_barrier")
    if o.ldonly: a("s_endpgm")
    mk_srd(RW, 26, W_END + 4096)
    a("s_add_u32 s%d, s26, 0x%x\ns_addc_u32 s%d, s27, 0\ns_mov_b32 s%d, 0x%x\ns_mov_b32 s%d, 0x00020000", RB, BOFF, RB + 1, RB + 2, W_AEND, RB + 3)
    a("s_mov_b32 %s, 0", sVER)
    a("s_mov_b32 %s, -1000", sSEEN)
    a("v_lshrrev_b32 v8, 4, v0\nv_and_b32 v9, 15, v0\nv_mov_b32 v14, 0xffffff00")
    roles()
    a("s_cmp_ge_u32 %s, 5\ns_cbranch_scc1 L_att", sWV)

    sW, sIT, sTH = "s90", "s91", "s92"
    a("s_sub_u32 %s, %s, 1", sW, sWV)
    a("v_lshrrev_b32 v11, 3, v0\nv_and_b32 v11, 3, v11\nv_xor_b32 v11, %s, v11", sW)
    a("v_lshlrev_b32 v11, 5, v11\nv_and_b32 v12, 3, v0\nv_lshl_add_u32 v11, v12, 3, v11")
    a("v_lshrrev_b32 v10, 2, v0\nv_lshl_add_u32 v10, v10, 7, v11")
    a("v_lshrrev_b32 v15, 5, v0\nv_lshl_add_u32 v15, v15, 10, v10")
    a("v_add_u32 v15, %d, v15", RA)
    a("v_and_b32 v12, 1, v0")
    a("s_mov_b32 %s, 0xffff0000", sT0)
    a("s_waitcnt vmcnt(0)")
    stamp(1)
    X = 28
    for k in range(9):
        a("v_lshlrev_b32 v%d, 16, v%d\nv_and_b32 v%d, %s, v%d", X + 2 * k, 16 + k, X + 2 * k + 1, sT0, 16 + k)
    def half_allreduce_add(v, t):
        for dp in ("quad_perm:[1,0,3,2]", "quad_perm:[2,3,0,1]", "row_ror:4", "row_ror:8"):
            a("s_nop 1\nv_add_f32_dpp %s, %s, %s %s row_mask:0xf bank_mask:0xf", v, v, v, dp)
        a("v_mov_b32 %s, %s\ns_nop 1\nv_permlane16_swap_b32 %s, %s\nv_add_f32 %s, %s, %s", t, v, v, t, v, v, t)
    a("v_add_f32 v4, v%d, v%d\nv_add_f32 v5, v%d, v%d", X, X + 1, X + 2, X + 3)
    for k in range(4, 18, 2):
        a("v_add_f32 v4, v4, v%d\nv_add_f32 v5, v5, v%d", X + k, X + k + 1)
    a("v_add_f32 v4, v4, v5")
    half_allreduce_add("v4", "v5")
    a("v_mul_f32 v4, 0x3ae38e39, v4\nv_mov_b32 v5, 0\nv_mov_b32 v25, 0")
    for k in range(0, 18, 2):
        a("v_sub_f32 v26, v%d, v4\nv_sub_f32 v27, v%d, v4\nv_fmac_f32 v5, v26, v26\nv_fmac_f32 v25, v27, v27", X + k, X + k + 1)
    a("v_add_f32 v5, v5, v25")
    half_allreduce_add("v5", "v25")
    a("v_mul_f32 v5, 0x3ae38e39, v5")
    a("v_cvt_pk_bf16_f32 v4, v4, v5")
    a("v_and_b32 v5, %s, v4\nv_lshlrev_b32 v4, 16, v4", sT0)
    a("v_add_f32 v5, 0x3727c5ac, v5")
    a("v_cvt_pk_bf16_f32 v5, v5, v5\nv_lshlrev_b32 v5, 16, v5")
    a("v_sqrt_f32 v5, v5\ns_nop 0")
    a("v_cvt_pk_bf16_f32 v5, v5, v5\nv_lshlrev_b32 v5, 16, v5")
    a("v_rcp_f32 v5, v5")
    for k in range(9):
        a("v_sub_f32 v26, v%d, v4\nv_sub_f32 v27, v%d, v4", X + 2 * k, X + 2 * k + 1)
        a("v_cvt_pk_bf16_f32 v26, v26, v27")
        a("v_and_b32 v27, %s, v26\nv_lshlrev_b32 v26, 16, v26", sT0)
        a("v_mul_f32 v26, v26, v5\nv_mul_f32 v27, v27, v5")
        a("v_cvt_pk_bf16_f32 v%d, v26, v27", 16 + k)
    for k in range(0, 8, 2):
        a("ds_write2_b32 v13, v%d, v%d offset0:%d offset1:%d", 16 + k, 17 + k, XN // 4 + k, XN // 4 + k + 1)
    a("ds_write_b32 v13, v24 offset:%d", XN + 32)
    a("v_mul_u32_u24 v11, %d, v12\nv_lshl_add_u32 v11, v8, 3, v11\nv_add_u32 v11, %d, v11", XN_P, XN)
    a("s_and_b32 %s, %s, 3\ns_mul_i32 %s, %s, 288\nv_add_u32 v13, %s, v11", sT0, sIDX, sT0, sT0, sT0)
    for s in range(4):
        a("ds_read2_b64 v[%d:%d], v13 offset0:%d offset1:%d", 40 + 4 * s, 43 + 4 * s, 8 * s, 8 * s + 4)
    a("ds_read_b64 v[56:57], v13 offset:256")
    for r in range(8): a("v_mov_b32 v%d, 0", 60 + r)
    a("v_add_u32 v13, %d, v10", RWQ)
    stamp(2)
    get_tag()
    a("v_lshlrev_b32 v1, 6, v9\nv_lshl_add_u32 v1, v8, 4, v1")
    a("s_lshr_b32 %s, %s, 2\ns_xor_b32 %s, %s, %d", sT0, sIDX, sT0, sT0, o.wqx)
    a("s_lshr_b32 %s, %s, 2\ns_lshl1_add_u32 %s, %s, %s\ns_and_b32 %s, %s, 3\ns_lshl2_add_u32 %s, %s, %s", sT1, sT0, sT1, sX, sT1, sT2, sIDX, sT1, sT1, sT2)
    a("s_and_b32 %s, %s, 3\ns_lshl2_add_u32 %s, %s, %s\ns_lshl2_add_u32 %s, %s, %s", sT0, sT0, sT1, sT1, sT0, sT1, sT1, sW)
    a("s_lshl_b32 %s, %s, 7\ns_add_u32 s93, %s, %d", sT1, sT1, sT1, W_Q)
    a("v_cmp_gt_u32 vcc, 2, v9\ns_mov_b64 %s, vcc", sEX)
    lds_wait_ge(F_PROG, "18", cache=sSEEN)
    for q in range(9):
        a("ds_read_b64_tr_b16 v[%d:%d], v13 offset:%d", 16 + 2 * q, 17 + 2 * q, q * 2048)
    for s in range(4):
        a("s_waitcnt lgkmcnt(%d)", 7 - 2 * s)
        mfma(60, 16 + 4 * s, 40 + 4 * s)
    a("s_waitcnt lgkmcnt(0)")
    a("v_mfma_f32_16x16x16_bf16 v[64:67], v[32:33], v[56:57], v[64:67]")
    flag_add(F_C1)
    a("s_nop 4")
    for r in range(4): a("v_add_f32 v%d, v%d, v%d", 72 + r, 60 + r, 64 + r)
    tag_merge(72)
    a("s_mov_b64 exec, %s", sEX)
    a("buffer_store_dwordx4 v[72:75], v1, %s, s93 offen", srd(RW))
    a("s_mov_b64 exec, -1")
    a("s_mov_b32 s99, s93")
    stamp(3)
    def q_republish():
        get_ver()
        two_way(lambda: None, lambda: a("s_mov_b64 exec, %s\nbuffer_store_dwordx4 v[72:75], v1, %s, s99 offen sc1\ns_mov_b64 exec, -1", sEX, srd(RB)))
    Lh = a.lab("LH")
    a("s_cmp_lg_u32 %s, 82\ns_cbranch_scc1 %s", sB2, Lh)
    q_republish()
    a("s_branch L_w_s2")
    a("%s:" % Lh)
    a("s_mul_i32 %s, %s, 384\nv_add_u32 v13, %s, v11", sT0, sM3, sT0)
    for s in range(6):
        a("ds_read2_b64 v[%d:%d], v13 offset0:%d offset1:%d", 40 + 4 * s, 43 + 4 * s, 8 * s, 8 * s + 4)
    for r in range(8): a("v_mov_b32 v%d, 0", 64 + r)
    gu_pair(sT0, sT1)
    a("s_mul_i32 %s, %s, 3\ns_add_u32 %s, %s, %s\ns_mul_i32 %s, %s, 36864", sT0, sT0, sT0, sT0, sM3, sT0, sT0)
    a("s_lshl3_add_u32 %s, %s, %s\ns_lshl_b32 %s, %s, 7\ns_add_u32 %s, %s, %s\ns_add_u32 s93, %s, %d", sT1, sT1, sW, sT1, sT1, sT0, sT0, sT1, sT0, W_G)
    for s in range(6):
        if s == 5: q_republish()
        lds_wait_ge(F_PROG, str(P_G + 8 * s + 8 + 4 * (s // o.mix)), cache=sSEEN)
        for h in range(2):
            for q in range(2):
                a("ds_read_b64_tr_b16 v[%d:%d], v15 offset:%d", 16 + 4 * h + 2 * q, 17 + 4 * h + 2 * q, s * 8192 + q * 4096 + h * 1024)
        a("s_waitcnt lgkmcnt(2)")
        mfma(64, 16, 40 + 4 * s)
        a("s_waitcnt lgkmcnt(0)")
        mfma(68, 20, 40 + 4 * s)
    stamp(4)
    a("s_nop 5")
    tag_merge(64)
    tag_merge(68)
    a("s_mov_b64 exec, %s", sEX)
    a("buffer_store_dwordx4 v[64:67], v1, %s, s93 offen sc1", srd(RB))
    a("buffer_store_dwordx4 v[68:71], v1, %s, s93 offen offset:512 sc1", srd(RB))
    a("s_mov_b64 exec, -1")
    a("L_w_s2:")
    AC = 80
    a("v_mul_u32_u24 v11, %d, v12\nv_lshl_add_u32 v11, v8, 4, v11", VEC2_P)
    for r in range(8): a("v_mov_b32 v%d, 0", AC + r)
    a("v_add_u32 v10, %d, v10\nv_add_u32 v13, 0x10000, v15", RWQ)
    if o.redc: a("s_mov_b32 %s, %s", sT2, sTEAM)
    else:
        a("s_and_b32 %s, %s, 3\ns_lshr_b32 %s, %s, 2\ns_lshl3_add_u32 %s, %s, %s", sT2, sTEAM, sT1, sTEAM, sT2, sT2, sT1)
    a("s_lshl2_add_u32 %s, %s, %s\ns_lshl_b32 %s, %s, 12\ns_lshl_b32 %s, %s, 7\ns_add_u32 %s, %s, %s\ns_add_u32 s93, %s, %d\ns_add_u32 s98, s93, 16384", sT0, sX, sW, sT0, sT0, sT1, sT2, sT0, sT0, sT1, sT0, W_F)
    a("s_cmp_ge_u32 %s, 16\ns_cbranch_scc1 L_w_dn", sTEAM)
    a("s_cmp_eq_u32 %s, 7\ns_cbranch_scc1 L_wo2", sX)
    def w1(R, st):
        for q in range(2):
            a("ds_read_b64_tr_b16 v[%d:%d], v10 offset:%d", R + 2 * q, R + 2 * q + 1, st * 4096 + q * 2048)
    def w2(R, st):
        va, off = ("v15", st) if st < 8 else ("v13", st - 8)
        for q, d in enumerate((0, 4096, 1024, 5120)):
            a("ds_read_b64_tr_b16 v[%d:%d], %s offset:%d", R + 2 * q, R + 2 * q + 1, va, off * 8192 + d)
    def vecs(n):
        for st in range(n):
            a("ds_read_b128 v[%d:%d], v11 offset:%d", 16 + 4 * st, 19 + 4 * st, VEC2 + 64 * st)
    def fstore(items, Lend):
        def go(fl):
            for regs, so in items: a("buffer_store_dwordx4 %s, v1, %s, %s offen %s", regs, srd(RW), so, fl)
        two_way(lambda: go(""), lambda: go("sc1"))
    for st in range(0, 8, 2):
        lds_wait_ge(F_PROG, str(130 + 4 * st + 8), cache=sSEEN)
        w1(88 + 4 * st, st); w1(92 + 4 * st, st + 1)
    stamp(5)
    if o.bar: a("s_barrier")
    else: lds_wait_ge(F_VRDY, "4")
    vecs(8)
    for st in range(8):
        a("s_waitcnt lgkmcnt(%d)", 7 - st)
        mfma(AC, 88 + 4 * st, 16 + 4 * st)
    stamp(6)
    a("L_s2_pub:")
    a("s_mov_b64 exec, %s", sEX)
    a("s_nop 6")
    tag_merge(AC, rnd=False)
    fstore([("v[80:83]", "s93")], None)
    a("L_w_end:")
    stamp(7)
    stamps_out()
    a("s_endpgm")
    flush_ool()
    a("L_wo2:")
    for st in range(8):
        lds_wait_ge(F_PROG, str(82 + 8 * st + 8), cache=sSEEN)
        w2(88 + 8 * st, st)
    stamp(5)
    if o.bar: a("s_barrier")
    else: lds_wait_ge(F_VRDY, "4")
    vecs(8)
    for st in range(8):
        a("s_waitcnt lgkmcnt(%d)", 7 - st)
        mfma(AC, 88 + 8 * st, 16 + 4 * st)
        mfma(AC + 4, 92 + 8 * st, 16 + 4 * st)
    stamp(6)
    a("L_s2_pub2:")
    a("s_mov_b64 exec, %s", sEX)
    a("s_nop 5")
    tag_merge(AC, rnd=False)
    tag_merge(AC + 4, rnd=False)
    fstore([("v[80:83]", "s93"), ("v[84:87]", "s98")], None)
    a("s_branch L_w_end")

    a("L_w_dn:")
    NP0 = (o.hpolll - 82) // 8
    a("s_cmp_lg_u32 %s, 7\ns_cbranch_scc1 L_hprep", sX)
    for st in range(NP0):
        lds_wait_ge(F_PROG, str(82 + 8 * st + 8), cache=sSEEN)
        w2(88 + 8 * st, st)
    a("L_hprep:")
    HA, HW, HC = "v60", "v62", "v64"
    a("s_mul_i32 %s, %s, 36\nv_add_u32 v5, %s, v0\nv_lshlrev_b32 %s, 4, v5", sT0, sW, sT0, HA)
    a("s_lshl_b32 %s, %s, 3\ns_add_u32 s48, %s, %d", sT0, sR0, sT0, W_G)
    for k in range(1, 6): a("s_add_u32 s%d, s48, %d", 48 + k, 36864 * k)
    a("v_bfe_u32 v4, v5, 2, 1\nv_mul_u32_u24 %s, %d, v4\nv_lshrrev_b32 v4, 4, v5\nv_lshl_add_u32 %s, v4, 6, %s\nv_and_b32 v4, 3, v5\nv_lshl_add_u32 %s, v4, 4, %s\nv_bfe_u32 v4, v5, 3, 1\nv_lshl_add_u32 %s, v4, 3, %s", HW, VEC2_P, HW, HW, HW, HW, HW, HW)
    c1 = -2.0 * math.sqrt(2.0 / math.pi) * math.log2(math.e)
    a("s_mov_b32 s54, 0x%08x\nv_mov_b32 %s, 0x%08x\ns_mov_b32 s55, 0xffff0000", f2u(c1 * 0.044715), HC, f2u(c1))
    a("s_mov_b32 %s, %d\ns_cmp_eq_u32 %s, 82\ns_cselect_b32 %s, %d, %s", sTH, o.hpoll, sB2, sTH, o.hpolll, sTH)
    lds_wait_ge(F_PROG, sTH, cache=sSEEN)
    a("s_mov_b32 exec_hi, 15\ns_mov_b32 %s, 0", sTMO)
    if o.nopoll & 2: a("s_branch L_h_ok")
    a("L_h_poll:")
    for k in range(6):
        a("buffer_load_dwordx4 v[%d:%d], %s, %s, s%d offen sc1", 16 + 4 * k, 19 + 4 * k, HA, srd(RB), 48 + k)
    a("s_add_u32 %s, %s, 1\ns_cmp_gt_u32 %s, 0x8000\ns_cbranch_scc1 L_h_ok", sTMO, sTMO, sTMO)
    a("s_waitcnt vmcnt(0)")
    for k in range(6): tag_bad("v4", 16 + 4 * k, k == 0)
    a("v_and_b32 v4, 0xff, v4\nv_cmp_ne_u32 vcc, 0, v4\ns_and_b64 exec, exec, vcc\ns_cbranch_vccnz L_h_poll")
    a("L_h_ok:")
    a("s_mov_b32 exec_lo, -1\ns_mov_b32 exec_hi, 15")
    a("s_waitcnt vmcnt(0)")
    for B in (16, 28):
        for k in range(4): a("v_add_f32 v%d, v%d, v%d", B + k, B + k, B + 4 + k)
        for k in range(4): a("v_add_f32 v%d, v%d, v%d", B + k, B + k, B + 8 + k)
        a("v_cvt_pk_bf16_f32 v%d, v%d, v%d\nv_cvt_pk_bf16_f32 v%d, v%d, v%d", B + 4, B, B + 1, B + 5, B + 2, B + 3)
        a("v_lshlrev_b32 v%d, 16, v%d\nv_and_b32 v%d, s55, v%d\nv_lshlrev_b32 v%d, 16, v%d\nv_and_b32 v%d, s55, v%d", B, B + 4, B + 1, B + 4, B + 2, B + 5, B + 3, B + 5)
    G, U, T, B = 16, 28, 4, 20
    for k in range(4): a("v_mul_f32 v%d, v%d, v%d", T + k, G + k, G + k)
    for k in range(4): a("v_fma_f32 v%d, v%d, s54, %s", T + k, T + k, HC)
    for k in range(4): a("v_mul_f32 v%d, v%d, v%d", T + k, T + k, G + k)
    for k in range(4): a("v_exp_f32 v%d, v%d", T + k, T + k)
    a("s_nop 0")
    for k in range(4): a("v_add_f32 v%d, 1.0, v%d", T + k, T + k)
    for k in range(4): a("v_rcp_f32 v%d, v%d", T + k, T + k)
    a("s_nop 0")
    for k in range(4): a("v_mul_f32 v%d, v%d, v%d", T + k, T + k, G + k)
    a("v_cvt_pk_bf16_f32 v%d, v%d, v%d\nv_cvt_pk_bf16_f32 v%d, v%d, v%d", B, T, T + 1, B + 1, T + 2, T + 3)
    a("v_lshlrev_b32 v%d, 16, v%d\nv_and_b32 v%d, s55, v%d\nv_lshlrev_b32 v%d, 16, v%d\nv_and_b32 v%d, s55, v%d", T, B, T + 1, B, T + 2, B + 1, T + 3, B + 1)
    for k in range(4): a("v_mul_f32 v%d, v%d, v%d", T + k, T + k, U + k)
    a("v_cvt_pk_bf16_f32 v%d, v%d, v%d\nv_cvt_pk_bf16_f32 v%d, v%d, v%d", B, T, T + 1, B + 1, T + 2, T + 3)
    a("ds_write_b64 %s, v[%d:%d] offset:%d", HW, B, B + 1, VEC2)
    flag_add(F_VRDY)
    stamp(5)
    a("s_cmp_eq_u32 %s, 7\ns_cbranch_scc1 L_dn2", sX)
    lds_wait_ge(F_VRDY, "4")
    stamp(6)
    vecs(9)
    a("s_add_u32 %s, %s, 4", sTH, sB2)
    def d1(st):
        lds_wait_ge(F_PROG, sTH, cache=sSEEN, hot=(0 < st < 8))
        w1(88 + 4 * st, st)
        if st < 8: a("s_add_u32 %s, %s, 4", sTH, sTH)
    d1(0); d1(1)
    for st in range(9):
        if st + 2 < 9: d1(st + 2)
        a("s_waitcnt lgkmcnt(%d)", 2 * (min(st + 2, 8) - st))
        mfma(AC, 88 + 4 * st, 16 + 4 * st)
    a("s_branch L_s2_pub")
    a("L_dn2:")
    d2r = lambda st: 88 + 8 * st if st < 8 else 56
    for st in range(NP0, 7):
        lds_wait_ge(F_PROG, str(82 + 8 * st + 8), cache=sSEEN)
        w2(d2r(st), st)
    lds_wait_ge(F_VRDY, "4")
    stamp(6)
    vecs(9)
    def mm2(st):
        mfma(AC, d2r(st), 16 + 4 * st)
        mfma(AC + 4, d2r(st) + 4, 16 + 4 * st)
    for st in range(7):
        a("s_waitcnt lgkmcnt(%d)", 8 - st)
        mm2(st)
    for st in (7, 8):
        lds_wait_ge(F_PROG, str(82 + 8 * st + 8), cache=sSEEN)
        w2(d2r(st), st)
    a("s_waitcnt lgkmcnt(4)")
    mm2(7)
    a("s_waitcnt lgkmcnt(0)")
    mm2(8)
    a("s_branch L_s2_pub2")
    flush_ool()

    sA = "s90"
    a("L_att:")
    a("s_sub_u32 %s, %s, 5", sA, sWV)
    a("v_lshrrev_b32 v10, 2, v9\nv_mul_u32_u24 v10, %d, v10", KP)
    a("v_and_b32 v11, 3, v0\nv_lshl_add_u32 v10, v11, 8, v10\nv_xor_b32 v11, v11, v8\nv_lshl_add_u32 v10, v11, 4, v10")
    a("s_mul_i32 %s, %s, %d\ns_add_u32 %s, %s, %d\nv_add_u32 v10, %s, v10", sT0, sA, 8 * KP, sT0, sT0, RK, sT0)
    VA = 72
    a("v_mul_u32_u24 v12, %d, v8", VP)
    a("v_lshrrev_b32 v11, 2, v9\nv_lshl_add_u32 v12, v11, 8, v12\nv_lshlrev_b32 v11, 5, v11")
    a("s_lshl_b32 %s, %s, 6\nv_xor_b32 v11, %s, v11\nv_add_u32 v12, v12, v11", sT0, sA, sT0)
    a("v_and_b32 v11, 3, v0\nv_lshl_add_u32 v12, v11, 3, v12")
    a("v_add_u32 v%d, %d, v12", VA, RV)
    a("v_xor_b32 v%d, 32, v%d", VA + 1, VA)
    KF, QF, SC, PF, VF, OA = 16, 48, 64, 16, 32, 56
    a("v_lshlrev_b32 v1, 6, v9\nv_lshl_add_u32 v1, v8, 4, v1")
    a("v_cmp_gt_u32 vcc, 2, v9\ns_mov_b64 %s, vcc", sEX)
    get_tag()
    a("s_cmp_lg_u32 %s, 1\ns_cbranch_scc1 L_a_nov", sA)
    if o.nover == 1: a("v_mov_b32 v4, 1\nds_write_b32 v3, v4 offset:%d\ns_branch L_a_nov", F_VER)
    a("s_getreg_b32 %s, hwreg(HW_REG_XCC_ID, 0, 4)", sT2)
    a("s_lshl_b32 %s, %s, 8\ns_add_u32 %s, %s, %d\ns_lshl3_add_u32 %s, %s, %s", sT0, sX, sT0, sT0, W_END, sT1, sIDX, sT0)
    a("v_mov_b32 v4, %s\nv_mov_b32 v5, %s\nv_lshlrev_b32 v11, 3, v0", sTAG, sT2)
    def v2_store():
        a("s_mov_b64 exec, 1\nbuffer_store_dwordx2 v[4:5], v3, %s, %s offen offset:2048 sc1\ns_mov_b32 exec_lo, -1", srd(RW), sT1)
    a("s_mov_b64 exec, 1\nbuffer_store_dwordx2 v[4:5], v3, %s, %s offen\ns_mov_b64 exec, -1", srd(RW), sT1)
    lds_wait_ge(F_PROG, str(o.vpoll), cache=sSEEN)
    a("s_mov_b32 exec_hi, 0\ns_mov_b32 %s, 0", sTMO)
    a("L_a_vpoll:")
    a("buffer_load_dwordx2 v[6:7], v11, %s, %s offen nt", srd(RW), sT0)
    a("s_add_u32 %s, %s, 1\ns_cmp_lt_u32 %s, %d\ns_cbranch_scc1 L_a_v1", sTMO, sTMO, sTMO, o.vesc)
    a("s_cmp_lg_u32 %s, %d\ns_cbranch_scc1 L_a_v2", sTMO, o.vesc)
    v2_store()
    a("L_a_v2:")
    a("buffer_load_dwordx2 v[16:17], v11, %s, %s offen offset:2048 sc1", srd(RW), sT0)
    a("s_waitcnt vmcnt(0)")
    a("v_cmp_eq_u32 vcc, %s, v16\ns_nop 1\nv_cndmask_b32 v6, v6, v16, vcc\nv_cndmask_b32 v7, v7, v17, vcc", sTAG)
    a("s_cmp_gt_u32 %s, 0x8000\ns_cbranch_scc1 L_a_vok", sTMO)
    a("L_a_v1:")
    a("s_waitcnt vmcnt(0)")
    a("v_cmp_ne_u32 vcc, %s, v6\ns_cbranch_vccnz L_a_vpoll", sTAG)
    a("L_a_vok:")
    a("v_cmp_ne_u32 vcc, %s, v7", sT2)
    a("s_cmp_eq_u64 vcc, 0\ns_cselect_b32 %s, %d, 2\nv_mov_b32 v6, %s", sT0, 1 if o.local else 2, sT0)
    a("ds_write_b32 v3, v6 offset:%d", F_VER)
    a("s_cmp_eq_u32 %s, 1\ns_cbranch_scc1 L_a_vend", sT0)
    v2_store()
    a("L_a_vend:")
    a("s_mov_b64 exec, -1")
    a("L_a_nov:")
    a("s_cmp_lg_u32 %s, 0\ns_cbranch_scc1 L_a_k", sA)
    lds_wait_ge(F_PROG, str(o.qpoll), cache=sSEEN)
    a("v_lshrrev_b32 v11, 2, v0\nv_lshlrev_b32 v11, 7, v11\nv_and_b32 v12, 3, v0\nv_lshl_add_u32 v11, v12, 4, v11")
    a("s_lshl_b32 %s, %s, 13\ns_lshr_b32 %s, %s, 3\ns_lshl_b32 %s, %s, 6\ns_add_u32 %s, %s, %s\ns_add_u32 %s, %s, %d\ns_add_u32 %s, %s, 4096",
      sT0, sG, sT1, sI, sT1, sT1, sT0, sT0, sT1, sT0, sT0, W_Q, sT1, sT0)
    a("s_mov_b32 %s, 0", sTMO)
    if o.nopoll & 1: a("s_branch L_a_qok")
    a("s_mov_b32 %s, 1\ns_mov_b32 s53, 0", sVER)
    a("L_a_qpoll:")
    fetch([(16 + 4 * r, "v11", sT0 if r < 2 else sT1, (r & 1) * 2048) for r in range(4)], o.qld)
    a("s_add_u32 s53, s53, 1\ns_cmp_gt_u32 s53, 0x8000\ns_cbranch_scc1 L_a_qok")
    a("s_waitcnt vmcnt(0)")
    for r in range(4): tag_bad("v4", 16 + 4 * r, r == 0)
    a("v_and_b32 v4, 0xff, v4\nv_cmp_ne_u32 vcc, 0, v4\ns_cbranch_vccz L_a_qok")
    a("s_mov_b32 %s, 0", sVER)
    get_ver()
    a("s_branch L_a_qpoll")
    a("L_a_qok:")
    a("s_mov_b32 %s, 0", sVER)
    a("s_waitcnt vmcnt(0)")
    for k in range(4):
        a("v_add_f32 v%d, v%d, v%d\nv_add_f32 v%d, v%d, v%d\nv_add_f32 v%d, v%d, v%d", 16 + k, 16 + k, 20 + k, 24 + k, 24 + k, 28 + k, 16 + k, 16 + k, 24 + k)
    a("v_cvt_pk_bf16_f32 v4, v16, v17\nv_cvt_pk_bf16_f32 v5, v18, v19")
    a("v_lshlrev_b32 v11, 3, v0\nv_mov_b32 v6, 1")
    a("ds_write_b64 v11, v[4:5] offset:%d", QV)
    a("ds_write_b32 v3, v6 offset:%d", F_QRDY)
    a("L_a_k:")
    vP, vPW, vM, vMW, vOL, vOW, sOL = "v74", "v75", "v80", "v81", "v82", "v83", "s57"
    a("v_and_b32 v12, 1, v0\nv_lshlrev_b32 %s, 6, v12\nv_lshl_add_u32 %s, v8, 4, %s", vP, vP, vP)
    a("s_lshl_b32 %s, %s, 7\nv_add_u32 %s, %s, %s", sT3, sA, vPW, sT3, vP)
    a("v_lshlrev_b32 %s, 2, v12\nv_add_u32 %s, %d, %s\ns_lshl_b32 %s, %s, 3\nv_add_u32 %s, %s, %s", vM, vM, MX, vM, sT3, sA, vMW, sT3, vM)
    a("v_lshlrev_b32 v11, 8, v12\nv_lshl_add_u32 v11, v8, 4, v11")
    a("s_lshl4_add_u32 %s, %s, %s\ns_lshl2_add_u32 %s, %s, %s\ns_lshl_b32 %s, %s, 8\ns_add_u32 s93, %s, %d", sT0, sG, sI, sT0, sT0, sA, sT0, sT0, sT0, W_O)
    a("v_lshrrev_b32 v12, 5, v0\nv_and_b32 %s, 31, v0\nv_lshlrev_b32 %s, 4, %s\nv_lshl_add_u32 %s, v12, 12, %s", vOL, vOL, vOL, vOL, vOL)
    a("s_lshl_b32 %s, %s, 14\ns_lshr_b32 %s, %s, 1\ns_lshl_b32 %s, %s, 13\ns_add_u32 %s, %s, %s", sT0, sTEAM, sT1, sA, sT1, sT1, sT0, sT0, sT1)
    a("s_and_b32 %s, %s, 1\ns_lshl_b32 %s, %s, 9\ns_add_u32 %s, %s, %s\ns_add_u32 %s, %s, %d", sT1, sA, sT1, sT1, sT0, sT0, sT1, sOL, sT0, W_O)
    a("v_bfe_u32 %s, v0, 2, 1\nv_lshlrev_b32 %s, 8, %s\nv_lshl_add_u32 %s, v12, 2, %s", vOW, vOW, vOW, vOW, vOW)
    a("v_bfe_u32 v12, v0, 4, 1\nv_lshl_add_u32 %s, v12, 6, %s\nv_and_b32 v12, 3, v0\nv_lshl_add_u32 %s, v12, 4, %s\nv_bfe_u32 v12, v0, 3, 1\nv_lshl_add_u32 %s, v12, 3, %s", vOW, vOW, vOW, vOW, vOW, vOW)
    a("s_lshr_b32 %s, %s, 1\ns_mul_i32 %s, %s, %d\ns_lshr_b32 %s, %s, 2\ns_add_u32 %s, %s, %s\nv_add_u32 %s, %s, %s", sT2, sA, sT2, sT2, VEC2_P, sT1, sT1, sT2, sT2, sT1, vOW, sT2, vOW)
    kpos = [22, 26]
    p_ = 26
    for it in range(6 // o.mix):
        p_ += 8 * o.mix + 4; kpos.append(p_)
    while len(kpos) < 8:
        p_ += 4; kpos.append(p_)
    assert kpos[7] == 98
    pk = lambda l: l[0] | l[1] << 8 | l[2] << 16 | l[3] << 24
    a("s_mov_b32 %s, 0x%x\ns_cmp_eq_u32 %s, 82\ns_cselect_b32 %s, 0x%x, %s", sTH, pk(kpos[1::2]), sB2, sTH, pk([26, 34, 42, 50]), sTH)
    a("s_lshl_b32 %s, %s, 3\ns_lshr_b32 %s, %s, %s\ns_and_b32 %s, %s, 0xff", sT3, sA, sTH, sTH, sT3, sTH, sTH)
    for r in range(8): a("v_mov_b32 v%d, 0", SC + r)
    a("s_mov_b32 %s, 0xffff0000\ns_mov_b32 %s, 0x3db504f3\ns_mov_b32 %s, 0x3fb8aa3b", sT0, sT1, sT2)
    lds_wait_ge(F_QRDY, "1")
    stamp(1)
    for c in range(4):
        a("ds_read_b128 v[%d:%d], v11 offset:%d", QF + 4 * c, QF + 4 * c + 3, QV + c * 64)
    get_ver()
    lds_wait_ge(F_PROG, sTH, cache=sSEEN)
    stamp(2)
    for c in range(4):
        for t in range(2):
            a("ds_read_b128 v[%d:%d], v10 offset:%d", KF + 16 * t + 4 * c, KF + 16 * t + 4 * c + 3, t * 4 * KP + c * 64)
    for c in range(4):
        for t in range(2):
            a("s_waitcnt lgkmcnt(%d)", 7 - 2 * c - t)
            mfma(SC + 4 * t, KF + 16 * t + 4 * c, QF + 4 * c)
    a("s_nop 5")
    for k in range(0, 8, 2):
        a("v_cvt_pk_bf16_f32 v4, v%d, v%d", SC + k, SC + k + 1)
        a("v_and_b32 v5, %s, v4\nv_lshlrev_b32 v4, 16, v4", sT0)
        a("v_mul_f32 v4, %s, v4\nv_mul_f32 v5, %s, v5", sT1, sT1)
        a("v_cvt_pk_bf16_f32 v4, v4, v5")
        a("v_and_b32 v%d, %s, v4\nv_lshlrev_b32 v%d, 16, v4", SC + k + 1, sT0, SC + k)
    a("v_max3_f32 v4, v%d, v%d, v%d\nv_max3_f32 v5, v%d, v%d, v%d\nv_max3_f32 v4, v4, v%d, v%d\nv_max_f32 v4, v4, v5", *[SC + k for k in range(8)])
    def rows_allreduce(op, v, t):
        a("v_mov_b32 %s, %s\ns_nop 1\nv_permlane16_swap_b32 %s, %s\n%s %s, %s, %s", t, v, v, t, op, v, v, t)
        a("v_mov_b32 %s, %s\ns_nop 1\nv_permlane32_swap_b32 %s, %s\n%s %s, %s, %s", t, v, v, t, op, v, v, t)
    rows_allreduce("v_max_f32", "v4", "v5")
    a("ds_write_b32 %s, v4", vMW)
    flag_add(F_A1)
    lds_wait_ge(F_A1, "4")
    a("ds_read2_b32 v[4:5], %s offset0:0 offset1:2\nds_read2_b32 v[6:7], %s offset0:4 offset1:6", vM, vM)
    a("s_waitcnt lgkmcnt(0)")
    a("v_max3_f32 v4, v4, v5, v6\nv_max_f32 v4, v4, v7")
    a("v_mul_f32 v15, %s, v4", sT2)
    for k in range(8): a("v_fma_f32 v%d, v%d, %s, -v15", SC + k, SC + k, sT2)
    for k in range(8): a("v_exp_f32 v%d, v%d", SC + k, SC + k)
    for k in range(4): a("v_cvt_pk_bf16_f32 v%d, v%d, v%d", 48 + k, SC + 2 * k, SC + 2 * k + 1)
    a("ds_write_b128 %s, v[48:51] offset:%d", vPW, PB)
    a("v_add_f32 v5, v%d, v%d\nv_add_f32 v6, v%d, v%d", SC, SC + 1, SC + 2, SC + 3)
    a("v_add_f32 v5, v5, v%d\nv_add_f32 v6, v6, v%d\nv_add_f32 v5, v5, v%d\nv_add_f32 v6, v6, v%d\nv_add_f32 v5, v5, v6", SC + 4, SC + 5, SC + 6, SC + 7)
    rows_allreduce("v_add_f32", "v5", "v6")
    a("ds_write_b32 %s, v5 offset:%d", vMW, LS - MX)
    flag_add(F_A2)
    for r in range(8): a("v_mov_b32 v%d, 0", OA + r)
    a("s_sub_u32 %s, %s, 24", sTH, sB2)
    lds_wait_ge(F_A2, "4")
    a("ds_read2_b32 v[4:5], %s offset0:8 offset1:10\nds_read2_b32 v[6:7], %s offset0:12 offset1:14", vM, vM)
    for j in range(4):
        a("ds_read_b128 v[%d:%d], %s offset:%d", PF + 4 * j, PF + 4 * j + 3, vP, PB + 128 * j)
    a("s_waitcnt lgkmcnt(4)")
    a("v_add_f32 v4, v4, v5\nv_add_f32 v6, v6, v7\nv_add_f32 v4, v4, v6")
    a("v_log_f32 v5, v4\nv_rcp_f32 v13, v4")
    a("v_mov_b32 v50, %s\nv_mov_b32 v54, %s\nv_add_f32 v51, v15, v5\nv_add_f32 v55, v15, v5", sTAG, sTAG)
    stamp(3)
    def pv_reads(j):
        lds_wait_ge(F_PROG, sTH, cache=sSEEN, hot=(0 < j < 3))
        for d in range(2):
            for t in range(2):
                R = VF + 8 * (j & 1) + 4 * d + 2 * t
                a("ds_read_b64_tr_b16 v[%d:%d], v%d offset:%d", R, R + 1, VA + d, (j * 8 + t * 4) * VP)
        if j < 3: a("s_add_u32 %s, %s, 8", sTH, sTH)
    def pv_mm(j, n):
        a("s_waitcnt lgkmcnt(%d)", n + 2)
        mfma(OA, VF + 8 * (j & 1), PF + 4 * j)
        a("s_waitcnt lgkmcnt(%d)", n)
        mfma(OA + 4, VF + 8 * (j & 1) + 4, PF + 4 * j)
    pv_reads(0)
    for j in range(3):
        pv_reads(j + 1)
        pv_mm(j, 4)
    pv_mm(3, 0)
    a("s_mov_b64 exec, %s", sEX)
    a("s_nop 4")
    for r in range(8): a("v_mul_f32 v%d, v%d, v13", OA + r, OA + r)
    a("v_cvt_pk_bf16_f32 v48, v%d, v%d\nv_cvt_pk_bf16_f32 v49, v%d, v%d", OA, OA + 1, OA + 2, OA + 3)
    a("v_cvt_pk_bf16_f32 v52, v%d, v%d\nv_cvt_pk_bf16_f32 v53, v%d, v%d", OA + 4, OA + 5, OA + 6, OA + 7)
    for regs, off in (("v[48:51]", 0), ("v[52:55]", 128)):
        a("buffer_store_dwordx4 %s, v1, %s, s93 offen offset:%d sc1", regs, srd(RB), off)
    if o.dual:
        two_way(lambda: [a("buffer_store_dwordx4 %s, v1, %s, s93 offen offset:%d", regs, srd(RW), off) for regs, off in (("v[48:51]", 0), ("v[52:55]", 128))], lambda: None)
    a("s_mov_b64 exec, -1")
    stamp(4)
    a("s_cmp_ge_u32 %s, 16\ns_cbranch_scc1 L_a_red", sTEAM)
    if o.dual: a("s_lshr_b32 %s, %s, 1\ns_cmp_eq_u32 %s, %s\ns_cselect_b32 %s, %s, 2", sT3, sTEAM, sT3, sX, sVER, sVER)
    else: a("s_mov_b32 %s, 2", sVER)
    a("s_min_u32 %s, %s, %d", sTH, sEND, o.opoll)
    lds_wait_ge(F_PROG, sTH, cache=sSEEN)
    a("s_mov_b32 %s, 0", sTMO)
    if o.nopoll & 4: a("s_branch L_a_ook")
    a("L_a_opoll:")
    a("s_cmp_eq_u32 %s, 1\ns_cbranch_scc1 L_a_oloc", sVER)
    for k in range(4): a("buffer_load_dwordx4 v[%d:%d], %s, %s, %s offen offset:%d sc1", 16 + 4 * k, 19 + 4 * k, vOL, srd(RB), sOL, k * 1024)
    ool.append(("L_a_oloc", lambda: [a("buffer_load_dwordx4 v[%d:%d], %s, %s, %s offen offset:%d nt", 16 + 4 * k, 19 + 4 * k, vOL, srd(RW), sOL, k * 1024) for k in range(4)], "L_a_ochk"))
    a("L_a_ochk:")
    a("s_add_u32 %s, %s, 1\ns_cmp_gt_u32 %s, 0x8000\ns_cbranch_scc1 L_a_ook", sTMO, sTMO, sTMO)
    a("s_waitcnt vmcnt(0)")
    a("v_xor_b32 v4, %s, v18\nv_xor_b32 v5, %s, v22\nv_xor_b32 v6, %s, v26\nv_xor_b32 v7, %s, v30", sTAG, sTAG, sTAG, sTAG)
    a("v_or3_b32 v4, v4, v5, v6\nv_or_b32 v4, v4, v7")
    a("v_cmp_ne_u32 vcc, 0, v4\ns_and_b64 exec, exec, vcc\ns_cbranch_vccnz L_a_opoll")
    a("L_a_ook:")
    a("s_mov_b64 exec, -1")
    a("s_waitcnt vmcnt(0)")
    stamp(5)
    a("v_max3_f32 v4, v19, v23, v27\nv_max_f32 v4, v4, v31")
    a("v_mov_b32 v5, v4")
    a("v_lshlrev_b32 v32, 16, v16\nv_and_b32 v33, %s, v16", sT0)
    a("v_permlane32_swap_b32 v4, v5\nv_max_f32 v4, v4, v5")
    for k in range(4): a("v_sub_f32 v%d, v%d, v4", 19 + 4 * k, 19 + 4 * k)
    for k in range(4): a("v_exp_f32 v%d, v%d", 19 + 4 * k, 19 + 4 * k)
    a("v_lshlrev_b32 v34, 16, v17\nv_and_b32 v35, %s, v17", sT0)
    for r in range(4): a("v_mul_f32 v%d, v%d, v19", 32 + r, 32 + r)
    a("v_add_f32 v5, v19, v23\nv_add_f32 v6, v27, v31\nv_add_f32 v5, v5, v6\nv_mov_b32 v4, v5")
    for k in range(1, 4):
        w = 19 + 4 * k
        a("v_lshlrev_b32 v6, 16, v%d\nv_and_b32 v7, %s, v%d\nv_fmac_f32 v32, v%d, v6\nv_fmac_f32 v33, v%d, v7", 16 + 4 * k, sT0, 16 + 4 * k, w, w)
        if k == 1: a("v_permlane32_swap_b32 v4, v5\nv_add_f32 v4, v4, v5\nv_rcp_f32 v4, v4")
        a("v_lshlrev_b32 v6, 16, v%d\nv_and_b32 v7, %s, v%d\nv_fmac_f32 v34, v%d, v6\nv_fmac_f32 v35, v%d, v7", 17 + 4 * k, sT0, 17 + 4 * k, w, w)
    a("s_nop 1")
    a("v_permlane32_swap_b32 v32, v34\nv_permlane32_swap_b32 v33, v35")
    a("v_add_f32 v32, v32, v34\nv_add_f32 v33, v33, v35\nv_mul_f32 v32, v32, v4\nv_mul_f32 v33, v33, v4")
    a("v_cvt_pk_bf16_f32 v32, v32, v33")
    a("ds_write_b32 %s, v32 offset:%d", vOW, VEC2)
    if o.bar == 2: a("s_waitcnt lgkmcnt(0)\ns_barrier")
    elif o.bar: a("s_waitcnt lgkmcnt(0)")
    else: flag_add(F_VRDY)
    stamp(6)
    a("s_branch L_a_end")
    sRU = "s56"
    a("L_a_red:")
    a("s_sub_u32 %s, %s, 28\ns_lshl2_add_u32 %s, %s, %s", sT0, sIDX, sRU, sX, sT0)
    a("s_cmp_lt_u32 %s, 4\ns_cbranch_scc1 L_a_red2", sT0)
    a("s_sub_u32 %s, %s, 24\ns_add_u32 %s, %s, 32", sT0, sIDX, sRU, sT0)
    a("s_cmp_ge_u32 %s, 4\ns_cbranch_scc1 L_a_end", sT0)
    a("s_cmp_lg_u32 %s, 7\ns_cbranch_scc1 L_a_end", sX)
    a("L_a_red2:")
    a("s_sub_u32 %s, %s, %d", sTH, sEND, o.fback)
    lds_wait_ge(F_PROG, sTH, cache=sSEEN)
    mk_srd(R1, 22, 2304)
    if not o.redc:
        a("v_bfe_u32 v12, v0, 2, 1\nv_mul_u32_u24 v12, 1152, v12\nv_and_b32 v11, 3, v0\nv_lshl_add_u32 v12, v11, 3, v12")
        a("v_and_b32 v11, 1, v8\nv_lshl_add_u32 v12, v11, 2, v12")
        a("s_lshl_b32 %s, %s, 5\nv_add_u32 v12, %s, v12", sT1, sRU, sT1)
        a("global_load_dword v40, v12, s[4:5]")
        if o.outpre: a("buffer_load_dword v42, v12, %s, 0 offen", srd(R1))
        a("s_lshl_b32 %s, %s, 12\ns_add_u32 %s, %s, %d", sT0, sRU, sT0, sT0, W_F)
        a("v_lshlrev_b32 v11, 4, v0")
        a("s_mov_b32 %s, 0xffff0000\ns_mov_b32 %s, 0", sT1, sTMO)
        a("s_waitcnt vmcnt(0)")
        a("v_and_b32 v41, %s, v40\nv_lshlrev_b32 v40, 16, v40", sT1)
        if True:
            a("s_lshl_b32 %s, %s, 10\ns_add_u32 %s, %s, %s", sT2, sA, sT0, sT0, sT2)
            a("v_and_b32 v10, 7, v0\nv_lshl_add_u32 v10, v8, 3, v10\nv_lshlrev_b32 v10, 3, v10\ns_lshl_b32 %s, %s, 8\nv_add_u32 v13, %s, v10\nv_mov_b32 v6, 1", sT2, sA, sT2)
            if o.nopoll & 8: a("s_branch L_a_fok")
            a("L_a_fpoll:")
            two_way(lambda: a("buffer_load_dwordx4 v[16:19], v11, %s, %s offen %s", srd(RW), sT0, o.fld), lambda: a("buffer_load_dwordx4 v[16:19], v11, %s, %s offen sc1", srd(RW), sT0))
            a("s_add_u32 %s, %s, 1\ns_cmp_gt_u32 %s, 0x8000\ns_cbranch_scc1 L_a_fok", sTMO, sTMO, sTMO)
            a("s_waitcnt vmcnt(0)")
            tag_bad("v4", 16, True)
            a("v_and_b32 v4, 0xff, v4\nv_cmp_ne_u32 vcc, 0, v4\ns_and_b64 exec, exec, vcc\ns_cbranch_vccnz L_a_fpoll")
            a("L_a_fok:")
            a("s_mov_b64 exec, -1")
            stamp(7)
            a("v_permlane16_swap_b32 v16, v18\nv_permlane16_swap_b32 v17, v19")
            a("v_add_f32 v16, v16, v18\nv_add_f32 v17, v17, v19\ns_nop 0")
            a("v_add_f32_dpp v16, v16, v16 row_ror:8 row_mask:0xf bank_mask:0xf\nv_add_f32_dpp v17, v17, v17 row_ror:8 row_mask:0xf bank_mask:0xf")
            a("ds_write_b64 v13, v[16:17] offset:%d", RP)
            a("s_mov_b64 exec, 1\nds_add_rtn_u32 v6, v3, v6 offset:%d\ns_mov_b64 exec, -1", F_RED)
            for k in range(4): a("ds_read_b64 v[%d:%d], v10 offset:%d", 20 + 2 * k, 21 + 2 * k, RP + 256 * k)
            a("s_waitcnt lgkmcnt(4)")
            a("v_readfirstlane_b32 %s, v6", sT3)
            a("s_cmp_lg_u32 %s, 3\ns_cbranch_scc1 L_a_end", sT3)
            a("s_waitcnt lgkmcnt(0)")
            a("v_add_f32 v16, v20, v22\nv_add_f32 v17, v21, v23\nv_add_f32 v18, v24, v26\nv_add_f32 v19, v25, v27")
            a("v_add_f32 v16, v16, v18\nv_add_f32 v17, v17, v19")
    else:
        a("v_and_b32 v11, 1, v0\nv_lshlrev_b32 v12, 3, v11\nv_and_b32 v10, 1, v8\nv_lshl_add_u32 v12, v10, 2, v12")
        a("s_lshr_b32 %s, %s, 1\ns_mul_i32 %s, %s, 1152\ns_and_b32 %s, %s, 1\ns_lshl4_add_u32 %s, %s, %s\ns_lshl_b32 %s, %s, 5\ns_add_u32 %s, %s, %s\nv_add_u32 v12, %s, v12",
          sT1, sA, sT1, sT1, sT2, sA, sT1, sT2, sT1, sT2, sRU, sT1, sT1, sT2, sT1)
        a("global_load_dword v40, v12, s[4:5]")
        a("s_lshl_b32 %s, %s, 12\ns_lshl_b32 %s, %s, 5\ns_add_u32 %s, %s, %s\ns_add_u32 %s, %s, %d", sT0, sRU, sT2, sA, sT0, sT0, sT2, sT0, sT0, W_F)
        a("v_lshrrev_b32 v10, 1, v0\nv_lshlrev_b32 v11, 4, v11\nv_lshl_add_u32 v11, v10, 7, v11")
        a("s_mov_b32 %s, 0xffff0000\ns_mov_b32 %s, 0", sT1, sTMO)
        a("s_waitcnt vmcnt(0)")
        a("v_and_b32 v41, %s, v40\nv_lshlrev_b32 v40, 16, v40", sT1)
        a("L_a_fpoll:")
        two_way(lambda: a("buffer_load_dwordx4 v[16:19], v11, %s, %s offen %s", srd(RW), sT0, o.fld), lambda: a("buffer_load_dwordx4 v[16:19], v11, %s, %s offen sc1", srd(RW), sT0))
        a("s_add_u32 %s, %s, 1\ns_cmp_gt_u32 %s, 0x8000\ns_cbranch_scc1 L_a_fok", sTMO, sTMO, sTMO)
        a("s_waitcnt vmcnt(0)")
        tag_bad("v4", 16, True)
        a("v_and_b32 v4, 0xff, v4\nv_cmp_ne_u32 vcc, 0, v4\ns_and_b64 exec, exec, vcc\ns_cbranch_vccnz L_a_fpoll")
        a("L_a_fok:")
        a("s_mov_b64 exec, -1")
        stamp(7)
        a("v_permlane16_swap_b32 v16, v18\nv_permlane16_swap_b32 v17, v19")
        a("v_add_f32 v16, v16, v18\nv_add_f32 v17, v17, v19")
        for dp in ("quad_perm:[2,3,0,1]", "row_ror:4", "row_ror:8"):
            a("s_nop 0\nv_add_f32_dpp v16, v16, v16 %s row_mask:0xf bank_mask:0xf\nv_add_f32_dpp v17, v17, v17 %s row_mask:0xf bank_mask:0xf", dp, dp)
    a("v_cvt_pk_bf16_f32 v16, v16, v17\nv_mov_b32 v18, v16\ns_nop 1")
    a("v_permlane32_swap_b32 v16, v18")
    a("v_lshlrev_b32 v6, 16, v16\nv_and_b32 v7, %s, v16", sT1)
    a("v_add_f32 v4, v40, v6\nv_add_f32 v5, v41, v7\nv_cvt_pk_bf16_f32 v4, v4, v5")
    a("v_lshlrev_b32 v6, 16, v18\nv_and_b32 v7, %s, v18", sT1)
    a("v_and_b32 v5, %s, v4\nv_lshlrev_b32 v4, 16, v4", sT1)
    a("s_mov_b64 exec, 0x%x", 0x30003 if o.redc else 0xff00ff)
    a("v_add_f32 v4, v4, v6\nv_add_f32 v5, v5, v7\nv_cvt_pk_bf16_f32 v20, v4, v5")
    a("buffer_store_dword v20, v12, %s, 0 offen %s", srd(R1), o.outpol)
    if o.redc: a("s_or_b32 %s, %s, %s", sRU, sRU, sA)
    a("s_cmp_lg_u32 %s, 0\ns_cbranch_scc1 %s", sRU, "L_a_end2" if o.holdf else "L_a_end")
    a("s_mov_b64 exec, 1\nv_mov_b32 v4, %s", sTAG)
    a("buffer_store_dword v4, v3, %s, 0 offen %s", srd(RW), o.eppol)
    if o.holdf:
        a("s_branch L_a_end2")
    a("L_a_end:")
    stamps_out()
    a("L_end:")
    a("s_endpgm")
    if o.holdf:
        a("L_a_end2:")
        if o.holdwg >= 0: a("s_cmp_lg_u32 s2, %d\ns_cbranch_scc1 L_end", o.holdwg)
        a("s_memrealtime s[70:71]\ns_waitcnt lgkmcnt(0)\ns_sub_u32 %s, s70, s86\ns_mul_i32 %s, %s, %d\ns_add_u32 %s, %s, %d", sT1, sT1, sT1, o.holdmul, sT1, sT1, o.holdf)
        a("L_holdf:\ns_memrealtime s[70:71]\ns_waitcnt lgkmcnt(0)\ns_sub_u32 %s, s70, s86\ns_cmp_lt_u32 %s, %s\ns_cbranch_scc1 L_holdf", sT0, sT0, sT1)
        a("s_endpgm")
    flush_ool()
    a("L_code_end:")
    if o.cpf: a(".fill 256, 4, 0xbf800000")

    hdr = open(os.path.join(os.path.dirname(os.path.abspath(__file__)), "header.txt")).read()
    hdr += "; @launch grid=(256,1,1) block=(576,1,1) lds=%d\n" % LDS_TOTAL
    hdr += DOC
    hdr += '.amdgcn_target "amdgcn-amd-amdhsa--gfx950"\n.text\n.globl %s\n.p2align 8\n.type %s,@function\n' % (NAME, NAME)
    ftr = """.section .rodata,"a"
.p2align 6
.amdhsa_kernel %s
  .amdhsa_next_free_vgpr 152
  .amdhsa_next_free_sgpr 102
  .amdhsa_accum_offset 152
  .amdhsa_group_segment_fixed_size 0
  .amdhsa_kernarg_size 96
  .amdhsa_user_sgpr_count 2
  .amdhsa_user_sgpr_kernarg_segment_ptr 1
  .amdhsa_system_sgpr_workgroup_id_x 1
  .amdhsa_float_denorm_mode_32 3
.end_amdhsa_kernel
""" % NAME
    body = a.text()
    if o.nostore:
        body = "\n".join(l for l in body.split("\n") if not ("buffer_store_dwordx4" in l and (o.nostore & 2 or "sc1" in l)))
    return hdr + body + ftr

def parser():
    p = argparse.ArgumentParser()
    p.add_argument("-o", default="-")
    p.add_argument("--depth", type=int, default=24)
    p.add_argument("--diag", type=int, default=0)
    p.add_argument("--qpoll", type=int, default=54)
    p.add_argument("--opoll", type=int, default=154)
    p.add_argument("--hpoll", type=int, default=110)
    p.add_argument("--cpf", type=int, default=1)
    p.add_argument("--sdiag", type=int, default=0)
    p.add_argument("--mix", type=int, default=2)
    p.add_argument("--local", type=int, default=1)
    p.add_argument("--redc", type=int, default=1)
    p.add_argument("--bar", type=int, default=2)
    p.add_argument("--rotsel", type=int, default=1)
    p.add_argument("--opf", type=int, default=0)
    p.add_argument("--depthv7", type=int, default=0)
    p.add_argument("--depthvw", type=int, default=0)
    p.add_argument("--depthvd", type=int, default=0)
    p.add_argument("--depth7", type=int, default=20)
    p.add_argument("--dual", type=int, default=1)
    p.add_argument("--fback", type=int, default=12)
    p.add_argument("--fld", default="nt")
    p.add_argument("--floc", type=int, default=1)
    p.add_argument("--depth2w", type=int, default=24)
    p.add_argument("--xg", type=int, default=0)
    p.add_argument("--tpoll", type=int, default=0)
    p.add_argument("--tpol", default="nt")
    p.add_argument("--aprio", type=int, default=0)
    p.add_argument("--redmap", type=int, default=0)
    p.add_argument("--qld", default="nt")
    p.add_argument("--hld", default="nt")
    p.add_argument("--old", default="nt")
    p.add_argument("--cpe", type=int, default=1)
    p.add_argument("--xpol", default="")
    p.add_argument("--cpol", default="")
    p.add_argument("--vesc", type=int, default=3)
    p.add_argument("--vstride", type=int, default=3)
    p.add_argument("--vfull", type=int, default=1)
    p.add_argument("--fast0", type=int, default=1)
    p.add_argument("--red4", type=int, default=1)
    p.add_argument("--race", type=int, default=0)
    p.add_argument("--s2early", type=int, default=0)
    p.add_argument("--redbase", type=int, default=216)
    p.add_argument("--fpoll", type=int, default=150)
    p.add_argument("--ltsplit", type=int, default=0)
    p.add_argument("--depthl2", type=int, default=44)
    p.add_argument("--eppol", default="")
    p.add_argument("--wb", type=int, default=0)
    p.add_argument("--wbcb", type=int, default=8)
    p.add_argument("--outpre", type=int, default=0)
    p.add_argument("--tlb", type=int, default=0)
    p.add_argument("--burst", type=int, default=0)
    p.add_argument("--hold", type=int, default=0)
    p.add_argument("--holdf", type=int, default=0)
    p.add_argument("--holdmul", type=int, default=0)
    p.add_argument("--holdwg", type=int, default=0)
    p.add_argument("--wqx", type=int, default=4)
    p.add_argument("--spec", type=int, default=0)
    p.add_argument("--outpol", default="")
    p.add_argument("--nover", type=int, default=0)
    p.add_argument("--depthv", type=int, default=0)
    p.add_argument("--depthl", type=int, default=0)
    p.add_argument("--ltwait", type=int, default=0)
    p.add_argument("--hpolll", type=int, default=114)
    p.add_argument("--touch", type=int, default=6)
    p.add_argument("--vpoll", type=int, default=30)
    p.add_argument("--depth2", type=int, default=24)
    p.add_argument("--sleep", type=int, default=0)
    p.add_argument("--nopoll", type=int, default=0)
    p.add_argument("--nostore", type=int, default=0)
    p.add_argument("--rot", type=int, default=1)
    p.add_argument("--ldonly", type=int, default=0)
    p.add_argument("--pol", default="nt")
    return p

if __name__ == "__main__":
    o = parser().parse_args()
    t = gen(o)
    if o.o == "-": sys.stdout.write(t)
    else: open(o.o, "w").write(t)
```
